```python
import torch

def _softmax(x, axis=-1):
    return torch.softmax(x, dim=axis)
def _gelu(x):
    return torch.nn.functional.gelu(x, approximate="tanh")
def _silu(x):
    return torch.nn.functional.silu(x)
def _sigmoid(x):
    return torch.sigmoid(x)
def _layernorm(x, axis=-1, eps=1e-5):
    m = x.mean(dim=axis, keepdim=True)
    v = x.var(dim=axis, keepdim=True, unbiased=False)
    return (x - m) / torch.sqrt(v + eps)
def _scatter_add(tgt, idx, src, axis=0):
    return tgt.clone().index_add_(axis, idx, src)
def _segment_sum(src, seg, n):
    out = torch.zeros((n,) + src.shape[1:], dtype=src.dtype)
    return out.index_add_(0, seg, src)
def _pad(x, pw):
    flat = tuple(v for pair in reversed(pw) for v in pair)
    return torch.nn.functional.pad(x, flat)

kernel_name = 'parallel_sum__linear_attn_block__mixer_s_mlp__prompt'

def setup_inputs():

    _w = (lambda a: (lambda t: t.to(torch.bfloat16) if t.is_floating_point() else t)(torch.as_tensor(a)))
    def _A_setup():
        B, S, D = 1, 2048, 640
        return {
            "x": _w((lambda *s: torch.randn(*s, dtype=torch.bfloat16) * 0.05)(B, S, D)),
            "wqkv": _w((lambda *s: torch.randn(*s, dtype=torch.bfloat16) * 0.2)(D, 3 * D)),
            "wo": _w((lambda *s: torch.randn(*s, dtype=torch.bfloat16) * 0.1)(D, D)),
        }
    _A_in = _A_setup()

    def _B_setup():
        B, S, D, F = 1, 2048, 640, 1536
        return {
            "x":  _w((lambda *s: torch.randn(*s, dtype=torch.bfloat16) * 0.05)(B, S, D)),
            "w1": _w((lambda *s: torch.randn(*s, dtype=torch.bfloat16) * 0.8)(D, D) * (D ** -0.5)),
            "w2": _w((lambda *s: torch.randn(*s, dtype=torch.bfloat16) * 0.8)(D, D) * (D ** -0.5)),
            "w3": _w((lambda *s: torch.randn(*s, dtype=torch.bfloat16) * 0.8)(D, F) * (D ** -0.5)),
            "w4": _w((lambda *s: torch.randn(*s, dtype=torch.bfloat16) * 0.8)(F, D) * (F ** -0.5)),
        }
    _B_in = _B_setup()

    return {
        "A_x": _A_in["x"],
        "A_wqkv": _A_in["wqkv"],
        "A_wo": _A_in["wo"],
        "B_x": _B_in["x"],
        "B_w1": _B_in["w1"],
        "B_w2": _B_in["w2"],
        "B_w3": _B_in["w3"],
        "B_w4": _B_in["w4"],
    }

def reference(A_x, A_wqkv, A_wo, B_x, B_w1, B_w2, B_w3, B_w4):
    def _A_ref(x, wqkv, wo):
        B, S, D = x.shape
        H = 32; Dh = D // H
        qkv = (lambda x, *d: x.permute(*d))((x @ wqkv).reshape(B, S, 3, H, Dh), 2, 0, 3, 1, 4)
        q, k, v = qkv[0], qkv[1], qkv[2]
        phi = lambda t: torch.where(t > 0, t + 1, torch.exp(t)) + 1e-6
        pq, pk = phi(q), phi(k)
        kv = torch.einsum("bhsd,bhse->bhde", pk, v)
        z = torch.einsum("bhsd->bhd", pk)
        num = torch.einsum("bhqd,bhde->bhqe", pq, kv)
        den = torch.einsum("bhqd,bhd->bhq", pq, z)[..., None] + 1e-6
        o = num / den
        return (lambda x, *d: x.permute(*d))(o, 0, 2, 1, 3).reshape(B, S, D) @ wo

    def _B_ref(x, w1, w2, w3, w4):
        B, S, D = x.shape
        h = _gelu(_layernorm(x, axis=-1) @ w1)
        c = D // 4
        g0 = _pad(h[:, :, 0*c:1*c], ((0, 0), (1, 0), (0, 0)))[:, :S, :]
        g1 = _pad(h[:, :, 1*c:2*c], ((0, 0), (0, 1), (0, 0)))[:, 1:, :]
        g2 = _pad(h[:, :, 2*c:3*c], ((0, 0), (2, 0), (0, 0)))[:, :S, :]
        g3 = _pad(h[:, :, 3*c:   ], ((0, 0), (0, 2), (0, 0)))[:, 2:, :]
        hs = torch.concatenate([g0, g1, g2, g3], axis=-1) @ w2
        x1 = x + hs
        h2 = _gelu(_layernorm(x1, axis=-1) @ w3) @ w4
        return x1 + h2

    x = A_x
    xn = _layernorm(x, axis=-1)
    return x + _A_ref(xn, A_wqkv, A_wo) + _B_ref(xn, B_w1, B_w2, B_w3, B_w4)
```

```python
import re

class R:
    __slots__ = ('k', 'i', 'n')
    def __init__(s, k, i, n=1): s.k, s.i, s.n = k, i, n
    def __str__(s): return f'{s.k}{s.i}' if s.n == 1 else f'{s.k}[{s.i}:{s.i+s.n-1}]'
    __repr__ = __str__
    def __getitem__(s, x):
        if isinstance(x, slice):
            a = x.start or 0; b = s.n if x.stop is None else x.stop
            assert 0 <= a < b <= s.n, (s, x)
            return R(s.k, s.i + a, b - a)
        assert 0 <= x < s.n, (s, x)
        return R(s.k, s.i + x, 1)
    def sub(s, a, n): return s[a:a+n]
    def regs(s): return [(s.k, s.i + j) for j in range(s.n)]

_RE = re.compile(r'^(-|abs\()?\|?([vas])(?:(\d+)|\[(\d+):(\d+)\])\)?\|?$')
def parse_regs(tok):
    tok = tok.strip()
    if tok == 'vcc': return [('s', 'vcc')]
    if tok in ('vcc_lo', 'vcc_hi'): return [('s', 'vcc')]
    if tok in ('exec', 'exec_lo', 'exec_hi'): return [('s', 'exec')]
    if tok == 'm0': return [('s', 'm0')]
    m = _RE.match(tok)
    if not m: return []
    k = m.group(2)
    if m.group(3) is not None: return [(k, int(m.group(3)))]
    return [(k, j) for j in range(int(m.group(4)), int(m.group(5)) + 1)]

TRANS = ('v_exp_f32', 'v_log_f32', 'v_rcp_f32', 'v_rsq_f32', 'v_sqrt_f32', 'v_sin_f32', 'v_cos_f32', 'v_rcp_iflag_f32')

class I:
    __slots__ = ('op', 'ops', 'mods', 'w', 'r', 'cls', 'tok', 'text', 'passes', 'srcc', 'srcab', 'wide', 'data', 'dpp', 'note')
    def __init__(s, text):
        s.text = text; s.tok = None; s.note = None
        s.passes = 0; s.srcc = []; s.srcab = []; s.wide = False; s.data = []; s.dpp = False
        t = text.strip()
        if t.endswith(':') or t.startswith('.') or t.startswith(';'):
            s.op = t; s.cls = 'label' if t.endswith(':') else 'dir'; s.w = []; s.r = []; s.ops = []; return
        p = t.split(None, 1); s.op = op = p[0]
        rest = p[1] if len(p) > 1 else ''
        ops = []; cur = ''; d = 0
        for ch in rest:
            if ch in '[(': d += 1
            if ch in '])': d -= 1
            if ch == ',' and d == 0: ops.append(cur.strip()); cur = ''
            else: cur += ch
        if cur.strip(): ops.append(cur.strip())
        mods = ''
        if ops:
            last = ops[-1].split(None, 1)
            ops[-1] = last[0]; mods = last[1] if len(last) > 1 else ''
        s.ops = ops; s.mods = mods
        P = [parse_regs(o) for o in ops]
        flat = lambda L: [x for l in L for x in l]
        base = re.sub(r'_(e32|e64|dpp|sdwa)$', '', op)
        if op.startswith('v_mfma'):
            s.cls = 'mfma'; s.w = P[0]; s.srcab = P[1] + P[2]; s.srcc = P[3]; s.r = s.srcab + s.srcc
            s.passes = 8 if '32x32x16' in op else 4 if '16x16x32' in op else None
            assert s.passes
        elif op.startswith('v_'):
            s.cls = 'valu'
            s.dpp = op.endswith('_dpp') or 'row_' in mods or 'quad_perm' in mods
            if base.startswith('v_permlane') and 'swap' in base:
                s.w = P[0] + P[1]; s.r = P[0] + P[1]; s.cls = 'permlane'
            elif base in ('v_readfirstlane_b32', 'v_readlane_b32'):
                s.w = P[0]; s.r = flat(P[1:]); s.cls = 'readlane'
            elif base.startswith('v_cmpx'):
                s.w = P[0] + [('s', 'exec')]; s.r = flat(P[1:])
            elif base in ('v_add_co_u32', 'v_sub_co_u32', 'v_addc_co_u32', 'v_subb_co_u32', 'v_mad_u64_u32'):
                s.w = P[0] + P[1]; s.r = flat(P[2:])
            else:
                s.w = P[0]; s.r = flat(P[1:])
                if base in ('v_fmac_f32', 'v_dot2c_f32_bf16', 'v_writelane_b32', 'v_pk_fmac_f16') or s.dpp or 'sdwa' in op: s.r = s.r + P[0]
                if base in TRANS: s.cls = 'trans'
                if base.startswith('v_dot2'): s.cls = 'dot'
        elif op.startswith('ds_'):
            s.cls = 'ds'
            if op.startswith('ds_read') or op.startswith('ds_bpermute') or op.startswith('ds_swizzle') or op.startswith('ds_permute'):
                s.w = P[0]; s.r = flat(P[1:])
            else:
                s.w = []; s.r = flat(P)
        elif op.startswith('buffer_') or op.startswith('global_'):
            s.cls = 'vmem'
            lds = re.search(r'\blds\b', mods) is not None or '_lds_' in op
            if 'load' in op and not lds: s.w = P[0]; s.r = flat(P[1:])
            elif 'load' in op: s.w = []; s.r = flat(P) + [('s', 'm0')]; s.note = 'dma'
            elif 'store' in op:
                s.w = []; s.r = flat(P)
                s.data = P[0] if op.startswith('buffer_') else P[1]
                s.wide = op.endswith('x3') or op.endswith('x4')
            elif 'atomic' in op:
                s.r = flat(P); s.w = P[0] if 'sc0' in mods else []
            else: s.w = []; s.r = []
        elif op.startswith('s_load') or op.startswith('s_memtime') or op.startswith('s_memrealtime'):
            s.cls = 'smem'; s.w = P[0]; s.r = flat(P[1:])
        elif op in ('s_waitcnt', 's_nop', 's_barrier', 's_endpgm', 's_sleep', 's_setprio') or op.startswith('s_cbranch') or op == 's_branch':
            s.cls = 'branch' if 'branch' in op else op[2:]; s.w = []; s.r = []
            if 'vcc' in op: s.r = [('s', 'vcc')]
        elif op.startswith('s_cmp') or op.startswith('s_bitcmp'):
            s.cls = 'salu'; s.w = []; s.r = flat(P)
        elif op.startswith('s_setpc'):
            s.cls = 'branch'; s.w = []; s.r = flat(P)
        elif op.startswith('s_'):
            s.cls = 'salu'; s.w = P[0]; s.r = flat(P[1:])
            if 'saveexec' in op: s.w = s.w + [('s', 'exec')]
        elif op == 'WAITVM':
            s.cls = 'pseudo'; s.w = []; s.r = []
        else:
            raise ValueError('unknown op ' + text)

VALUISH = ('valu', 'trans', 'dot', 'permlane', 'readlane')

class Asm:
    def __init__(s):
        s.ins = []; s.ntok = 0
        s.vp = {'v': 0, 'a': 0, 's': 0}
    def __call__(s, text, *a):
        last = None
        for ln in text.split('\n'):
            ln = ln.strip()
            if not ln: continue
            last = I(ln); s.ins.append(last)
        return last
    def tokof(s, ins):
        if ins.tok is None: s.ntok += 1; ins.tok = s.ntok
        return ins.tok
    def waitvm(s, ins):
        p = I('WAITVM'); p.tok = s.tokof(ins); s.ins.append(p); return p
    def ctl(s, what, name=None):
        p = I('WAITVM'); p.tok = (what, name); s.ins.append(p)
    def wait_prejoin(s):
        p = I('WAITVM'); p.tok = 'prejoin'; s.ins.append(p)

    def finalize(s, verbose=False):
        out = []
        vm = []
        lg = []
        saved = {}; joinw = []
        hist = []
        def push(i):
            out.append(i)
            if i.cls in ('label', 'dir'): return
            ws = int(i.ops[0]) + 1 if i.cls == 'nop' else 1
            for h in hist: h[1] += ws
            hist.append([i, 0])
            while hist and hist[0][1] > 24: hist.pop(0)
        def do_wait(vn=None, ln=None):
            parts = []
            if vn is not None:
                vn = min(vn, 63); parts.append(f'vmcnt({vn})')
                del vm[:max(0, len(vm) - vn)]
            if ln is not None:
                if any(x.cls == 'smem' for x in lg): ln = 0
                ln = min(ln, 15); parts.append(f'lgkmcnt({ln})')
                del lg[:max(0, len(lg) - ln)]
            push(I('s_waitcnt ' + ' '.join(parts)))
        for i in s.ins:
            if i.cls == 'pseudo':
                if isinstance(i.tok, tuple):
                    what, name = i.tok
                    if what == 'save': saved[name] = (list(vm), list(lg), [list(h) for h in hist])
                    elif what == 'restore':
                        a, b, c = saved[name]; vm[:] = a; lg[:] = b; hist[:] = [list(h) for h in c]
                    elif what == 'endvar':
                        assert not lg, 'lgkm pending at variant end'
                        assert not any(h.cls == 'mfma' and age < 16 for h, age in hist)
                        for x in vm: joinw.extend(x.w)
                    elif what == 'join':
                        X = I('WAITVM'); X.tok = 'prejoin'; X.w = list(joinw); vm[:] = [X]; lg[:] = []; hist[:] = []
                        push(I('s_nop 4'))
                    continue
                idx = [k for k, x in enumerate(vm) if x.tok == i.tok]
                if idx: do_wait(vn=len(vm) - 1 - idx[0])
                continue
            if i.cls in ('label', 'dir'):
                push(i); continue
            if i.cls == 'waitcnt':
                m = re.search(r'vmcnt\((\d+)\)', i.text)
                if m: del vm[:max(0, len(vm) - int(m.group(1)))]
                m = re.search(r'lgkmcnt\((\d+)\)', i.text)
                if m:
                    n = int(m.group(1)); assert n == 0 or not any(x.cls == 'smem' for x in lg)
                    del lg[:max(0, len(lg) - n)]
                push(i); continue
            touched = set(i.r) | set(i.w)
            vn = ln = None
            for k, x in enumerate(vm):
                if touched & set(x.w): vn = len(vm) - 1 - k
            for k, x in enumerate(lg):
                if touched & set(x.w): ln = len(lg) - 1 - k
            if vn is not None or ln is not None: do_wait(vn, ln)
            need = 0
            rs, wsx = set(i.r), set(i.w)
            for h, age in hist:
                d = 0; hw = set(h.w)
                if h.cls in VALUISH:
                    hv = {x for x in hw if x[0] != 's'}; hsg = {x for x in hw if x[0] == 's'}
                    if i.cls == 'mfma' and hv & rs: d = max(d, 2)
                    if i.cls == 'permlane' and hv & rs: d = max(d, 2)
                    if i.dpp and hv & rs: d = max(d, 2)
                    if i.cls == 'readlane' and hv & rs: d = max(d, 1)
                    if h.cls == 'trans' and i.cls in VALUISH + ('mfma',) and i.cls != 'trans' and hv & rs: d = max(d, 1)
                    if h.cls == 'trans' and i.cls in ('vmem', 'ds') and hv & rs: d = max(d, 1)
                    if h.cls == 'dot' and hv & (rs | wsx) and not (i.cls == 'dot' and i.op == h.op and not (hv & set(sum([parse_regs(o) for o in i.ops[1:3]], [])))): d = max(d, 3)
                    if ('sdwa' in h.op or 'op_sel' in h.mods and not h.op.startswith('v_pk')) and i.cls in VALUISH and hv & (rs | wsx): d = max(d, 1)
                    if hsg:
                        if i.cls == 'vmem' and hsg & rs: d = max(d, 5)
                        if i.cls in VALUISH and hsg & rs: d = max(d, 4 if i.cls == 'readlane' else 2)
                        if i.cls in VALUISH and i.op.startswith('v_cndmask') and ('s', 'vcc') in hsg: d = max(d, 2)
                        if ('s', 'exec') in hsg: d = max(d, 5 if i.dpp else 4 if i.cls in ('mfma', 'readlane', 'permlane') else 0)
                        if i.cls in ('salu', 'branch') and hsg & rs: d = max(d, 1)
                elif h.cls == 'mfma':
                    p = h.passes
                    if i.cls == 'mfma':
                        if hw & set(i.srcab): d = max(d, p + 4)
                        if hw & set(i.srcc):
                            if not (set(i.srcc) == hw and i.passes == p): d = max(d, p + 2)
                        elif hw & wsx: d = max(d, p + 4)
                    elif i.cls in VALUISH or i.cls in ('vmem', 'ds'):
                        if hw & (rs | wsx): d = max(d, p + 4)
                        if set(h.srcc) & wsx: d = max(d, p - 1)
                elif h.cls == 'salu':
                    if ('s', 'm0') in hw and i.note == 'dma': d = max(d, 1)
                elif h.cls == 'vmem' and h.wide:
                    if set(h.data) & wsx: d = max(d, 2)
                elif h.cls == 'ds' and not h.w and h.op.endswith(('b128', 'b96')):
                    if set(h.r) & wsx and i.cls in VALUISH: d = max(d, 1)
                need = max(need, d - age)
            while need > 0:
                n = min(need, 16); push(I(f's_nop {n-1}')); need -= n
            push(i)
            if i.cls == 'vmem': vm.append(i)
            elif i.cls in ('ds', 'smem'): lg.append(i)
        return out

    def text(s):
        return '\n'.join(i.text for i in s.finalize()) + '\n'

class Pool:
    def __init__(s, kind, lo, hi): s.k, s.free = kind, [True] * hi; s.lo = lo; s.hi = hi; s.top = lo; s.free[:lo] = [False] * lo
    def get(s, n=1, align=None):
        al = align or (4 if n >= 4 else 2 if n >= 2 else 1)
        i = s.lo
        while i + n <= s.hi:
            if i % al == 0 and all(s.free[i:i+n]):
                s.free[i:i+n] = [False] * n; s.top = max(s.top, i + n); return R(s.k, i, n)
            i += 1
        raise RuntimeError(f'out of {s.k} regs (need {n})')
    def put(s, *rs):
        for r in rs:
            assert r.k == s.k and not any(s.free[r.i:r.i+r.n]), r
            s.free[r.i:r.i+r.n] = [True] * r.n
    def snapshot(s): return list(s.free)
    def restore(s, f): s.free = list(f)
```

```python
import sys, struct, math
from asmgen import *

NAME = 'parallel_sum__linear_attn_block__mixer_s_mlp__prompt'
KB = 1024
F1, FQ, FK, F2, FP, FW, F3 = 0x1000, 0x3000, 0x5000, 0x6000, 0x8000, 0x9000, 0xB000
RS, CS, S2, KV, STAMP = 0x10000, 0x18000, 0x40000, 0x60000, 0x180000
HS, PQ, PP, X1, H3, WOP = 0x200000, 0x480000, 0x700000, 0x980000, 0xC00000, 0x1200000
WS_USED = 0x1400000
OOB = 0x40000000
MISC = 148 * KB
KVB = 152 * KB
WOB = 154 * KB
SPIN = 200000

def f2u(x): return struct.unpack('<I', struct.pack('<f', x))[0]
def hexf(x): return '0x%08x' % f2u(x)
LOG2E = 1.4426950408889634
GC0 = -2.0 * LOG2E * math.sqrt(2.0 / math.pi)
GC1 = GC0 * 0.044715

sX, sWQKV, sWO, sW1, sW2, sW3, sW4, sOUT, sWS, sCSRC = [R('s', 4 + 4 * i, 4) for i in range(10)]

class Panel:
    def __init__(s, name, addr, size): s.name, s.addr, s.size = name, addr, size; s.last = None; s.waited = None; s.lastread = -1; s.dead = False; s.issued = False

class LT:
    def __init__(s): s.epoch = 0; s.live = []
    def issue(s, p):
        for q in list(s.live):
            if q is p: continue
            if q.addr < p.addr + p.size and p.addr < q.addr + q.size:
                assert q.dead and q.lastread < s.epoch, f'panel {p.name} overwrites live {q.name}'
                s.live.remove(q)
        if p not in s.live: s.live.append(p)
    def can_issue(s, p):
        return all(q is p or not (q.addr < p.addr + p.size and p.addr < q.addr + q.size) or (q.dead and q.lastread < s.epoch) for q in s.live)
    def read(s, p):
        assert p.waited is not None and p.waited < s.epoch and not p.dead and p in s.live, f'bad read of {p.name}'
        p.lastread = s.epoch

class G:
    def __init__(s, stop=99, stamps=False):
        s.A = Asm(); s.stop = stop; s.stamps = stamps
        s.V = Pool('v', 1, 256); s.AG = Pool('a', 0, 256); s.S = Pool('s', 44, 100)
        s.lt = LT(); s.cold = []; s.nlab = 0; s.nstamp = 0
        s.q2 = []

    def lab(s, p='L'): s.nlab += 1; return f'{p}{s.nlab}'
    def stamp(s, n):
        if s.stamps:
            s.A(f's_memrealtime {s.sStamp}'); s.A(f'v_writelane_b32 {s.vStamp}, {s.sStamp[0]}, {n}')
    def barrier(s, waits=()):
        A = s.A
        A('s_waitcnt lgkmcnt(0)')
        for p in waits:
            assert p.issued, p.name
            if p.last == 'prejoin': A.wait_prejoin()
            else: A.waitvm(p.last)
            p.waited = s.lt.epoch
        A('s_barrier'); s.lt.epoch += 1
    def dsaddr(s, base, wins=(0, 1, 2)):
        regs = {0: base}
        for wv in wins:
            if wv:
                r = s.V.get(); s.A(f'v_add_u32 {r}, {wv * 65536}, {base}'); regs[wv] = r
        def at(c): return f'{regs[c >> 16]} offset:{c & 0xffff}'
        at.regs = list(regs.values())
        return at
    def dma_ops(s, p, groups):
        ops = []; n = sum(len(g[3]) for g in groups); cnt = [0]
        def first(): s.lt.issue(p)
        for gi, (m0, srd, soff, lst) in enumerate(groups):
            def setm(m0=m0, gi=gi):
                if gi == 0: first()
                s.A(f's_add_u32 m0, {m0[0]}, {m0[1]}' if m0[0] is not None else f's_mov_b32 m0, {m0[1]}')
            ops.append(setm)
            for (vo, imm) in lst:
                def ld(srd=srd, soff=soff, vo=vo, imm=imm, sc=getattr(p, 'sc', '')):
                    i = s.A(f'buffer_load_dwordx4 {vo}, {srd}, {soff} offen offset:{imm} {sc} lds')
                    cnt[0] += 1
                    if cnt[0] == n: p.last = i; p.issued = True
                ops.append(ld)
        return ops
    def flush2(s, n=None):
        k = 0
        while s.q2 and (n is None or k < n): s.q2.pop(0)(); k += 1
    def weave(s, mf, prim, n1, n2):
        prim = list(prim)
        for m in mf:
            m()
            for _ in range(n1):
                if prim: prim.pop(0)()
            s.flush2(n2 if prim else n2 + n1)
        for f in prim: f()
    def poll(s, vaddr, soff='0'):
        A = s.A; L = s.lab('P'); D = s.lab('PD'); t = s.V.get()
        A(f's_mov_b32 {s.sT0}, {SPIN}')
        A(f'{L}:')
        A(f'buffer_load_dword {t}, {vaddr}, {sWS}, {soff} offen sc1')
        A(f's_sub_u32 {s.sT0}, {s.sT0}, 1')
        A(f's_cbranch_scc1 {D}')
        A(f'v_cmp_ne_u32 vcc, {s.sN}, {t}')
        A(f's_cbranch_vccnz {L}')
        A(f'{D}:')
        A('s_waitcnt vmcnt(0)')
        s.V.put(t)
    def checked(s, loads, tags):
        A = s.A; Lr = s.lab('R'); Lb = s.lab('B')
        def chk(target, br):
            t = s.V.get()
            if len(tags) == 1:
                A(f'v_cmp_ne_u32 vcc, {s.sN}, {tags[0]}')
            else:
                A(f'v_xor_b32 {t}, {s.sN}, {tags[0]}')
                for x in tags[1:]:
                    A(f'v_bitop3_b32 {t}, {t}, {s.vN}, {x} bitop3:0xf6')
                A(f'v_cmp_ne_u32 vcc, 0, {t}')
            A(f'{br} {target}')
            s.V.put(t)
        chk(Lr, 's_cbranch_vccnz')
        A(f'{Lb}:')
        main = A.ins; A.ins = []
        A(f'{Lr}:')
        A('s_waitcnt vmcnt(0) lgkmcnt(0)')
        A(f's_mov_b32 {s.sT0}, {SPIN}')
        L2 = s.lab('R')
        A(f'{L2}:')
        for ld in loads: A(ld)
        A('s_waitcnt vmcnt(0)')
        A(f's_sub_u32 {s.sT0}, {s.sT0}, 1')
        A(f's_cbranch_scc1 {Lb}')
        chk(L2, 's_cbranch_vccnz')
        A('s_nop 4')
        A(f's_branch {Lb}')
        s.cold += A.ins; A.ins = main
    def setflag(s, last_store, soff, voff=None):
        A = s.A
        A.waitvm(last_store)
        A(f'buffer_store_dword {s.vN}, {voff or s.vL0}, {sWS}, {soff} offen sc1')
    def rbf(s, d, x):
        s.A(f'v_cvt_pk_bf16_f32 {d}, {x}, {x}'); s.A(f'v_and_b32 {d}, 0xffff0000, {d}')
    def div20(s, i, q, c20):
        A = s.A; t = s.V.get()
        A(f'v_add_u32 {t}, {64*i}, {s.vLane}')
        A(f'v_mul_u32_u24 {q}, 3277, {t}'); A(f'v_lshrrev_b32 {q}, 16, {q}')
        A(f'v_mul_u32_u24 {c20}, 20, {q}'); A(f'v_sub_u32 {c20}, {t}, {c20}')
        A(f'v_lshrrev_b32 {t}, 2, {q}'); A(f'v_and_b32 {t}, 2, {t}'); A(f'v_xor_b32 {c20}, {c20}, {t}')
        A(f'v_cmp_le_u32 vcc, 10, {c20}')
        s.V.put(t)
    def mk_w80_voff(s):
        A = s.A; q = s.V.get(); c = s.V.get(); t = s.V.get()
        A(f's_lshr_b32 {s.sT0}, {s.sW}, 1'); A(f's_lshl_b32 {s.sT0}, {s.sT0}, 6')
        A(f's_and_b32 {s.sT1}, {s.sW}, 1'); A(f's_lshl_b32 {s.sT1}, {s.sT1}, 4'); A(f's_add_u32 {s.sT0}, {s.sT0}, {s.sT1}')
        for i in range(5):
            s.div20(i, q, c)
            A(f'v_mov_b32 {t}, {40960 - 160}')
            A(f'v_add_u32 {q}, {s.sT0}, {q}')
            A(f'v_cndmask_b32 {t}, 0, {t}, vcc')
            A(f'v_mul_u32_u24 {q}, 1280, {q}'); A(f'v_lshlrev_b32 {c}, 4, {c}')
            A(f'v_add3_u32 {s.vW80[i]}, {q}, {c}, {t}')
            if 0 < i < 4: A(f'v_subrev_u32 {s.vW80[i]}, {1024*i}, {s.vW80[i]}')
        s.V.put(q, c, t)
    def w80_panel(s, name, addr, srd, kbase):
        p = Panel(name, addr, 20 * KB)
        so = s.sQ
        ops = [lambda: s.A(f's_add_u32 {so}, {s.sJ160}, {kbase * 1280}')]
        ops += s.dma_ops(p, [((s.sW5120, addr), srd, so, [(s.vW80[i], 1024 * i) for i in range(4)]),
                             ((s.sW5120, addr + 4096), srd, so, [(s.vW80[4], 0)])])
        p.ops = ops
        return p
    def mk_nt_voff(s, NT, stride):
        A = s.A; vo = [s.V.get() for _ in range(NT)]; t = s.V.get(); c = s.V.get()
        A(f's_lshl_b32 {s.sT0}, {s.sW}, 4')
        if NT == 3:
            for i in range(3):
                q = vo[i]
                A(f'v_add_u32 {t}, {64*i}, {s.vLane}')
                A(f'v_mul_u32_u24 {q}, 5462, {t}'); A(f'v_lshrrev_b32 {q}, 16, {q}')
                A(f'v_mul_u32_u24 {c}, 12, {q}'); A(f'v_sub_u32 {c}, {t}, {c}')
                A(f'v_add_u32 {q}, {s.sT0}, {q}'); A(f'v_mul_u32_u24 {q}, {stride}, {q}')
                A(f'v_lshl_add_u32 {q}, {c}, 4, {q}')
                if i: A(f'v_subrev_u32 {q}, {1024*i}, {q}')
        else:
            A(f'v_lshrrev_b32 {t}, 3, {s.vLane}'); A(f'v_add_u32 {t}, {s.sT0}, {t}'); A(f'v_mul_u32_u24 {t}, {stride}, {t}')
            A(f'v_lshrrev_b32 {c}, 2, {s.vLane}'); A(f'v_and_b32 {c}, 4, {c}'); A(f'v_xor_b32 {c}, {c}, {s.vLane}'); A(f'v_and_b32 {c}, 7, {c}')
            A(f'v_lshl_add_u32 {vo[0]}, {c}, 4, {t}')
            A(f'v_add_u32 {vo[1]}, {8 * stride - 1024}, {vo[0]}')
        s.V.put(t, c)
        return vo
    def mk_nt_read(s, NT):
        A = s.A; b = s.V.get(); t = s.V.get(); rs = 64 * NT
        A(f'v_lshrrev_b32 {b}, 5, {s.vLane}'); A(f'v_lshlrev_b32 {b}, 3, {b}')
        A(f'v_bfe_u32 {t}, {s.vLane}, 2, 2'); A(f'v_add_u32 {b}, {b}, {t}'); A(f'v_mul_u32_u24 {b}, {rs}, {b}')
        A(f'v_and_b32 {t}, 3, {s.vLane}'); A(f'v_lshl_add_u32 {b}, {t}, 3, {b}')
        A(f'v_and_b32 {t}, 16, {s.vLane}'); A(f'v_lshl_add_u32 {b}, {t}, 1, {b}')
        if NT == 3:
            f = s.dsaddr(b); s.V.put(t)
            fs = [(lambda c, J=J: f(c + 64 * J)) for J in range(3)]; regs = f.regs
        else:
            A(f'v_and_b32 {t}, 8, {s.vLane}'); A(f'v_lshlrev_b32 {t}, 3, {t}')
            A(f'v_xor_b32 {b}, {b}, {t}'); A(f'v_xor_b32 {t}, 64, {b}')
            f0 = s.dsaddr(b); f1 = s.dsaddr(t); fs = [f0, f1]; regs = f0.regs + f1.regs
        return fs, regs

    def prologue(s):
        A = s.A; S = s.S; V = s.V
        A('s_cmp_ge_u32 s2, 256'); A('s_cbranch_scc1 L_end')
        for srd, off in [(sX, 0), (sWQKV, 8), (sW1, 32), (sWS, 80), (sW3, 48), (sW2, 40), (sWO, 16), (sW4, 56), (sOUT, 64)]:
            A(f's_load_dwordx2 {srd[0:2]}, s[0:1], {off}')
        if s.stamps: s.sStamp = S.get(2); s.vStamp = V.get(); A(f'v_mov_b32 {s.vStamp}, 0')
        s.stamp(0)
        s.sT0, s.sT1, s.sT2, s.sT3 = S.get(), S.get(), S.get(), S.get()
        s.sW, s.sN, s.sQ = S.get(), S.get(), S.get()
        s.sW4096, s.sW5120, s.sMisc = S.get(), S.get(), S.get()
        s.sRb, s.sCl, s.sXc, s.sRb2, s.sJ2, s.sJ160, s.sCb3 = [S.get() for _ in range(7)]
        s.sOA, s.sOB, s.sEA, s.sBB = [S.get() for _ in range(4)]
        s.vLane, s.vL16, s.vL0, s.vN = V.get(), V.get(), V.get(), V.get()
        s.vXA = [V.get() for _ in range(4)]
        s.vW80 = [V.get() for _ in range(5)]
        t = V.get(); u = V.get()
        A(f'v_lshrrev_b32 {t}, 6, v0'); A(f'v_and_b32 {s.vLane}, 63, v0')
        A(f'v_readfirstlane_b32 {s.sW}, {t}')
        A(f's_and_b32 {s.sT0}, s2, 7'); A(f's_lshr_b32 {s.sT1}, s2, 3')
        A(f's_and_b32 {s.sRb}, {s.sT0}, 3'); A(f's_lshl_b32 {s.sRb}, {s.sRb}, 2'); A(f's_and_b32 {s.sT2}, {s.sT1}, 3'); A(f's_add_u32 {s.sRb}, {s.sRb}, {s.sT2}')
        A(f's_lshr_b32 {s.sCl}, {s.sT1}, 2'); A(f's_lshr_b32 {s.sXc}, {s.sT0}, 2')
        A(f's_lshl_b32 {s.sRb2}, {s.sT0}, 2'); A(f's_lshr_b32 {s.sT2}, {s.sT1}, 3'); A(f's_add_u32 {s.sRb2}, {s.sRb2}, {s.sT2}')
        A(f's_and_b32 {s.sJ2}, {s.sT1}, 7'); A(f's_mul_i32 {s.sJ160}, {s.sJ2}, 160'); A(f's_and_b32 {s.sCb3}, {s.sT1}, 15')
        A(f'v_mul_u32_u24 {t}, 40960, {t}'); A(f'v_lshrrev_b32 {u}, 3, {s.vLane}'); A(f'v_mul_u32_u24 {u}, 1280, {u}'); A(f'v_add_u32 {t}, {t}, {u}')
        A(f'v_lshrrev_b32 {u}, 4, {s.vLane}'); A(f'v_xor_b32 {u}, {u}, {s.vLane}'); A(f'v_and_b32 {u}, 7, {u}'); A(f'v_lshlrev_b32 {u}, 4, {u}')
        A(f'v_add_u32 {s.vXA[0]}, {t}, {u}'); A(f'v_xor_b32 {u}, 64, {u}'); A(f'v_add_u32 {u}, 9216, {u}'); A(f'v_add_u32 {s.vXA[1]}, {t}, {u}')
        A(f'v_add_u32 {s.vXA[2]}, 18432, {s.vXA[0]}'); A(f'v_add_u32 {s.vXA[3]}, 18432, {s.vXA[1]}')
        A(f'v_lshlrev_b32 {s.vL16}, 4, {s.vLane}')
        A(f'v_cmp_eq_u32 vcc, 0, {s.vLane}'); A(f'v_mov_b32 {t}, {OOB}'); A(f'v_cndmask_b32 {s.vL0}, {t}, 0, vcc'.replace(', 0, vcc', f', {s.vLane}, vcc'))
        V.put(t, u)
        A(f's_lshl_b32 {s.sW4096}, {s.sW}, 12'); A(f's_mul_i32 {s.sW5120}, {s.sW}, 5120')
        A(f's_lshl_b32 {s.sMisc}, {s.sW}, 10'); A(f's_add_u32 {s.sMisc}, {s.sMisc}, {MISC}')
        for srd, n in [(sX, 2621440), (sWQKV, 2457600), (sW1, 819200), (sWS, WS_USED), (sW3, 1966080), (sW2, 819200), (sWO, 819200), (sW4, 1966080), (sOUT, 2621440)]:
            A(f's_mov_b32 {srd[2]}, {n}'); A(f's_mov_b32 {srd[3]}, 0x20000')
        A(f's_cmp_lt_u32 {s.sCl}, 4'); A('s_cbranch_scc1 L_T1')
        A(f's_cmp_lt_u32 {s.sCl}, 6'); A('s_cbranch_scc1 L_TA')
        A.ctl('save', 'fork')

    def rot_init(s, colidx, bbase, bstride):
        A = s.A
        A(f's_add_u32 {s.sT0}, {s.sRb}, {colidx}'); A(f's_mul_i32 {s.sT1}, {s.sT0}, 26'); A(f's_lshr_b32 {s.sT1}, {s.sT1}, 8')
        A(f's_mul_i32 {s.sT1}, {s.sT1}, 10'); A(f's_sub_u32 {s.sRot}, {s.sT0}, {s.sT1}')
        A(f's_mul_i32 {s.sEA}, {s.sRb}, 163840'); A(f's_lshl_b32 {s.sOA}, {s.sRot}, 7'); A(f's_add_u32 {s.sOA}, {s.sOA}, {s.sEA}')
        A(f's_add_u32 {s.sEA}, {s.sEA}, 1280')
        A(f's_mul_i32 {s.sOB}, {s.sRot}, {64 * bstride}'); A(f's_add_u32 {s.sOB}, {s.sOB}, {bbase}'); A(f's_mov_b32 {s.sBB}, {bbase}')
    def rot_step(s, bstride):
        A = s.A
        return [lambda: A(f's_add_u32 {s.sOA}, {s.sOA}, 128'), lambda: A(f's_add_u32 {s.sOB}, {s.sOB}, {64 * bstride}'),
                lambda: (A(f's_cmp_eq_u32 {s.sOA}, {s.sEA}'), A(f's_cselect_b32 {s.sOB}, {s.sBB}, {s.sOB}'),
                         A(f's_cselect_b32 {s.sT3}, 1280, 0'), A(f's_sub_u32 {s.sOA}, {s.sOA}, {s.sT3}'))]

    def p0_issue(s, csaddr):
        A = s.A; V = s.V
        s.p0x = V.get(10, 2); t = V.get(); u = V.get()
        A(f's_load_dword {s.sN}, {sWS[0:2]}, 0')
        A(f'v_lshrrev_b32 {t}, 5, v0'); A(f'v_mul_u32_u24 {t}, 1280, {t}'); A(f'v_and_b32 {u}, 31, v0'); A(f'v_lshl_add_u32 {t}, {u}, 3, {t}')
        A(f's_mul_i32 {s.sT0}, s2, 10240')
        for i in range(5): A(f'buffer_load_dwordx2 {s.p0x.sub(2*i, 2)}, {t}, {sX}, {s.sT0} offen offset:{256*i}')
        lc, st = s.sT0, s.sT1
        A(f's_lshr_b32 {lc}, s2, 2')
        A(f's_cmp_lt_u32 {lc}, 40')
        A(f's_cselect_b32 {sCSRC[0]}, {sW1[0]}, {sW3[0]}'); A(f's_cselect_b32 {sCSRC[1]}, {sW1[1]}, {sW3[1]}'); A(f's_cselect_b32 {sCSRC[2]}, {sW1[2]}, {sW3[2]}')
        A(f's_movk_i32 {st}, 3072'); A(f's_cselect_b32 {st}, 1280, {st}'); A(f's_cselect_b32 {s.sT2}, 30, 40')
        A(f's_cmp_lt_u32 {lc}, 30')
        A(f's_cselect_b32 {sCSRC[0]}, {sWQKV[0]}, {sCSRC[0]}'); A(f's_cselect_b32 {sCSRC[1]}, {sWQKV[1]}, {sCSRC[1]}'); A(f's_cselect_b32 {sCSRC[2]}, {sWQKV[2]}, {sCSRC[2]}')
        A(f's_cselect_b32 {st}, 3840, {st}'); A(f's_cselect_b32 {s.sT2}, 0, {s.sT2}')
        A(f's_mov_b32 {sCSRC[3]}, 0x20000')
        A(f's_sub_u32 {lc}, {lc}, {s.sT2}'); A(f's_lshl_b32 {lc}, {lc}, 7')
        A(f's_and_b32 {s.sT2}, s2, 3'); A(f's_lshl_b32 {s.sT2}, {s.sT2}, 2'); A(f's_add_u32 {s.sT2}, {s.sT2}, {s.sW}'); A(f's_mul_i32 {s.sT2}, {s.sT2}, 40')
        A(f's_mul_i32 {s.sT2}, {s.sT2}, {st}'); A(f's_add_u32 {lc}, {lc}, {s.sT2}')
        A(f'v_lshrrev_b32 {t}, 3, {s.vLane}'); A(f'v_mul_lo_u32 {t}, {t}, {st}'); A(f'v_and_b32 {u}, 7, {s.vLane}'); A(f'v_lshl_add_u32 {t}, {u}, 4, {t}')
        A(f's_lshl_b32 {st}, {st}, 3')
        p = Panel('cs', csaddr, 20 * KB); s.lt.issue(p)
        for i in range(5):
            A(f's_add_u32 m0, {s.sW5120}, {csaddr + 1024 * i}')
            if i: A(f's_add_u32 {lc}, {lc}, {st}')
            p.last = A(f'buffer_load_dwordx4 {t}, {sCSRC}, {lc} offen lds')
        p.issued = True; s.pcs = p
        s.p0c = V.get(4)
        L = s.lab('PC')
        pc = s.S.get(2)
        A(f's_getpc_b64 {pc}'); A(f'{L}:')
        A(f's_sub_u32 {pc[0]}, {pc[0]}, {L}-{NAME}_kernel'); A(f's_subb_u32 {pc[1]}, {pc[1]}, 0')
        A(f's_lshr_b32 {s.sT2}, s2, 3'); A(f's_lshl_b32 {s.sT2}, {s.sT2}, 2'); A(f's_add_u32 {s.sT2}, {s.sT2}, {s.sW}'); A(f's_lshl_b32 {s.sT2}, {s.sT2}, 10')
        A(f's_min_u32 {s.sT2}, {s.sT2}, L_codeend-{NAME}_kernel-1024')
        A(f'v_add_u32 {u}, {s.sT2}, {s.vL16}')
        A(f'global_load_dwordx4 {s.p0c}, {u}, {pc}')
        s.S.put(pc); V.put(t, u)
    def p0_compute(s):
        A = s.A; V = s.V; x = s.p0x
        A(f's_mul_i32 {s.sN}, {s.sN}, 1664525'); A(f's_add_u32 {s.sN}, {s.sN}, 1013904223')
        A(f'v_mov_b32 {s.vN}, {s.sN}')
        fr = V.get(20); ones = V.get(4); ad = V.get(); t = V.get(); D = V.get(4)
        A(f'v_lshrrev_b32 {ad}, 4, {s.vLane}'); A(f'v_lshlrev_b32 {ad}, 3, {ad}'); A(f'v_bfe_u32 {t}, {s.vLane}, 2, 2'); A(f'v_add_u32 {ad}, {ad}, {t}')
        A(f'v_lshlrev_b32 {ad}, 7, {ad}'); A(f'v_and_b32 {t}, 3, {s.vLane}'); A(f'v_lshl_add_u32 {ad}, {t}, 3, {ad}')
        A(f's_lshl_b32 {s.sT0}, {s.sW}, 5'); A(f's_add_u32 {s.sT0}, {s.sT0}, {s.pcs.addr}'); A(f'v_add_u32 {ad}, {s.sT0}, {ad}')
        s.lt.read(s.pcs)
        for ks in range(5):
            for t2 in range(2): A(f'ds_read_b64_tr_b16 {fr.sub(4*ks + 2*t2, 2)}, {ad} offset:{(32*ks + 4*t2) * 128}')
        s.pcs.dead = True
        for i in range(4): A(f'v_mov_b32 {ones[i]}, 0x3f803f80')
        g = V.get(4); sm = V.get(); sq = V.get(); u = V.get()
        A(f'v_mov_b32 {sm}, 0'); A(f'v_mov_b32 {sq}, 0')
        for i in range(10):
            A(f'v_dot2c_f32_bf16 {sm}, {x[i]}, {ones[0]}'); A(f'v_dot2c_f32_bf16 {sq}, {x[i]}, {x[i]}')
        for ks in range(5): A(f'v_mfma_f32_16x16x32_bf16 {D}, {ones}, {fr.sub(4*ks, 4)}, {"0" if ks == 0 else D}')
        for m in ['quad_perm:[1,0,3,2]', 'quad_perm:[2,3,0,1]', 'row_half_mirror', 'row_mirror']:
            A(f'v_add_f32_dpp {sm}, {sm}, {sm} {m} row_mask:0xf bank_mask:0xf'); A(f'v_add_f32_dpp {sq}, {sq}, {sq} {m} row_mask:0xf bank_mask:0xf')
        A(f'v_mov_b32 {t}, {sm}'); A(f'v_mov_b32 {u}, {sq}')
        A(f'v_permlane16_swap_b32 {sm}, {t}'); A(f'v_permlane16_swap_b32 {sq}, {u}')
        A(f'v_add_f32 {sm}, {sm}, {t}'); A(f'v_add_f32 {sq}, {sq}, {u}')
        s.ln_scalars(sm, sq, g[0], g[1], var=sq)
        A(f'v_mul_f32 {sq}, {sq}, {g[0]}'); A(f'v_mul_f32 {sq}, {sq}, {g[0]}')
        s.rstd(g[2], sq)
        A(f'v_mov_b32 {g[3]}, {s.sN}')
        A(f'v_and_b32 {t}, 31, {s.vLane}'); A(f'v_cmp_eq_u32 vcc, 0, {t}'); A(f'v_lshrrev_b32 {t}, 1, v0'); A(f'v_mov_b32 {u}, {OOB}'); A(f'v_cndmask_b32 {t}, {u}, {t}, vcc')
        A(f's_lshl_b32 {s.sT0}, s2, 7'); A(f's_add_u32 {s.sT0}, {s.sT0}, {RS}')
        A(f'buffer_store_dwordx4 {g}, {t}, {sWS}, {s.sT0} offen sc1')
        A(f'v_mov_b32 {D[1]}, {s.sN}')
        A(f'v_cmp_gt_u32 vcc, 16, {s.vLane}'); A(f'v_lshlrev_b32 {ad}, 5, {s.vLane}'); A(f'v_cndmask_b32 {ad}, {u}, {ad}, vcc')
        A(f's_lshr_b32 {s.sT0}, s2, 2'); A(f's_lshl_b32 {s.sT0}, {s.sT0}, 11'); A(f's_and_b32 {s.sT1}, s2, 3'); A(f's_lshl_b32 {s.sT1}, {s.sT1}, 3'); A(f's_add_u32 {s.sT0}, {s.sT0}, {s.sT1}')
        A(f's_lshl_b32 {s.sT1}, {s.sW}, 9'); A(f's_add_u32 {s.sT0}, {s.sT0}, {s.sT1}'); A(f's_add_u32 {s.sT0}, {s.sT0}, {CS}')
        A(f'buffer_store_dwordx2 {D[0:2]}, {ad}, {sWS}, {s.sT0} offen sc1')
        A(f'v_mov_b32 {t}, {s.p0c[0]}')
        V.put(fr, ones, ad, t, D, g, sm, sq, u, s.p0x, s.p0c)
    def rstd(s, d, var):
        A = s.A
        s.rbf(d, var); A(f'v_add_f32 {d}, {hexf(1e-5)}, {d}'); s.rbf(d, d); A(f'v_sqrt_f32 {d}, {d}'); s.rbf(d, d); A(f'v_rcp_f32 {d}, {d}')
    def ln_scalars(s, sm, sq, r, mr, var):
        A = s.A
        A(f'v_mul_f32 {sm}, {hexf(1.0/640)}, {sm}'); A(f'v_mul_f32 {sq}, {hexf(1.0/640)}, {sq}')
        A(f'v_fma_f32 {var}, -{sm}, {sm}, {sq}'); A(f'v_max_f32 {var}, 0, {var}')
        s.rstd(r, var); A(f'v_mul_f32 {mr}, {sm}, {r}')

    def pipeline(s, nst, panels, reads, mfmas, n1, n2, pending, hook=None, first_waits=None, nobar=()):
        def pump():
            while pending and s.lt.can_issue(pending[0]) and all(not (q.addr < pending[0].addr + pending[0].size and pending[0].addr < q.addr + q.size) for q in queued):
                p = pending.pop(0); queued.append(p); s.q2 += p.ops
                if getattr(p, 'pace', False): break
        queued = []
        def need(ps):
            while any(not p.issued for p in ps):
                if not s.q2: pump(); assert s.q2, [p.name for p in ps]
                s.flush2(1)
        need(panels[0])
        s.barrier(list(panels[0]) + list(first_waits or []))
        pump()
        for f in reads(0, 0): f()
        for st in range(nst):
            if hook: hook(st, 0)
            s.weave(mfmas(st, 0), reads(st, 1), n1, n2)
            for p in panels[st]: p.dead = True
            queued[:] = [q for q in queued if not q.issued]
            if hook: hook(st, 1)
            mf = mfmas(st, 1)
            if st + 1 < nst:
                if st not in nobar:
                    w = []
                    k = st + 1
                    while True:
                        w += [p for p in panels[k] if p.waited is None]
                        if k in nobar and k + 1 < nst: k += 1
                        else: break
                    need(w)
                    mf[0](); mf = mf[1:]
                    s.barrier(w); pump()
                s.weave(mf, reads(st + 1, 0), n1, n2)
            else:
                mf[0](); mf = mf[1:]
                s.barrier(); pump()
                s.weave(mf, [], n1, n2)
        return pump

    def b2_panels(s): return [s.w80_panel(f'b2_{i}', 20 * KB * i, sW2, 128 * i) for i in range(5)]

    def t1(s):
        A = s.A; V = s.V; S = s.S; AG = s.AG
        A('L_T1:'); A.ctl('restore', 'fork'); s.lt = LT()
        s.sRot = S.get(); sCb = S.get(); sWr = S.get(); sWc = S.get()
        A(f's_lshl_b32 {sCb}, {s.sXc}, 2'); A(f's_add_u32 {sCb}, {sCb}, {s.sCl}')
        A(f's_lshr_b32 {sWr}, {s.sW}, 1'); A(f's_and_b32 {sWc}, {s.sW}, 1')
        A(f's_mul_i32 {s.sT2}, {sCb}, 160')
        s.rot_init(sCb, s.sT2, 3840)
        vB = [V.get() for _ in range(5)]; q = V.get(); c = V.get(); t = V.get()
        A(f's_lshl_b32 {s.sT0}, {s.sW}, 4')
        for i in range(5):
            s.div20(i, q, c)
            A(f'v_mov_b32 {t}, 1120'); A(f'v_add_u32 {q}, {s.sT0}, {q}'); A(f'v_cndmask_b32 {t}, 0, {t}, vcc')
            A(f'v_mul_u32_u24 {q}, 3840, {q}'); A(f'v_lshlrev_b32 {c}, 4, {c}'); A(f'v_add3_u32 {vB[i]}, {q}, {c}, {t}')
            A(f'v_add_u32 {vB[i]}, {1280 - (1024 * i if i < 4 else 0) & 0xffffffff}, {vB[i]}')
        slot = lambda st: ((st + 2) % 4) * 36 * KB
        stages = []
        for st in range(10):
            p = Panel(f's{st}', slot(st), 36 * KB)
            p.ops = s.dma_ops(p, [((s.sW4096, p.addr), sX, s.sOA, [(s.vXA[i], 1024 * i) for i in range(4)]),
                                  ((s.sW5120, p.addr + 16 * KB), sWQKV, s.sOB, [(vB[i], 1024 * i) for i in range(4)]),
                                  ((s.sW5120, p.addr + 20 * KB), sWQKV, s.sOB, [(vB[4], 0)])]) + s.rot_step(3840)
            stages.append(p)
        for f in stages[0].ops: f()
        s.p0_issue(slot(3))
        for st in (1, 2):
            for f in stages[st].ops: f()
        s.stamp(1)
        a0 = V.get(); a1 = V.get()
        A(f'v_and_b32 {a0}, 15, {s.vLane}'); A(f'v_lshrrev_b32 {t}, 1, {a0}'); A(f'v_lshrrev_b32 {q}, 4, {s.vLane}'); A(f'v_xor_b32 {t}, {t}, {q}')
        A(f's_lshl_b32 {s.sT0}, {sWr}, 6'); A(f'v_add_u32 {a0}, {s.sT0}, {a0}'); A(f'v_lshlrev_b32 {a0}, 7, {a0}'); A(f'v_lshl_add_u32 {a0}, {t}, 4, {a0}')
        A(f'v_xor_b32 {a1}, 64, {a0}')
        fa = [s.dsaddr(a0), s.dsaddr(a1)]
        fb = []
        rowp = V.get(); hi = V.get(); x2 = V.get()
        A(f'v_lshlrev_b32 {rowp}, 3, {q}'); A(f'v_bfe_u32 {t}, {s.vLane}, 2, 2'); A(f'v_add_u32 {rowp}, {rowp}, {t}'); A(f'v_mul_u32_u24 {rowp}, 320, {rowp}')
        A(f'v_and_b32 {t}, 1, {s.vLane}'); A(f'v_lshl_add_u32 {rowp}, {t}, 3, {rowp}')
        A(f'v_bfe_u32 {hi}, {s.vLane}, 1, 1'); A(f'v_and_b32 {x2}, 1, {q}'); A(f'v_lshlrev_b32 {x2}, 1, {x2}')
        A(f's_mul_i32 {s.sT0}, {sWc}, 5')
        for tt, ba in enumerate([0, 2, 4, 11, 13]):
            b = V.get()
            A(f'v_mul_u32_u24 {b}, {6 if tt == 2 else 1}, {hi}'); A(f'v_add_u32 {b}, {ba}, {b}'); A(f'v_add_u32 {b}, {s.sT0}, {b}')
            A(f'v_xor_b32 {b}, {b}, {x2}'); A(f'v_lshl_add_u32 {b}, {b}, 4, {rowp}')
            fb.append(s.dsaddr(b))
        V.put(rowp, hi, x2, q, c, t)
        s.mk_w80_voff()
        acc = [[V.get(4) for _ in range(5)] for _ in range(4)]
        XA = [[AG.get(4) for _ in range(4)] for _ in range(2)]; WB = [[AG.get(4) for _ in range(5)] for _ in range(2)]
        def reads(st, h):
            p = stages[st]
            ra = lambda mt: (lambda: (s.lt.read(p), A(f'ds_read_b128 {XA[h][mt]}, {fa[h](p.addr + 2048 * mt)}')))
            rb = lambda tt, t2: (lambda: (s.lt.read(p), A(f'ds_read_b64_tr_b16 {WB[h][tt].sub(2*t2, 2)}, {fb[tt](p.addr + 16 * KB + (32 * h + 4 * t2) * 320)}')))
            return [ra(0), rb(0, 0), rb(0, 1), ra(1), ra(2), ra(3)] + [rb(tt, t2) for tt in range(1, 5) for t2 in range(2)]
        def mfmas(st, h):
            return [(lambda mt=mt, tt=tt: A(f'v_mfma_f32_16x16x32_bf16 {acc[mt][tt]}, {XA[h][mt]}, {WB[h][tt]}, {"0" if st == 0 and h == 0 else acc[mt][tt]}')) for tt in range(5) for mt in range(4)]
        gr = V.get(4); csg = [V.get(2) for _ in range(5)]; vra = V.get(); vca = [V.get() for _ in range(2)]; sRSo = S.get(); sCSo = S.get()
        loads = []
        def hook(st, h):
            if st == 1 and h == 0: s.p0_compute()
            if st == 8 and h == 0:
                t = V.get()
                A(f's_lshl_b32 {sRSo}, {s.sRb}, 11'); A(f's_lshl_b32 {s.sT0}, {sWr}, 10'); A(f's_add_u32 {sRSo}, {sRSo}, {s.sT0}'); A(f's_add_u32 {sRSo}, {sRSo}, {RS}')
                loads.append(f'buffer_load_dwordx4 {gr}, {s.vL16}, {sWS}, {sRSo} offen sc1')
                A(f's_mul_i32 {sCSo}, {sCb}, 80'); A(f's_mul_i32 {s.sT0}, {sWc}, 40'); A(f's_add_u32 {sCSo}, {sCSo}, {s.sT0}'); A(f's_lshl_b32 {sCSo}, {sCSo}, 5')
                A(f's_add_u32 {sCSo}, {sCSo}, {CS + 640 * 32}')
                A(f'v_and_b32 {vca[0]}, 15, {s.vLane}'); A(f'v_cmp_le_u32 vcc, 8, {vca[0]}'); A(f'v_lshlrev_b32 {vca[0]}, 5, {vca[0]}')
                A(f'v_lshrrev_b32 {t}, 4, {s.vLane}'); A(f'v_lshl_add_u32 {vca[0]}, {t}, 3, {vca[0]}')
                A(f'v_add_u32 {vca[1]}, {600 * 32}, {vca[0]}'); A(f'v_cndmask_b32 {vra}, {vca[0]}, {vca[1]}, vcc')
                for tt in range(5):
                    loads.append(f'buffer_load_dwordx2 {csg[tt]}, {[vca[0], vca[0], vra, vca[1], vca[1]][tt]}, {sWS}, {sCSo} offen offset:{512 * tt} sc1')
                for ld in loads: A(ld)
                V.put(t)
        pend = stages[3:] + s.b2p
        panels = [[p] for p in stages]; panels[1] = [stages[1], s.pcs]
        pump = s.pipeline(10, panels, reads, mfmas, 1, 1, pend, hook)
        s.flush2(); assert not pend
        s.stamp(2)
        for f in fa + fb: V.put(*f.regs)
        V.put(*vB)
        s.checked(loads, [gr[3]] + [c[1] for c in csg])
        ad = V.get(); t = V.get()
        A(f'v_lshlrev_b32 {ad}, 2, {s.vLane}'); A(f'v_add_u32 {ad}, {s.sMisc}, {ad}')
        A(f'ds_write_b32 {ad}, {gr[0]}'); A(f'ds_write_b32 {ad}, {gr[1]} offset:256')
        A(f'v_and_b32 {ad}, 48, {s.vLane}'); A(f'v_add_u32 {ad}, {s.sMisc}, {ad}')
        r1 = [V.get(4) for _ in range(4)]; mr = [V.get(4) for _ in range(4)]
        A('s_waitcnt lgkmcnt(0)')
        for mt in range(4): A(f'ds_read_b128 {r1[mt]}, {ad} offset:{64 * mt}'); A(f'ds_read_b128 {mr[mt]}, {ad} offset:{256 + 64 * mt}')
        for swp in ('16', '32'):
            for c in csg: A(f'v_mov_b32 {c[1]}, {c[0]}')
            for c in csg: A(f'v_permlane{swp}_swap_b32 {c[0]}, {c[1]}')
            for c in csg: A(f'v_add_f32 {c[0]}, {c[0]}, {c[1]}')
        eps = V.get(2); epm = V.get(2); l2e = V.get(2); sK = S.get(2)
        A(f'v_mov_b32 {eps[0]}, {hexf(1e-6)}'); A(f'v_mov_b32 {l2e[0]}, {hexf(LOG2E)}')
        A(f'v_and_b32 {t}, 8, {s.vLane}'); A(f'v_cmp_eq_u32 {sK}, 0, {t}'); A(f'v_cndmask_b32 {epm[0]}, 0, {eps[0]}, {sK}')
        pk = [[V.get(4) for _ in range(5)] for _ in range(2)]
        T = [V.get(2) for _ in range(4)]; U = [V.get(2) for _ in range(4)]
        for tt in range(5):
            for u in range(2):
                prs = [(2 * u + m, h) for m in range(2) for h in range(2)]
                y = [acc[mt][tt].sub(2 * h, 2) for mt, h in prs]
                for k, (mt, h) in enumerate(prs):
                    if tt < 3: A(f'v_pk_fma_f32 {T[k]}, {mr[mt].sub(2*h, 2)}, {csg[tt]}, {eps if tt < 2 else epm} op_sel_hi:[1,0,0] neg_lo:[0,1,0] neg_hi:[0,1,0]')
                    else: A(f'v_pk_mul_f32 {T[k]}, {mr[mt].sub(2*h, 2)}, {csg[tt]} op_sel_hi:[1,0] neg_lo:[0,1] neg_hi:[0,1]')
                for k, (mt, h) in enumerate(prs): A(f'v_pk_fma_f32 {y[k]}, {y[k]}, {r1[mt].sub(2*h, 2)}, {T[k]}')
                if tt < 3:
                    for k in range(4): A(f'v_pk_mul_f32 {U[k]}, {y[k]}, {l2e} op_sel_hi:[1,0]')
                    for k in range(4): A(f'v_min_f32 {U[k][0]}, 0, {U[k][0]}'); A(f'v_min_f32 {U[k][1]}, 0, {U[k][1]}')
                    for k in range(4): A(f'v_exp_f32 {U[k][0]}, {U[k][0]}'); A(f'v_exp_f32 {U[k][1]}, {U[k][1]}')
                    for k in range(4): A(f'v_max_f32 {T[k][0]}, {eps[0]}, {y[k][0]}'); A(f'v_max_f32 {T[k][1]}, {eps[0]}, {y[k][1]}')
                    if tt < 2:
                        for k in range(4): A(f'v_pk_add_f32 {y[k]}, {T[k]}, {U[k]}')
                    else:
                        for k in range(4): A(f'v_pk_add_f32 {T[k]}, {T[k]}, {U[k]}')
                        for k in range(4):
                            for e in range(2): A(f'v_cndmask_b32 {y[k][e]}, {y[k][e]}, {T[k][e]}, {sK}')
                for k in range(4): A(f'v_cvt_pk_bf16_f32 {pk[u][tt][k]}, {y[k][0]}, {y[k][1]}')
        V.put(*T, *U, eps, epm, l2e, *r1, *mr, gr, *csg, vra, *vca)
        ones = V.get(4)
        for i in range(4): A(f'v_mov_b32 {ones[i]}, 0x3f803f80')
        pairs = [(0, 2), (0, 3), (1, 2), (1, 3), (1, 4), (2, 3), (2, 4)]
        kv = [V.get(4) for _ in pairs]; zz = [V.get(4) for _ in range(3)]
        for u in range(2):
            for k, (dt, et) in enumerate(pairs): A(f'v_mfma_f32_16x16x32_bf16 {kv[k]}, {pk[u][et]}, {pk[u][dt]}, {"0" if u == 0 else kv[k]}')
            for dt in range(3): A(f'v_mfma_f32_16x16x32_bf16 {zz[dt]}, {ones}, {pk[u][dt]}, {"0" if u == 0 else zz[dt]}')
        dt_off = [V.get() for _ in range(3)]; dt_hd = [V.get() for _ in range(3)]; e_off = [V.get() for _ in range(3)]; e_hd = [V.get() for _ in range(3)]
        c15 = V.get(); g4 = V.get(); oob = V.get()
        A(f'v_and_b32 {c15}, 15, {s.vLane}'); A(f'v_lshrrev_b32 {g4}, 4, {s.vLane}'); A(f'v_lshlrev_b32 {g4}, 2, {g4}'); A(f'v_mov_b32 {oob}, {OOB}')
        for dt in range(3):
            A(f'v_add_u32 {t}, {16 * dt}, {c15}'); A(f'v_mul_u32_u24 {dt_hd[dt]}, 3277, {t}'); A(f'v_lshrrev_b32 {dt_hd[dt]}, 16, {dt_hd[dt]}')
            A(f'v_mul_u32_u24 {dt_off[dt]}, 20, {dt_hd[dt]}'); A(f'v_sub_u32 {dt_off[dt]}, {t}, {dt_off[dt]}')
        for et in range(3):
            A(f'v_add_u32 {t}, {16 * et + 12}, {g4}'); A(f'v_mul_u32_u24 {e_hd[et]}, 3277, {t}'); A(f'v_lshrrev_b32 {e_hd[et]}, 16, {e_hd[et]}')
            A(f'v_mul_u32_u24 {e_off[et]}, 20, {e_hd[et]}'); A(f'v_sub_u32 {e_off[et]}, {t}, {e_off[et]}'); A(f'v_subrev_u32 {e_hd[et]}, 1, {e_hd[et]}')
        kva = [V.get() for _ in pairs]; za = [V.get() for _ in range(3)]
        for k, (dt, et) in enumerate(pairs):
            A(f'v_cmp_eq_u32 vcc, {dt_hd[dt]}, {e_hd[et-2]}')
            A(f'v_mul_u32_u24 {t}, 20, {dt_off[dt]}'); A(f'v_add_u32 {t}, {t}, {e_off[et-2]}'); A(f'v_lshlrev_b32 {t}, 2, {t}'); A(f'v_lshl_add_u32 {t}, {dt_hd[dt]}, 15, {t}')
            A(f'v_cndmask_b32 {kva[k]}, {oob}, {t}, vcc')
        for dt in range(3):
            A(f'v_cmp_gt_u32 vcc, {16 if dt < 2 else 8}, {s.vLane}')
            A(f'v_lshlrev_b32 {t}, 2, {dt_off[dt]}'); A(f'v_lshl_add_u32 {t}, {dt_hd[dt]}, 15, {t}')
            A(f'v_cndmask_b32 {za[dt]}, {oob}, {t}, vcc')
        A(f'v_mov_b32 {zz[0][1]}, {zz[1][0]}'); A(f'v_mov_b32 {zz[0][2]}, {zz[2][0]}')
        RED = 108 * KB
        A(f's_lshl_b32 {s.sT0}, {sWc}, 13'); A(f's_add_u32 {s.sT0}, {s.sT0}, {RED}'); A(f'v_add_u32 {ad}, {s.sT0}, {s.vL16}')
        red = kv + [zz[0]]
        L1 = s.lab(); L2 = s.lab()
        A('s_nop 7')
        A(f's_cmp_eq_u32 {sWr}, 0'); A(f's_cbranch_scc1 {L1}')
        for k, r in enumerate(red): A(f'ds_write_b128 {ad}, {r} offset:{1024 * k}')
        A('s_waitcnt lgkmcnt(0)')
        A(f'{L1}:')
        A('s_barrier'); s.lt.epoch += 1
        A(f's_cmp_eq_u32 {sWr}, 0'); A(f's_cbranch_scc0 {L2}')
        tmp = [V.get(4) for _ in red]
        for k, r in enumerate(red): A(f'ds_read_b128 {tmp[k]}, {ad} offset:{1024 * k}')
        for k, r in enumerate(red):
            for h in range(2): A(f'v_pk_add_f32 {r.sub(2*h, 2)}, {r.sub(2*h, 2)}, {tmp[k].sub(2*h, 2)}')
        A(f'{L2}:')
        A(f's_lshl_b32 {s.sT0}, {sCb}, 1'); A(f's_add_u32 {s.sT0}, {s.sT0}, {sWc}')
        A(f's_lshl_b32 {s.sT1}, {s.sT0}, 16'); A(f's_lshl_b32 {s.sT2}, {s.sRb}, 11'); A(f's_add_u32 {s.sT1}, {s.sT1}, {s.sT2}'); A(f's_add_u32 {s.sT1}, {s.sT1}, {KV}')
        A(f's_lshl_b32 {s.sT2}, {sWr}, 29'); A(f's_add_u32 {s.sT1}, {s.sT1}, {s.sT2}')
        A(f's_lshl_b32 {s.sT0}, {s.sT0}, 7'); A(f's_add_u32 {s.sT0}, {s.sT0}, {s.sT2}'); A(f's_lshl_b32 {s.sT2}, {s.sRb}, 2'); A(f's_add_u32 {s.sT0}, {s.sT0}, {s.sT2}'); A(f's_add_u32 {s.sT0}, {s.sT0}, {FK}')
        for k in range(7): A(f'buffer_store_dwordx4 {kv[k]}, {kva[k]}, {sWS}, {s.sT1} offen sc1')
        for dt in range(3): last = A(f'buffer_store_dword {zz[0][dt]}, {za[dt]}, {sWS}, {s.sT1} offen offset:1600 sc1')
        s.setflag(last, s.sT0)
        s.stamp(3)
        A('s_waitcnt lgkmcnt(0)'); A.ctl('endvar'); A('s_branch L_join')

    def cs_loads(s, NT, scol):
        A = s.A; V = s.V
        so = s.S.get(); va = V.get(); t = V.get(); cg = [V.get(4) for _ in range(NT)]
        A(f's_lshl_b32 {so}, {scol}, 5'); A(f's_add_u32 {so}, {so}, {CS}')
        A(f'v_and_b32 {va}, 31, {s.vLane}'); A(f'v_lshlrev_b32 {va}, 5, {va}'); A(f'v_lshrrev_b32 {t}, 5, {s.vLane}'); A(f'v_lshl_add_u32 {va}, {t}, 4, {va}')
        V.put(t)
        return [f'buffer_load_dwordx4 {cg[J]}, {va}, {sWS}, {so} offen offset:{1024 * J} sc1' for J in range(NT)], cg, so, va
    def cs_to_lds(s, NT, cg):
        A = s.A; V = s.V; ad = V.get()
        for c in cg: A(f'v_add_f32 {c[0]}, {c[0]}, {c[2]}')
        for c in cg: A(f'v_mov_b32 {c[1]}, {c[0]}')
        A(f'v_and_b32 {ad}, 31, {s.vLane}'); A(f'v_lshlrev_b32 {ad}, 2, {ad}'); A(f'v_add_u32 {ad}, {s.sMisc}, {ad}')
        for c in cg: A(f'v_permlane32_swap_b32 {c[0]}, {c[1]}')
        for c in cg: A(f'v_add_f32 {c[0]}, {c[0]}, {c[1]}')
        for J, c in enumerate(cg): A(f'ds_write_b32 {ad}, {c[0]} offset:{128 * J}')
        A(f'v_lshrrev_b32 {ad}, 5, {s.vLane}'); A(f'v_lshlrev_b32 {ad}, 4, {ad}'); A(f'v_add_u32 {ad}, {s.sMisc}, {ad}')
        A('s_waitcnt lgkmcnt(0)')
        cs = [V.get(16) for _ in cg]
        for J in range(NT):
            for q in range(4): A(f'ds_read_b128 {cs[J].sub(4*q, 4)}, {ad} offset:{128 * J + 32 * q}')
        V.put(ad)
        return cs
    def epi32(s, kind, acc, cs, a, b, addr_fn):
        A = s.A; V = s.V
        c0 = V.get(2); c1 = V.get(2); one = V.get(2)
        if kind == 'gelu':
            A(f'v_mov_b32 {c0[0]}, {hexf(GC0)}'); A(f'v_mov_b32 {c1[0]}, {hexf(GC1)}'); A(f'v_mov_b32 {one[0]}, 1.0')
        else:
            A(f'v_mov_b32 {c0[0]}, {hexf(1e-6)}'); A(f'v_mov_b32 {c1[0]}, {hexf(LOG2E)}')
        T = [V.get(2) for _ in range(4)]; P = [V.get(4) for _ in range(2)]
        for J in range(len(acc)):
            vo, so, aa, bb = addr_fn(J)
            for hf in range(2):
                y = [acc[J].sub(8 * hf + 2 * k, 2) for k in range(4)]; cc = [cs[J].sub(8 * hf + 2 * k, 2) for k in range(4)]
                if kind == 'gelu':
                    for k in range(4): A(f'v_pk_mul_f32 {cc[k]}, {cc[k]}, {bb} op_sel_hi:[1,0] neg_lo:[0,1] neg_hi:[0,1]')
                    for k in range(4): A(f'v_pk_fma_f32 {y[k]}, {y[k]}, {aa}, {cc[k]} op_sel_hi:[1,0,1]')
                    for k in range(4): A(f'v_pk_mul_f32 {T[k]}, {y[k]}, {y[k]}')
                    for k in range(4): A(f'v_pk_fma_f32 {T[k]}, {T[k]}, {c1}, {c0} op_sel_hi:[1,0,0]')
                    for k in range(4): A(f'v_pk_mul_f32 {T[k]}, {T[k]}, {y[k]}')
                    for k in range(4): A(f'v_exp_f32 {T[k][0]}, {T[k][0]}'); A(f'v_exp_f32 {T[k][1]}, {T[k][1]}')
                    for k in range(4): A(f'v_pk_add_f32 {T[k]}, {T[k]}, {one} op_sel_hi:[1,0]')
                    for k in range(4): A(f'v_rcp_f32 {T[k][0]}, {T[k][0]}'); A(f'v_rcp_f32 {T[k][1]}, {T[k][1]}')
                    for k in range(4): A(f'v_pk_mul_f32 {y[k]}, {y[k]}, {T[k]}')
                else:
                    for k in range(4): A(f'v_pk_fma_f32 {cc[k]}, {cc[k]}, {bb}, {c0} op_sel_hi:[1,0,0] neg_lo:[0,1,0] neg_hi:[0,1,0]')
                    for k in range(4): A(f'v_pk_fma_f32 {y[k]}, {y[k]}, {aa}, {cc[k]} op_sel_hi:[1,0,1]')
                    for k in range(4): A(f'v_pk_mul_f32 {T[k]}, {y[k]}, {c1} op_sel_hi:[1,0]')
                    for k in range(4): A(f'v_min_f32 {T[k][0]}, 0, {T[k][0]}'); A(f'v_min_f32 {T[k][1]}, 0, {T[k][1]}')
                    for k in range(4): A(f'v_exp_f32 {T[k][0]}, {T[k][0]}'); A(f'v_exp_f32 {T[k][1]}, {T[k][1]}')
                    for k in range(4): A(f'v_max_f32 {y[k][0]}, {c0[0]}, {y[k][0]}'); A(f'v_max_f32 {y[k][1]}, {c0[0]}, {y[k][1]}')
                    for k in range(4): A(f'v_pk_add_f32 {y[k]}, {y[k]}, {T[k]}')
                p = P[hf]
                for k in range(4): A(f'v_cvt_pk_bf16_f32 {p[k]}, {y[k][0]}, {y[k][1]}')
                s.flush2(2)
                A(f'v_permlane32_swap_b32 {p[0]}, {p[2]}'); A(f'v_permlane32_swap_b32 {p[1]}, {p[3]}')
                last = A(f'buffer_store_dwordx4 {p}, {vo}, {sWS}, {so} offen offset:{512 * hf} sc1')
        V.put(c0, c1, one, *T, *P)
        return last
    def f16_voff(s, d, tok, nkb):
        A = s.A; t = s.V.get()
        A(f'v_lshrrev_b32 {t}, 4, {tok}'); A(f'v_mul_u32_u24 {t}, {nkb * 1024}, {t}')
        A(f'v_and_b32 {d}, 15, {tok}'); A(f'v_lshl_add_u32 {d}, {d}, 4, {t}')
        A(f'v_and_b32 {t}, 32, {s.vLane}'); A(f'v_lshl_add_u32 {d}, {t}, 3, {d}')
        s.V.put(t)

    def gemm32(s, NT, panels, boff, XF, fw, acc, pend, fx=None, hook=None, xload=None, nobar=(), extra=None, first_waits=None):
        A = s.A; AG = s.AG
        WB = [[[AG.get(4) for _ in range(NT)] for _ in range(2)] for _ in range(2)]
        def reads(st, h):
            p = panels[st]; out = []
            for k2 in range(2):
                ks = 2 * h + k2
                if fx: out.append(lambda ks=ks: (s.lt.read(p), A(f'ds_read_b128 {XF[4*st + ks]}, {fx[ks](p.addr)}')))
                for J in range(NT):
                    for t2 in range(2):
                        out.append(lambda ks=ks, J=J, t2=t2, k2=k2: (s.lt.read(p), A(f'ds_read_b64_tr_b16 {WB[h][k2][J].sub(2*t2, 2)}, {fw[J](p.addr + boff + (16 * ks + 4 * t2) * 64 * NT)}')))
            return out
        def mfmas(st, h):
            out = []
            for k2 in range(2):
                n = 4 * st + 2 * h + k2
                for J in range(NT):
                    def m(J=J, k2=k2, n=n):
                        A(f'v_mfma_f32_32x32x16_bf16 {acc[J]}, {WB[h][k2][J]}, {XF[n]}, {"0" if n == 0 else acc[J]}')
                        if xload and J == 0: xload(n)
                    out.append(m)
            return out
        pl = [[p] for p in panels]
        if extra:
            for k, v in extra.items(): pl[k] = pl[k] + v
        pump = s.pipeline(10, pl, reads, mfmas, 3, 2, pend, hook, nobar=nobar, first_waits=first_waits)
        for h in range(2):
            for k2 in range(2): AG.put(*WB[h][k2])
        return pump

    def t23(s, typ):
        A = s.A; V = s.V; S = s.S; AG = s.AG
        N1, N2 = (3, 2) if typ == 'A' else (2, 3)
        if typ == 'A': A('L_TA:')
        A.ctl('restore', 'fork'); s.lt = LT()
        s.sRot = S.get(); sA = S.get(); sJ = S.get(); sC1 = S.get(); sC2 = S.get(); sWN = S.get()
        A(f's_lshl_b32 {sA}, {s.sXc}, 1'); A(f's_add_u32 {sA}, {sA}, {s.sCl}'); A(f's_sub_u32 {sA}, {sA}, {4 if typ == "A" else 6}')
        A(f's_add_u32 {sJ}, {sA}, {0 if typ == "A" else 4}')
        c96, c64 = (sC1, sC2) if typ == 'A' else (sC2, sC1)
        A(f's_mul_i32 {c96}, {sA}, 96'); A(f's_lshl_b32 {c64}, {sA}, 6'); A(f's_add_u32 {c64}, {c64}, 384')
        A(f's_add_u32 {s.sT3}, {sJ}, 8'); A(f's_lshl_b32 {s.sT2}, {sC1}, 1')
        s.rot_init(s.sT3, s.sT2, 1280)
        vB = s.mk_nt_voff(N1, 1280)
        A(f's_mul_i32 {sWN}, {s.sW}, {1024 * N1}')
        ssz = (16 + 4 * N1) * KB
        stages = []
        for st in range(10):
            p = Panel(f's{st}', (st % 4) * ssz, ssz)
            p.ops = s.dma_ops(p, [((s.sW4096, p.addr), sX, s.sOA, [(s.vXA[i], 1024 * i) for i in range(4)]),
                                  ((sWN, p.addr + 16 * KB), sW1, s.sOB, [(vB[i], 1024 * i) for i in range(N1)])]) + s.rot_step(1280)
            stages.append(p)
        for f in stages[0].ops: f()
        s.p0_issue(120 * KB)
        for st in (1, 2, 3):
            for f in stages[st].ops: f()
        s.stamp(1)
        t = V.get(); u = V.get(); xb = [V.get() for _ in range(4)]
        A(f'v_and_b32 {xb[0]}, 31, {s.vLane}'); A(f'v_bfe_u32 {t}, {s.vLane}, 1, 3'); A(f'v_lshrrev_b32 {u}, 5, {s.vLane}'); A(f'v_xor_b32 {t}, {t}, {u}')
        A(f'v_lshlrev_b32 {xb[0]}, 7, {xb[0]}'); A(f'v_lshl_add_u32 {xb[0]}, {t}, 4, {xb[0]}'); A(f'v_add_u32 {xb[0]}, {s.sW4096}, {xb[0]}')
        for ks in range(1, 4): A(f'v_xor_b32 {xb[ks]}, {32 * ks}, {xb[0]}')
        fx = [s.dsaddr(b, (0, 1)) for b in xb]
        V.put(t, u)
        fw1, r1regs = s.mk_nt_read(N1)
        vQ = s.mk_nt_voff(N2, 3840)
        s.mk_w80_voff()
        sWN2 = S.get(); sOQ = S.get(); sEQ = S.get()
        A(f's_mul_i32 {sWN2}, {s.sW}, {1024 * N2}')
        qsz = 4 * N2 * KB
        if typ == 'A': qaddr = [68 * KB + qsz * i for i in range(10)]; order = [6, 7, 8, 9, 0, 1, 2, 3, 4, 5]
        else: qaddr = [(100 + 12 * i) * KB for i in range(4)] + [(28 + 12 * i) * KB for i in range(6)]; order = list(range(10))
        qp = []
        for i in range(10):
            p = Panel(f'q{i}', qaddr[i], qsz)
            pre = [lambda i=i: (A(f's_add_u32 {sOQ}, {s.sRot}, {i}'), A(f's_cmp_ge_u32 {sOQ}, 10'), A(f's_cselect_b32 {sEQ}, 10, 0'), A(f's_sub_u32 {sOQ}, {sOQ}, {sEQ}')),
                   lambda: (A(f's_mul_i32 {sOQ}, {sOQ}, {64 * 3840}'), A(f's_lshl_b32 {sEQ}, {sC2}, 1'), A(f's_add_u32 {sOQ}, {sOQ}, {sEQ}'))]
            p.ops = pre + s.dma_ops(p, [((sWN2, p.addr), sWQKV, sOQ, [(vQ[k], 1024 * k) for k in range(N2)])])
            qp.append(p)
        XF = [AG.get(4) for _ in range(40)]
        acc = [V.get(16) for _ in range(3)]
        gr = V.get(4); vra = V.get(); sRSo = S.get()
        st8 = {}
        def hook(st, h):
            if st == 1 and h == 0: s.p0_compute()
            if st == 8 and h == 0:
                A(f's_lshl_b32 {sRSo}, {s.sRb}, 11'); A(f's_lshl_b32 {s.sT0}, {s.sW}, 9'); A(f's_add_u32 {sRSo}, {sRSo}, {s.sT0}'); A(f's_add_u32 {sRSo}, {sRSo}, {RS}')
                A(f'v_and_b32 {vra}, 0x1f0, {s.vL16}')
                A(f's_add_u32 {s.sT0}, {sC1}, 1920')
                l1, cg, so, va = s.cs_loads(N1, s.sT0)
                st8.update(loads=[f'buffer_load_dwordx4 {gr}, {vra}, {sWS}, {sRSo} offen sc1'] + l1, cg=cg, so=so, va=va)
                for ld in st8['loads']: A(ld)
        pend = stages[4:] + [qp[i] for i in order] + s.b2p
        pump = s.gemm32(N1, stages, 16 * KB, XF, fw1, acc[:N1], pend, fx=fx, hook=hook, extra={1: [s.pcs]})
        s.stamp(2)
        for f in fx: V.put(*f.regs)
        V.put(*r1regs, *vB)
        cg = st8['cg']
        s.checked(st8['loads'], [gr[3]] + [c[k] for c in cg for k in (1, 3)])
        cs = s.cs_to_lds(N1, cg); V.put(*cg, st8['va']); S.put(st8['so'])
        ab = [V.get(2), V.get(2)]; abm = [V.get(2), V.get(2)]; tok = V.get(); vo = V.get(); tk2 = V.get(); so = S.get(); sSh = S.get()
        A(f'v_mul_f32 {ab[0][0]}, {gr[0]}, {gr[2]}'); A(f'v_mul_f32 {ab[1][0]}, {gr[1]}, {gr[2]}')
        A(f's_lshl_b32 {s.sT0}, {s.sRb}, 7'); A(f's_lshl_b32 {s.sT1}, {s.sW}, 5'); A(f's_add_u32 {s.sT0}, {s.sT0}, {s.sT1}')
        A(f'v_and_b32 {tok}, 31, {s.vLane}'); A(f'v_add_u32 {tok}, {s.sT0}, {tok}')
        def addr1(J):
            A(f's_lshr_b32 {so}, {sC1}, 5'); A(f's_add_u32 {so}, {so}, {J}')
            A(f's_cmp_ge_u32 {so}, 5'); A(f's_cselect_b32 {sSh}, -1, 1')
            A(f's_cmp_ge_u32 {so}, 10'); A(f's_cselect_b32 {sSh}, 2, {sSh}')
            A(f's_cmp_ge_u32 {so}, 15'); A(f's_cselect_b32 {sSh}, -2, {sSh}')
            A(f's_lshl_b32 {so}, {so}, 10'); A(f's_add_u32 {so}, {so}, {HS}')
            A(f'v_add_u32 {tk2}, {sSh}, {tok}'); A(f'v_cmp_gt_u32 vcc, 0x800, {tk2}'); A(f'v_and_b32 {tk2}, 0x7ff, {tk2}')
            s.f16_voff(vo, tk2, 20)
            A(f'v_cndmask_b32 {abm[0][0]}, 0, {ab[0][0]}, vcc'); A(f'v_cndmask_b32 {abm[1][0]}, 0, {ab[1][0]}, vcc')
            return vo, so, abm[0], abm[1]
        last = s.epi32('gelu', acc[:N1], cs, None, None, addr1)
        V.put(*cs)
        sF = S.get()
        A(f's_lshl_b32 {sF}, {s.sRb}, 9'); A(f's_lshl_b32 {s.sT0}, {s.sW}, 7'); A(f's_add_u32 {sF}, {sF}, {s.sT0}'); A(f's_lshl_b32 {s.sT0}, {sJ}, 2'); A(f's_add_u32 {sF}, {sF}, {s.sT0}')
        A(f's_add_u32 {sF}, {sF}, {F1}')
        fw2, r2regs = s.mk_nt_read(N2)
        l2, cg, so2, va = s.cs_loads(N2, sC2)
        s.setflag(last, sF)
        s.stamp(3)
        for ld in l2: A(ld)
        pump = s.gemm32(N2, qp, 0, XF, fw2, acc[:N2], pend)
        s.stamp(4)
        s.checked(l2, [c[k] for c in cg for k in (1, 3)])
        cs = s.cs_to_lds(N2, cg)
        A(f'v_mov_b32 {ab[0][0]}, {gr[0]}'); A(f'v_mov_b32 {ab[1][0]}, {gr[1]}')
        s.f16_voff(vo, tok, 20)
        def addr2(J):
            A(f's_lshl_b32 {so}, {sC2}, 5'); A(f's_add_u32 {so}, {so}, {PQ + 1024 * J}')
            return vo, so, ab[0], ab[1]
        s.flush2(); assert not pend, [p.name for p in pend]
        last = s.epi32('phi', acc[:N2], cs, None, None, addr2)
        A(f's_add_u32 {sF}, {sF}, {FQ - F1}')
        s.setflag(last, sF)
        s.stamp(5)
        A('s_waitcnt lgkmcnt(0)'); A.ctl('endvar'); A('s_branch L_join')

    def w80_read(s, extra=None):
        A = s.A; V = s.V; be = V.get(); bo = V.get(); t = V.get()
        A(f'v_lshrrev_b32 {be}, 4, {s.vLane}'); A(f'v_lshlrev_b32 {be}, 3, {be}'); A(f'v_bfe_u32 {t}, {s.vLane}, 2, 2'); A(f'v_add_u32 {be}, {be}, {t}')
        A(f'v_mul_u32_u24 {be}, 320, {be}'); A(f'v_and_b32 {t}, 3, {s.vLane}'); A(f'v_lshl_add_u32 {be}, {t}, 3, {be}')
        if extra: A(f'v_add_u32 {be}, {extra}, {be}')
        A(f'v_and_b32 {t}, 16, {s.vLane}'); A(f'v_lshlrev_b32 {t}, 1, {t}')
        A(f'v_sub_u32 {bo}, {be}, {t}'); A(f'v_add_u32 {be}, {be}, {t}')
        V.put(t)
        return [s.dsaddr(be), s.dsaddr(bo)]

    def common(s):
        A = s.A; V = s.V; S = s.S; AG = s.AG
        A('L_join:'); A.ctl('join'); s.lt = LT(); s.q2 = []
        b2 = s.b2_panels()
        for p in b2: s.lt.issue(p); p.issued = True; p.last = 'prejoin'
        if s.stop <= 1: return
        sTw = S.get(); sTT = S.get()
        A(f's_lshl_b32 {sTw}, {s.sRb2}, 1'); A(f's_lshr_b32 {s.sT0}, {s.sW}, 1'); A(f's_add_u32 {sTw}, {sTw}, {s.sT0}')
        A(f's_lshl_b32 {sTT}, {s.sRb2}, 2'); A(f's_add_u32 {sTT}, {sTT}, {s.sW}')
        fr = s.w80_read()
        xt = [V.get(2) for _ in range(5)]; vtok = V.get(); t = V.get(); u = V.get(); sXo = S.get()
        A(f'v_and_b32 {vtok}, 15, {s.vLane}'); A(f'v_mul_u32_u24 {t}, 1280, {vtok}'); A(f'v_lshrrev_b32 {u}, 4, {s.vLane}'); A(f'v_lshl_add_u32 {t}, {u}, 3, {t}')
        A(f's_mul_i32 {sXo}, {sTT}, 20480'); A(f's_add_u32 {s.sT0}, {sXo}, {s.sJ160}')
        for nt in range(5): A(f'buffer_load_dwordx2 {xt[nt]}, {t}, {sX}, {s.sT0} offen offset:{32 * nt}')
        pa = V.get()
        A(f's_and_b32 {s.sT0}, {s.sW}, 1'); A(f's_lshl_b32 {s.sT0}, {s.sT0}, 1'); A(f's_add_u32 {s.sT0}, {s.sT0}, 63'); A(f's_add_u32 {s.sT0}, {s.sT0}, {sTw}'); A(f's_and_b32 {s.sT0}, {s.sT0}, 63')
        A(f'v_and_b32 {t}, 8, {s.vLane}'); A(f'v_cmp_eq_u32 vcc, 0, {t}'); A(f'v_mov_b32 {t}, {s.sT0}'); A(f'v_mov_b32 {u}, {sTw}'); A(f'v_cndmask_b32 {pa}, {t}, {u}, vcc')
        A(f'v_lshlrev_b32 {pa}, 7, {pa}'); A(f'v_and_b32 {t}, 7, {s.vLane}'); A(f'v_lshl_add_u32 {pa}, {t}, 2, {pa}'); A(f'v_add_u32 {pa}, {F1}, {pa}')
        s.barrier(b2)
        NF = 60
        XA = [AG.get(4) for _ in range(20)]
        WF = [AG.get(4) for _ in range(44)] + [V.get(4) for _ in range(NF - 44)]
        def rd2(n, t2):
            u_, nt = divmod(n, 5); p = b2[u_ // 4]; uu = u_ % 4; jj = 5 * (uu & 1) + nt
            s.lt.read(p)
            A(f'ds_read_b64_tr_b16 {WF[n % NF].sub(2*t2, 2)}, {fr[jj & 1](p.addr + (uu >> 1) * 10240 + t2 * 1280 + 32 * jj)}')
        s.stamp(6)
        s.poll(pa)
        sHo = S.get(); gr = V.get(4)
        A(f's_add_u32 {sHo}, {sXo}, {HS}')
        def ldx(i):
            if i % 4 == 0 and i: A(f's_add_u32 {sHo}, {sHo}, 4096')
            A(f'buffer_load_dwordx4 {XA[i]}, {s.vL16}, {sWS}, {sHo} offen offset:{1024 * (i % 4)} sc1')
        for i in range(12): ldx(i)
        s.stamp(7)
        for n in range(NF):
            rd2(n, 0); rd2(n, 1)
            if n % 6 == 5 and 12 + n // 6 < 20: ldx(12 + n // 6)
        A(f's_lshl_b32 {s.sT0}, {sTT}, 8'); A(f's_add_u32 {s.sT0}, {s.sT0}, {RS}'); A(f'v_lshlrev_b32 {t}, 4, {vtok}')
        A(f'buffer_load_dwordx4 {gr}, {t}, {sWS}, {s.sT0} offen sc1')
        vB3 = s.mk_nt_voff(3, 3072); sW3072 = S.get(); sO3 = S.get(); sC3 = S.get()
        A(f's_mul_i32 {sW3072}, {s.sW}, 3072'); A(f's_mul_i32 {sC3}, {s.sCb3}, 192')
        b3 = []
        for i in range(10):
            p = Panel(f'b3_{i}', ((100 + 12 * i) if i < 4 else 12 * (i - 4)) * KB, 12 * KB)
            p.ops = [lambda i=i: A(f's_add_u32 {sO3}, {sC3}, {i * 64 * 3072}')] + s.dma_ops(p, [((sW3072, p.addr), sW3, sO3, [(vB3[k], 1024 * k) for k in range(3)])])
            b3.append(p)
        pwo = Panel('wob', WOB, 5 * KB); vwo = [V.get() for _ in range(2)]; sWo = S.get(); sWm = S.get()
        for k in range(2):
            if k == 0: A(f'v_mov_b32 {t}, v0')
            else: A(f'v_add_u32 {t}, 256, {s.vLane}')
            A(f'v_mul_u32_u24 {u}, 6554, {t}'); A(f'v_lshrrev_b32 {u}, 16, {u}')
            A(f'v_mul_u32_u24 {vwo[k]}, 10, {u}'); A(f'v_sub_u32 {t}, {t}, {vwo[k]}'); A(f'v_mul_u32_u24 {u}, 1280, {u}'); A(f'v_lshl_add_u32 {vwo[k]}, {t}, 4, {u}')
        A(f's_mul_i32 {sWo}, {s.sRb2}, 25600'); A(f's_add_u32 {sWo}, {sWo}, {s.sJ160}'); A(f's_lshl_b32 {sWm}, {s.sW}, 10')
        pwo.ops = s.dma_ops(pwo, [((sWm, WOB), sWO, sWo, [(vwo[0], 0)]), ((None, WOB + 4096), sWO, sWo, [(vwo[1], 0)])])
        s.q2 += pwo.ops
        for p in b3[:4]: s.q2 += p.ops
        acc = [V.get(4) for _ in range(5)]
        for n in range(100):
            u_, nt = divmod(n, 5)
            A(f'v_mfma_f32_16x16x32_bf16 {acc[nt]}, {WF[n % NF]}, {XA[u_]}, {"0" if u_ == 0 else acc[nt]}')
            if NF + n // 2 < 100: rd2(NF + n // 2, n & 1)
            if n >= 20 and n % 2 == 0: s.flush2(1)
            if n == 84:
                for p in b2: p.dead = True
                s.barrier()
        s.flush2()
        s.stamp(8)
        V.put(*WF[44:], *vwo); AG.put(*WF[:44], *XA); S.put(sWo, sWm, sHo)
        resid = [V.get(4) for _ in range(5)]; pk = [V.get(4) for _ in range(3)]; sm = V.get(2); sq = V.get(2); T = V.get(2); X = V.get(2)
        pkr = lambda nt: pk[nt // 2].sub(2 * (nt & 1), 2)
        for nt in range(5):
            for h in range(2):
                x = resid[nt].sub(2 * h, 2); y = acc[nt].sub(2 * h, 2); w_ = pkr(nt)[h]
                A(f'v_lshlrev_b32 {x[0]}, 16, {xt[nt][h]}'); A(f'v_and_b32 {x[1]}, 0xffff0000, {xt[nt][h]}')
                A(f'v_pk_fma_f32 {T}, {x}, {gr[0:2]}, {gr[0:2]} op_sel:[0,0,1] op_sel_hi:[1,0,1] neg_lo:[0,0,1] neg_hi:[0,0,1]')
                A(f'v_cvt_pk_bf16_f32 {w_}, {T[0]}, {T[1]}')
                A(f'v_lshlrev_b32 {T[0]}, 16, {w_}'); A(f'v_and_b32 {T[1]}, 0xffff0000, {w_}')
                A(f'v_pk_add_f32 {y}, {y}, {T}')
                A(f'v_cvt_pk_bf16_f32 {w_}, {y[0]}, {y[1]}')
                A(f'v_lshlrev_b32 {X[0]}, 16, {w_}'); A(f'v_and_b32 {X[1]}, 0xffff0000, {w_}')
                A(f'v_pk_add_f32 {x}, {x}, {X}')
                if nt == 0 and h == 0:
                    A(f'v_pk_mul_f32 {sq}, {X}, {X}'); A(f'v_mov_b32 {sm[0]}, {X[0]}'); A(f'v_mov_b32 {sm[1]}, {X[1]}')
                else:
                    A(f'v_pk_fma_f32 {sq}, {X}, {X}, {sq}'); A(f'v_pk_add_f32 {sm}, {sm}, {X}')
        va = V.get(); va2 = V.get()
        A(f'v_lshlrev_b32 {va}, 4, {vtok}'); A(f'v_and_b32 {t}, 32, {s.vLane}'); A(f'v_lshl_add_u32 {va}, {t}, 4, {va}')
        A(f'v_and_b32 {t}, 16, {s.vLane}'); A(f'v_lshl_add_u32 {va2}, {t}, 26, {va}'); A(f'v_lshl_add_u32 {va}, {t}, 6, {va}')
        A(f's_mul_i32 {s.sT0}, {sTw}, 40960'); A(f's_mul_i32 {s.sT1}, {s.sJ2}, 5120'); A(f's_add_u32 {s.sT0}, {s.sT0}, {s.sT1}')
        A(f's_and_b32 {s.sT1}, {s.sW}, 1'); A(f's_lshl_b32 {s.sT1}, {s.sT1}, 8'); A(f's_add_u32 {s.sT0}, {s.sT0}, {s.sT1}'); A(f's_add_u32 {s.sT0}, {s.sT0}, {X1}')
        A(f's_add_u32 {s.sT1}, {s.sT0}, 4096')
        for k in range(3): A(f'v_permlane16_swap_b32 {pk[k][0]}, {pk[k][2]}'); A(f'v_permlane16_swap_b32 {pk[k][1]}, {pk[k][3]}')
        A(f'buffer_store_dwordx4 {pk[0]}, {va}, {sWS}, {s.sT0} offen sc1')
        A(f'buffer_store_dwordx4 {pk[1]}, {va}, {sWS}, {s.sT0} offen offset:2048 sc1')
        A(f'buffer_store_dwordx4 {pk[2]}, {va2}, {sWS}, {s.sT1} offen sc1')
        A(f'v_add_f32 {sm[0]}, {sm[0]}, {sm[1]}'); A(f'v_add_f32 {sm[1]}, {sq[0]}, {sq[1]}')
        for swp in ('16', '32'):
            A(f'v_mov_b32 {T[0]}, {sm[0]}'); A(f'v_mov_b32 {T[1]}, {sm[1]}')
            A(f'v_permlane{swp}_swap_b32 {sm[0]}, {T[0]}'); A(f'v_permlane{swp}_swap_b32 {sm[1]}, {T[1]}')
            A(f'v_pk_add_f32 {sm}, {sm}, {T}')
        A(f'v_cmp_gt_u32 vcc, 16, {s.vLane}'); A(f'v_lshlrev_b32 {t}, 6, {s.vLane}'); A(f'v_mov_b32 {u}, {OOB}'); A(f'v_cndmask_b32 {t}, {u}, {t}, vcc')
        A(f's_lshl_b32 {s.sT0}, {sTT}, 10'); A(f's_lshl_b32 {s.sT1}, {s.sJ2}, 3'); A(f's_add_u32 {s.sT0}, {s.sT0}, {s.sT1}'); A(f's_add_u32 {s.sT0}, {s.sT0}, {S2}')
        last = A(f'buffer_store_dwordx2 {sm}, {t}, {sWS}, {s.sT0} offen sc1')
        A(f's_lshl_b32 {s.sT0}, {sTw}, 7'); A(f's_and_b32 {s.sT1}, {s.sW}, 1'); A(f's_lshl_b32 {s.sT1}, {s.sT1}, 3'); A(f's_add_u32 {s.sT1}, {s.sT1}, {s.sJ2}')
        A(f's_lshl_b32 {s.sT1}, {s.sT1}, 2'); A(f's_add_u32 {s.sT0}, {s.sT0}, {s.sT1}'); A(f's_add_u32 {s.sT0}, {s.sT0}, {F2}')
        s.setflag(last, s.sT0)
        s.stamp(9)
        V.put(*acc, *pk, sm, sq, T, X, va, va2, *xt, gr)
        for f in fr: V.put(*f.regs)
        if s.stop <= 2: return
        A(f'v_and_b32 {t}, 7, {s.vLane}'); A(f'v_lshlrev_b32 {t}, 2, {t}'); A(f'v_and_b32 {u}, 8, {s.vLane}'); A(f'v_lshl_add_u32 {t}, {u}, 4, {t}')
        A(f's_lshl_b32 {s.sT0}, {s.sRb2}, 8'); A(f's_add_u32 {s.sT0}, {s.sT0}, {FQ}'); A(f'v_add_u32 {pa}, {s.sT0}, {t}')
        A(f'v_lshlrev_b32 {t}, 2, {vtok}')
        A(f's_lshl_b32 {s.sT0}, {s.sJ2}, 1'); A(f's_lshr_b32 {s.sT1}, {s.sW}, 1'); A(f's_add_u32 {s.sT0}, {s.sT0}, {s.sT1}'); A(f's_lshl_b32 {s.sT0}, {s.sT0}, 7'); A(f's_add_u32 {s.sT0}, {s.sT0}, {FK}')
        A(f'v_add_u32 {u}, {s.sT0}, {t}'); A(f'v_cmp_gt_u32 vcc, 16, {s.vLane}'); A(f'v_cndmask_b32 {pa}, {u}, {pa}, vcc')
        A(f's_lshr_b32 {s.sT0}, {s.sRb2}, 1'); A(f's_lshl_b32 {s.sT0}, {s.sT0}, 7'); A(f's_add_u32 {s.sT0}, {s.sT0}, {FK}')
        A(f'v_add_u32 {u}, {s.sT0}, {t}'); A(f'v_cmp_gt_u32 vcc, 32, {s.vLane}'); A(f'v_cndmask_b32 {pa}, {u}, {pa}, vcc')
        z2 = V.get(2)
        A(f'v_mov_b32 {z2[0]}, 0'); A(f'v_mov_b32 {z2[1]}, 0'); A(f'v_lshlrev_b32 {t}, 3, v0'); A(f'v_add_u32 {t}, {KVB}, {t}'); A(f'ds_write_b64 {t}, {z2}')
        V.put(z2)
        s.barrier()
        s.poll(pa)
        kq = [V.get(4) for _ in range(8)]; zq = [V.get() for _ in range(8)]; pq = V.get(10, 4); vk = V.get(); vz = V.get(); vp = V.get()
        sH = S.get(); sKo = S.get(); sZo = S.get(); sP = [S.get() for _ in range(3)]
        A(f'v_and_b32 {t}, 31, {s.vLane}'); A(f'v_min_u32 {vk}, 24, {t}'); A(f'v_lshlrev_b32 {vk}, 4, {vk}'); A(f'v_and_b32 {u}, 32, {s.vLane}'); A(f'v_lshl_add_u32 {vk}, {u}, 6, {vk}')
        A(f's_lshl_b32 {sKo}, {s.sRb2}, 15'); A(f's_mul_i32 {s.sT0}, {s.sW}, 400'); A(f's_add_u32 {sKo}, {sKo}, {s.sT0}'); A(f's_add_u32 {sKo}, {sKo}, {KV}')
        for i in range(8):
            A(f'buffer_load_dwordx4 {kq[i]}, {vk}, {sWS}, {sKo} offen sc1')
            if i < 7: A(f's_add_u32 {sKo}, {sKo}, 4096')
        A(f's_lshl_b32 {sH}, {s.sJ2}, 2'); A(f's_add_u32 {sH}, {sH}, {s.sW}'); A(f's_and_b32 {s.sT0}, {s.sW}, 1'); A(f's_lshl_b32 {s.sT0}, {s.sT0}, 2')
        A(f'v_min_u32 {vz}, 19, {t}'); A(f'v_add_u32 {vz}, {s.sT0}, {vz}'); A(f'v_subrev_u32 {t}, 20, {vz}'); A(f'v_min_u32 {vz}, {vz}, {t}')
        A(f'v_lshlrev_b32 {vz}, 2, {vz}'); A(f'v_lshl_add_u32 {vz}, {u}, 6, {vz}')
        A(f's_lshl_b32 {sZo}, {sH}, 15'); A(f's_add_u32 {sZo}, {sZo}, {KV + 1600}')
        for i in range(8):
            A(f'buffer_load_dword {zq[i]}, {vz}, {sWS}, {sZo} offen sc1')
            if i < 7: A(f's_add_u32 {sZo}, {sZo}, 4096')
        A(f'v_lshrrev_b32 {t}, 4, {s.vLane}'); A(f'v_mul_u32_u24 {t}, 20480, {t}'); A(f'v_lshl_add_u32 {vp}, {vtok}, 4, {t}')
        A(f's_mul_i32 {s.sT1}, {sH}, 20'); A(f's_add_u32 {s.sT2}, {s.sT1}, {s.sT0}'); A(f's_lshl_b32 {sP[0]}, {s.sT2}, 5')
        A(f's_mul_i32 {s.sT2}, {s.sRb2}, 81920'); A(f's_add_u32 {sP[0]}, {sP[0]}, {s.sT2}'); A(f's_add_u32 {sP[0]}, {sP[0]}, {PQ}')
        A(f's_cmp_eq_u32 {s.sT0}, 0'); A(f's_movk_i32 {sP[1]}, 512'); A(f's_cselect_b32 {sP[1]}, {sP[1]}, -248'); A(f's_add_u32 {sP[1]}, {sP[1]}, {sP[0]}')
        A(f'buffer_load_dwordx4 {pq[0:4]}, {vp}, {sWS}, {sP[0]} offen sc1')
        A(f'buffer_load_dwordx4 {pq[4:8]}, {vp}, {sWS}, {sP[0]} offen offset:256 sc1')
        A(f'buffer_load_dwordx2 {pq[8:10]}, {vp}, {sWS}, {sP[1]} offen sc1')
        slot4 = lambda i: 20 * KB * i
        b4b = [s.w80_panel(f'b4b_{i}', slot4([4, 3, 5, 6, 0, 1, 2, 4, 3, 5, 6, 0][i]), sW4, 128 * i) for i in range(12)]
        for p in b3[4:] + [b4b[0]]:
            for f in p.ops: f()
        for st_ in (4, 2, 1):
            for i in range(st_):
                for h in range(2): A(f'v_pk_add_f32 {kq[i].sub(2*h, 2)}, {kq[i].sub(2*h, 2)}, {kq[i + st_].sub(2*h, 2)}')
        for i in range(4): A(f'v_mov_b32 {kq[1][i]}, {kq[0][i]}')
        for i in range(4): A(f'v_permlane32_swap_b32 {kq[0][i]}, {kq[1][i]}')
        for h in range(2): A(f'v_pk_add_f32 {kq[0].sub(2*h, 2)}, {kq[0].sub(2*h, 2)}, {kq[1].sub(2*h, 2)}')
        A(f'v_cvt_pk_bf16_f32 {kq[1][0]}, {kq[0][0]}, {kq[0][1]}'); A(f'v_cvt_pk_bf16_f32 {kq[1][1]}, {kq[0][2]}, {kq[0][3]}')
        A(f'v_and_b32 {t}, 31, {s.vLane}'); A(f'v_min_u32 {t}, 24, {t}'); A(f'v_mul_u32_u24 {u}, 13108, {t}'); A(f'v_lshrrev_b32 {u}, 16, {u}')
        A(f'v_mul_u32_u24 {vk}, 24, {u}'); A(f'v_lshl_add_u32 {vk}, {t}, 3, {vk}')
        A(f's_mul_i32 {s.sT0}, {s.sW}, 320'); A(f's_add_u32 {s.sT0}, {s.sT0}, {KVB}'); A(f'v_add_u32 {vk}, {s.sT0}, {vk}')
        A(f'ds_write_b64 {vk}, {kq[1][0:2]}')
        s.barrier([pwo])
        ka = [V.get(4) for _ in range(2)]; wb = [V.get(4) for _ in range(2)]; D = [[V.get(4) for _ in range(2)] for _ in range(2)]
        A(f'v_lshlrev_b32 {t}, 6, {vtok}'); A(f'v_and_b32 {u}, 48, {s.vLane}'); A(f'v_add_u32 {t}, {t}, {u}'); A(f'v_add_u32 {t}, {KVB}, {t}')
        for m in range(2): A(f'ds_read_b128 {ka[m]}, {t} offset:{1024 * m}')
        A(f'v_lshrrev_b32 {t}, 4, {s.vLane}'); A(f'v_lshlrev_b32 {t}, 3, {t}'); A(f'v_bfe_u32 {u}, {s.vLane}, 2, 2'); A(f'v_add_u32 {t}, {t}, {u}'); A(f'v_mul_u32_u24 {t}, 160, {t}')
        A(f'v_and_b32 {u}, 3, {s.vLane}'); A(f'v_lshl_add_u32 {t}, {u}, 3, {t}'); A(f'v_add_u32 {t}, {WOB}, {t}')
        A(f's_lshl_b32 {s.sT0}, {s.sW}, 5'); A(f'v_add_u32 {u}, {s.sT0}, {t}')
        s.lt.read(pwo)
        for t2 in range(2):
            A(f'ds_read_b64_tr_b16 {wb[0].sub(2*t2, 2)}, {u} offset:{640 * t2}'); A(f'ds_read_b64_tr_b16 {wb[1].sub(2*t2, 2)}, {t} offset:{128 + 640 * t2}')
        for st_ in (4, 2, 1):
            for i in range(st_): A(f'v_add_f32 {zq[i]}, {zq[i]}, {zq[i + st_]}')
        A(f'v_mov_b32 {zq[1]}, {zq[0]}'); A(f'v_permlane32_swap_b32 {zq[0]}, {zq[1]}'); A(f'v_add_f32 {zq[0]}, {zq[0]}, {zq[1]}')
        for n in range(2):
            for m in range(2): A(f'v_mfma_f32_16x16x32_bf16 {D[n][m]}, {ka[m]}, {wb[n]}, 0')
        pf = V.get(20); den = V.get(2); sZ = S.get(2)
        for i in range(10): A(f'v_lshlrev_b32 {pf[2*i]}, 16, {pq[i]}'); A(f'v_and_b32 {pf[2*i+1]}, 0xffff0000, {pq[i]}')
        A(f'v_mov_b32 {den[0]}, {hexf(1e-6)}'); A(f'v_mov_b32 {den[1]}, 0')
        sZs = [sZ, S.get(2)]
        for i in range(10):
            z = sZs[i & 1]
            A(f'v_readlane_b32 {z[0]}, {zq[0]}, {2*i}'); A(f'v_readlane_b32 {z[1]}, {zq[0]}, {2*i+1}')
            if i: A(f'v_pk_fma_f32 {den}, {pf.sub(2*i-2, 2)}, {sZs[(i-1) & 1]}, {den}')
        A(f'v_pk_fma_f32 {den}, {pf.sub(18, 2)}, {sZs[1]}, {den}')
        A(f'v_add_f32 {den[0]}, {den[0]}, {den[1]}'); A(f'v_rcp_f32 {den[0]}, {den[0]}')
        for i in range(10): A(f'v_pk_mul_f32 {pf.sub(2*i, 2)}, {pf.sub(2*i, 2)}, {den} op_sel_hi:[1,0]')
        for i in range(10): A(f'v_cvt_pk_bf16_f32 {pq[i]}, {pf[2*i]}, {pf[2*i+1]}')
        A(f's_add_u32 {sP[0]}, {sP[0]}, {PP - PQ}'); A(f's_add_u32 {sP[1]}, {sP[1]}, {PP - PQ}')
        A(f'buffer_store_dwordx4 {pq[0:4]}, {vp}, {sWS}, {sP[0]} offen sc1')
        A(f'buffer_store_dwordx4 {pq[4:8]}, {vp}, {sWS}, {sP[0]} offen offset:256 sc1')
        A(f'buffer_store_dwordx2 {pq[8:10]}, {vp}, {sWS}, {sP[1]} offen sc1')
        wa = [V.get() for _ in range(2)]
        A(f's_mul_i32 {s.sT0}, {s.sRb2}, 5')
        for m in range(2):
            A(f'v_lshrrev_b32 {t}, 4, {s.vLane}'); A(f'v_add_u32 {t}, {s.sT0}, {t}')
            if m: A(f'v_add_u32 {t}, 4, {t}')
            A(f'v_lshrrev_b32 {u}, 3, {t}'); A(f'v_mul_u32_u24 {wa[m]}, 5120, {u}')
            A(f'v_bfe_u32 {u}, {t}, 1, 2'); A(f'v_lshl_add_u32 {wa[m]}, {u}, 8, {wa[m]}')
            A(f'v_and_b32 {u}, 1, {t}'); A(f'v_lshl_add_u32 {wa[m]}, {u}, 3, {wa[m]}'); A(f'v_lshl_add_u32 {wa[m]}, {vtok}, 4, {wa[m]}')
        A(f'v_cmp_gt_u32 vcc, 16, {s.vLane}'); A(f'v_mov_b32 {u}, {OOB}'); A(f'v_cndmask_b32 {wa[1]}, {u}, {wa[1]}, vcc')
        A(f's_mul_i32 {s.sT0}, {s.sJ2}, 102400'); A(f's_add_u32 {s.sT0}, {s.sT0}, {WOP}')
        A(f's_cmp_eq_u32 {s.sW}, 0'); A(f's_movk_i32 {s.sT1}, 4096'); A(f's_cselect_b32 {s.sT1}, {s.sT1}, 0x20000000'); A(f's_add_u32 {s.sT1}, {s.sT1}, {s.sT0}')
        A(f's_lshl_b32 {s.sT2}, {s.sW}, 10'); A(f's_add_u32 {s.sT0}, {s.sT0}, {s.sT2}')
        for n in range(2):
            for m in range(2):
                d = D[n][m]
                A(f'v_cvt_pk_bf16_f32 {d[0]}, {d[0]}, {d[1]}'); A(f'v_cvt_pk_bf16_f32 {d[1]}, {d[2]}, {d[3]}')
                last = A(f'buffer_store_dwordx2 {d[0:2]}, {wa[m]}, {sWS}, {[s.sT0, s.sT1][n]} offen sc1')
        V.put(*kq, *zq, pq, vk, vz, vp, *ka, *wb, *D[0], *D[1], pf, den, *wa); S.put(sH, sKo, sZo, *sP, *sZs)
        fw3, r3regs = s.mk_nt_read(3)
        sTw3 = S.get()
        A(f's_lshr_b32 {sTw3}, {s.sRb2}, 1'); A(f's_lshl_b32 {sTw3}, {sTw3}, 2'); A(f's_add_u32 {sTw3}, {sTw3}, {s.sW}')
        A(f's_mul_i32 {s.sT0}, {s.sCb3}, 96'); A(f's_add_u32 {s.sT0}, {s.sT0}, 2560')
        l3, cg, so3, va3 = s.cs_loads(3, s.sT0)
        for ld in l3: A(ld)
        A.waitvm(last)
        s.barrier()
        A(f's_lshl_b32 {s.sT0}, {s.sRb2}, 7'); A(f's_lshl_b32 {s.sT1}, {s.sJ2}, 2'); A(f's_add_u32 {s.sT0}, {s.sT0}, {s.sT1}'); A(f's_add_u32 {s.sT0}, {s.sT0}, {FP}')
        A(f's_lshl_b32 {s.sT1}, {s.sJ2}, 7'); A(f's_lshl_b32 {s.sT2}, {s.sRb2}, 2'); A(f's_add_u32 {s.sT1}, {s.sT1}, {s.sT2}'); A(f's_add_u32 {s.sT1}, {s.sT1}, {FW}')
        A(f'v_mov_b32 {t}, {OOB}'); A(f'v_mov_b32 {u}, {s.sT0}'); A(f'v_cmp_eq_u32 vcc, 0, v0'); A(f'v_cndmask_b32 {t}, {t}, {u}, vcc')
        A(f'v_mov_b32 {u}, {s.sT1}'); A(f'v_cmp_eq_u32 vcc, 1, v0'); A(f'v_cndmask_b32 {t}, {t}, {u}, vcc')
        A(f'buffer_store_dword {s.vN}, {t}, {sWS}, 0 offen sc1')
        s.stamp(10)
        if s.stop <= 3: return
        s.checked(l3, [c[k] for c in cg for k in (1, 3)])
        cs = s.cs_to_lds(3, cg); V.put(*cg, va3); S.put(so3)
        A(f's_lshl_b32 {s.sT1}, {sTw3}, 7'); A(f's_add_u32 {s.sT1}, {s.sT1}, {F2}'); A(f'v_lshlrev_b32 {pa}, 2, {vtok}')
        s.poll(pa, s.sT1)
        s.stamp(11)
        XF = [AG.get(4) for _ in range(40)]; sXo3 = S.get(); st2 = [V.get(4) for _ in range(2)]
        A(f's_mul_i32 {sXo3}, {sTw3}, 40960'); A(f's_add_u32 {sXo3}, {sXo3}, {X1}')
        def ldx3(i):
            if i >= 40: return
            if i % 4 == 0 and i: A(f's_add_u32 {sXo3}, {sXo3}, 4096')
            A(f'buffer_load_dwordx4 {XF[i]}, {s.vL16}, {sWS}, {sXo3} offen offset:{1024 * (i % 4)} sc1')
        LA3 = 12
        for i in range(LA3): ldx3(i)
        sWp = S.get()
        b4a = []
        for i in range(5):
            p = Panel(f'b4a_{i}', slot4([5, 6, 0, 1, 2][i]), 20 * KB); p.sc = 'sc1'
            p.ops = [lambda i=i: (A(f's_mul_i32 {sWp}, {s.sJ2}, 102400'), A(f's_add_u32 {sWp}, {sWp}, {s.sW5120}'), A(f's_add_u32 {sWp}, {sWp}, {WOP + 20480 * i}'))]
            g1 = s.dma_ops(p, [((s.sW5120, p.addr), sWS, sWp, [(s.vL16, 1024 * k) for k in range(4)]), ((s.sW5120, p.addr + 4096), sWS, sWp, [(s.vL16, 0)])])
            p.ops += g1[:5] + [lambda: A(f's_add_u32 {sWp}, {sWp}, 4096')] + g1[5:]
            b4a.append(p)
        pw = V.get(); pwa = V.get(); pwl = []
        acc = [V.get(16) for _ in range(3)]
        def hook3(st, h):
            if st == 0 and h == 1:
                A(f'v_and_b32 {t}, 31, {s.vLane}'); A(f'v_lshlrev_b32 {t}, 6, {t}'); A(f'v_and_b32 {u}, 32, {s.vLane}'); A(f'v_add_u32 {t}, {t}, {u}')
                A(f's_lshl_b32 {s.sT0}, {sTw3}, 11'); A(f's_add_u32 {s.sT0}, {s.sT0}, {S2}')
                for k in range(2): A(f'buffer_load_dwordx4 {st2[k]}, {t}, {sWS}, {s.sT0} offen offset:{16 * k} sc1')
            if st == 2 and h == 0:
                A(f'v_and_b32 {t}, 31, {s.vLane}'); A(f'v_lshlrev_b32 {t}, 2, {t}'); A(f's_lshl_b32 {s.sT0}, {s.sJ2}, 7'); A(f's_add_u32 {s.sT0}, {s.sT0}, {FW}'); A(f'v_add_u32 {pwa}, {s.sT0}, {t}')
                A(f'v_and_b32 {t}, 28, {t}'); A(f's_lshl_b32 {s.sT0}, {s.sRb2}, 7'); A(f's_add_u32 {s.sT0}, {s.sT0}, {FP}'); A(f'v_add_u32 {t}, {s.sT0}, {t}')
                A(f'v_cmp_gt_u32 vcc, 32, {s.vLane}'); A(f'v_cndmask_b32 {pwa}, {t}, {pwa}, vcc')
                pwl.append(f'buffer_load_dword {pw}, {pwa}, {sWS}, 0 offen sc1'); A(pwl[0])
            if st == 3 and h == 1:
                s.checked(pwl, [pw])
                pend3.extend(b4a + [b4b[1]])
        pend3 = []
        s.gemm32(3, b3, 0, XF, fw3, acc, pend3, hook=hook3, xload=lambda n: ldx3(n + LA3), nobar=(0, 1, 2, 4, 6), first_waits=b3[1:])
        s.stamp(12)
        AG.put(*XF); V.put(*r3regs, *vB3, pw, pwa); S.put(sXo3, sW3072, sO3, sC3)
        XA = [[AG.get(4) for _ in range(2)] for _ in range(24)]
        sA4 = [S.get() for _ in range(2)]; sKh = S.get()
        A(f's_and_b32 {sKh}, {s.sW}, 1')
        def a4_base(base, nkb):
            for m in range(2):
                A(f's_xor_b32 {sA4[m]}, {sTT}, {m}'); A(f's_mul_i32 {sA4[m]}, {sA4[m]}, {nkb * 1024}'); A(f's_lshl_b32 {s.sT0}, {sKh}, 11')
                A(f's_add_u32 {sA4[m]}, {sA4[m]}, {s.sT0}'); A(f's_add_u32 {sA4[m]}, {sA4[m]}, {base}')
        def lda4(n, lim):
            if n >= lim: return
            if n % 2 == 0 and n:
                for m in range(2): A(f's_add_u32 {sA4[m]}, {sA4[m]}, 4096')
            for m in range(2): A(f'buffer_load_dwordx4 {XA[n][m]}, {s.vL16}, {sWS}, {sA4[m]} offen offset:{1024 * (n % 2)} sc1')
        ab = [V.get(2), V.get(2)]; vo = V.get(); so = S.get()
        A(f'v_pk_add_f32 {st2[0][0:2]}, {st2[0][0:2]}, {st2[0][2:4]}'); A(f'v_pk_add_f32 {st2[1][0:2]}, {st2[1][0:2]}, {st2[1][2:4]}'); A(f'v_pk_add_f32 {st2[0][0:2]}, {st2[0][0:2]}, {st2[1][0:2]}')
        A(f'v_mov_b32 {st2[0][2]}, {st2[0][0]}'); A(f'v_mov_b32 {st2[0][3]}, {st2[0][1]}')
        A(f'v_permlane32_swap_b32 {st2[0][0]}, {st2[0][2]}'); A(f'v_permlane32_swap_b32 {st2[0][1]}, {st2[0][3]}')
        A(f'v_pk_add_f32 {st2[0][0:2]}, {st2[0][0:2]}, {st2[0][2:4]}')
        s.ln_scalars(st2[0][0], st2[0][1], ab[0][0], ab[1][0], var=st2[0][1])
        A(f'v_and_b32 {t}, 31, {s.vLane}')
        s.f16_voff(vo, t, 48)
        def addr3(J):
            if J == 0:
                A(f's_mul_i32 {so}, {sTw3}, {2 * 48 * 1024}'); A(f's_mul_i32 {s.sT0}, {s.sCb3}, 3072'); A(f's_add_u32 {so}, {so}, {s.sT0}'); A(f's_add_u32 {so}, {so}, {H3}')
            else: A(f's_add_u32 {so}, {so}, 1024')
            return vo, so, ab[0], ab[1]
        s.flush2(); assert not pend3
        last = s.epi32('gelu', acc, cs, None, None, addr3)
        a4_base(PP, 20)
        for n in range(10): lda4(n, 10)
        A(f's_lshl_b32 {s.sT0}, {sTw3}, 7'); A(f's_lshl_b32 {s.sT1}, {s.sCb3}, 2'); A(f's_add_u32 {s.sT0}, {s.sT0}, {s.sT1}'); A(f's_add_u32 {s.sT0}, {s.sT0}, {F3}')
        s.setflag(last, s.sT0)
        s.stamp(13)
        V.put(*acc, *cs, *ab, vo, *st2); S.put(so)
        if s.stop <= 4: return
        A(f's_mul_i32 {s.sT0}, {sKh}, 10240')
        fr = s.w80_read(s.sT0)
        la = V.get(); A(f'v_add_u32 {la}, {s.sT0}, {s.vL16}'); fl = s.dsaddr(la)
        acc = [[V.get(4) for _ in range(5)] for _ in range(2)]
        WB = [[V.get(4) for _ in range(5)] for _ in range(2)]
        def mf4(first, lim, LA):
            def mfmas(st, h):
                n = 2 * st + h; out = []
                for nt in range(5):
                    for m in range(2):
                        def f(nt=nt, m=m):
                            A(f'v_mfma_f32_16x16x32_bf16 {acc[m][nt]}, {WB[h][nt]}, {XA[n][m]}, {"0" if first and n == 0 else acc[m][nt]}')
                            if LA and nt == 4 and m == 1: lda4(n + LA, lim)
                        out.append(f)
                return out
            return mfmas
        def reads4a(st, h):
            p = b4a[st]
            return [(lambda nt=nt: (s.lt.read(p), A(f'ds_read_b128 {WB[h][nt]}, {fl(p.addr + (5 * h + nt) * 1024)}'))) for nt in range(5)]
        def reads4b(st, h):
            p = b4b[st]
            return [(lambda nt=nt, t2=t2: (s.lt.read(p), A(f'ds_read_b64_tr_b16 {WB[h][nt].sub(2*t2, 2)}, {fr[(5*h + nt) & 1](p.addr + t2 * 1280 + 32 * (5 * h + nt))}'))) for nt in range(5) for t2 in range(2)]
        pend4 = b4b[2:]
        s.pipeline(5, [[p] for p in b4a], reads4a, mf4(True, 0, 0), 1, 1, pend4)
        s.flush2()
        s.stamp(14)
        A(f's_lshl_b32 {s.sT1}, {sTw}, 7'); A(f's_add_u32 {s.sT1}, {s.sT1}, {F3}')
        a4_base(H3, 48)
        s.poll(pa, s.sT1)
        s.stamp(15)
        LA4 = 6
        for n in range(LA4): lda4(n, 24)
        s.pipeline(12, [[p] for p in b4b], reads4b, mf4(False, 24, LA4), 1, 1, pend4)
        assert not pend4 and not s.q2
        RED = slot4(1)
        A(f's_add_u32 {s.sT0}, {s.sW5120}, {RED}'); A(f'v_add_u32 {t}, {s.sT0}, {s.vL16}')
        A(f's_xor_b32 {s.sT0}, {s.sW}, 1'); A(f's_mul_i32 {s.sT0}, {s.sT0}, 5120'); A(f's_add_u32 {s.sT0}, {s.sT0}, {RED}'); A(f'v_add_u32 {u}, {s.sT0}, {s.vL16}')
        for nt in range(5): A(f'ds_write_b128 {t}, {acc[1][nt]} offset:{1024 * nt}')
        for nt in range(5):
            for h in range(2): A(f'v_pk_add_f32 {acc[0][nt].sub(2*h, 2)}, {acc[0][nt].sub(2*h, 2)}, {resid[nt].sub(2*h, 2)}')
        s.barrier()
        for nt in range(5): A(f'ds_read_b128 {WB[0][nt]}, {u} offset:{1024 * nt}')
        va = V.get(); va2 = V.get(); pk = [V.get(4) for _ in range(3)]
        A(f'v_mul_u32_u24 {va}, 1280, {vtok}'); A(f'v_lshrrev_b32 {t}, 1, {s.vLane}'); A(f'v_and_b32 {t}, 16, {t}'); A(f'v_add_u32 {va}, {va}, {t}')
        A(f'v_and_b32 {t}, 16, {s.vLane}'); A(f'v_lshl_add_u32 {va2}, {t}, 26, {va}'); A(f'v_lshl_add_u32 {va}, {t}, 1, {va}')
        A(f's_add_u32 {s.sT0}, {sXo}, {s.sJ160}')
        for nt in range(5):
            for h in range(2):
                y = acc[0][nt].sub(2 * h, 2)
                A(f'v_pk_add_f32 {y}, {y}, {WB[0][nt].sub(2*h, 2)}')
                A(f'v_cvt_pk_bf16_f32 {pk[nt // 2][2 * (nt & 1) + h]}, {y[0]}, {y[1]}')
        for k in range(3):
            A(f'v_permlane16_swap_b32 {pk[k][0]}, {pk[k][2]}'); A(f'v_permlane16_swap_b32 {pk[k][1]}, {pk[k][3]}')
            A(f'buffer_store_dwordx4 {pk[k]}, {va if k < 2 else va2}, {sOUT}, {s.sT0} offen offset:{64 * k}')

    def finish(s):
        A = s.A
        t = s.V.get(); u = s.V.get()
        if s.stop > 4:
            A(f'v_or_b32 {t}, s2, v0'); A(f'v_cmp_eq_u32 vcc, 0, {t}'); A(f'v_mov_b32 {u}, {OOB}'); A(f'v_cndmask_b32 {t}, {u}, {t}, vcc')
            A(f'buffer_store_dword {s.vN}, {t}, {sWS}, 0 offen')
        if s.stamps:
            A('s_waitcnt vmcnt(0)')
            s.stamp(16)
            A(f's_lshl_b32 {s.sT0}, s2, 2'); A(f's_add_u32 {s.sT0}, {s.sT0}, {s.sW}'); A(f's_lshl_b32 {s.sT0}, {s.sT0}, 7'); A(f's_add_u32 {s.sT0}, {s.sT0}, {STAMP}')
            A(f'v_and_b32 {t}, 31, {s.vLane}'); A(f'v_lshlrev_b32 {t}, 2, {t}'); A(f'v_and_b32 {u}, 32, {s.vLane}'); A(f'v_lshl_add_u32 {t}, {u}, 25, {t}')
            A(f'buffer_store_dword {s.vStamp}, {t}, {sWS}, {s.sT0} offen')
        A('L_end:'); A('s_endpgm')
        A.ins += s.cold
        A('s_endpgm')
        A('.p2align 8'); A('L_codeend:')

    def build(s):
        s.prologue()
        snap = (s.V.snapshot(), s.AG.snapshot(), s.S.snapshot())
        for var in ('B', 'A', 'T1'):
            s.V.restore(snap[0]); s.AG.restore(snap[1]); s.S.restore(snap[2]); s.q2 = []
            s.b2p = s.b2_panels()
            if var == 'T1': s.t1()
            else: s.t23(var)
        s.V.restore(snap[0]); s.AG.restore(snap[1]); s.S.restore(snap[2])
        s.V.put(*s.vXA); s.S.put(s.sOA, s.sOB, s.sEA, s.sBB, s.sCl, s.sXc, s.sRb)
        s.common()
        s.finish()
        hdr = open('cdna_kernels/' + NAME + '.s.ref').read().split('; Override launch')[0]
        txt = hdr + '; @launch grid=(256,1,1) block=(256,1,1) lds=163840\n'
        txt += f'.amdgcn_target "amdgcn-amd-amdhsa--gfx950"\n.text\n.globl {NAME}_kernel\n.p2align 8\n.type {NAME}_kernel,@function\n{NAME}_kernel:\n'
        txt += s.A.text()
        txt += f'''.section .rodata,"a"
.p2align 6
.amdhsa_kernel {NAME}_kernel
  .amdhsa_next_free_vgpr 512
  .amdhsa_next_free_sgpr 102
  .amdhsa_accum_offset 256
  .amdhsa_group_segment_fixed_size 0
  .amdhsa_kernarg_size 88
  .amdhsa_user_sgpr_count 2
  .amdhsa_user_sgpr_kernarg_segment_ptr 1
  .amdhsa_system_sgpr_workgroup_id_x 1
.end_amdhsa_kernel
'''
        return txt

if __name__ == '__main__':
    import argparse
    ap = argparse.ArgumentParser()
    ap.add_argument('-o', default='cdna_kernels/' + NAME + '.s')
    ap.add_argument('--stop', type=int, default=99)
    ap.add_argument('--stamps', action='store_true')
    a = ap.parse_args()
    g = G(stop=a.stop, stamps=a.stamps)
    open(a.o, 'w').write(g.build())
    print('written', a.o, 'vgpr top', g.V.top, 'agpr top', g.AG.top, 'sgpr top', g.S.top)
```

```python
import sys, struct, math
from asmgen import *

NAME = 'parallel_sum__linear_attn_block__mixer_s_mlp__prompt'
KB = 1024
F1, FQ, FK, F2, FP, FW, F3 = 0x1000, 0x3000, 0x5000, 0x6000, 0x8000, 0x9000, 0xB000
RS, CS, S2, KV, STAMP = 0x10000, 0x18000, 0x40000, 0x60000, 0x180000
HS, PQ, PP, X1, H3, WOP = 0x200000, 0x480000, 0x700000, 0x980000, 0xC00000, 0x1200000
WS_USED = 0x1400000
OOB = 0x40000000
MISC = 148 * KB
KVB = 152 * KB
WOB = 154 * KB
SPIN = 200000

def f2u(x): return struct.unpack('<I', struct.pack('<f', x))[0]
def hexf(x): return '0x%08x' % f2u(x)
LOG2E = 1.4426950408889634
GC0 = -2.0 * LOG2E * math.sqrt(2.0 / math.pi)
GC1 = GC0 * 0.044715

sX, sWQKV, sWO, sW1, sW2, sW3, sW4, sOUT, sWS, sCSRC = [R('s', 4 + 4 * i, 4) for i in range(10)]

class Panel:
    def __init__(s, name, addr, size): s.name, s.addr, s.size = name, addr, size; s.last = None; s.waited = None; s.lastread = -1; s.dead = False; s.issued = False

class LT:
    def __init__(s): s.epoch = 0; s.live = []
    def issue(s, p):
        for q in list(s.live):
            if q is p: continue
            if q.addr < p.addr + p.size and p.addr < q.addr + q.size:
                assert q.dead and q.lastread < s.epoch, f'panel {p.name} overwrites live {q.name}'
                s.live.remove(q)
        if p not in s.live: s.live.append(p)
    def can_issue(s, p):
        return all(q is p or not (q.addr < p.addr + p.size and p.addr < q.addr + q.size) or (q.dead and q.lastread < s.epoch) for q in s.live)
    def read(s, p):
        assert p.waited is not None and p.waited < s.epoch and not p.dead and p in s.live, f'bad read of {p.name}'
        p.lastread = s.epoch

class G:
    def __init__(s, stop=99, stamps=False, dbg=''):
        s.A = Asm(); s.stop = stop; s.stamps = stamps; s.dbg = dbg; s.stbase = None
        s.V = Pool('v', 1, 256); s.AG = Pool('a', 0, 256); s.S = Pool('s', 44, 100)
        s.lt = LT(); s.cold = []; s.nlab = 0; s.nstamp = 0
        s.q2 = []

    def lab(s, p='L'): s.nlab += 1; return f'{p}{s.nlab}'
    def stamp(s, n):
        if s.stamps:
            s.A(f's_mem{"" if "cyc" in s.dbg else "real"}time {s.sStamp}'); s.A(f'v_writelane_b32 {s.vStamp}, {s.sStamp[0]}, {n}')
    def barrier(s, waits=()):
        A = s.A
        A('s_waitcnt lgkmcnt(0)')
        for p in waits:
            assert p.issued, p.name
            if p.last == 'prejoin': A.wait_prejoin()
            else: A.waitvm(p.last)
            p.waited = s.lt.epoch
        A('s_barrier'); s.lt.epoch += 1
    def dsaddr(s, base, wins=(0, 1, 2)):
        regs = {0: base}
        for wv in wins:
            if wv:
                r = s.V.get(); s.A(f'v_add_u32 {r}, {wv * 65536}, {base}'); regs[wv] = r
        def at(c): return f'{regs[c >> 16]} offset:{c & 0xffff}'
        at.regs = list(regs.values())
        return at
    def dma_ops(s, p, groups):
        ops = []; n = sum(len(g[3]) for g in groups); cnt = [0]
        def first(): s.lt.issue(p)
        for gi, (m0, srd, soff, lst) in enumerate(groups):
            def setm(m0=m0, gi=gi):
                if gi == 0: first()
                s.A(f's_add_u32 m0, {m0[0]}, {m0[1]}' if m0[0] is not None else f's_mov_b32 m0, {m0[1]}')
            ops.append(setm)
            for (vo, imm) in lst:
                def ld(srd=srd, soff=soff, vo=vo, imm=imm, sc=getattr(p, 'sc', '')):
                    i = s.A(f'buffer_load_dwordx4 {vo}, {srd}, {soff} offen offset:{imm} {sc} lds')
                    cnt[0] += 1
                    if cnt[0] == n: p.last = i; p.issued = True
                ops.append(ld)
        return ops
    def flush2(s, n=None):
        k = 0
        while s.q2 and (n is None or k < n): s.q2.pop(0)(); k += 1
    def weave(s, mf, prim, n1, n2):
        prim = list(prim)
        for m in mf:
            m()
            for _ in range(n1):
                if prim: prim.pop(0)()
            s.flush2(n2 if prim else n2 + n1)
        for f in prim: f()
    def poll(s, vaddr, soff='0'):
        A = s.A; L = s.lab('P'); D = s.lab('PD'); t = s.V.get()
        A(f's_mov_b32 {s.sT0}, {SPIN}')
        A(f'{L}:')
        A(f'buffer_load_dword {t}, {vaddr}, {sWS}, {soff} offen sc1')
        A(f's_sub_u32 {s.sT0}, {s.sT0}, 1')
        A(f's_cbranch_scc1 {D}')
        A(f'v_cmp_ne_u32 vcc, {s.sN}, {t}')
        A(f's_cbranch_vccnz {L}')
        A(f'{D}:')
        A('s_waitcnt vmcnt(0)')
        s.V.put(t)
    def checked(s, loads, tags):
        A = s.A; Lr = s.lab('R'); Lb = s.lab('B')
        def chk(target, br):
            t = s.V.get()
            if len(tags) == 1:
                A(f'v_cmp_ne_u32 vcc, {s.sN}, {tags[0]}')
            else:
                A(f'v_xor_b32 {t}, {s.sN}, {tags[0]}')
                for x in tags[1:]:
                    A(f'v_bitop3_b32 {t}, {t}, {s.vN}, {x} bitop3:0xf6')
                A(f'v_cmp_ne_u32 vcc, 0, {t}')
            A(f'{br} {target}')
            s.V.put(t)
        chk(Lr, 's_cbranch_vccnz')
        A(f'{Lb}:')
        main = A.ins; A.ins = []
        A(f'{Lr}:')
        A('s_waitcnt vmcnt(0) lgkmcnt(0)')
        A(f's_mov_b32 {s.sT0}, {SPIN}')
        L2 = s.lab('R')
        A(f'{L2}:')
        for ld in loads: A(ld)
        A('s_waitcnt vmcnt(0)')
        A(f's_sub_u32 {s.sT0}, {s.sT0}, 1')
        A(f's_cbranch_scc1 {Lb}')
        chk(L2, 's_cbranch_vccnz')
        A('s_nop 4')
        A(f's_branch {Lb}')
        s.cold += A.ins; A.ins = main
    def setflag(s, last_store, soff, voff=None):
        A = s.A
        A.waitvm(last_store)
        A(f'buffer_store_dword {s.vN}, {voff or s.vL0}, {sWS}, {soff} offen sc1')
    def rbf(s, d, x):
        s.A(f'v_cvt_pk_bf16_f32 {d}, {x}, {x}'); s.A(f'v_and_b32 {d}, 0xffff0000, {d}')
    def div20(s, i, q, c20):
        A = s.A; t = s.V.get()
        A(f'v_add_u32 {t}, {64*i}, {s.vLane}')
        A(f'v_mul_u32_u24 {q}, 3277, {t}'); A(f'v_lshrrev_b32 {q}, 16, {q}')
        A(f'v_mul_u32_u24 {c20}, 20, {q}'); A(f'v_sub_u32 {c20}, {t}, {c20}')
        A(f'v_lshrrev_b32 {t}, 2, {q}'); A(f'v_and_b32 {t}, 2, {t}'); A(f'v_xor_b32 {c20}, {c20}, {t}')
        A(f'v_cmp_le_u32 vcc, 10, {c20}')
        s.V.put(t)
    def mk_w80_voff(s):
        A = s.A; q = s.V.get(); c = s.V.get(); t = s.V.get()
        A(f's_lshr_b32 {s.sT0}, {s.sW}, 1'); A(f's_lshl_b32 {s.sT0}, {s.sT0}, 6')
        A(f's_and_b32 {s.sT1}, {s.sW}, 1'); A(f's_lshl_b32 {s.sT1}, {s.sT1}, 4'); A(f's_add_u32 {s.sT0}, {s.sT0}, {s.sT1}')
        for i in range(5):
            s.div20(i, q, c)
            A(f'v_mov_b32 {t}, {40960 - 160}')
            A(f'v_add_u32 {q}, {s.sT0}, {q}')
            A(f'v_cndmask_b32 {t}, 0, {t}, vcc')
            A(f'v_mul_u32_u24 {q}, 1280, {q}'); A(f'v_lshlrev_b32 {c}, 4, {c}')
            A(f'v_add3_u32 {s.vW80[i]}, {q}, {c}, {t}')
            if 0 < i < 4: A(f'v_subrev_u32 {s.vW80[i]}, {1024*i}, {s.vW80[i]}')
        s.V.put(q, c, t)
    def w80_panel(s, name, addr, srd, kbase):
        p = Panel(name, addr, 20 * KB)
        so = s.sQ
        ops = [lambda: s.A(f's_add_u32 {so}, {s.sJ160}, {kbase * 1280}')]
        ops += s.dma_ops(p, [((s.sW5120, addr), srd, so, [(s.vW80[i], 1024 * i) for i in range(4)]),
                             ((s.sW5120, addr + 4096), srd, so, [(s.vW80[4], 0)])])
        p.ops = ops
        return p
    def mk_nt_voff(s, NT, stride):
        A = s.A; vo = [s.V.get() for _ in range(NT)]; t = s.V.get(); c = s.V.get()
        A(f's_lshl_b32 {s.sT0}, {s.sW}, 4')
        if NT == 3:
            for i in range(3):
                q = vo[i]
                A(f'v_add_u32 {t}, {64*i}, {s.vLane}')
                A(f'v_mul_u32_u24 {q}, 5462, {t}'); A(f'v_lshrrev_b32 {q}, 16, {q}')
                A(f'v_mul_u32_u24 {c}, 12, {q}'); A(f'v_sub_u32 {c}, {t}, {c}')
                A(f'v_add_u32 {q}, {s.sT0}, {q}'); A(f'v_mul_u32_u24 {q}, {stride}, {q}')
                A(f'v_lshl_add_u32 {q}, {c}, 4, {q}')
                if i: A(f'v_subrev_u32 {q}, {1024*i}, {q}')
        else:
            A(f'v_lshrrev_b32 {t}, 3, {s.vLane}'); A(f'v_add_u32 {t}, {s.sT0}, {t}'); A(f'v_mul_u32_u24 {t}, {stride}, {t}')
            A(f'v_lshrrev_b32 {c}, 2, {s.vLane}'); A(f'v_and_b32 {c}, 4, {c}'); A(f'v_xor_b32 {c}, {c}, {s.vLane}'); A(f'v_and_b32 {c}, 7, {c}')
            A(f'v_lshl_add_u32 {vo[0]}, {c}, 4, {t}')
            A(f'v_add_u32 {vo[1]}, {8 * stride - 1024}, {vo[0]}')
        s.V.put(t, c)
        return vo
    def mk_nt_read(s, NT):
        A = s.A; b = s.V.get(); t = s.V.get(); rs = 64 * NT
        A(f'v_lshrrev_b32 {b}, 5, {s.vLane}'); A(f'v_lshlrev_b32 {b}, 3, {b}')
        A(f'v_bfe_u32 {t}, {s.vLane}, 2, 2'); A(f'v_add_u32 {b}, {b}, {t}'); A(f'v_mul_u32_u24 {b}, {rs}, {b}')
        A(f'v_and_b32 {t}, 3, {s.vLane}'); A(f'v_lshl_add_u32 {b}, {t}, 3, {b}')
        A(f'v_and_b32 {t}, 16, {s.vLane}'); A(f'v_lshl_add_u32 {b}, {t}, 1, {b}')
        if NT == 3:
            f = s.dsaddr(b); s.V.put(t)
            fs = [(lambda c, J=J: f(c + 64 * J)) for J in range(3)]; regs = f.regs
        else:
            A(f'v_and_b32 {t}, 8, {s.vLane}'); A(f'v_lshlrev_b32 {t}, 3, {t}')
            A(f'v_xor_b32 {b}, {b}, {t}'); A(f'v_xor_b32 {t}, 64, {b}')
            f0 = s.dsaddr(b); f1 = s.dsaddr(t); fs = [f0, f1]; regs = f0.regs + f1.regs
        return fs, regs

    def prologue(s):
        A = s.A; S = s.S; V = s.V
        A('s_cmp_ge_u32 s2, 256'); A('s_cbranch_scc1 L_end')
        for srd, off in [(sX, 0), (sWQKV, 8), (sW1, 32), (sWS, 80), (sW3, 48), (sW2, 40), (sWO, 16), (sW4, 56), (sOUT, 64)]:
            A(f's_load_dwordx2 {srd[0:2]}, s[0:1], {off}')
        if s.stamps: s.sStamp = S.get(2); s.vStamp = V.get(); A(f'v_mov_b32 {s.vStamp}, 0')
        s.stamp(0)
        s.sT0, s.sT1, s.sT2, s.sT3 = S.get(), S.get(), S.get(), S.get()
        s.sW, s.sN, s.sQ = S.get(), S.get(), S.get()
        s.sW4096, s.sW5120, s.sMisc = S.get(), S.get(), S.get()
        s.sRb, s.sCl, s.sXc, s.sRb2, s.sJ2, s.sJ160, s.sCb3 = [S.get() for _ in range(7)]
        s.sOA, s.sOB, s.sEA, s.sBB = [S.get() for _ in range(4)]
        s.vLane, s.vL16, s.vL0, s.vN = V.get(), V.get(), V.get(), V.get()
        s.vXA = [V.get() for _ in range(4)]
        s.vW80 = [V.get() for _ in range(5)]
        t = V.get(); u = V.get()
        A(f'v_lshrrev_b32 {t}, 6, v0'); A(f'v_and_b32 {s.vLane}, 63, v0')
        A(f'v_readfirstlane_b32 {s.sW}, {t}')
        A(f's_and_b32 {s.sT0}, s2, 7'); A(f's_lshr_b32 {s.sT1}, s2, 3')
        A(f's_and_b32 {s.sRb}, {s.sT0}, 3'); A(f's_lshl_b32 {s.sRb}, {s.sRb}, 2'); A(f's_and_b32 {s.sT2}, {s.sT1}, 3'); A(f's_add_u32 {s.sRb}, {s.sRb}, {s.sT2}')
        A(f's_lshr_b32 {s.sCl}, {s.sT1}, 2'); A(f's_lshr_b32 {s.sXc}, {s.sT0}, 2')
        A(f's_lshl_b32 {s.sRb2}, {s.sT0}, 2'); A(f's_lshr_b32 {s.sT2}, {s.sT1}, 3'); A(f's_add_u32 {s.sRb2}, {s.sRb2}, {s.sT2}')
        A(f's_and_b32 {s.sJ2}, {s.sT1}, 7'); A(f's_mul_i32 {s.sJ160}, {s.sJ2}, 160'); A(f's_and_b32 {s.sCb3}, {s.sT1}, 15')
        A(f'v_mul_u32_u24 {t}, 40960, {t}'); A(f'v_lshrrev_b32 {u}, 3, {s.vLane}'); A(f'v_mul_u32_u24 {u}, 1280, {u}'); A(f'v_add_u32 {t}, {t}, {u}')
        A(f'v_lshrrev_b32 {u}, 4, {s.vLane}'); A(f'v_xor_b32 {u}, {u}, {s.vLane}'); A(f'v_and_b32 {u}, 7, {u}'); A(f'v_lshlrev_b32 {u}, 4, {u}')
        A(f'v_add_u32 {s.vXA[0]}, {t}, {u}'); A(f'v_xor_b32 {u}, 64, {u}'); A(f'v_add_u32 {u}, 9216, {u}'); A(f'v_add_u32 {s.vXA[1]}, {t}, {u}')
        A(f'v_add_u32 {s.vXA[2]}, 18432, {s.vXA[0]}'); A(f'v_add_u32 {s.vXA[3]}, 18432, {s.vXA[1]}')
        A(f'v_lshlrev_b32 {s.vL16}, 4, {s.vLane}')
        A(f'v_cmp_eq_u32 vcc, 0, {s.vLane}'); A(f'v_mov_b32 {t}, {OOB}'); A(f'v_cndmask_b32 {s.vL0}, {t}, 0, vcc'.replace(', 0, vcc', f', {s.vLane}, vcc'))
        V.put(t, u)
        A(f's_lshl_b32 {s.sW4096}, {s.sW}, 12'); A(f's_mul_i32 {s.sW5120}, {s.sW}, 5120')
        A(f's_lshl_b32 {s.sMisc}, {s.sW}, 10'); A(f's_add_u32 {s.sMisc}, {s.sMisc}, {MISC}')
        for srd, n in [(sX, 2621440), (sWQKV, 2457600), (sW1, 819200), (sWS, WS_USED), (sW3, 1966080), (sW2, 819200), (sWO, 819200), (sW4, 1966080), (sOUT, 2621440)]:
            A(f's_mov_b32 {srd[2]}, {n}'); A(f's_mov_b32 {srd[3]}, 0x20000')
        A(f's_cmp_lt_u32 {s.sCl}, 4'); A('s_cbranch_scc1 L_T1')
        A(f's_cmp_lt_u32 {s.sCl}, 6'); A('s_cbranch_scc1 L_TA')
        A.ctl('save', 'fork')

    def rot_init(s, colidx, bbase, bstride):
        A = s.A
        A(f's_add_u32 {s.sT0}, {s.sRb}, {colidx}'); A(f's_mul_i32 {s.sT1}, {s.sT0}, 26'); A(f's_lshr_b32 {s.sT1}, {s.sT1}, 8')
        A(f's_mul_i32 {s.sT1}, {s.sT1}, 10'); A(f's_sub_u32 {s.sRot}, {s.sT0}, {s.sT1}')
        if 'norot' in s.dbg: A(f's_mov_b32 {s.sRot}, 0')
        A(f's_mul_i32 {s.sEA}, {s.sRb}, 163840'); A(f's_lshl_b32 {s.sOA}, {s.sRot}, 7'); A(f's_add_u32 {s.sOA}, {s.sOA}, {s.sEA}')
        A(f's_add_u32 {s.sEA}, {s.sEA}, 1280')
        A(f's_mul_i32 {s.sOB}, {s.sRot}, {64 * bstride}'); A(f's_add_u32 {s.sOB}, {s.sOB}, {bbase}'); A(f's_mov_b32 {s.sBB}, {bbase}')
    def rot_step(s, bstride):
        A = s.A
        return [lambda: A(f's_add_u32 {s.sOA}, {s.sOA}, 128'), lambda: A(f's_add_u32 {s.sOB}, {s.sOB}, {64 * bstride}'),
                lambda: (A(f's_cmp_eq_u32 {s.sOA}, {s.sEA}'), A(f's_cselect_b32 {s.sOB}, {s.sBB}, {s.sOB}'),
                         A(f's_cselect_b32 {s.sT3}, 1280, 0'), A(f's_sub_u32 {s.sOA}, {s.sOA}, {s.sT3}'))]

    def p0_issue(s, csaddr):
        A = s.A; V = s.V
        s.p0x = V.get(10, 2); t = V.get(); u = V.get()
        A(f's_load_dword {s.sN}, {sWS[0:2]}, 0')
        A(f'v_lshrrev_b32 {t}, 5, v0'); A(f'v_mul_u32_u24 {t}, 1280, {t}'); A(f'v_and_b32 {u}, 31, v0'); A(f'v_lshl_add_u32 {t}, {u}, 3, {t}')
        A(f's_mul_i32 {s.sT0}, s2, 10240')
        for i in range(5): A(f'buffer_load_dwordx2 {s.p0x.sub(2*i, 2)}, {t}, {sX}, {s.sT0} offen offset:{256*i}')
        lc, st = s.sT0, s.sT1
        A(f's_lshr_b32 {lc}, s2, 2')
        A(f's_cmp_lt_u32 {lc}, 40')
        A(f's_cselect_b32 {sCSRC[0]}, {sW1[0]}, {sW3[0]}'); A(f's_cselect_b32 {sCSRC[1]}, {sW1[1]}, {sW3[1]}'); A(f's_cselect_b32 {sCSRC[2]}, {sW1[2]}, {sW3[2]}')
        A(f's_movk_i32 {st}, 3072'); A(f's_cselect_b32 {st}, 1280, {st}'); A(f's_cselect_b32 {s.sT2}, 30, 40')
        A(f's_cmp_lt_u32 {lc}, 30')
        A(f's_cselect_b32 {sCSRC[0]}, {sWQKV[0]}, {sCSRC[0]}'); A(f's_cselect_b32 {sCSRC[1]}, {sWQKV[1]}, {sCSRC[1]}'); A(f's_cselect_b32 {sCSRC[2]}, {sWQKV[2]}, {sCSRC[2]}')
        A(f's_cselect_b32 {st}, 3840, {st}'); A(f's_cselect_b32 {s.sT2}, 0, {s.sT2}')
        A(f's_mov_b32 {sCSRC[3]}, 0x20000')
        A(f's_sub_u32 {lc}, {lc}, {s.sT2}'); A(f's_lshl_b32 {lc}, {lc}, 7')
        A(f's_and_b32 {s.sT2}, s2, 3'); A(f's_lshl_b32 {s.sT2}, {s.sT2}, 2'); A(f's_add_u32 {s.sT2}, {s.sT2}, {s.sW}'); A(f's_mul_i32 {s.sT2}, {s.sT2}, 40')
        A(f's_mul_i32 {s.sT2}, {s.sT2}, {st}'); A(f's_add_u32 {lc}, {lc}, {s.sT2}')
        A(f'v_lshrrev_b32 {t}, 3, {s.vLane}'); A(f'v_mul_lo_u32 {t}, {t}, {st}'); A(f'v_and_b32 {u}, 7, {s.vLane}'); A(f'v_lshl_add_u32 {t}, {u}, 4, {t}')
        A(f's_lshl_b32 {st}, {st}, 3')
        p = Panel('cs', csaddr, 20 * KB); s.lt.issue(p)
        for i in range(5):
            A(f's_add_u32 m0, {s.sW5120}, {csaddr + 1024 * i}')
            if i: A(f's_add_u32 {lc}, {lc}, {st}')
            p.last = A(f'buffer_load_dwordx4 {t}, {sCSRC}, {lc} offen lds')
        p.issued = True; s.pcs = p
        s.p0c = V.get(4)
        L = s.lab('PC')
        pc = s.S.get(2)
        A(f's_getpc_b64 {pc}'); A(f'{L}:')
        A(f's_sub_u32 {pc[0]}, {pc[0]}, {L}-{NAME}_kernel'); A(f's_subb_u32 {pc[1]}, {pc[1]}, 0')
        A(f's_lshr_b32 {s.sT2}, s2, 3'); A(f's_lshl_b32 {s.sT2}, {s.sT2}, 2'); A(f's_add_u32 {s.sT2}, {s.sT2}, {s.sW}'); A(f's_lshl_b32 {s.sT2}, {s.sT2}, 10')
        A(f's_min_u32 {s.sT2}, {s.sT2}, L_codeend-{NAME}_kernel-1024')
        A(f'v_add_u32 {u}, {s.sT2}, {s.vL16}')
        A(f'global_load_dwordx4 {s.p0c}, {u}, {pc}')
        s.S.put(pc); V.put(t, u)
    def p0_compute(s):
        A = s.A; V = s.V; x = s.p0x
        A(f's_mul_i32 {s.sN}, {s.sN}, 1664525'); A(f's_add_u32 {s.sN}, {s.sN}, 1013904223')
        A(f'v_mov_b32 {s.vN}, {s.sN}')
        fr = V.get(20); ones = V.get(4); ad = V.get(); t = V.get(); D = V.get(4)
        A(f'v_lshrrev_b32 {ad}, 4, {s.vLane}'); A(f'v_lshlrev_b32 {ad}, 3, {ad}'); A(f'v_bfe_u32 {t}, {s.vLane}, 2, 2'); A(f'v_add_u32 {ad}, {ad}, {t}')
        A(f'v_lshlrev_b32 {ad}, 7, {ad}'); A(f'v_and_b32 {t}, 3, {s.vLane}'); A(f'v_lshl_add_u32 {ad}, {t}, 3, {ad}')
        A(f's_lshl_b32 {s.sT0}, {s.sW}, 5'); A(f's_add_u32 {s.sT0}, {s.sT0}, {s.pcs.addr}'); A(f'v_add_u32 {ad}, {s.sT0}, {ad}')
        s.lt.read(s.pcs)
        for ks in range(5):
            for t2 in range(2): A(f'ds_read_b64_tr_b16 {fr.sub(4*ks + 2*t2, 2)}, {ad} offset:{(32*ks + 4*t2) * 128}')
        s.pcs.dead = True
        for i in range(4): A(f'v_mov_b32 {ones[i]}, 0x3f803f80')
        g = V.get(4); sm = V.get(); sq = V.get(); u = V.get()
        A(f'v_mov_b32 {sm}, 0'); A(f'v_mov_b32 {sq}, 0')
        for i in range(10):
            A(f'v_dot2c_f32_bf16 {sm}, {x[i]}, {ones[0]}'); A(f'v_dot2c_f32_bf16 {sq}, {x[i]}, {x[i]}')
        for ks in range(5): A(f'v_mfma_f32_16x16x32_bf16 {D}, {ones}, {fr.sub(4*ks, 4)}, {"0" if ks == 0 else D}')
        for m in ['quad_perm:[1,0,3,2]', 'quad_perm:[2,3,0,1]', 'row_half_mirror', 'row_mirror']:
            A(f'v_add_f32_dpp {sm}, {sm}, {sm} {m} row_mask:0xf bank_mask:0xf'); A(f'v_add_f32_dpp {sq}, {sq}, {sq} {m} row_mask:0xf bank_mask:0xf')
        A(f'v_mov_b32 {t}, {sm}'); A(f'v_mov_b32 {u}, {sq}')
        A(f'v_permlane16_swap_b32 {sm}, {t}'); A(f'v_permlane16_swap_b32 {sq}, {u}')
        A(f'v_add_f32 {sm}, {sm}, {t}'); A(f'v_add_f32 {sq}, {sq}, {u}')
        s.ln_scalars(sm, sq, g[0], g[1], var=sq)
        A(f'v_mul_f32 {sq}, {sq}, {g[0]}'); A(f'v_mul_f32 {sq}, {sq}, {g[0]}')
        s.rstd(g[2], sq)
        A(f'v_mov_b32 {g[3]}, {s.sN}')
        A(f'v_and_b32 {t}, 31, {s.vLane}'); A(f'v_cmp_eq_u32 vcc, 0, {t}'); A(f'v_lshrrev_b32 {t}, 1, v0'); A(f'v_mov_b32 {u}, {OOB}'); A(f'v_cndmask_b32 {t}, {u}, {t}, vcc')
        A(f's_lshl_b32 {s.sT0}, s2, 7'); A(f's_add_u32 {s.sT0}, {s.sT0}, {RS}')
        A(f'buffer_store_dwordx4 {g}, {t}, {sWS}, {s.sT0} offen sc1')
        A(f'v_mov_b32 {D[1]}, {s.sN}')
        A(f'v_cmp_gt_u32 vcc, 16, {s.vLane}'); A(f'v_lshlrev_b32 {ad}, 5, {s.vLane}'); A(f'v_cndmask_b32 {ad}, {u}, {ad}, vcc')
        A(f's_lshr_b32 {s.sT0}, s2, 2'); A(f's_lshl_b32 {s.sT0}, {s.sT0}, 11'); A(f's_and_b32 {s.sT1}, s2, 3'); A(f's_lshl_b32 {s.sT1}, {s.sT1}, 3'); A(f's_add_u32 {s.sT0}, {s.sT0}, {s.sT1}')
        A(f's_lshl_b32 {s.sT1}, {s.sW}, 9'); A(f's_add_u32 {s.sT0}, {s.sT0}, {s.sT1}'); A(f's_add_u32 {s.sT0}, {s.sT0}, {CS}')
        A(f'buffer_store_dwordx2 {D[0:2]}, {ad}, {sWS}, {s.sT0} offen sc1')
        A(f'v_mov_b32 {t}, {s.p0c[0]}')
        V.put(fr, ones, ad, t, D, g, sm, sq, u, s.p0x, s.p0c)
    def rstd(s, d, var):
        A = s.A
        s.rbf(d, var); A(f'v_add_f32 {d}, {hexf(1e-5)}, {d}'); s.rbf(d, d); A(f'v_sqrt_f32 {d}, {d}'); s.rbf(d, d); A(f'v_rcp_f32 {d}, {d}')
    def ln_scalars(s, sm, sq, r, mr, var):
        A = s.A
        A(f'v_mul_f32 {sm}, {hexf(1.0/640)}, {sm}'); A(f'v_mul_f32 {sq}, {hexf(1.0/640)}, {sq}')
        A(f'v_fma_f32 {var}, -{sm}, {sm}, {sq}'); A(f'v_max_f32 {var}, 0, {var}')
        s.rstd(r, var); A(f'v_mul_f32 {mr}, {sm}, {r}')

    def pipeline(s, nst, panels, reads, mfmas, n1, n2, pending, hook=None, first_waits=None, nobar=()):
        def pump():
            while pending and s.lt.can_issue(pending[0]) and all(not (q.addr < pending[0].addr + pending[0].size and pending[0].addr < q.addr + q.size) for q in queued):
                p = pending.pop(0); queued.append(p); s.q2 += p.ops
                if getattr(p, 'pace', False): break
        queued = []
        def need(ps):
            while any(not p.issued for p in ps):
                if not s.q2: pump(); assert s.q2, [p.name for p in ps]
                s.flush2(1)
        need(panels[0])
        s.barrier(list(panels[0]) + list(first_waits or []))
        pump()
        for f in reads(0, 0): f()
        for st in range(nst):
            if hook: hook(st, 0)
            s.weave(mfmas(st, 0), reads(st, 1), n1, n2)
            for p in panels[st]: p.dead = True
            queued[:] = [q for q in queued if not q.issued]
            if hook: hook(st, 1)
            mf = mfmas(st, 1)
            if st + 1 < nst:
                if st not in nobar:
                    w = []
                    k = st + 1
                    while True:
                        w += [p for p in panels[k] if p.waited is None]
                        if k in nobar and k + 1 < nst: k += 1
                        else: break
                    need(w)
                    mf[0](); mf = mf[1:]
                    s.barrier(w); pump()
                    if s.stbase is not None: s.stamp(s.stbase + st)
                s.weave(mf, reads(st + 1, 0), n1, n2)
            else:
                mf[0](); mf = mf[1:]
                s.barrier(); pump()
                s.weave(mf, [], n1, n2)
        return pump

    def b2_panels(s): return [s.w80_panel(f'b2_{i}', 20 * KB * i, sW2, 128 * i) for i in range(5)]

    def t1(s):
        A = s.A; V = s.V; S = s.S; AG = s.AG
        A('L_T1:'); A.ctl('restore', 'fork'); s.lt = LT()
        s.sRot = S.get(); sCb = S.get(); sWr = S.get(); sWc = S.get()
        A(f's_lshl_b32 {sCb}, {s.sXc}, 2'); A(f's_add_u32 {sCb}, {sCb}, {s.sCl}')
        A(f's_lshr_b32 {sWr}, {s.sW}, 1'); A(f's_and_b32 {sWc}, {s.sW}, 1')
        A(f's_mul_i32 {s.sT2}, {sCb}, 160')
        s.rot_init(sCb, s.sT2, 3840)
        vB = [V.get() for _ in range(5)]; q = V.get(); c = V.get(); t = V.get()
        A(f's_lshl_b32 {s.sT0}, {s.sW}, 4')
        for i in range(5):
            s.div20(i, q, c)
            A(f'v_mov_b32 {t}, 1120'); A(f'v_add_u32 {q}, {s.sT0}, {q}'); A(f'v_cndmask_b32 {t}, 0, {t}, vcc')
            A(f'v_mul_u32_u24 {q}, 3840, {q}'); A(f'v_lshlrev_b32 {c}, 4, {c}'); A(f'v_add3_u32 {vB[i]}, {q}, {c}, {t}')
            A(f'v_add_u32 {vB[i]}, {1280 - (1024 * i if i < 4 else 0) & 0xffffffff}, {vB[i]}')
        slot = lambda st: ((st + 2) % 4) * 36 * KB
        stages = []
        for st in range(10):
            p = Panel(f's{st}', slot(st), 36 * KB)
            p.ops = s.dma_ops(p, [((s.sW4096, p.addr), sX, s.sOA, [(s.vXA[i], 1024 * i) for i in range(4)]),
                                  ((s.sW5120, p.addr + 16 * KB), sWQKV, s.sOB, [(vB[i], 1024 * i) for i in range(4)]),
                                  ((s.sW5120, p.addr + 20 * KB), sWQKV, s.sOB, [(vB[4], 0)])]) + s.rot_step(3840)
            stages.append(p)
        for f in stages[0].ops: f()
        s.p0_issue(slot(3))
        for st in (1, 2):
            for f in stages[st].ops: f()
        s.stamp(1)
        a0 = V.get(); a1 = V.get()
        A(f'v_and_b32 {a0}, 15, {s.vLane}'); A(f'v_lshrrev_b32 {t}, 1, {a0}'); A(f'v_lshrrev_b32 {q}, 4, {s.vLane}'); A(f'v_xor_b32 {t}, {t}, {q}')
        A(f's_lshl_b32 {s.sT0}, {sWr}, 6'); A(f'v_add_u32 {a0}, {s.sT0}, {a0}'); A(f'v_lshlrev_b32 {a0}, 7, {a0}'); A(f'v_lshl_add_u32 {a0}, {t}, 4, {a0}')
        A(f'v_xor_b32 {a1}, 64, {a0}')
        fa = [s.dsaddr(a0), s.dsaddr(a1)]
        fb = []
        rowp = V.get(); hi = V.get(); x2 = V.get()
        A(f'v_lshlrev_b32 {rowp}, 3, {q}'); A(f'v_bfe_u32 {t}, {s.vLane}, 2, 2'); A(f'v_add_u32 {rowp}, {rowp}, {t}'); A(f'v_mul_u32_u24 {rowp}, 320, {rowp}')
        A(f'v_and_b32 {t}, 1, {s.vLane}'); A(f'v_lshl_add_u32 {rowp}, {t}, 3, {rowp}')
        A(f'v_bfe_u32 {hi}, {s.vLane}, 1, 1'); A(f'v_and_b32 {x2}, 1, {q}'); A(f'v_lshlrev_b32 {x2}, 1, {x2}')
        A(f's_mul_i32 {s.sT0}, {sWc}, 5')
        for tt, ba in enumerate([0, 2, 4, 11, 13]):
            b = V.get()
            A(f'v_mul_u32_u24 {b}, {6 if tt == 2 else 1}, {hi}'); A(f'v_add_u32 {b}, {ba}, {b}'); A(f'v_add_u32 {b}, {s.sT0}, {b}')
            A(f'v_xor_b32 {b}, {b}, {x2}'); A(f'v_lshl_add_u32 {b}, {b}, 4, {rowp}')
            fb.append(s.dsaddr(b))
        V.put(rowp, hi, x2, q, c, t)
        s.mk_w80_voff()
        acc = [[V.get(4) for _ in range(5)] for _ in range(4)]
        XA = [[AG.get(4) for _ in range(4)] for _ in range(2)]; WB = [[AG.get(4) for _ in range(5)] for _ in range(2)]
        def reads(st, h):
            p = stages[st]
            ra = lambda mt: (lambda: (s.lt.read(p), A(f'ds_read_b128 {XA[h][mt]}, {fa[h](p.addr + 2048 * mt)}')))
            rb = lambda tt, t2: (lambda: (s.lt.read(p), A(f'ds_read_b64_tr_b16 {WB[h][tt].sub(2*t2, 2)}, {fb[tt](p.addr + 16 * KB + (32 * h + 4 * t2) * 320)}')))
            return [ra(0), rb(0, 0), rb(0, 1), ra(1), ra(2), ra(3)] + [rb(tt, t2) for tt in range(1, 5) for t2 in range(2)]
        def mfmas(st, h):
            return [(lambda mt=mt, tt=tt: A(f'v_mfma_f32_16x16x32_bf16 {acc[mt][tt]}, {XA[h][mt]}, {WB[h][tt]}, {"0" if st == 0 and h == 0 else acc[mt][tt]}')) for tt in range(5) for mt in range(4)]
        gr = V.get(4); csg = [V.get(2) for _ in range(5)]; vra = V.get(); vca = [V.get() for _ in range(2)]; sRSo = S.get(); sCSo = S.get()
        loads = []
        def hook(st, h):
            if st == 1 and h == 0: s.p0_compute()
            if st == 8 and h == 0:
                t = V.get()
                A(f's_lshl_b32 {sRSo}, {s.sRb}, 11'); A(f's_lshl_b32 {s.sT0}, {sWr}, 10'); A(f's_add_u32 {sRSo}, {sRSo}, {s.sT0}'); A(f's_add_u32 {sRSo}, {sRSo}, {RS}')
                loads.append(f'buffer_load_dwordx4 {gr}, {s.vL16}, {sWS}, {sRSo} offen sc1')
                A(f's_mul_i32 {sCSo}, {sCb}, 80'); A(f's_mul_i32 {s.sT0}, {sWc}, 40'); A(f's_add_u32 {sCSo}, {sCSo}, {s.sT0}'); A(f's_lshl_b32 {sCSo}, {sCSo}, 5')
                A(f's_add_u32 {sCSo}, {sCSo}, {CS + 640 * 32}')
                A(f'v_and_b32 {vca[0]}, 15, {s.vLane}'); A(f'v_cmp_le_u32 vcc, 8, {vca[0]}'); A(f'v_lshlrev_b32 {vca[0]}, 5, {vca[0]}')
                A(f'v_lshrrev_b32 {t}, 4, {s.vLane}'); A(f'v_lshl_add_u32 {vca[0]}, {t}, 3, {vca[0]}')
                A(f'v_add_u32 {vca[1]}, {600 * 32}, {vca[0]}'); A(f'v_cndmask_b32 {vra}, {vca[0]}, {vca[1]}, vcc')
                for tt in range(5):
                    loads.append(f'buffer_load_dwordx2 {csg[tt]}, {[vca[0], vca[0], vra, vca[1], vca[1]][tt]}, {sWS}, {sCSo} offen offset:{512 * tt} sc1')
                for ld in loads: A(ld)
                V.put(t)
        pend = stages[3:] + s.b2p
        panels = [[p] for p in stages]; panels[1] = [stages[1], s.pcs]
        if 'st1' in s.dbg: s.stbase = 17
        pump = s.pipeline(10, panels, reads, mfmas, 1, 1, pend, hook)
        s.stbase = None
        s.flush2(); assert not pend
        s.stamp(2)
        for f in fa + fb: V.put(*f.regs)
        V.put(*vB)
        s.checked(loads, [gr[3]] + [c[1] for c in csg])
        ad = V.get(); t = V.get()
        A(f'v_lshlrev_b32 {ad}, 2, {s.vLane}'); A(f'v_add_u32 {ad}, {s.sMisc}, {ad}')
        A(f'ds_write_b32 {ad}, {gr[0]}'); A(f'ds_write_b32 {ad}, {gr[1]} offset:256')
        A(f'v_and_b32 {ad}, 48, {s.vLane}'); A(f'v_add_u32 {ad}, {s.sMisc}, {ad}')
        r1 = [V.get(4) for _ in range(4)]; mr = [V.get(4) for _ in range(4)]
        A('s_waitcnt lgkmcnt(0)')
        for mt in range(4): A(f'ds_read_b128 {r1[mt]}, {ad} offset:{64 * mt}'); A(f'ds_read_b128 {mr[mt]}, {ad} offset:{256 + 64 * mt}')
        for swp in ('16', '32'):
            for c in csg: A(f'v_mov_b32 {c[1]}, {c[0]}')
            for c in csg: A(f'v_permlane{swp}_swap_b32 {c[0]}, {c[1]}')
            for c in csg: A(f'v_add_f32 {c[0]}, {c[0]}, {c[1]}')
        eps = V.get(2); epm = V.get(2); l2e = V.get(2); sK = S.get(2)
        A(f'v_mov_b32 {eps[0]}, {hexf(1e-6)}'); A(f'v_mov_b32 {l2e[0]}, {hexf(LOG2E)}')
        A(f'v_and_b32 {t}, 8, {s.vLane}'); A(f'v_cmp_eq_u32 {sK}, 0, {t}'); A(f'v_cndmask_b32 {epm[0]}, 0, {eps[0]}, {sK}')
        pk = [[V.get(4) for _ in range(5)] for _ in range(2)]
        T = [V.get(2) for _ in range(4)]; U = [V.get(2) for _ in range(4)]
        for tt in range(5):
            for u in range(2):
                prs = [(2 * u + m, h) for m in range(2) for h in range(2)]
                y = [acc[mt][tt].sub(2 * h, 2) for mt, h in prs]
                for k, (mt, h) in enumerate(prs):
                    if tt < 3: A(f'v_pk_fma_f32 {T[k]}, {mr[mt].sub(2*h, 2)}, {csg[tt]}, {eps if tt < 2 else epm} op_sel_hi:[1,0,0] neg_lo:[0,1,0] neg_hi:[0,1,0]')
                    else: A(f'v_pk_mul_f32 {T[k]}, {mr[mt].sub(2*h, 2)}, {csg[tt]} op_sel_hi:[1,0] neg_lo:[0,1] neg_hi:[0,1]')
                for k, (mt, h) in enumerate(prs): A(f'v_pk_fma_f32 {y[k]}, {y[k]}, {r1[mt].sub(2*h, 2)}, {T[k]}')
                if tt < 3:
                    for k in range(4): A(f'v_pk_mul_f32 {U[k]}, {y[k]}, {l2e} op_sel_hi:[1,0]')
                    for k in range(4): A(f'v_min_f32 {U[k][0]}, 0, {U[k][0]}'); A(f'v_min_f32 {U[k][1]}, 0, {U[k][1]}')
                    for k in range(4): A(f'v_exp_f32 {U[k][0]}, {U[k][0]}'); A(f'v_exp_f32 {U[k][1]}, {U[k][1]}')
                    for k in range(4): A(f'v_max_f32 {T[k][0]}, {eps[0]}, {y[k][0]}'); A(f'v_max_f32 {T[k][1]}, {eps[0]}, {y[k][1]}')
                    if tt < 2:
                        for k in range(4): A(f'v_pk_add_f32 {y[k]}, {T[k]}, {U[k]}')
                    else:
                        for k in range(4): A(f'v_pk_add_f32 {T[k]}, {T[k]}, {U[k]}')
                        for k in range(4):
                            for e in range(2): A(f'v_cndmask_b32 {y[k][e]}, {y[k][e]}, {T[k][e]}, {sK}')
                for k in range(4): A(f'v_cvt_pk_bf16_f32 {pk[u][tt][k]}, {y[k][0]}, {y[k][1]}')
        V.put(*T, *U, eps, epm, l2e, *r1, *mr, gr, *csg, vra, *vca)
        ones = V.get(4)
        for i in range(4): A(f'v_mov_b32 {ones[i]}, 0x3f803f80')
        pairs = [(0, 2), (0, 3), (1, 2), (1, 3), (1, 4), (2, 3), (2, 4)]
        kv = [V.get(4) for _ in pairs]; zz = [V.get(4) for _ in range(3)]
        for u in range(2):
            for k, (dt, et) in enumerate(pairs): A(f'v_mfma_f32_16x16x32_bf16 {kv[k]}, {pk[u][et]}, {pk[u][dt]}, {"0" if u == 0 else kv[k]}')
            for dt in range(3): A(f'v_mfma_f32_16x16x32_bf16 {zz[dt]}, {ones}, {pk[u][dt]}, {"0" if u == 0 else zz[dt]}')
        dt_off = [V.get() for _ in range(3)]; dt_hd = [V.get() for _ in range(3)]; e_off = [V.get() for _ in range(3)]; e_hd = [V.get() for _ in range(3)]
        c15 = V.get(); g4 = V.get(); oob = V.get()
        A(f'v_and_b32 {c15}, 15, {s.vLane}'); A(f'v_lshrrev_b32 {g4}, 4, {s.vLane}'); A(f'v_lshlrev_b32 {g4}, 2, {g4}'); A(f'v_mov_b32 {oob}, {OOB}')
        for dt in range(3):
            A(f'v_add_u32 {t}, {16 * dt}, {c15}'); A(f'v_mul_u32_u24 {dt_hd[dt]}, 3277, {t}'); A(f'v_lshrrev_b32 {dt_hd[dt]}, 16, {dt_hd[dt]}')
            A(f'v_mul_u32_u24 {dt_off[dt]}, 20, {dt_hd[dt]}'); A(f'v_sub_u32 {dt_off[dt]}, {t}, {dt_off[dt]}')
        for et in range(3):
            A(f'v_add_u32 {t}, {16 * et + 12}, {g4}'); A(f'v_mul_u32_u24 {e_hd[et]}, 3277, {t}'); A(f'v_lshrrev_b32 {e_hd[et]}, 16, {e_hd[et]}')
            A(f'v_mul_u32_u24 {e_off[et]}, 20, {e_hd[et]}'); A(f'v_sub_u32 {e_off[et]}, {t}, {e_off[et]}'); A(f'v_subrev_u32 {e_hd[et]}, 1, {e_hd[et]}')
        kva = [V.get() for _ in pairs]; za = [V.get() for _ in range(3)]
        for k, (dt, et) in enumerate(pairs):
            A(f'v_cmp_eq_u32 vcc, {dt_hd[dt]}, {e_hd[et-2]}')
            A(f'v_mul_u32_u24 {t}, 20, {dt_off[dt]}'); A(f'v_add_u32 {t}, {t}, {e_off[et-2]}'); A(f'v_lshlrev_b32 {t}, 2, {t}'); A(f'v_lshl_add_u32 {t}, {dt_hd[dt]}, 15, {t}')
            A(f'v_cndmask_b32 {kva[k]}, {oob}, {t}, vcc')
        for dt in range(3):
            A(f'v_cmp_gt_u32 vcc, {16 if dt < 2 else 8}, {s.vLane}')
            A(f'v_lshlrev_b32 {t}, 2, {dt_off[dt]}'); A(f'v_lshl_add_u32 {t}, {dt_hd[dt]}, 15, {t}')
            A(f'v_cndmask_b32 {za[dt]}, {oob}, {t}, vcc')
        A(f'v_mov_b32 {zz[0][1]}, {zz[1][0]}'); A(f'v_mov_b32 {zz[0][2]}, {zz[2][0]}')
        RED = 108 * KB
        A(f's_lshl_b32 {s.sT0}, {sWc}, 13'); A(f's_add_u32 {s.sT0}, {s.sT0}, {RED}'); A(f'v_add_u32 {ad}, {s.sT0}, {s.vL16}')
        red = kv + [zz[0]]
        L1 = s.lab(); L2 = s.lab()
        A('s_nop 7')
        A(f's_cmp_eq_u32 {sWr}, 0'); A(f's_cbranch_scc1 {L1}')
        for k, r in enumerate(red): A(f'ds_write_b128 {ad}, {r} offset:{1024 * k}')
        A('s_waitcnt lgkmcnt(0)')
        A(f'{L1}:')
        A('s_barrier'); s.lt.epoch += 1
        A(f's_cmp_eq_u32 {sWr}, 0'); A(f's_cbranch_scc0 {L2}')
        tmp = [V.get(4) for _ in red]
        for k, r in enumerate(red): A(f'ds_read_b128 {tmp[k]}, {ad} offset:{1024 * k}')
        for k, r in enumerate(red):
            for h in range(2): A(f'v_pk_add_f32 {r.sub(2*h, 2)}, {r.sub(2*h, 2)}, {tmp[k].sub(2*h, 2)}')
        A(f'{L2}:')
        A(f's_lshl_b32 {s.sT0}, {sCb}, 1'); A(f's_add_u32 {s.sT0}, {s.sT0}, {sWc}')
        A(f's_lshl_b32 {s.sT1}, {s.sT0}, 16'); A(f's_lshl_b32 {s.sT2}, {s.sRb}, 11'); A(f's_add_u32 {s.sT1}, {s.sT1}, {s.sT2}'); A(f's_add_u32 {s.sT1}, {s.sT1}, {KV}')
        A(f's_lshl_b32 {s.sT2}, {sWr}, 29'); A(f's_add_u32 {s.sT1}, {s.sT1}, {s.sT2}')
        A(f's_lshl_b32 {s.sT0}, {s.sT0}, 7'); A(f's_add_u32 {s.sT0}, {s.sT0}, {s.sT2}'); A(f's_lshl_b32 {s.sT2}, {s.sRb}, 2'); A(f's_add_u32 {s.sT0}, {s.sT0}, {s.sT2}'); A(f's_add_u32 {s.sT0}, {s.sT0}, {FK}')
        for k in range(7): A(f'buffer_store_dwordx4 {kv[k]}, {kva[k]}, {sWS}, {s.sT1} offen sc1')
        for dt in range(3): last = A(f'buffer_store_dword {zz[0][dt]}, {za[dt]}, {sWS}, {s.sT1} offen offset:1600 sc1')
        s.setflag(last, s.sT0)
        s.stamp(3)
        A('s_waitcnt lgkmcnt(0)'); A.ctl('endvar'); A('s_branch L_join')

    def cs_loads(s, NT, scol):
        A = s.A; V = s.V
        so = s.S.get(); va = V.get(); t = V.get(); cg = [V.get(4) for _ in range(NT)]
        A(f's_lshl_b32 {so}, {scol}, 5'); A(f's_add_u32 {so}, {so}, {CS}')
        A(f'v_and_b32 {va}, 31, {s.vLane}'); A(f'v_lshlrev_b32 {va}, 5, {va}'); A(f'v_lshrrev_b32 {t}, 5, {s.vLane}'); A(f'v_lshl_add_u32 {va}, {t}, 4, {va}')
        V.put(t)
        return [f'buffer_load_dwordx4 {cg[J]}, {va}, {sWS}, {so} offen offset:{1024 * J} sc1' for J in range(NT)], cg, so, va
    def cs_to_lds(s, NT, cg):
        A = s.A; V = s.V; ad = V.get()
        for c in cg: A(f'v_add_f32 {c[0]}, {c[0]}, {c[2]}')
        for c in cg: A(f'v_mov_b32 {c[1]}, {c[0]}')
        A(f'v_and_b32 {ad}, 31, {s.vLane}'); A(f'v_lshlrev_b32 {ad}, 2, {ad}'); A(f'v_add_u32 {ad}, {s.sMisc}, {ad}')
        for c in cg: A(f'v_permlane32_swap_b32 {c[0]}, {c[1]}')
        for c in cg: A(f'v_add_f32 {c[0]}, {c[0]}, {c[1]}')
        for J, c in enumerate(cg): A(f'ds_write_b32 {ad}, {c[0]} offset:{128 * J}')
        A(f'v_lshrrev_b32 {ad}, 5, {s.vLane}'); A(f'v_lshlrev_b32 {ad}, 4, {ad}'); A(f'v_add_u32 {ad}, {s.sMisc}, {ad}')
        A('s_waitcnt lgkmcnt(0)')
        cs = [V.get(16) for _ in cg]
        for J in range(NT):
            for q in range(4): A(f'ds_read_b128 {cs[J].sub(4*q, 4)}, {ad} offset:{128 * J + 32 * q}')
        V.put(ad)
        return cs
    def epi32(s, kind, acc, cs, a, b, addr_fn):
        A = s.A; V = s.V
        c0 = V.get(2); c1 = V.get(2); one = V.get(2)
        if kind == 'gelu':
            A(f'v_mov_b32 {c0[0]}, {hexf(GC0)}'); A(f'v_mov_b32 {c1[0]}, {hexf(GC1)}'); A(f'v_mov_b32 {one[0]}, 1.0')
        else:
            A(f'v_mov_b32 {c0[0]}, {hexf(1e-6)}'); A(f'v_mov_b32 {c1[0]}, {hexf(LOG2E)}')
        T = [V.get(2) for _ in range(4)]; P = [V.get(4) for _ in range(2)]
        for J in range(len(acc)):
            vo, so, aa, bb = addr_fn(J)
            for hf in range(2):
                y = [acc[J].sub(8 * hf + 2 * k, 2) for k in range(4)]; cc = [cs[J].sub(8 * hf + 2 * k, 2) for k in range(4)]
                if kind == 'gelu':
                    for k in range(4): A(f'v_pk_mul_f32 {cc[k]}, {cc[k]}, {bb} op_sel_hi:[1,0] neg_lo:[0,1] neg_hi:[0,1]')
                    for k in range(4): A(f'v_pk_fma_f32 {y[k]}, {y[k]}, {aa}, {cc[k]} op_sel_hi:[1,0,1]')
                    for k in range(4): A(f'v_pk_mul_f32 {T[k]}, {y[k]}, {y[k]}')
                    for k in range(4): A(f'v_pk_fma_f32 {T[k]}, {T[k]}, {c1}, {c0} op_sel_hi:[1,0,0]')
                    for k in range(4): A(f'v_pk_mul_f32 {T[k]}, {T[k]}, {y[k]}')
                    for k in range(4): A(f'v_exp_f32 {T[k][0]}, {T[k][0]}'); A(f'v_exp_f32 {T[k][1]}, {T[k][1]}')
                    for k in range(4): A(f'v_pk_add_f32 {T[k]}, {T[k]}, {one} op_sel_hi:[1,0]')
                    for k in range(4): A(f'v_rcp_f32 {T[k][0]}, {T[k][0]}'); A(f'v_rcp_f32 {T[k][1]}, {T[k][1]}')
                    for k in range(4): A(f'v_pk_mul_f32 {y[k]}, {y[k]}, {T[k]}')
                else:
                    for k in range(4): A(f'v_pk_fma_f32 {cc[k]}, {cc[k]}, {bb}, {c0} op_sel_hi:[1,0,0] neg_lo:[0,1,0] neg_hi:[0,1,0]')
                    for k in range(4): A(f'v_pk_fma_f32 {y[k]}, {y[k]}, {aa}, {cc[k]} op_sel_hi:[1,0,1]')
                    for k in range(4): A(f'v_pk_mul_f32 {T[k]}, {y[k]}, {c1} op_sel_hi:[1,0]')
                    for k in range(4): A(f'v_min_f32 {T[k][0]}, 0, {T[k][0]}'); A(f'v_min_f32 {T[k][1]}, 0, {T[k][1]}')
                    for k in range(4): A(f'v_exp_f32 {T[k][0]}, {T[k][0]}'); A(f'v_exp_f32 {T[k][1]}, {T[k][1]}')
                    for k in range(4): A(f'v_max_f32 {y[k][0]}, {c0[0]}, {y[k][0]}'); A(f'v_max_f32 {y[k][1]}, {c0[0]}, {y[k][1]}')
                    for k in range(4): A(f'v_pk_add_f32 {y[k]}, {y[k]}, {T[k]}')
                p = P[hf]
                for k in range(4): A(f'v_cvt_pk_bf16_f32 {p[k]}, {y[k][0]}, {y[k][1]}')
                s.flush2(2)
                A(f'v_permlane32_swap_b32 {p[0]}, {p[2]}'); A(f'v_permlane32_swap_b32 {p[1]}, {p[3]}')
                last = A(f'buffer_store_dwordx4 {p}, {vo}, {sWS}, {so} offen offset:{512 * hf} sc1')
        V.put(c0, c1, one, *T, *P)
        return last
    def f16_voff(s, d, tok, nkb):
        A = s.A; t = s.V.get()
        A(f'v_lshrrev_b32 {t}, 4, {tok}'); A(f'v_mul_u32_u24 {t}, {nkb * 1024}, {t}')
        A(f'v_and_b32 {d}, 15, {tok}'); A(f'v_lshl_add_u32 {d}, {d}, 4, {t}')
        A(f'v_and_b32 {t}, 32, {s.vLane}'); A(f'v_lshl_add_u32 {d}, {t}, 3, {d}')
        s.V.put(t)

    def gemm32(s, NT, panels, boff, XF, fw, acc, pend, fx=None, hook=None, xload=None, nobar=(), extra=None, first_waits=None):
        A = s.A; AG = s.AG
        WB = [[[AG.get(4) for _ in range(NT)] for _ in range(2)] for _ in range(2)]
        def reads(st, h):
            p = panels[st]; out = []
            for k2 in range(2):
                ks = 2 * h + k2
                if fx: out.append(lambda ks=ks: (s.lt.read(p), A(f'ds_read_b128 {XF[4*st + ks]}, {fx[ks](p.addr)}')))
                for J in range(NT):
                    for t2 in range(2):
                        out.append(lambda ks=ks, J=J, t2=t2, k2=k2: (s.lt.read(p), A(f'ds_read_b64_tr_b16 {WB[h][k2][J].sub(2*t2, 2)}, {fw[J](p.addr + boff + (16 * ks + 4 * t2) * 64 * NT)}')))
            return out
        def mfmas(st, h):
            out = []
            for k2 in range(2):
                n = 4 * st + 2 * h + k2
                for J in range(NT):
                    def m(J=J, k2=k2, n=n):
                        A(f'v_mfma_f32_32x32x16_bf16 {acc[J]}, {WB[h][k2][J]}, {XF[n]}, {"0" if n == 0 else acc[J]}')
                        if xload and J == 0: xload(n)
                    out.append(m)
            return out
        pl = [[p] for p in panels]
        if extra:
            for k, v in extra.items(): pl[k] = pl[k] + v
        pump = s.pipeline(10, pl, reads, mfmas, 3, 2, pend, hook, nobar=nobar, first_waits=first_waits)
        for h in range(2):
            for k2 in range(2): AG.put(*WB[h][k2])
        return pump

    def t23(s, typ):
        A = s.A; V = s.V; S = s.S; AG = s.AG
        N1, N2 = (3, 2) if typ == 'A' else (2, 3)
        if typ == 'A': A('L_TA:')
        A.ctl('restore', 'fork'); s.lt = LT()
        s.sRot = S.get(); sA = S.get(); sJ = S.get(); sC1 = S.get(); sC2 = S.get(); sWN = S.get()
        A(f's_lshl_b32 {sA}, {s.sXc}, 1'); A(f's_add_u32 {sA}, {sA}, {s.sCl}'); A(f's_sub_u32 {sA}, {sA}, {4 if typ == "A" else 6}')
        A(f's_add_u32 {sJ}, {sA}, {0 if typ == "A" else 4}')
        c96, c64 = (sC1, sC2) if typ == 'A' else (sC2, sC1)
        A(f's_mul_i32 {c96}, {sA}, 96'); A(f's_lshl_b32 {c64}, {sA}, 6'); A(f's_add_u32 {c64}, {c64}, 384')
        A(f's_add_u32 {s.sT3}, {sJ}, 8'); A(f's_lshl_b32 {s.sT2}, {sC1}, 1')
        s.rot_init(s.sT3, s.sT2, 1280)
        vB = s.mk_nt_voff(N1, 1280)
        A(f's_mul_i32 {sWN}, {s.sW}, {1024 * N1}')
        ssz = (16 + 4 * N1) * KB
        stages = []
        for st in range(10):
            p = Panel(f's{st}', (st % 4) * ssz, ssz)
            p.ops = s.dma_ops(p, [((s.sW4096, p.addr), sX, s.sOA, [(s.vXA[i], 1024 * i) for i in range(4)]),
                                  ((sWN, p.addr + 16 * KB), sW1, s.sOB, [(vB[i], 1024 * i) for i in range(N1)])]) + s.rot_step(1280)
            stages.append(p)
        for f in stages[0].ops: f()
        s.p0_issue(120 * KB)
        for st in (1, 2, 3):
            for f in stages[st].ops: f()
        s.stamp(1)
        t = V.get(); u = V.get(); xb = [V.get() for _ in range(4)]
        A(f'v_and_b32 {xb[0]}, 31, {s.vLane}'); A(f'v_bfe_u32 {t}, {s.vLane}, 1, 3'); A(f'v_lshrrev_b32 {u}, 5, {s.vLane}'); A(f'v_xor_b32 {t}, {t}, {u}')
        A(f'v_lshlrev_b32 {xb[0]}, 7, {xb[0]}'); A(f'v_lshl_add_u32 {xb[0]}, {t}, 4, {xb[0]}'); A(f'v_add_u32 {xb[0]}, {s.sW4096}, {xb[0]}')
        for ks in range(1, 4): A(f'v_xor_b32 {xb[ks]}, {32 * ks}, {xb[0]}')
        fx = [s.dsaddr(b, (0, 1)) for b in xb]
        V.put(t, u)
        fw1, r1regs = s.mk_nt_read(N1)
        vQ = s.mk_nt_voff(N2, 3840)
        s.mk_w80_voff()
        sWN2 = S.get(); sOQ = S.get(); sEQ = S.get()
        A(f's_mul_i32 {sWN2}, {s.sW}, {1024 * N2}')
        qsz = 4 * N2 * KB
        if typ == 'A': qaddr = [68 * KB + qsz * i for i in range(10)]; order = [6, 7, 8, 9, 0, 1, 2, 3, 4, 5]
        else: qaddr = [(100 + 12 * i) * KB for i in range(4)] + [(28 + 12 * i) * KB for i in range(6)]; order = list(range(10))
        qp = []
        for i in range(10):
            p = Panel(f'q{i}', qaddr[i], qsz)
            pre = [lambda i=i: (A(f's_add_u32 {sOQ}, {s.sRot}, {i}'), A(f's_cmp_ge_u32 {sOQ}, 10'), A(f's_cselect_b32 {sEQ}, 10, 0'), A(f's_sub_u32 {sOQ}, {sOQ}, {sEQ}')),
                   lambda: (A(f's_mul_i32 {sOQ}, {sOQ}, {64 * 3840}'), A(f's_lshl_b32 {sEQ}, {sC2}, 1'), A(f's_add_u32 {sOQ}, {sOQ}, {sEQ}'))]
            p.ops = pre + s.dma_ops(p, [((sWN2, p.addr), sWQKV, sOQ, [(vQ[k], 1024 * k) for k in range(N2)])])
            qp.append(p)
        XF = [AG.get(4) for _ in range(40)]
        acc = [V.get(16) for _ in range(3)]
        gr = V.get(4); vra = V.get(); sRSo = S.get()
        st8 = {}
        def hook(st, h):
            if st == 1 and h == 0: s.p0_compute()
            if st == 8 and h == 0:
                A(f's_lshl_b32 {sRSo}, {s.sRb}, 11'); A(f's_lshl_b32 {s.sT0}, {s.sW}, 9'); A(f's_add_u32 {sRSo}, {sRSo}, {s.sT0}'); A(f's_add_u32 {sRSo}, {sRSo}, {RS}')
                A(f'v_and_b32 {vra}, 0x1f0, {s.vL16}')
                A(f's_add_u32 {s.sT0}, {sC1}, 1920')
                l1, cg, so, va = s.cs_loads(N1, s.sT0)
                st8.update(loads=[f'buffer_load_dwordx4 {gr}, {vra}, {sWS}, {sRSo} offen sc1'] + l1, cg=cg, so=so, va=va)
                for ld in st8['loads']: A(ld)
        pend = stages[4:] + [qp[i] for i in order] + s.b2p
        if 'st1' in s.dbg: s.stbase = 17
        pump = s.gemm32(N1, stages, 16 * KB, XF, fw1, acc[:N1], pend, fx=fx, hook=hook, extra={1: [s.pcs]})
        s.stbase = None
        s.stamp(2)
        for f in fx: V.put(*f.regs)
        V.put(*r1regs, *vB)
        cg = st8['cg']
        s.checked(st8['loads'], [gr[3]] + [c[k] for c in cg for k in (1, 3)])
        cs = s.cs_to_lds(N1, cg); V.put(*cg, st8['va']); S.put(st8['so'])
        ab = [V.get(2), V.get(2)]; abm = [V.get(2), V.get(2)]; tok = V.get(); vo = V.get(); tk2 = V.get(); so = S.get(); sSh = S.get()
        A(f'v_mul_f32 {ab[0][0]}, {gr[0]}, {gr[2]}'); A(f'v_mul_f32 {ab[1][0]}, {gr[1]}, {gr[2]}')
        A(f's_lshl_b32 {s.sT0}, {s.sRb}, 7'); A(f's_lshl_b32 {s.sT1}, {s.sW}, 5'); A(f's_add_u32 {s.sT0}, {s.sT0}, {s.sT1}')
        A(f'v_and_b32 {tok}, 31, {s.vLane}'); A(f'v_add_u32 {tok}, {s.sT0}, {tok}')
        def addr1(J):
            A(f's_lshr_b32 {so}, {sC1}, 5'); A(f's_add_u32 {so}, {so}, {J}')
            A(f's_cmp_ge_u32 {so}, 5'); A(f's_cselect_b32 {sSh}, -1, 1')
            A(f's_cmp_ge_u32 {so}, 10'); A(f's_cselect_b32 {sSh}, 2, {sSh}')
            A(f's_cmp_ge_u32 {so}, 15'); A(f's_cselect_b32 {sSh}, -2, {sSh}')
            A(f's_lshl_b32 {so}, {so}, 10'); A(f's_add_u32 {so}, {so}, {HS}')
            A(f'v_add_u32 {tk2}, {sSh}, {tok}'); A(f'v_cmp_gt_u32 vcc, 0x800, {tk2}'); A(f'v_and_b32 {tk2}, 0x7ff, {tk2}')
            s.f16_voff(vo, tk2, 20)
            A(f'v_cndmask_b32 {abm[0][0]}, 0, {ab[0][0]}, vcc'); A(f'v_cndmask_b32 {abm[1][0]}, 0, {ab[1][0]}, vcc')
            return vo, so, abm[0], abm[1]
        last = s.epi32('gelu', acc[:N1], cs, None, None, addr1)
        V.put(*cs)
        sF = S.get()
        A(f's_lshl_b32 {sF}, {s.sRb}, 9'); A(f's_lshl_b32 {s.sT0}, {s.sW}, 7'); A(f's_add_u32 {sF}, {sF}, {s.sT0}'); A(f's_lshl_b32 {s.sT0}, {sJ}, 2'); A(f's_add_u32 {sF}, {sF}, {s.sT0}')
        A(f's_add_u32 {sF}, {sF}, {F1}')
        fw2, r2regs = s.mk_nt_read(N2)
        l2, cg, so2, va = s.cs_loads(N2, sC2)
        s.setflag(last, sF)
        s.stamp(3)
        for ld in l2: A(ld)
        pump = s.gemm32(N2, qp, 0, XF, fw2, acc[:N2], pend)
        s.stamp(4)
        s.checked(l2, [c[k] for c in cg for k in (1, 3)])
        cs = s.cs_to_lds(N2, cg)
        A(f'v_mov_b32 {ab[0][0]}, {gr[0]}'); A(f'v_mov_b32 {ab[1][0]}, {gr[1]}')
        s.f16_voff(vo, tok, 20)
        def addr2(J):
            A(f's_lshl_b32 {so}, {sC2}, 5'); A(f's_add_u32 {so}, {so}, {PQ + 1024 * J}')
            return vo, so, ab[0], ab[1]
        s.flush2(); assert not pend, [p.name for p in pend]
        last = s.epi32('phi', acc[:N2], cs, None, None, addr2)
        A(f's_add_u32 {sF}, {sF}, {FQ - F1}')
        s.setflag(last, sF)
        s.stamp(5)
        A('s_waitcnt lgkmcnt(0)'); A.ctl('endvar'); A('s_branch L_join')

    def w80_read(s, extra=None):
        A = s.A; V = s.V; be = V.get(); bo = V.get(); t = V.get()
        A(f'v_lshrrev_b32 {be}, 4, {s.vLane}'); A(f'v_lshlrev_b32 {be}, 3, {be}'); A(f'v_bfe_u32 {t}, {s.vLane}, 2, 2'); A(f'v_add_u32 {be}, {be}, {t}')
        A(f'v_mul_u32_u24 {be}, 320, {be}'); A(f'v_and_b32 {t}, 3, {s.vLane}'); A(f'v_lshl_add_u32 {be}, {t}, 3, {be}')
        if extra: A(f'v_add_u32 {be}, {extra}, {be}')
        A(f'v_and_b32 {t}, 16, {s.vLane}'); A(f'v_lshlrev_b32 {t}, 1, {t}')
        A(f'v_sub_u32 {bo}, {be}, {t}'); A(f'v_add_u32 {be}, {be}, {t}')
        V.put(t)
        return [s.dsaddr(be), s.dsaddr(bo)]

    def common(s):
        A = s.A; V = s.V; S = s.S; AG = s.AG
        A('L_join:'); A.ctl('join'); s.lt = LT(); s.q2 = []
        b2 = s.b2_panels()
        for p in b2: s.lt.issue(p); p.issued = True; p.last = 'prejoin'
        if s.stop <= 1: return
        sTw = S.get(); sTT = S.get()
        A(f's_lshl_b32 {sTw}, {s.sRb2}, 1'); A(f's_lshr_b32 {s.sT0}, {s.sW}, 1'); A(f's_add_u32 {sTw}, {sTw}, {s.sT0}')
        A(f's_lshl_b32 {sTT}, {s.sRb2}, 2'); A(f's_add_u32 {sTT}, {sTT}, {s.sW}')
        fr = s.w80_read()
        xt = [V.get(2) for _ in range(5)]; vtok = V.get(); t = V.get(); u = V.get(); sXo = S.get()
        A(f'v_and_b32 {vtok}, 15, {s.vLane}'); A(f'v_mul_u32_u24 {t}, 1280, {vtok}'); A(f'v_lshrrev_b32 {u}, 4, {s.vLane}'); A(f'v_lshl_add_u32 {t}, {u}, 3, {t}')
        A(f's_mul_i32 {sXo}, {sTT}, 20480'); A(f's_add_u32 {s.sT0}, {sXo}, {s.sJ160}')
        for nt in range(5): A(f'buffer_load_dwordx2 {xt[nt]}, {t}, {sX}, {s.sT0} offen offset:{32 * nt}')
        pa = V.get()
        A(f's_and_b32 {s.sT0}, {s.sW}, 1'); A(f's_lshl_b32 {s.sT0}, {s.sT0}, 1'); A(f's_add_u32 {s.sT0}, {s.sT0}, 63'); A(f's_add_u32 {s.sT0}, {s.sT0}, {sTw}'); A(f's_and_b32 {s.sT0}, {s.sT0}, 63')
        A(f'v_and_b32 {t}, 8, {s.vLane}'); A(f'v_cmp_eq_u32 vcc, 0, {t}'); A(f'v_mov_b32 {t}, {s.sT0}'); A(f'v_mov_b32 {u}, {sTw}'); A(f'v_cndmask_b32 {pa}, {t}, {u}, vcc')
        A(f'v_lshlrev_b32 {pa}, 7, {pa}'); A(f'v_and_b32 {t}, 7, {s.vLane}'); A(f'v_lshl_add_u32 {pa}, {t}, 2, {pa}'); A(f'v_add_u32 {pa}, {F1}, {pa}')
        s.barrier(b2)
        NF = 60
        XA = [AG.get(4) for _ in range(20)]
        WF = [AG.get(4) for _ in range(44)] + [V.get(4) for _ in range(NF - 44)]
        def rd2(n, t2):
            u_, nt = divmod(n, 5); p = b2[u_ // 4]; uu = u_ % 4; jj = 5 * (uu & 1) + nt
            s.lt.read(p)
            A(f'ds_read_b64_tr_b16 {WF[n % NF].sub(2*t2, 2)}, {fr[jj & 1](p.addr + (uu >> 1) * 10240 + t2 * 1280 + 32 * jj)}')
        s.stamp(6)
        s.poll(pa)
        sHo = S.get(); gr = V.get(4)
        A(f's_add_u32 {sHo}, {sXo}, {HS}')
        def ldx(i):
            if i % 4 == 0 and i: A(f's_add_u32 {sHo}, {sHo}, 4096')
            A(f'buffer_load_dwordx4 {XA[i]}, {s.vL16}, {sWS}, {sHo} offen offset:{1024 * (i % 4)} sc1')
        for i in range(12): ldx(i)
        s.stamp(7)
        for n in range(NF):
            rd2(n, 0); rd2(n, 1)
            if n % 6 == 5 and 12 + n // 6 < 20: ldx(12 + n // 6)
        A(f's_lshl_b32 {s.sT0}, {sTT}, 8'); A(f's_add_u32 {s.sT0}, {s.sT0}, {RS}'); A(f'v_lshlrev_b32 {t}, 4, {vtok}')
        A(f'buffer_load_dwordx4 {gr}, {t}, {sWS}, {s.sT0} offen sc1')
        vB3 = s.mk_nt_voff(3, 3072); sW3072 = S.get(); sO3 = S.get(); sC3 = S.get()
        A(f's_mul_i32 {sW3072}, {s.sW}, 3072'); A(f's_mul_i32 {sC3}, {s.sCb3}, 192')
        b3 = []
        for i in range(10):
            p = Panel(f'b3_{i}', ((100 + 12 * i) if i < 4 else 12 * (i - 4)) * KB, 12 * KB)
            p.ops = [lambda i=i: A(f's_add_u32 {sO3}, {sC3}, {i * 64 * 3072}')] + s.dma_ops(p, [((sW3072, p.addr), sW3, sO3, [(vB3[k], 1024 * k) for k in range(3)])])
            b3.append(p)
        pwo = Panel('wob', WOB, 5 * KB); vwo = [V.get() for _ in range(2)]; sWo = S.get(); sWm = S.get()
        for k in range(2):
            if k == 0: A(f'v_mov_b32 {t}, v0')
            else: A(f'v_add_u32 {t}, 256, {s.vLane}')
            A(f'v_mul_u32_u24 {u}, 6554, {t}'); A(f'v_lshrrev_b32 {u}, 16, {u}')
            A(f'v_mul_u32_u24 {vwo[k]}, 10, {u}'); A(f'v_sub_u32 {t}, {t}, {vwo[k]}'); A(f'v_mul_u32_u24 {u}, 1280, {u}'); A(f'v_lshl_add_u32 {vwo[k]}, {t}, 4, {u}')
        A(f's_mul_i32 {sWo}, {s.sRb2}, 25600'); A(f's_add_u32 {sWo}, {sWo}, {s.sJ160}'); A(f's_lshl_b32 {sWm}, {s.sW}, 10')
        pwo.ops = s.dma_ops(pwo, [((sWm, WOB), sWO, sWo, [(vwo[0], 0)]), ((None, WOB + 4096), sWO, sWo, [(vwo[1], 0)])])
        s.q2 += pwo.ops
        for p in b3[:4]: s.q2 += p.ops
        acc = [V.get(4) for _ in range(5)]
        for n in range(100):
            u_, nt = divmod(n, 5)
            A(f'v_mfma_f32_16x16x32_bf16 {acc[nt]}, {WF[n % NF]}, {XA[u_]}, {"0" if u_ == 0 else acc[nt]}')
            if NF + n // 2 < 100: rd2(NF + n // 2, n & 1)
            if n >= 20 and n % 2 == 0: s.flush2(1)
            if n == 84:
                for p in b2: p.dead = True
                s.barrier()
        s.flush2()
        s.stamp(8)
        V.put(*WF[44:], *vwo); AG.put(*WF[:44], *XA); S.put(sWo, sWm, sHo)
        resid = [V.get(4) for _ in range(5)]; pk = [V.get(4) for _ in range(3)]; sm = V.get(2); sq = V.get(2); T = V.get(2); X = V.get(2)
        pkr = lambda nt: pk[nt // 2].sub(2 * (nt & 1), 2)
        for nt in range(5):
            for h in range(2):
                x = resid[nt].sub(2 * h, 2); y = acc[nt].sub(2 * h, 2); w_ = pkr(nt)[h]
                A(f'v_lshlrev_b32 {x[0]}, 16, {xt[nt][h]}'); A(f'v_and_b32 {x[1]}, 0xffff0000, {xt[nt][h]}')
                A(f'v_pk_fma_f32 {T}, {x}, {gr[0:2]}, {gr[0:2]} op_sel:[0,0,1] op_sel_hi:[1,0,1] neg_lo:[0,0,1] neg_hi:[0,0,1]')
                A(f'v_cvt_pk_bf16_f32 {w_}, {T[0]}, {T[1]}')
                A(f'v_lshlrev_b32 {T[0]}, 16, {w_}'); A(f'v_and_b32 {T[1]}, 0xffff0000, {w_}')
                A(f'v_pk_add_f32 {y}, {y}, {T}')
                A(f'v_cvt_pk_bf16_f32 {w_}, {y[0]}, {y[1]}')
                A(f'v_lshlrev_b32 {X[0]}, 16, {w_}'); A(f'v_and_b32 {X[1]}, 0xffff0000, {w_}')
                A(f'v_pk_add_f32 {x}, {x}, {X}')
                if nt == 0 and h == 0:
                    A(f'v_pk_mul_f32 {sq}, {X}, {X}'); A(f'v_mov_b32 {sm[0]}, {X[0]}'); A(f'v_mov_b32 {sm[1]}, {X[1]}')
                else:
                    A(f'v_pk_fma_f32 {sq}, {X}, {X}, {sq}'); A(f'v_pk_add_f32 {sm}, {sm}, {X}')
        va = V.get(); va2 = V.get()
        A(f'v_lshlrev_b32 {va}, 4, {vtok}'); A(f'v_and_b32 {t}, 32, {s.vLane}'); A(f'v_lshl_add_u32 {va}, {t}, 4, {va}')
        A(f'v_and_b32 {t}, 16, {s.vLane}'); A(f'v_lshl_add_u32 {va2}, {t}, 26, {va}'); A(f'v_lshl_add_u32 {va}, {t}, 6, {va}')
        A(f's_mul_i32 {s.sT0}, {sTw}, 40960'); A(f's_mul_i32 {s.sT1}, {s.sJ2}, 5120'); A(f's_add_u32 {s.sT0}, {s.sT0}, {s.sT1}')
        A(f's_and_b32 {s.sT1}, {s.sW}, 1'); A(f's_lshl_b32 {s.sT1}, {s.sT1}, 8'); A(f's_add_u32 {s.sT0}, {s.sT0}, {s.sT1}'); A(f's_add_u32 {s.sT0}, {s.sT0}, {X1}')
        A(f's_add_u32 {s.sT1}, {s.sT0}, 4096')
        for k in range(3): A(f'v_permlane16_swap_b32 {pk[k][0]}, {pk[k][2]}'); A(f'v_permlane16_swap_b32 {pk[k][1]}, {pk[k][3]}')
        A(f'buffer_store_dwordx4 {pk[0]}, {va}, {sWS}, {s.sT0} offen sc1')
        A(f'buffer_store_dwordx4 {pk[1]}, {va}, {sWS}, {s.sT0} offen offset:2048 sc1')
        A(f'buffer_store_dwordx4 {pk[2]}, {va2}, {sWS}, {s.sT1} offen sc1')
        A(f'v_add_f32 {sm[0]}, {sm[0]}, {sm[1]}'); A(f'v_add_f32 {sm[1]}, {sq[0]}, {sq[1]}')
        for swp in ('16', '32'):
            A(f'v_mov_b32 {T[0]}, {sm[0]}'); A(f'v_mov_b32 {T[1]}, {sm[1]}')
            A(f'v_permlane{swp}_swap_b32 {sm[0]}, {T[0]}'); A(f'v_permlane{swp}_swap_b32 {sm[1]}, {T[1]}')
            A(f'v_pk_add_f32 {sm}, {sm}, {T}')
        A(f'v_cmp_gt_u32 vcc, 16, {s.vLane}'); A(f'v_lshlrev_b32 {t}, 6, {s.vLane}'); A(f'v_mov_b32 {u}, {OOB}'); A(f'v_cndmask_b32 {t}, {u}, {t}, vcc')
        A(f's_lshl_b32 {s.sT0}, {sTT}, 10'); A(f's_lshl_b32 {s.sT1}, {s.sJ2}, 3'); A(f's_add_u32 {s.sT0}, {s.sT0}, {s.sT1}'); A(f's_add_u32 {s.sT0}, {s.sT0}, {S2}')
        last = A(f'buffer_store_dwordx2 {sm}, {t}, {sWS}, {s.sT0} offen sc1')
        A(f's_lshl_b32 {s.sT0}, {sTw}, 7'); A(f's_and_b32 {s.sT1}, {s.sW}, 1'); A(f's_lshl_b32 {s.sT1}, {s.sT1}, 3'); A(f's_add_u32 {s.sT1}, {s.sT1}, {s.sJ2}')
        A(f's_lshl_b32 {s.sT1}, {s.sT1}, 2'); A(f's_add_u32 {s.sT0}, {s.sT0}, {s.sT1}'); A(f's_add_u32 {s.sT0}, {s.sT0}, {F2}')
        s.setflag(last, s.sT0)
        s.stamp(9)
        V.put(*acc, *pk, sm, sq, T, X, va, va2, *xt, gr)
        for f in fr: V.put(*f.regs)
        if s.stop <= 2: return
        A(f'v_and_b32 {t}, 7, {s.vLane}'); A(f'v_lshlrev_b32 {t}, 2, {t}'); A(f'v_and_b32 {u}, 8, {s.vLane}'); A(f'v_lshl_add_u32 {t}, {u}, 4, {t}')
        A(f's_lshl_b32 {s.sT0}, {s.sRb2}, 8'); A(f's_add_u32 {s.sT0}, {s.sT0}, {FQ}'); A(f'v_add_u32 {pa}, {s.sT0}, {t}')
        A(f'v_lshlrev_b32 {t}, 2, {vtok}')
        A(f's_lshl_b32 {s.sT0}, {s.sJ2}, 1'); A(f's_lshr_b32 {s.sT1}, {s.sW}, 1'); A(f's_add_u32 {s.sT0}, {s.sT0}, {s.sT1}'); A(f's_lshl_b32 {s.sT0}, {s.sT0}, 7'); A(f's_add_u32 {s.sT0}, {s.sT0}, {FK}')
        A(f'v_add_u32 {u}, {s.sT0}, {t}'); A(f'v_cmp_gt_u32 vcc, 16, {s.vLane}'); A(f'v_cndmask_b32 {pa}, {u}, {pa}, vcc')
        A(f's_lshr_b32 {s.sT0}, {s.sRb2}, 1'); A(f's_lshl_b32 {s.sT0}, {s.sT0}, 7'); A(f's_add_u32 {s.sT0}, {s.sT0}, {FK}')
        A(f'v_add_u32 {u}, {s.sT0}, {t}'); A(f'v_cmp_gt_u32 vcc, 32, {s.vLane}'); A(f'v_cndmask_b32 {pa}, {u}, {pa}, vcc')
        z2 = V.get(2)
        A(f'v_mov_b32 {z2[0]}, 0'); A(f'v_mov_b32 {z2[1]}, 0'); A(f'v_lshlrev_b32 {t}, 3, v0'); A(f'v_add_u32 {t}, {KVB}, {t}'); A(f'ds_write_b64 {t}, {z2}')
        V.put(z2)
        s.barrier()
        s.poll(pa)
        kq = [V.get(4) for _ in range(8)]; zq = [V.get() for _ in range(8)]; pq = V.get(10, 4); vk = V.get(); vz = V.get(); vp = V.get()
        sH = S.get(); sKo = S.get(); sZo = S.get(); sP = [S.get() for _ in range(3)]
        A(f'v_and_b32 {t}, 31, {s.vLane}'); A(f'v_min_u32 {vk}, 24, {t}'); A(f'v_lshlrev_b32 {vk}, 4, {vk}'); A(f'v_and_b32 {u}, 32, {s.vLane}'); A(f'v_lshl_add_u32 {vk}, {u}, 6, {vk}')
        A(f's_lshl_b32 {sKo}, {s.sRb2}, 15'); A(f's_mul_i32 {s.sT0}, {s.sW}, 400'); A(f's_add_u32 {sKo}, {sKo}, {s.sT0}'); A(f's_add_u32 {sKo}, {sKo}, {KV}')
        for i in range(8):
            A(f'buffer_load_dwordx4 {kq[i]}, {vk}, {sWS}, {sKo} offen sc1')
            if i < 7: A(f's_add_u32 {sKo}, {sKo}, 4096')
        A(f's_lshl_b32 {sH}, {s.sJ2}, 2'); A(f's_add_u32 {sH}, {sH}, {s.sW}'); A(f's_and_b32 {s.sT0}, {s.sW}, 1'); A(f's_lshl_b32 {s.sT0}, {s.sT0}, 2')
        A(f'v_min_u32 {vz}, 19, {t}'); A(f'v_add_u32 {vz}, {s.sT0}, {vz}'); A(f'v_subrev_u32 {t}, 20, {vz}'); A(f'v_min_u32 {vz}, {vz}, {t}')
        A(f'v_lshlrev_b32 {vz}, 2, {vz}'); A(f'v_lshl_add_u32 {vz}, {u}, 6, {vz}')
        A(f's_lshl_b32 {sZo}, {sH}, 15'); A(f's_add_u32 {sZo}, {sZo}, {KV + 1600}')
        for i in range(8):
            A(f'buffer_load_dword {zq[i]}, {vz}, {sWS}, {sZo} offen sc1')
            if i < 7: A(f's_add_u32 {sZo}, {sZo}, 4096')
        A(f'v_lshrrev_b32 {t}, 4, {s.vLane}'); A(f'v_mul_u32_u24 {t}, 20480, {t}'); A(f'v_lshl_add_u32 {vp}, {vtok}, 4, {t}')
        A(f's_mul_i32 {s.sT1}, {sH}, 20'); A(f's_add_u32 {s.sT2}, {s.sT1}, {s.sT0}'); A(f's_lshl_b32 {sP[0]}, {s.sT2}, 5')
        A(f's_mul_i32 {s.sT2}, {s.sRb2}, 81920'); A(f's_add_u32 {sP[0]}, {sP[0]}, {s.sT2}'); A(f's_add_u32 {sP[0]}, {sP[0]}, {PQ}')
        A(f's_cmp_eq_u32 {s.sT0}, 0'); A(f's_movk_i32 {sP[1]}, 512'); A(f's_cselect_b32 {sP[1]}, {sP[1]}, -248'); A(f's_add_u32 {sP[1]}, {sP[1]}, {sP[0]}')
        A(f'buffer_load_dwordx4 {pq[0:4]}, {vp}, {sWS}, {sP[0]} offen sc1')
        A(f'buffer_load_dwordx4 {pq[4:8]}, {vp}, {sWS}, {sP[0]} offen offset:256 sc1')
        A(f'buffer_load_dwordx2 {pq[8:10]}, {vp}, {sWS}, {sP[1]} offen sc1')
        slot4 = lambda i: 20 * KB * i
        b4b = [s.w80_panel(f'b4b_{i}', slot4([4, 3, 5, 6, 0, 1, 2, 4, 3, 5, 6, 0][i]), sW4, 128 * i) for i in range(12)]
        for p in b3[4:] + [b4b[0]]:
            for f in p.ops: f()
        for st_ in (4, 2, 1):
            for i in range(st_):
                for h in range(2): A(f'v_pk_add_f32 {kq[i].sub(2*h, 2)}, {kq[i].sub(2*h, 2)}, {kq[i + st_].sub(2*h, 2)}')
        for i in range(4): A(f'v_mov_b32 {kq[1][i]}, {kq[0][i]}')
        for i in range(4): A(f'v_permlane32_swap_b32 {kq[0][i]}, {kq[1][i]}')
        for h in range(2): A(f'v_pk_add_f32 {kq[0].sub(2*h, 2)}, {kq[0].sub(2*h, 2)}, {kq[1].sub(2*h, 2)}')
        A(f'v_cvt_pk_bf16_f32 {kq[1][0]}, {kq[0][0]}, {kq[0][1]}'); A(f'v_cvt_pk_bf16_f32 {kq[1][1]}, {kq[0][2]}, {kq[0][3]}')
        A(f'v_and_b32 {t}, 31, {s.vLane}'); A(f'v_min_u32 {t}, 24, {t}'); A(f'v_mul_u32_u24 {u}, 13108, {t}'); A(f'v_lshrrev_b32 {u}, 16, {u}')
        A(f'v_mul_u32_u24 {vk}, 24, {u}'); A(f'v_lshl_add_u32 {vk}, {t}, 3, {vk}')
        A(f's_mul_i32 {s.sT0}, {s.sW}, 320'); A(f's_add_u32 {s.sT0}, {s.sT0}, {KVB}'); A(f'v_add_u32 {vk}, {s.sT0}, {vk}')
        A(f'ds_write_b64 {vk}, {kq[1][0:2]}')
        s.barrier([pwo])
        ka = [V.get(4) for _ in range(2)]; wb = [V.get(4) for _ in range(2)]; D = [[V.get(4) for _ in range(2)] for _ in range(2)]
        A(f'v_lshlrev_b32 {t}, 6, {vtok}'); A(f'v_and_b32 {u}, 48, {s.vLane}'); A(f'v_add_u32 {t}, {t}, {u}'); A(f'v_add_u32 {t}, {KVB}, {t}')
        for m in range(2): A(f'ds_read_b128 {ka[m]}, {t} offset:{1024 * m}')
        A(f'v_lshrrev_b32 {t}, 4, {s.vLane}'); A(f'v_lshlrev_b32 {t}, 3, {t}'); A(f'v_bfe_u32 {u}, {s.vLane}, 2, 2'); A(f'v_add_u32 {t}, {t}, {u}'); A(f'v_mul_u32_u24 {t}, 160, {t}')
        A(f'v_and_b32 {u}, 3, {s.vLane}'); A(f'v_lshl_add_u32 {t}, {u}, 3, {t}'); A(f'v_add_u32 {t}, {WOB}, {t}')
        A(f's_lshl_b32 {s.sT0}, {s.sW}, 5'); A(f'v_add_u32 {u}, {s.sT0}, {t}')
        s.lt.read(pwo)
        for t2 in range(2):
            A(f'ds_read_b64_tr_b16 {wb[0].sub(2*t2, 2)}, {u} offset:{640 * t2}'); A(f'ds_read_b64_tr_b16 {wb[1].sub(2*t2, 2)}, {t} offset:{128 + 640 * t2}')
        for st_ in (4, 2, 1):
            for i in range(st_): A(f'v_add_f32 {zq[i]}, {zq[i]}, {zq[i + st_]}')
        A(f'v_mov_b32 {zq[1]}, {zq[0]}'); A(f'v_permlane32_swap_b32 {zq[0]}, {zq[1]}'); A(f'v_add_f32 {zq[0]}, {zq[0]}, {zq[1]}')
        for n in range(2):
            for m in range(2): A(f'v_mfma_f32_16x16x32_bf16 {D[n][m]}, {ka[m]}, {wb[n]}, 0')
        pf = V.get(20); den = V.get(2); sZ = S.get(2)
        for i in range(10): A(f'v_lshlrev_b32 {pf[2*i]}, 16, {pq[i]}'); A(f'v_and_b32 {pf[2*i+1]}, 0xffff0000, {pq[i]}')
        A(f'v_mov_b32 {den[0]}, {hexf(1e-6)}'); A(f'v_mov_b32 {den[1]}, 0')
        sZs = [sZ, S.get(2)]
        for i in range(10):
            z = sZs[i & 1]
            A(f'v_readlane_b32 {z[0]}, {zq[0]}, {2*i}'); A(f'v_readlane_b32 {z[1]}, {zq[0]}, {2*i+1}')
            if i: A(f'v_pk_fma_f32 {den}, {pf.sub(2*i-2, 2)}, {sZs[(i-1) & 1]}, {den}')
        A(f'v_pk_fma_f32 {den}, {pf.sub(18, 2)}, {sZs[1]}, {den}')
        A(f'v_add_f32 {den[0]}, {den[0]}, {den[1]}'); A(f'v_rcp_f32 {den[0]}, {den[0]}')
        for i in range(10): A(f'v_pk_mul_f32 {pf.sub(2*i, 2)}, {pf.sub(2*i, 2)}, {den} op_sel_hi:[1,0]')
        for i in range(10): A(f'v_cvt_pk_bf16_f32 {pq[i]}, {pf[2*i]}, {pf[2*i+1]}')
        A(f's_add_u32 {sP[0]}, {sP[0]}, {PP - PQ}'); A(f's_add_u32 {sP[1]}, {sP[1]}, {PP - PQ}')
        A(f'buffer_store_dwordx4 {pq[0:4]}, {vp}, {sWS}, {sP[0]} offen sc1')
        A(f'buffer_store_dwordx4 {pq[4:8]}, {vp}, {sWS}, {sP[0]} offen offset:256 sc1')
        A(f'buffer_store_dwordx2 {pq[8:10]}, {vp}, {sWS}, {sP[1]} offen sc1')
        wa = [V.get() for _ in range(2)]
        A(f's_mul_i32 {s.sT0}, {s.sRb2}, 5')
        for m in range(2):
            A(f'v_lshrrev_b32 {t}, 4, {s.vLane}'); A(f'v_add_u32 {t}, {s.sT0}, {t}')
            if m: A(f'v_add_u32 {t}, 4, {t}')
            A(f'v_lshrrev_b32 {u}, 3, {t}'); A(f'v_mul_u32_u24 {wa[m]}, 5120, {u}')
            A(f'v_bfe_u32 {u}, {t}, 1, 2'); A(f'v_lshl_add_u32 {wa[m]}, {u}, 8, {wa[m]}')
            A(f'v_and_b32 {u}, 1, {t}'); A(f'v_lshl_add_u32 {wa[m]}, {u}, 3, {wa[m]}'); A(f'v_lshl_add_u32 {wa[m]}, {vtok}, 4, {wa[m]}')
        A(f'v_cmp_gt_u32 vcc, 16, {s.vLane}'); A(f'v_mov_b32 {u}, {OOB}'); A(f'v_cndmask_b32 {wa[1]}, {u}, {wa[1]}, vcc')
        A(f's_mul_i32 {s.sT0}, {s.sJ2}, 102400'); A(f's_add_u32 {s.sT0}, {s.sT0}, {WOP}')
        A(f's_cmp_eq_u32 {s.sW}, 0'); A(f's_movk_i32 {s.sT1}, 4096'); A(f's_cselect_b32 {s.sT1}, {s.sT1}, 0x20000000'); A(f's_add_u32 {s.sT1}, {s.sT1}, {s.sT0}')
        A(f's_lshl_b32 {s.sT2}, {s.sW}, 10'); A(f's_add_u32 {s.sT0}, {s.sT0}, {s.sT2}')
        for n in range(2):
            for m in range(2):
                d = D[n][m]
                A(f'v_cvt_pk_bf16_f32 {d[0]}, {d[0]}, {d[1]}'); A(f'v_cvt_pk_bf16_f32 {d[1]}, {d[2]}, {d[3]}')
                last = A(f'buffer_store_dwordx2 {d[0:2]}, {wa[m]}, {sWS}, {[s.sT0, s.sT1][n]} offen sc1')
        V.put(*kq, *zq, pq, vk, vz, vp, *ka, *wb, *D[0], *D[1], pf, den, *wa); S.put(sH, sKo, sZo, *sP, *sZs)
        fw3, r3regs = s.mk_nt_read(3)
        sTw3 = S.get()
        A(f's_lshr_b32 {sTw3}, {s.sRb2}, 1'); A(f's_lshl_b32 {sTw3}, {sTw3}, 2'); A(f's_add_u32 {sTw3}, {sTw3}, {s.sW}')
        A(f's_mul_i32 {s.sT0}, {s.sCb3}, 96'); A(f's_add_u32 {s.sT0}, {s.sT0}, 2560')
        l3, cg, so3, va3 = s.cs_loads(3, s.sT0)
        for ld in l3: A(ld)
        A.waitvm(last)
        s.barrier()
        A(f's_lshl_b32 {s.sT0}, {s.sRb2}, 7'); A(f's_lshl_b32 {s.sT1}, {s.sJ2}, 2'); A(f's_add_u32 {s.sT0}, {s.sT0}, {s.sT1}'); A(f's_add_u32 {s.sT0}, {s.sT0}, {FP}')
        A(f's_lshl_b32 {s.sT1}, {s.sJ2}, 7'); A(f's_lshl_b32 {s.sT2}, {s.sRb2}, 2'); A(f's_add_u32 {s.sT1}, {s.sT1}, {s.sT2}'); A(f's_add_u32 {s.sT1}, {s.sT1}, {FW}')
        A(f'v_mov_b32 {t}, {OOB}'); A(f'v_mov_b32 {u}, {s.sT0}'); A(f'v_cmp_eq_u32 vcc, 0, v0'); A(f'v_cndmask_b32 {t}, {t}, {u}, vcc')
        A(f'v_mov_b32 {u}, {s.sT1}'); A(f'v_cmp_eq_u32 vcc, 1, v0'); A(f'v_cndmask_b32 {t}, {t}, {u}, vcc')
        A(f'buffer_store_dword {s.vN}, {t}, {sWS}, 0 offen sc1')
        s.stamp(10)
        if s.stop <= 3: return
        s.checked(l3, [c[k] for c in cg for k in (1, 3)])
        cs = s.cs_to_lds(3, cg); V.put(*cg, va3); S.put(so3)
        A(f's_lshl_b32 {s.sT1}, {sTw3}, 7'); A(f's_add_u32 {s.sT1}, {s.sT1}, {F2}'); A(f'v_lshlrev_b32 {pa}, 2, {vtok}')
        s.poll(pa, s.sT1)
        s.stamp(11)
        XF = [AG.get(4) for _ in range(40)]; sXo3 = S.get(); st2 = [V.get(4) for _ in range(2)]
        A(f's_mul_i32 {sXo3}, {sTw3}, 40960'); A(f's_add_u32 {sXo3}, {sXo3}, {X1}')
        def ldx3(i):
            if i >= 40: return
            if i % 4 == 0 and i: A(f's_add_u32 {sXo3}, {sXo3}, 4096')
            A(f'buffer_load_dwordx4 {XF[i]}, {s.vL16}, {sWS}, {sXo3} offen offset:{1024 * (i % 4)} sc1')
        LA3 = 12
        for i in range(LA3): ldx3(i)
        sWp = S.get()
        b4a = []
        for i in range(5):
            p = Panel(f'b4a_{i}', slot4([5, 6, 0, 1, 2][i]), 20 * KB); p.sc = 'sc1'
            p.ops = [lambda i=i: (A(f's_mul_i32 {sWp}, {s.sJ2}, 102400'), A(f's_add_u32 {sWp}, {sWp}, {s.sW5120}'), A(f's_add_u32 {sWp}, {sWp}, {WOP + 20480 * i}'))]
            g1 = s.dma_ops(p, [((s.sW5120, p.addr), sWS, sWp, [(s.vL16, 1024 * k) for k in range(4)]), ((s.sW5120, p.addr + 4096), sWS, sWp, [(s.vL16, 0)])])
            p.ops += g1[:5] + [lambda: A(f's_add_u32 {sWp}, {sWp}, 4096')] + g1[5:]
            b4a.append(p)
        pw = V.get(); pwa = V.get(); pwl = []
        acc = [V.get(16) for _ in range(3)]
        def hook3(st, h):
            if st == 0 and h == 1:
                A(f'v_and_b32 {t}, 31, {s.vLane}'); A(f'v_lshlrev_b32 {t}, 6, {t}'); A(f'v_and_b32 {u}, 32, {s.vLane}'); A(f'v_add_u32 {t}, {t}, {u}')
                A(f's_lshl_b32 {s.sT0}, {sTw3}, 11'); A(f's_add_u32 {s.sT0}, {s.sT0}, {S2}')
                for k in range(2): A(f'buffer_load_dwordx4 {st2[k]}, {t}, {sWS}, {s.sT0} offen offset:{16 * k} sc1')
            if st == 2 and h == 0:
                A(f'v_and_b32 {t}, 31, {s.vLane}'); A(f'v_lshlrev_b32 {t}, 2, {t}'); A(f's_lshl_b32 {s.sT0}, {s.sJ2}, 7'); A(f's_add_u32 {s.sT0}, {s.sT0}, {FW}'); A(f'v_add_u32 {pwa}, {s.sT0}, {t}')
                A(f'v_and_b32 {t}, 28, {t}'); A(f's_lshl_b32 {s.sT0}, {s.sRb2}, 7'); A(f's_add_u32 {s.sT0}, {s.sT0}, {FP}'); A(f'v_add_u32 {t}, {s.sT0}, {t}')
                A(f'v_cmp_gt_u32 vcc, 32, {s.vLane}'); A(f'v_cndmask_b32 {pwa}, {t}, {pwa}, vcc')
                pwl.append(f'buffer_load_dword {pw}, {pwa}, {sWS}, 0 offen sc1'); A(pwl[0])
            if st == 3 and h == 1:
                s.checked(pwl, [pw])
                pend3.extend(b4a + [b4b[1]])
        pend3 = []
        s.gemm32(3, b3, 0, XF, fw3, acc, pend3, hook=hook3, xload=lambda n: ldx3(n + LA3), nobar=(0, 1, 2, 4, 6), first_waits=b3[1:])
        s.stamp(12)
        AG.put(*XF); V.put(*r3regs, *vB3, pw, pwa); S.put(sXo3, sW3072, sO3, sC3)
        XA = [[AG.get(4) for _ in range(2)] for _ in range(24)]
        sA4 = [S.get() for _ in range(2)]; sKh = S.get()
        A(f's_and_b32 {sKh}, {s.sW}, 1')
        def a4_base(base, nkb):
            for m in range(2):
                A(f's_xor_b32 {sA4[m]}, {sTT}, {m}'); A(f's_mul_i32 {sA4[m]}, {sA4[m]}, {nkb * 1024}'); A(f's_lshl_b32 {s.sT0}, {sKh}, 11')
                A(f's_add_u32 {sA4[m]}, {sA4[m]}, {s.sT0}'); A(f's_add_u32 {sA4[m]}, {sA4[m]}, {base}')
        def lda4(n, lim):
            if n >= lim: return
            if n % 2 == 0 and n:
                for m in range(2): A(f's_add_u32 {sA4[m]}, {sA4[m]}, 4096')
            for m in range(2): A(f'buffer_load_dwordx4 {XA[n][m]}, {s.vL16}, {sWS}, {sA4[m]} offen offset:{1024 * (n % 2)} sc1')
        ab = [V.get(2), V.get(2)]; vo = V.get(); so = S.get()
        A(f'v_pk_add_f32 {st2[0][0:2]}, {st2[0][0:2]}, {st2[0][2:4]}'); A(f'v_pk_add_f32 {st2[1][0:2]}, {st2[1][0:2]}, {st2[1][2:4]}'); A(f'v_pk_add_f32 {st2[0][0:2]}, {st2[0][0:2]}, {st2[1][0:2]}')
        A(f'v_mov_b32 {st2[0][2]}, {st2[0][0]}'); A(f'v_mov_b32 {st2[0][3]}, {st2[0][1]}')
        A(f'v_permlane32_swap_b32 {st2[0][0]}, {st2[0][2]}'); A(f'v_permlane32_swap_b32 {st2[0][1]}, {st2[0][3]}')
        A(f'v_pk_add_f32 {st2[0][0:2]}, {st2[0][0:2]}, {st2[0][2:4]}')
        s.ln_scalars(st2[0][0], st2[0][1], ab[0][0], ab[1][0], var=st2[0][1])
        A(f'v_and_b32 {t}, 31, {s.vLane}')
        s.f16_voff(vo, t, 48)
        def addr3(J):
            if J == 0:
                A(f's_mul_i32 {so}, {sTw3}, {2 * 48 * 1024}'); A(f's_mul_i32 {s.sT0}, {s.sCb3}, 3072'); A(f's_add_u32 {so}, {so}, {s.sT0}'); A(f's_add_u32 {so}, {so}, {H3}')
            else: A(f's_add_u32 {so}, {so}, 1024')
            return vo, so, ab[0], ab[1]
        s.flush2(); assert not pend3
        last = s.epi32('gelu', acc, cs, None, None, addr3)
        a4_base(PP, 20)
        for n in range(10): lda4(n, 10)
        A(f's_lshl_b32 {s.sT0}, {sTw3}, 7'); A(f's_lshl_b32 {s.sT1}, {s.sCb3}, 2'); A(f's_add_u32 {s.sT0}, {s.sT0}, {s.sT1}'); A(f's_add_u32 {s.sT0}, {s.sT0}, {F3}')
        s.setflag(last, s.sT0)
        s.stamp(13)
        V.put(*acc, *cs, *ab, vo, *st2); S.put(so)
        if s.stop <= 4: return
        A(f's_mul_i32 {s.sT0}, {sKh}, 10240')
        fr = s.w80_read(s.sT0)
        la = V.get(); A(f'v_add_u32 {la}, {s.sT0}, {s.vL16}'); fl = s.dsaddr(la)
        acc = [[V.get(4) for _ in range(5)] for _ in range(2)]
        WB = [[V.get(4) for _ in range(5)] for _ in range(2)]
        def mf4(first, lim, LA):
            def mfmas(st, h):
                n = 2 * st + h; out = []
                for nt in range(5):
                    for m in range(2):
                        def f(nt=nt, m=m):
                            A(f'v_mfma_f32_16x16x32_bf16 {acc[m][nt]}, {WB[h][nt]}, {XA[n][m]}, {"0" if first and n == 0 else acc[m][nt]}')
                            if LA and nt == 4 and m == 1: lda4(n + LA, lim)
                        out.append(f)
                return out
            return mfmas
        def reads4a(st, h):
            p = b4a[st]
            return [(lambda nt=nt: (s.lt.read(p), A(f'ds_read_b128 {WB[h][nt]}, {fl(p.addr + (5 * h + nt) * 1024)}'))) for nt in range(5)]
        def reads4b(st, h):
            p = b4b[st]
            return [(lambda nt=nt, t2=t2: (s.lt.read(p), A(f'ds_read_b64_tr_b16 {WB[h][nt].sub(2*t2, 2)}, {fr[(5*h + nt) & 1](p.addr + t2 * 1280 + 32 * (5 * h + nt))}'))) for nt in range(5) for t2 in range(2)]
        pend4 = b4b[2:]
        s.pipeline(5, [[p] for p in b4a], reads4a, mf4(True, 0, 0), 1, 1, pend4)
        s.flush2()
        s.stamp(14)
        A(f's_lshl_b32 {s.sT1}, {sTw}, 7'); A(f's_add_u32 {s.sT1}, {s.sT1}, {F3}')
        a4_base(H3, 48)
        s.poll(pa, s.sT1)
        s.stamp(15)
        LA4 = 6
        for n in range(LA4): lda4(n, 24)
        s.pipeline(12, [[p] for p in b4b], reads4b, mf4(False, 24, LA4), 1, 1, pend4)
        assert not pend4 and not s.q2
        RED = slot4(1)
        A(f's_add_u32 {s.sT0}, {s.sW5120}, {RED}'); A(f'v_add_u32 {t}, {s.sT0}, {s.vL16}')
        A(f's_xor_b32 {s.sT0}, {s.sW}, 1'); A(f's_mul_i32 {s.sT0}, {s.sT0}, 5120'); A(f's_add_u32 {s.sT0}, {s.sT0}, {RED}'); A(f'v_add_u32 {u}, {s.sT0}, {s.vL16}')
        for nt in range(5): A(f'ds_write_b128 {t}, {acc[1][nt]} offset:{1024 * nt}')
        for nt in range(5):
            for h in range(2): A(f'v_pk_add_f32 {acc[0][nt].sub(2*h, 2)}, {acc[0][nt].sub(2*h, 2)}, {resid[nt].sub(2*h, 2)}')
        s.barrier()
        for nt in range(5): A(f'ds_read_b128 {WB[0][nt]}, {u} offset:{1024 * nt}')
        va = V.get(); va2 = V.get(); pk = [V.get(4) for _ in range(3)]
        A(f'v_mul_u32_u24 {va}, 1280, {vtok}'); A(f'v_lshrrev_b32 {t}, 1, {s.vLane}'); A(f'v_and_b32 {t}, 16, {t}'); A(f'v_add_u32 {va}, {va}, {t}')
        A(f'v_and_b32 {t}, 16, {s.vLane}'); A(f'v_lshl_add_u32 {va2}, {t}, 26, {va}'); A(f'v_lshl_add_u32 {va}, {t}, 1, {va}')
        A(f's_add_u32 {s.sT0}, {sXo}, {s.sJ160}')
        for nt in range(5):
            for h in range(2):
                y = acc[0][nt].sub(2 * h, 2)
                A(f'v_pk_add_f32 {y}, {y}, {WB[0][nt].sub(2*h, 2)}')
                A(f'v_cvt_pk_bf16_f32 {pk[nt // 2][2 * (nt & 1) + h]}, {y[0]}, {y[1]}')
        for k in range(3):
            A(f'v_permlane16_swap_b32 {pk[k][0]}, {pk[k][2]}'); A(f'v_permlane16_swap_b32 {pk[k][1]}, {pk[k][3]}')
            A(f'buffer_store_dwordx4 {pk[k]}, {va if k < 2 else va2}, {sOUT}, {s.sT0} offen offset:{64 * k}')

    def finish(s):
        A = s.A
        t = s.V.get(); u = s.V.get()
        if s.stop > 4:
            A(f'v_or_b32 {t}, s2, v0'); A(f'v_cmp_eq_u32 vcc, 0, {t}'); A(f'v_mov_b32 {u}, {OOB}'); A(f'v_cndmask_b32 {t}, {u}, {t}, vcc')
            A(f'buffer_store_dword {s.vN}, {t}, {sWS}, 0 offen')
        if s.stamps:
            A('s_waitcnt vmcnt(0)')
            s.stamp(16)
            A(f's_lshl_b32 {s.sT0}, s2, 2'); A(f's_add_u32 {s.sT0}, {s.sT0}, {s.sW}'); A(f's_lshl_b32 {s.sT0}, {s.sT0}, 7'); A(f's_add_u32 {s.sT0}, {s.sT0}, {STAMP}')
            A(f'v_and_b32 {t}, 31, {s.vLane}'); A(f'v_lshlrev_b32 {t}, 2, {t}'); A(f'v_and_b32 {u}, 32, {s.vLane}'); A(f'v_lshl_add_u32 {t}, {u}, 25, {t}')
            A(f'buffer_store_dword {s.vStamp}, {t}, {sWS}, {s.sT0} offen')
            if 'dbgout' in s.dbg:
                A(f's_load_dwordx2 {sCSRC[0:2]}, s[0:1], 72'); A(f's_mov_b32 {sCSRC[2]}, 64'); A(f's_mov_b32 {sCSRC[3]}, 0x20000')
                A(f'v_readlane_b32 {s.sT1}, {s.vStamp}, 0'); A(f'v_readlane_b32 {s.sT2}, {s.vStamp}, 16'); A(f'v_writelane_b32 {s.vStamp}, {s.sT2}, 4')
                A(f'v_subrev_u32 {u}, {s.sT1}, {s.vStamp}'); A(f'v_lshlrev_b32 {t}, 2, v0'); A(f's_lshl_b32 {s.sT0}, s2, 10')
                A(f'buffer_store_dword {u}, {t}, {sCSRC}, {s.sT0} offen')
        A('L_end:'); A('s_endpgm')
        A.ins += s.cold
        A('s_endpgm')
        A('.p2align 8'); A('L_codeend:')

    def build(s):
        s.prologue()
        snap = (s.V.snapshot(), s.AG.snapshot(), s.S.snapshot())
        for var in ('B', 'A', 'T1'):
            s.V.restore(snap[0]); s.AG.restore(snap[1]); s.S.restore(snap[2]); s.q2 = []
            s.b2p = s.b2_panels()
            if var == 'T1': s.t1()
            else: s.t23(var)
        s.V.restore(snap[0]); s.AG.restore(snap[1]); s.S.restore(snap[2])
        s.V.put(*s.vXA); s.S.put(s.sOA, s.sOB, s.sEA, s.sBB, s.sCl, s.sXc, s.sRb)
        s.common()
        s.finish()
        hdr = open('cdna_kernels/' + NAME + '.s.ref').read().split('; Override launch')[0]
        txt = hdr + '; @launch grid=(256,1,1) block=(256,1,1) lds=163840\n'
        txt += f'.amdgcn_target "amdgcn-amd-amdhsa--gfx950"\n.text\n.globl {NAME}_kernel\n.p2align 8\n.type {NAME}_kernel,@function\n{NAME}_kernel:\n'
        if 'nomfma' in s.dbg: s.A.ins = [i for i in s.A.ins if i.cls != 'mfma']
        if 'nods' in s.dbg: s.A.ins = [i for i in s.A.ins if not (i.cls == 'ds' and i.w and i.w[0][0] == 'a')]
        if 'nodma' in s.dbg: s.A.ins = [i for i in s.A.ins if i.note != 'dma']
        txt += s.A.text()
        txt += f'''.section .rodata,"a"
.p2align 6
.amdhsa_kernel {NAME}_kernel
  .amdhsa_next_free_vgpr 512
  .amdhsa_next_free_sgpr 102
  .amdhsa_accum_offset 256
  .amdhsa_group_segment_fixed_size 0
  .amdhsa_kernarg_size 88
  .amdhsa_user_sgpr_count 2
  .amdhsa_user_sgpr_kernarg_segment_ptr 1
  .amdhsa_system_sgpr_workgroup_id_x 1
.end_amdhsa_kernel
'''
        return txt

if __name__ == '__main__':
    import argparse
    ap = argparse.ArgumentParser()
    ap.add_argument('-o', default='cdna_kernels/' + NAME + '.s')
    ap.add_argument('--stop', type=int, default=99)
    ap.add_argument('--stamps', action='store_true')
    ap.add_argument('--dbg', default='')
    a = ap.parse_args()
    g = G(stop=a.stop, stamps=a.stamps, dbg=a.dbg)
    open(a.o, 'w').write(g.build())
    print('written', a.o, 'vgpr top', g.V.top, 'agpr top', g.AG.top, 'sgpr top', g.S.top)
```

```python
import re

class R:
    __slots__ = ('k', 'i', 'n')
    def __init__(s, k, i, n=1): s.k, s.i, s.n = k, i, n
    def __str__(s): return f'{s.k}{s.i}' if s.n == 1 else f'{s.k}[{s.i}:{s.i+s.n-1}]'
    __repr__ = __str__
    def __getitem__(s, x):
        if isinstance(x, slice):
            a = x.start or 0; b = s.n if x.stop is None else x.stop
            assert 0 <= a < b <= s.n, (s, x)
            return R(s.k, s.i + a, b - a)
        assert 0 <= x < s.n, (s, x)
        return R(s.k, s.i + x, 1)
    def sub(s, a, n): return s[a:a+n]
    def regs(s): return [(s.k, s.i + j) for j in range(s.n)]

_RE = re.compile(r'^(-|abs\()?\|?([vas])(?:(\d+)|\[(\d+):(\d+)\])\)?\|?$')
def parse_regs(tok):
    tok = tok.strip()
    if tok == 'vcc': return [('s', 'vcc')]
    if tok in ('vcc_lo', 'vcc_hi'): return [('s', 'vcc')]
    if tok in ('exec', 'exec_lo', 'exec_hi'): return [('s', 'exec')]
    if tok == 'm0': return [('s', 'm0')]
    m = _RE.match(tok)
    if not m: return []
    k = m.group(2)
    if m.group(3) is not None: return [(k, int(m.group(3)))]
    return [(k, j) for j in range(int(m.group(4)), int(m.group(5)) + 1)]

TRANS = ('v_exp_f32', 'v_log_f32', 'v_rcp_f32', 'v_rsq_f32', 'v_sqrt_f32', 'v_sin_f32', 'v_cos_f32', 'v_rcp_iflag_f32')

class I:
    __slots__ = ('op', 'ops', 'mods', 'w', 'r', 'cls', 'tok', 'text', 'passes', 'srcc', 'srcab', 'wide', 'data', 'dpp', 'note')
    def __init__(s, text):
        s.text = text; s.tok = None; s.note = None
        s.passes = 0; s.srcc = []; s.srcab = []; s.wide = False; s.data = []; s.dpp = False
        t = text.strip()
        if t.endswith(':') or t.startswith('.') or t.startswith(';'):
            s.op = t; s.cls = 'label' if t.endswith(':') else 'dir'; s.w = []; s.r = []; s.ops = []; return
        p = t.split(None, 1); s.op = op = p[0]
        rest = p[1] if len(p) > 1 else ''
        ops = []; cur = ''; d = 0
        for ch in rest:
            if ch in '[(': d += 1
            if ch in '])': d -= 1
            if ch == ',' and d == 0: ops.append(cur.strip()); cur = ''
            else: cur += ch
        if cur.strip(): ops.append(cur.strip())
        mods = ''
        if ops:
            last = ops[-1].split(None, 1)
            ops[-1] = last[0]; mods = last[1] if len(last) > 1 else ''
        s.ops = ops; s.mods = mods
        P = [parse_regs(o) for o in ops]
        flat = lambda L: [x for l in L for x in l]
        base = re.sub(r'_(e32|e64|dpp|sdwa)$', '', op)
        if op.startswith('v_mfma'):
            s.cls = 'mfma'; s.w = P[0]; s.srcab = P[1] + P[2]; s.srcc = P[3]; s.r = s.srcab + s.srcc
            s.passes = 8 if '32x32x16' in op else 4 if '16x16x32' in op else None
            assert s.passes
        elif op.startswith('v_'):
            s.cls = 'valu'
            s.dpp = op.endswith('_dpp') or 'row_' in mods or 'quad_perm' in mods
            if base.startswith('v_permlane') and 'swap' in base:
                s.w = P[0] + P[1]; s.r = P[0] + P[1]; s.cls = 'permlane'
            elif base in ('v_readfirstlane_b32', 'v_readlane_b32'):
                s.w = P[0]; s.r = flat(P[1:]); s.cls = 'readlane'
            elif base.startswith('v_cmpx'):
                s.w = P[0] + [('s', 'exec')]; s.r = flat(P[1:])
            elif base in ('v_add_co_u32', 'v_sub_co_u32', 'v_addc_co_u32', 'v_subb_co_u32', 'v_mad_u64_u32'):
                s.w = P[0] + P[1]; s.r = flat(P[2:])
            elif base == 'v_nop':
                s.w = []; s.r = []
            else:
                s.w = P[0]; s.r = flat(P[1:])
                if base in ('v_fmac_f32', 'v_dot2c_f32_bf16', 'v_writelane_b32', 'v_pk_fmac_f16') or s.dpp or 'sdwa' in op: s.r = s.r + P[0]
                if base in TRANS: s.cls = 'trans'
                if base.startswith('v_dot2'): s.cls = 'dot'
        elif op.startswith('ds_'):
            s.cls = 'ds'
            if op.startswith('ds_read') or op.startswith('ds_bpermute') or op.startswith('ds_swizzle') or op.startswith('ds_permute'):
                s.w = P[0]; s.r = flat(P[1:])
            else:
                s.w = []; s.r = flat(P)
        elif op.startswith('buffer_') or op.startswith('global_'):
            s.cls = 'vmem'
            lds = re.search(r'\blds\b', mods) is not None or '_lds_' in op
            if 'load' in op and not lds: s.w = P[0]; s.r = flat(P[1:])
            elif 'load' in op: s.w = []; s.r = flat(P) + [('s', 'm0')]; s.note = 'dma'
            elif 'store' in op:
                s.w = []; s.r = flat(P)
                s.data = P[0] if op.startswith('buffer_') else P[1]
                s.wide = op.endswith('x3') or op.endswith('x4')
            elif 'atomic' in op:
                s.r = flat(P); s.w = P[0] if 'sc0' in mods else []
            else: s.w = []; s.r = []
        elif op.startswith('s_atomic'):
            s.cls = 'smem'; s.w = P[0]; s.r = flat(P)
        elif op.startswith('s_load') or op.startswith('s_memtime') or op.startswith('s_memrealtime'):
            s.cls = 'smem'; s.w = P[0]; s.r = flat(P[1:])
        elif op in ('s_waitcnt', 's_nop', 's_barrier', 's_endpgm', 's_sleep', 's_setprio') or op.startswith('s_cbranch') or op == 's_branch':
            s.cls = 'branch' if 'branch' in op else op[2:]; s.w = []; s.r = []
            if 'vcc' in op: s.r = [('s', 'vcc')]
        elif op.startswith('s_cmp') or op.startswith('s_bitcmp'):
            s.cls = 'salu'; s.w = []; s.r = flat(P)
        elif op.startswith('s_setpc'):
            s.cls = 'branch'; s.w = []; s.r = flat(P)
        elif op.startswith('s_'):
            s.cls = 'salu'; s.w = P[0]; s.r = flat(P[1:])
            if op.startswith('s_cmov'): s.r = s.r + P[0]
            if 'saveexec' in op: s.w = s.w + [('s', 'exec')]
        elif op == 'WAITVM':
            s.cls = 'pseudo'; s.w = []; s.r = []
        else:
            raise ValueError('unknown op ' + text)

VALUISH = ('valu', 'trans', 'dot', 'permlane', 'readlane')

class Asm:
    def __init__(s):
        s.ins = []; s.ntok = 0; s.clk = 0; s.mf_free = 0; s.lds_free = 0; s.hook = None
        s.vp = {'v': 0, 'a': 0, 's': 0}
    def __call__(s, text, *a):
        last = None
        for ln in text.split('\n'):
            ln = ln.strip()
            if not ln: continue
            last = I(ln); s.ins.append(last)
            s.tick(last)
        return last
    def tick(s, i):
        if i.cls in ('label', 'dir', 'pseudo'): return
        if i.cls == 'mfma':
            st = max(s.clk, s.mf_free); s.clk = st + 8; s.mf_free = st + 4 * i.passes
        elif i.cls in ('trans', 'permlane'): s.clk += 8
        elif i.cls == 'ds' and i.w: s.clk += 4; s.lds_free = max(s.clk, s.lds_free) + (16 if 'b128' in i.op else 8); s.clk = max(s.clk, s.lds_free - 64)
        else: s.clk += 4
        if s.hook and i.cls in ('mfma', 'valu', 'trans', 'ds', 'dot', 'permlane'): s.hook()
    def tokof(s, ins):
        if ins.tok is None: s.ntok += 1; ins.tok = s.ntok
        return ins.tok
    def waitvm(s, ins):
        p = I('WAITVM'); p.tok = s.tokof(ins); s.ins.append(p); return p
    def ctl(s, what, name=None):
        p = I('WAITVM'); p.tok = (what, name); s.ins.append(p)
    def touch(s, regs):
        p = I('WAITVM'); p.tok = 'touch'; p.r = [x for r in regs for x in r.regs()]; s.ins.append(p)
    def wait_prejoin(s):
        p = I('WAITVM'); p.tok = 'prejoin'; s.ins.append(p)

    def finalize(s, verbose=False):
        out = []
        vm = []
        lg = []
        saved = {}; joinw = []
        hist = []
        def push(i):
            out.append(i)
            if i.cls in ('label', 'dir'): return
            ws = int(i.ops[0]) + 1 if i.cls == 'nop' else 1
            for h in hist: h[1] += ws
            hist.append([i, 0])
            while hist and hist[0][1] > 24: hist.pop(0)
        def do_wait(vn=None, ln=None):
            parts = []
            if vn is not None:
                vn = min(vn, 63); parts.append(f'vmcnt({vn})')
                del vm[:max(0, len(vm) - vn)]
            if ln is not None:
                if any(x.cls == 'smem' for x in lg): ln = 0
                ln = min(ln, 15); parts.append(f'lgkmcnt({ln})')
                del lg[:max(0, len(lg) - ln)]
            push(I('s_waitcnt ' + ' '.join(parts)))
        for i in s.ins:
            if i.cls == 'pseudo':
                if isinstance(i.tok, tuple):
                    what, name = i.tok
                    if what == 'save': saved[name] = (list(vm), list(lg), [list(h) for h in hist])
                    elif what == 'restore':
                        a, b, c = saved[name]; vm[:] = a; lg[:] = b; hist[:] = [list(h) for h in c]
                    elif what == 'pend':
                        X = I('WAITVM'); X.tok = 'pend'; X.w = [x for r in name for x in r.regs()]; vm[:] = [X]
                    elif what == 'endvar':
                        assert not lg, 'lgkm pending at variant end'
                        assert not any(h.cls == 'mfma' and age < 16 for h, age in hist)
                        for x in vm: joinw.extend(x.w)
                    elif what == 'join':
                        X = I('WAITVM'); X.tok = 'prejoin'; X.w = list(joinw); vm[:] = [X]; lg[:] = []; hist[:] = []
                        push(I('s_nop 4'))
                    continue
                if i.tok == 'touch':
                    touched = set(i.r); vn = ln = None
                    for k, x in enumerate(vm):
                        if touched & set(x.w): vn = len(vm) - 1 - k
                    for k, x in enumerate(lg):
                        if touched & set(x.w): ln = len(lg) - 1 - k
                    if vn is not None or ln is not None: do_wait(vn, ln)
                    continue
                idx = [k for k, x in enumerate(vm) if x.tok == i.tok]
                if idx: do_wait(vn=len(vm) - 1 - idx[0])
                continue
            if i.cls in ('label', 'dir'):
                push(i); continue
            if i.cls == 'waitcnt':
                m = re.search(r'vmcnt\((\d+)\)', i.text)
                if m: del vm[:max(0, len(vm) - int(m.group(1)))]
                m = re.search(r'lgkmcnt\((\d+)\)', i.text)
                if m:
                    n = int(m.group(1)); assert n == 0 or not any(x.cls == 'smem' for x in lg)
                    del lg[:max(0, len(lg) - n)]
                push(i); continue
            touched = set(i.r) | set(i.w)
            vn = ln = None
            for k, x in enumerate(vm):
                if touched & set(x.w): vn = len(vm) - 1 - k
            for k, x in enumerate(lg):
                if touched & set(x.w): ln = len(lg) - 1 - k
            if vn is not None or ln is not None: do_wait(vn, ln)
            need = 0
            rs, wsx = set(i.r), set(i.w)
            for h, age in hist:
                d = 0; hw = set(h.w)
                if h.cls in VALUISH:
                    hv = {x for x in hw if x[0] != 's'}; hsg = {x for x in hw if x[0] == 's'}
                    if i.cls == 'mfma' and hv & rs: d = max(d, 2)
                    if i.cls == 'permlane' and hv & rs: d = max(d, 2)
                    if i.dpp and hv & set(parse_regs(i.ops[1])): d = max(d, 2)
                    if i.cls == 'readlane' and hv & rs: d = max(d, 1)
                    if h.cls == 'trans' and i.cls in VALUISH + ('mfma',) and i.cls != 'trans' and hv & rs: d = max(d, 1)
                    if h.cls == 'trans' and i.cls in ('vmem', 'ds') and hv & rs: d = max(d, 1)
                    if h.cls == 'dot' and hv & (rs | wsx) and not (i.cls == 'dot' and i.op == h.op and not (hv & set(sum([parse_regs(o) for o in i.ops[1:3]], [])))): d = max(d, 3)
                    if ('sdwa' in h.op or 'op_sel' in h.mods and not h.op.startswith('v_pk')) and i.cls in VALUISH and hv & (rs | wsx): d = max(d, 1)
                    if hsg:
                        if i.cls == 'vmem' and hsg & rs: d = max(d, 5)
                        if i.cls in VALUISH and hsg & rs: d = max(d, 4 if i.cls == 'readlane' else 2)
                        if i.cls in VALUISH and i.op.startswith('v_cndmask') and ('s', 'vcc') in hsg: d = max(d, 2)
                        if ('s', 'exec') in hsg: d = max(d, 5 if i.dpp else 4 if i.cls in ('mfma', 'readlane', 'permlane') else 0)
                        if i.cls in ('salu', 'branch') and hsg & rs: d = max(d, 1)
                elif h.cls == 'mfma':
                    p = h.passes
                    if i.cls == 'mfma':
                        if hw & set(i.srcab): d = max(d, p + 4)
                        if hw & set(i.srcc):
                            if not (set(i.srcc) == hw and i.passes == p): d = max(d, p + 2)
                        elif hw & wsx: d = max(d, p + 4)
                    elif i.cls in VALUISH or i.cls in ('vmem', 'ds'):
                        if hw & (rs | wsx): d = max(d, p + 4)
                        if set(h.srcc) & wsx: d = max(d, p - 1)
                elif h.cls == 'salu':
                    if ('s', 'm0') in hw and i.note == 'dma': d = max(d, 1)
                elif h.cls == 'vmem' and h.wide:
                    if set(h.data) & wsx: d = max(d, 2)
                elif h.cls == 'ds' and not h.w and h.op.endswith(('b128', 'b96')):
                    if set(h.r) & wsx and i.cls in VALUISH: d = max(d, 1)
                need = max(need, d - age)
            while need > 0:
                n = min(need, 16); push(I(f's_nop {n-1}')); need -= n
            push(i)
            if i.cls == 'vmem': vm.append(i)
            elif i.cls in ('ds', 'smem'): lg.append(i)
        return out

    def text(s):
        return '\n'.join(i.text for i in s.finalize()) + '\n'

class Pool:
    def __init__(s, kind, lo, hi): s.k, s.free = kind, [True] * hi; s.lo = lo; s.hi = hi; s.top = lo; s.free[:lo] = [False] * lo
    def get(s, n=1, align=None):
        al = align or (4 if n >= 4 else 2 if n >= 2 else 1)
        i = s.lo
        while i + n <= s.hi:
            if i % al == 0 and all(s.free[i:i+n]):
                s.free[i:i+n] = [False] * n; s.top = max(s.top, i + n); return R(s.k, i, n)
            i += 1
        raise RuntimeError(f'out of {s.k} regs (need {n})')
    def put(s, *rs):
        for r in rs:
            assert r.k == s.k and not any(s.free[r.i:r.i+r.n]), r
            s.free[r.i:r.i+r.n] = [True] * r.n
    def snapshot(s): return list(s.free)
    def restore(s, f): s.free = list(f)
```

```python
import sys, struct, math
from asmgen import *

NAME = 'parallel_sum__linear_attn_block__mixer_s_mlp__prompt'
KB = 1024
F1, FQ, FK, F2, FP, FW, F3, FR = 0x1000, 0x3000, 0x5000, 0x6000, 0x8000, 0x9000, 0xB000, 0xD000
RS, CS, S2, STAMP = 0x10000, 0x18000, 0x40000, 0x180000
HS, PQ, PP, X1, H3, WOP = 0x200000, 0x480000, 0x700000, 0x980000, 0xC00000, 0x1200000
KV, W4R = 0x1300000, 0x1500000
WS_USED = 0x1700000
OOB = 0x40000000
XT = 148 * KB
KVB = 158 * KB
WOB = XT
SPIN = 200000

def f2u(x): return struct.unpack('<I', struct.pack('<f', x))[0]
def hexf(x): return '0x%08x' % f2u(x)
LOG2E = 1.4426950408889634
GC0 = -2.0 * LOG2E * math.sqrt(2.0 / math.pi)
GC1 = GC0 * 0.044715

sX, sWQKV, sWO, sW1, sW2, sW3, sW4, sOUT, sWS, sCSRC = [R('s', 4 + 4 * i, 4) for i in range(10)]

class Panel:
    def __init__(s, name, addr, size): s.name, s.addr, s.size = name, addr, size; s.last = None; s.waited = None; s.lastread = -1; s.dead = False; s.issued = False

def ovl(p, q): return q.addr < p.addr + p.size and p.addr < q.addr + q.size
class LT:
    def __init__(s): s.epoch = 0; s.live = []
    def issue(s, p):
        for q in list(s.live):
            if q is not p and ovl(p, q):
                assert q.dead and q.lastread < s.epoch, f'panel {p.name} overwrites live {q.name}'
                s.live.remove(q)
        if p not in s.live: s.live.append(p)
    def can_issue(s, p): return all(q is p or not ovl(p, q) or (q.dead and q.lastread < s.epoch) for q in s.live)
    def read(s, p):
        assert p.waited is not None and p.waited < s.epoch and not p.dead and p in s.live, f'bad read of {p.name}'
        p.lastread = s.epoch

class G:
    def __init__(s, stop=99, stamps=False, dbg='', **opt):
        s.A = Asm(); s.stop = stop; s.stamps = stamps; s.dbg = dbg; s.stbase = None
        s.V = Pool('v', 1, 256); s.AG = Pool('a', 0, 256); s.S = Pool('s', 44, 101)
        s.lt = LT(); s.cold = []; s.nlab = 0
        s.q2 = []; s.q3 = []; s.pend = []; s.queued = []
        s.pace = False; s.inhook = False; s.nxt = 0
        s.o = dict(rate=1.8, NF=64, PRE=48, LA2=12, LA3=12, LA4=6, f1d=24, f3d=30, lag16=12, lag32=6, fk=30, nph=10, xro=0); s.o.update(opt)
        s.A.hook = s.pacer

    def lab(s, p='L'): s.nlab += 1; return f'{p}{s.nlab}'
    def stamp(s, n):
        if s.stamps:
            pc = s.pace; s.pace = False
            s.A(f's_mem{"" if "cyc" in s.dbg else "real"}time {s.sStamp}'); s.A(f'v_writelane_b32 {s.vStamp}, {s.sStamp[0]}, {n}')
            s.pace = pc
    def pacer(s):
        if not s.pace or s.inhook or not s.q2 or s.A.clk < s.nxt: return
        s.inhook = True; s.pop2(); s.inhook = False
    def pop2(s):
        f, cost = s.q2.pop(0); f(); s.charge(cost)
    def charge(s, lines):
        if lines: s.nxt = max(s.nxt, s.A.clk) + lines * 4 * s.o['rate']
    def flush2(s):
        ih = s.inhook; s.inhook = True
        while s.q2: s.pop2()
        s.inhook = ih
    def flush3(s):
        while s.q3: s.q3.pop(0)()
    def defer(s, fn):
        A = s.A; main = A.ins; A.ins = []; h = A.hook; A.hook = None; clk = (A.clk, A.mf_free, A.lds_free)
        fn(); cap = A.ins; A.ins = main; A.hook = h; A.clk, A.mf_free, A.lds_free = clk
        grp = []
        for i in cap:
            grp.append(i)
            if i.cls != 'salu': s.q3.append(lambda g=grp: s.replay(g)); grp = []
        if grp: s.q3.append(lambda g=grp: s.replay(g))
    def replay(s, g):
        for i in g: s.A.ins.append(i); s.A.tick(i)
    def pump(s):
        s.queued = [q for q in s.queued if not q.issued]
        while s.pend and s.lt.can_issue(s.pend[0]) and not any(ovl(s.pend[0], q) for q in s.queued):
            p = s.pend.pop(0); s.queued.append(p); s.q2 += p.ops
    def need(s, ps):
        ih = s.inhook; s.inhook = True
        while any(not p.issued for p in ps):
            if not s.q2: s.pump(); assert s.q2, [p.name for p in ps]
            s.pop2()
        s.inhook = ih
    def barrier(s, waits=(), drain=True):
        A = s.A
        s.need(waits)
        if drain: A('s_waitcnt lgkmcnt(0)')
        for p in waits:
            if p.last == 'prejoin': A.wait_prejoin()
            else: A.waitvm(p.last)
            p.waited = s.lt.epoch
        A('s_barrier'); s.lt.epoch += 1; A.clk += 30
        s.pump()
    def dsaddr(s, base, wins=(0, 1, 2), regs=None):
        rr = {0: base}; k = 0
        for wv in wins:
            if wv:
                r = regs[k] if regs else s.V.get(); k += 1
                s.A(f'v_add_u32 {r}, {wv * 65536}, {base}'); rr[wv] = r
        def at(c): return f'{rr[c >> 16]} offset:{c & 0xffff}'
        at.regs = list(rr.values())
        return at
    def dma_ops(s, p, groups):
        ops = []; n = sum(len(g[3]) for g in groups); cnt = [0]
        for gi, (m0, srd, soff, lst, lines) in enumerate(groups):
            def setm(m0=m0, gi=gi):
                if gi == 0: s.lt.issue(p)
                s.A(f's_add_u32 m0, {m0[0]}, {m0[1]}' if m0[0] is not None else f's_mov_b32 m0, {m0[1]}')
            ops.append((setm, 0))
            for (vo, imm) in lst:
                def ld(srd=srd, soff=soff, vo=vo, imm=imm):
                    i = s.A(f'buffer_load_dwordx4 {vo}, {srd}, {soff} offen offset:{imm} {getattr(p, "sc", "")} lds')
                    cnt[0] += 1
                    if cnt[0] == n: p.last = i; p.issued = True
                ops.append((ld, lines))
        return ops
    def wrapadd(s, r, step, lim, base):
        return (lambda: (s.A(f's_add_u32 {r}, {r}, {step}'), s.A(f's_cmp_ge_u32 {r}, {lim}'), s.A(f's_cmov_b32 {r}, {base}')), 0)
    def poll(s, vaddr, soff='0'):
        A = s.A; L = s.lab('P'); D = s.lab('PD'); t = s.V.get(); pc = s.pace; s.pace = False
        A(f's_mov_b32 {s.sT0}, {SPIN}')
        A(f'{L}:')
        A(f'buffer_load_dword {t}, {vaddr}, {sWS}, {soff} offen sc1')
        A(f's_sub_u32 {s.sT0}, {s.sT0}, 1')
        A(f's_cbranch_scc1 {D}')
        A(f'v_cmp_ne_u32 vcc, {s.sN}, {t}')
        A(f's_cbranch_vccnz {L}')
        A(f'{D}:')
        A('s_waitcnt vmcnt(0)')
        s.V.put(t); s.pace = pc; s.nxt = A.clk
    def checked(s, loads, tags, pre=None):
        A = s.A; Lr = s.lab('R'); Lb = s.lab('B'); pc = s.pace; s.pace = False
        def chk(target):
            t = s.V.get()
            if len(tags) == 1: A(f'v_cmp_ne_u32 vcc, {s.sN}, {tags[0]}')
            else:
                A(f'v_xor_b32 {t}, {s.sN}, {tags[0]}')
                for x in tags[1:]: A(f'v_bitop3_b32 {t}, {t}, {s.vN}, {x} bitop3:0xf6')
                A(f'v_cmp_ne_u32 vcc, 0, {t}')
            A(f's_cbranch_vccnz {target}')
            s.V.put(t)
        chk(Lr)
        A(f'{Lb}:')
        main = A.ins; A.ins = []; clk = (A.clk, A.mf_free, A.lds_free)
        A(f'{Lr}:')
        A('s_waitcnt vmcnt(0) lgkmcnt(0)')
        if pre: A(pre)
        A(f's_mov_b32 {s.sT0}, {SPIN}')
        L2 = s.lab('R')
        A(f'{L2}:')
        for ld in loads: A(ld)
        A('s_waitcnt vmcnt(0)')
        A(f's_sub_u32 {s.sT0}, {s.sT0}, 1')
        A(f's_cbranch_scc1 {Lb}')
        chk(L2)
        A('s_nop 4')
        A(f's_branch {Lb}')
        s.cold += A.ins; A.ins = main; A.clk, A.mf_free, A.lds_free = clk; s.pace = pc
    def flagtxt(s, soff): return f'buffer_store_dword {s.vN}, {s.vL0}, {sWS}, {soff} offen sc1'
    def setflag(s, last_store, soff):
        if last_store == 'prejoin': s.A.wait_prejoin()
        else: s.A.waitvm(last_store)
        s.A(s.flagtxt(soff))
    def rbf(s, d, x):
        s.A(f'v_cvt_pk_bf16_f32 {d}, {x}, {x}'); s.A(f'v_and_b32 {d}, 0xffff0000, {d}')
    def rstd(s, d, var):
        A = s.A
        s.rbf(d, var); A(f'v_add_f32 {d}, {hexf(1e-5)}, {d}'); s.rbf(d, d); A(f'v_sqrt_f32 {d}, {d}'); s.rbf(d, d)
    def split_w(s, q, v):
        A = s.A
        A(f'v_cvt_pk_bf16_f32 {q[1]}, {v}, {v}'); A(f'v_and_b32 {q[2]}, 0xffff0000, {q[1]}'); A(f'v_sub_f32 {q[3]}, {v}, {q[2]}')
        A(f'v_cvt_pk_bf16_f32 {q[0]}, {q[2]}, {q[3]}'); A(f'v_and_b32 {q[1]}, 0xffff, {q[1]}'); A(f'v_mov_b32 {q[2]}, 0'); A(f'v_mov_b32 {q[3]}, 0')
    def split_x(s, q, m):
        A = s.A
        A(f'v_cvt_pk_bf16_f32 {q[0]}, -{m}, -{m}'); A(f'v_and_b32 {q[2]}, 0xffff0000, {q[0]}'); A(f'v_sub_f32 {q[2]}, -{m}, {q[2]}')
        A(f'v_cvt_pk_bf16_f32 {q[1]}, {q[2]}, 0'); A(f'v_mov_b32 {q[2]}, 0'); A(f'v_mov_b32 {q[3]}, 0')
    def div20(s, i, q, c20):
        A = s.A; t = s.V.get()
        A(f'v_add_u32 {t}, {64*i}, {s.vLane}')
        A(f'v_mul_u32_u24 {q}, 3277, {t}'); A(f'v_lshrrev_b32 {q}, 16, {q}')
        A(f'v_mul_u32_u24 {c20}, 20, {q}'); A(f'v_sub_u32 {c20}, {t}, {c20}')
        A(f'v_lshrrev_b32 {t}, 2, {q}'); A(f'v_and_b32 {t}, 2, {t}'); A(f'v_xor_b32 {c20}, {c20}, {t}')
        A(f'v_cmp_le_u32 vcc, 10, {c20}')
        s.V.put(t)
    def w80_panel(s, name, addr, srd, so, np_):
        p = Panel(name, addr, 20 * KB)
        p.ops = s.dma_ops(p, [((s.sW5120, addr), srd, so, [(s.vW80[i], 1024 * i) for i in range(4)], 12.8),
                              ((s.sW5120, addr + 4096), srd, so, [(s.vW80[4], 0)], 12.8)]) + [s.wrapadd(so, 163840, np_ * 163840, s.sJ160)]
        return p
    def mk_nt_voff(s, NT, stride, vo=None):
        A = s.A; vo = vo or [s.V.get() for _ in range(NT)]; t = s.V.get(); c = s.V.get()
        A(f's_lshl_b32 {s.sT0}, {s.sW}, 4')
        if NT == 3:
            for i in range(3):
                q = vo[i]
                A(f'v_add_u32 {t}, {64*i}, {s.vLane}')
                A(f'v_mul_u32_u24 {q}, 5462, {t}'); A(f'v_lshrrev_b32 {q}, 16, {q}')
                A(f'v_mul_u32_u24 {c}, 12, {q}'); A(f'v_sub_u32 {c}, {t}, {c}')
                A(f'v_add_u32 {q}, {s.sT0}, {q}'); A(f'v_mul_u32_u24 {q}, {stride}, {q}')
                A(f'v_lshl_add_u32 {q}, {c}, 4, {q}')
                if i: A(f'v_subrev_u32 {q}, {1024*i}, {q}')
        else:
            A(f'v_lshrrev_b32 {t}, 3, {s.vLane}'); A(f'v_add_u32 {t}, {s.sT0}, {t}'); A(f'v_mul_u32_u24 {t}, {stride}, {t}')
            A(f'v_lshrrev_b32 {c}, 2, {s.vLane}'); A(f'v_and_b32 {c}, 4, {c}'); A(f'v_xor_b32 {c}, {c}, {s.vLane}'); A(f'v_and_b32 {c}, 7, {c}')
            A(f'v_lshl_add_u32 {vo[0]}, {c}, 4, {t}')
            A(f'v_add_u32 {vo[1]}, {8 * stride - 1024}, {vo[0]}')
        s.V.put(t, c)
        return vo
    def mk_nt_read(s, NT, regs=None):
        A = s.A; b = regs[0] if regs else s.V.get(); t = s.V.get(); rs = 64 * NT
        A(f'v_lshrrev_b32 {b}, 5, {s.vLane}'); A(f'v_lshlrev_b32 {b}, 3, {b}')
        A(f'v_bfe_u32 {t}, {s.vLane}, 2, 2'); A(f'v_add_u32 {b}, {b}, {t}'); A(f'v_mul_u32_u24 {b}, {rs}, {b}')
        A(f'v_and_b32 {t}, 3, {s.vLane}'); A(f'v_lshl_add_u32 {b}, {t}, 3, {b}')
        A(f'v_and_b32 {t}, 16, {s.vLane}'); A(f'v_lshl_add_u32 {b}, {t}, 1, {b}')
        if NT == 3:
            f = s.dsaddr(b, regs=regs[1:] if regs else None); s.V.put(t)
            return [(lambda c, J=J: f(c + 64 * J)) for J in range(3)], f.regs
        A(f'v_and_b32 {t}, 8, {s.vLane}'); A(f'v_lshlrev_b32 {t}, 3, {t}')
        A(f'v_xor_b32 {b}, {b}, {t}'); A(f'v_xor_b32 {t}, 64, {b}')
        f0 = s.dsaddr(b); f1 = s.dsaddr(t)
        return [f0, f1], f0.regs + f1.regs
    def f16_voff(s, d, tok, nkb):
        A = s.A; t = s.V.get()
        A(f'v_lshrrev_b32 {t}, 4, {tok}'); A(f'v_mul_u32_u24 {t}, {nkb * 1024}, {t}')
        A(f'v_and_b32 {d}, 15, {tok}'); A(f'v_lshl_add_u32 {d}, {d}, 4, {t}')
        A(f'v_and_b32 {t}, 32, {s.vLane}'); A(f'v_lshl_add_u32 {d}, {t}, 3, {d}')
        s.V.put(t)

    def prologue(s):
        A = s.A; S = s.S; V = s.V
        A('s_cmp_ge_u32 s2, 256'); A('s_cbranch_scc1 L_end')
        for srd, off in [(sX, 0), (sWQKV, 8), (sW1, 32), (sW3, 48), (sWS, 80), (sW2, 40), (sWO, 16), (sW4, 56), (sOUT, 64)]:
            A(f's_load_dwordx2 {srd[0:2]}, s[0:1], {off}')
        s.sT0, s.sT1, s.sT2, s.sT3 = S.get(), S.get(), S.get(), S.get()
        s.sW, s.sN, s.sFlag = S.get(), S.get(), S.get()
        s.sW4096, s.sW5120, s.sW2560, s.sW1024 = S.get(), S.get(), S.get(), S.get()
        s.sRb2, s.sJ2, s.sJ160, s.sCb3, s.sTw, s.sTw3, s.sTT = [S.get() for _ in range(7)]
        s.sQ2, s.sA2 = S.get(), S.get()
        s.sRb, s.sCl, s.sXc, s.sRot, s.sOA, s.sOB, s.sBB, s.sCsA, s.sRow0, s.sLc = [S.get() for _ in range(10)]
        s.vLane, s.vL16, s.vL0, s.vN, s.vTok = [V.get() for _ in range(5)]
        s.vXA = [V.get() for _ in range(4)]
        s.p0c = V.get(4); s.p0x = V.get(10, 2)
        t = V.get(); u = V.get(); pc = S.get(2); xcd, idx = s.sT0, s.sT1
        A(f's_getpc_b64 {pc}'); A('L_pc:')
        A(f's_lshr_b32 {idx}, s2, 3'); A(f's_lshl_b32 {s.sT2}, {idx}, 12')
        A(f'v_lshl_add_u32 {u}, v0, 4, {s.sT2}'); A(f'v_min_u32 {u}, L_codeend-L_pc-16, {u}')
        A(f'global_load_dwordx4 {s.p0c}, {u}, {pc}')
        if s.stamps: s.sStamp = S.get(2); s.vStamp = V.get(); A(f'v_mov_b32 {s.vStamp}, 0')
        A(f'v_lshrrev_b32 {t}, 6, v0'); A(f'v_and_b32 {s.vLane}, 63, v0')
        A(f'v_readfirstlane_b32 {s.sW}, {t}')
        A(f's_and_b32 {xcd}, s2, 7')
        A(f's_and_b32 {s.sT3}, {xcd}, 3'); A(f's_and_b32 {s.sT2}, {idx}, 3'); A(f's_lshl2_add_u32 {s.sRb}, {s.sT3}, {s.sT2}')
        A(f's_lshr_b32 {s.sCl}, {idx}, 2'); A(f's_lshr_b32 {s.sXc}, {xcd}, 2')
        A(f's_lshr_b32 {s.sT2}, {idx}, 3'); A(f's_lshl2_add_u32 {s.sRb2}, {xcd}, {s.sT2}')
        A(f's_and_b32 {s.sJ2}, {idx}, 7'); A(f's_and_b32 {s.sCb3}, {idx}, 15')
        A(f's_lshl1_add_u32 {s.sRow0}, {s.sT3}, {s.sXc}'); A(f's_lshl_b32 {s.sRow0}, {s.sRow0}, 5'); A(f's_add_u32 {s.sRow0}, {s.sRow0}, {idx}')
        ad, ml = s.sLc, s.sT2
        A(f's_movk_i32 {ad}, 10'); A(f's_movk_i32 {ml}, 5')
        for th, a_, m_ in [(5, 15, None), (10, -10, 3), (13, 17, None), (16, -10, 2), (18, 18, None), (20, 20, 12)]:
            A(f's_cmp_ge_u32 {idx}, {th}'); A(f's_cmovk_i32 {ad}, {a_}')
            if m_: A(f's_cmovk_i32 {ml}, {m_}')
        A(f's_mul_i32 {ml}, {ml}, {s.sXc}'); A(f's_add_u32 {ad}, {ad}, {idx}'); A(f's_add_u32 {ad}, {ad}, {ml}')
        A(f's_lshl3_add_u32 {s.sT0}, {s.sXc}, {s.sCl}'); A(f's_add_u32 {s.sT0}, {s.sT0}, {s.sRb}')
        nph = s.o['nph']
        if nph == 10:
            A(f's_mul_i32 {s.sT1}, {s.sT0}, 26'); A(f's_lshr_b32 {s.sT1}, {s.sT1}, 8'); A(f's_mul_i32 {s.sT1}, {s.sT1}, 10'); A(f's_sub_u32 {s.sRot}, {s.sT0}, {s.sT1}')
        elif nph in (1, 2, 4):
            A(f's_and_b32 {s.sT0}, {s.sT0}, {nph - 1}'); A(f's_mul_i32 {s.sT0}, {s.sT0}, {20 // nph}')
            if s.o['xro']: A(f's_mul_i32 {s.sT1}, {s.sT3}, 5'); A(f's_add_u32 {s.sT0}, {s.sT0}, {s.sT1}'); A(f's_add_u32 {s.sT0}, {s.sT0}, {s.o["xro"] - 1}')
            A(f's_lshr_b32 {s.sRot}, {s.sT0}, 1'); A(f's_cmp_ge_u32 {s.sRot}, 10'); A(f's_cselect_b32 {s.sT1}, 10, 0'); A(f's_sub_u32 {s.sRot}, {s.sRot}, {s.sT1}')
        if 'norot' in s.dbg: A(f's_mov_b32 {s.sRot}, 0')
        A(f's_lshl_b32 {s.sOA}, {s.sRot}, 7')
        A(f's_lshl_b32 {s.sW4096}, {s.sW}, 12'); A(f's_mul_i32 {s.sW5120}, {s.sW}, 5120')
        A(f's_mul_i32 {s.sT0}, {s.sRb}, 163840')
        A(f'v_mul_u32_u24 {t}, 40960, {t}'); A(f'v_lshrrev_b32 {u}, 3, {s.vLane}'); A(f'v_mul_u32_u24 {u}, 1280, {u}'); A(f'v_add3_u32 {t}, {t}, {u}, {s.sT0}')
        A(f'v_lshrrev_b32 {u}, 4, {s.vLane}'); A(f'v_xor_b32 {u}, {u}, {s.vLane}'); A(f'v_and_b32 {u}, 7, {u}'); A(f'v_lshlrev_b32 {u}, 4, {u}')
        A(f'v_add_u32 {s.vXA[0]}, {t}, {u}'); A(f'v_xor_b32 {u}, 64, {u}'); A(f'v_add_u32 {u}, 9216, {u}'); A(f'v_add_u32 {s.vXA[1]}, {t}, {u}')
        A(f'v_add_u32 {s.vXA[2]}, 18432, {s.vXA[0]}'); A(f'v_add_u32 {s.vXA[3]}, 18432, {s.vXA[1]}')
        for srd, n in [(sX, 2621440), (sWQKV, 2457600), (sW1, 819200), (sW3, 1966080)]:
            A(f's_mov_b32 {srd[2]}, {n}'); A(f's_mov_b32 {srd[3]}, 0x20000')
        A(f'v_lshrrev_b32 {t}, 5, v0'); A(f'v_mul_u32_u24 {t}, 1280, {t}'); A(f'v_and_b32 {u}, 31, v0'); A(f'v_lshl_add_u32 {t}, {u}, 3, {t}')
        A(f's_mul_i32 {s.sT0}, {s.sRow0}, 10240')
        st = s.sT1
        A(f's_cmp_lt_u32 {s.sCl}, 4'); A(f's_mov_b32 {s.sCsA}, {120 * KB}'); A(f's_cselect_b32 {s.sCsA}, {36 * KB}, {s.sCsA}'); A(f's_cselect_b32 {s.sBB}, {72 * KB}, 0')
        for i in range(5): A(f'buffer_load_dwordx2 {s.p0x.sub(2*i, 2)}, {t}, {sX}, {s.sT0} offen offset:{256*i}')
        s.stamp(0)
        lc = s.sT0
        A(f's_cmp_lt_u32 {s.sLc}, 40')
        A(f's_cselect_b64 {sCSRC[0:2]}, {sW1[0:2]}, {sW3[0:2]}'); A(f's_cselect_b32 {sCSRC[2]}, {sW1[2]}, {sW3[2]}')
        A(f's_movk_i32 {st}, 3072'); A(f's_cmovk_i32 {st}, 1280'); A(f's_cselect_b32 {s.sT2}, 30, 40')
        A(f's_cmp_lt_u32 {s.sLc}, 30')
        A(f's_cselect_b64 {sCSRC[0:2]}, {sWQKV[0:2]}, {sCSRC[0:2]}'); A(f's_cselect_b32 {sCSRC[2]}, {sWQKV[2]}, {sCSRC[2]}')
        A(f's_cmovk_i32 {st}, 3840'); A(f's_cmovk_i32 {s.sT2}, 0')
        A(f's_mov_b32 {sCSRC[3]}, 0x20000')
        A(f's_sub_u32 {lc}, {s.sLc}, {s.sT2}'); A(f's_lshl_b32 {lc}, {lc}, 7')
        A(f's_lshl2_add_u32 {s.sT2}, {s.sT3}, {s.sW}'); A(f's_mul_i32 {s.sT2}, {s.sT2}, 40')
        A(f's_mul_i32 {s.sT2}, {s.sT2}, {st}'); A(f's_add_u32 {lc}, {lc}, {s.sT2}')
        A(f'v_lshrrev_b32 {t}, 3, {s.vLane}'); A(f'v_mul_lo_u32 {t}, {t}, {st}'); A(f'v_and_b32 {u}, 7, {s.vLane}'); A(f'v_lshl_add_u32 {t}, {u}, 4, {t}')
        A(f's_lshl_b32 {st}, {st}, 3'); A(f's_sub_u32 {st}, {st}, 1024')
        A(f's_add_u32 m0, {s.sW5120}, {s.sCsA}')
        for i in range(5):
            if i: A(f's_add_u32 {lc}, {lc}, {st}')
            if i == 4: A(f's_add_u32 m0, m0, 4096'); A(f's_add_u32 {lc}, {lc}, 4096')
            s.cs_last = A(f'buffer_load_dwordx4 {t}, {sCSRC}, {lc} offen offset:{1024 * (i % 4)} lds')
        A(f's_lshl_b32 {s.sLc}, {s.sLc}, 11'); A(f's_lshl3_add_u32 {s.sLc}, {s.sT3}, {s.sLc}')
        A(f's_add_u32 m0, {s.sW4096}, {s.sBB}')
        A(f's_load_dword {s.sN}, {sWS[0:2]}, 0')
        for i in range(4): A(f'buffer_load_dwordx4 {s.vXA[i]}, {sX}, {s.sOA} offen offset:{1024 * i} lds')
        V.put(t, u); S.put(pc)
        s.vW80 = [V.get() for _ in range(5)]; s.rF2 = [V.get() for _ in range(4)]; s.vB3 = [V.get() for _ in range(3)]; s.rW3 = [V.get() for _ in range(3)]
        s.vA2, s.vA3, s.paF1, s.paS, s.paW, s.vCsA, s.vTok4 = [V.get() for _ in range(7)]
        s.vSt = [V.get() for _ in range(3)]; s.vwo = [V.get() for _ in range(2)]
        s.vk, s.vz, s.vp = [V.get() for _ in range(3)]
        s.vXT = [V.get() for _ in range(3)]; s.gr2 = V.get(4); s.pF = V.get(); s.vkw = V.get()
        s.XA2 = [R('a', 4 * i, 4) for i in range(20)]
        A(f's_cmp_lt_u32 {s.sCl}, 4'); A('s_cbranch_scc1 L_T1')
        A(f's_cmp_lt_u32 {s.sCl}, 6'); A('s_cbranch_scc1 L_TA')
        A.ctl('save', 'fork'); s.clk0 = A.clk

    def rot_step(s, bstride):
        A = s.A
        return [(lambda: (A(f's_add_u32 {s.sOA}, {s.sOA}, 128'), A(f's_add_u32 {s.sOB}, {s.sOB}, {64 * bstride}'),
                          A(f's_cmpk_eq_u32 {s.sOA}, 1280'), A(f's_cmov_b32 {s.sOB}, {s.sBB}'), A(f's_cmovk_i32 {s.sOA}, 0')), 0)]

    def setup(s):
        A = s.A; V = s.V; t = V.get(); u = V.get(); q = V.get()
        for srd, n in [(sWS, WS_USED), (sW2, 819200), (sWO, 819200), (sW4, 1966080), (sOUT, 2621440)]:
            A(f's_mov_b32 {srd[2]}, {n}'); A(f's_mov_b32 {srd[3]}, 0x20000')
        A(f'v_lshlrev_b32 {s.vL16}, 4, {s.vLane}'); A(f'v_and_b32 {s.vTok}, 15, {s.vLane}'); A(f'v_lshlrev_b32 {s.vTok4}, 2, {s.vTok}')
        A(f'v_cmp_eq_u32 vcc, 0, {s.vLane}'); A(f'v_mov_b32 {t}, {OOB}'); A(f'v_cndmask_b32 {s.vL0}, {t}, {s.vLane}, vcc')
        A(f's_mul_i32 {s.sJ160}, {s.sJ2}, 160')
        A(f's_lshr_b32 {s.sT0}, {s.sW}, 1'); A(f's_lshl1_add_u32 {s.sTw}, {s.sRb2}, {s.sT0}'); A(f's_lshl2_add_u32 {s.sTT}, {s.sRb2}, {s.sW}')
        A(f's_lshr_b32 {s.sTw3}, {s.sRb2}, 1'); A(f's_lshl2_add_u32 {s.sTw3}, {s.sTw3}, {s.sW}')
        A(f's_and_b32 {s.sT1}, {s.sRb2}, 3'); A(f's_mul_i32 {s.sQ2}, {s.sT1}, 163840')
        A(f's_add_u32 {s.sQ2}, {s.sQ2}, {s.sJ160}'); A(f's_mul_i32 {s.sW2560}, {s.sW}, 2560'); A(f's_lshl_b32 {s.sW1024}, {s.sW}, 10')
        A(f's_lshl_b32 {s.sA2}, {s.sT1}, 12'); A(f's_add_u32 {s.sA2}, {s.sA2}, {HS}')
        A(f's_lshl_b32 {s.sT0}, {s.sT0}, 6'); A(f's_and_b32 {s.sT1}, {s.sW}, 1'); A(f's_lshl4_add_u32 {s.sT0}, {s.sT1}, {s.sT0}')
        for i in range(5):
            s.div20(i, q, u)
            A(f'v_mov_b32 {t}, {40960 - 160}'); A(f'v_add_u32 {q}, {s.sT0}, {q}'); A(f'v_cndmask_b32 {t}, 0, {t}, vcc')
            A(f'v_mul_u32_u24 {q}, 1280, {q}'); A(f'v_lshlrev_b32 {u}, 4, {u}'); A(f'v_add3_u32 {s.vW80[i]}, {q}, {u}, {t}')
            if 0 < i < 4: A(f'v_subrev_u32 {s.vW80[i]}, {1024*i}, {s.vW80[i]}')
        be, bo = s.rF2[0], s.rF2[2]
        A(f'v_lshrrev_b32 {be}, 4, {s.vLane}'); A(f'v_lshlrev_b32 {be}, 3, {be}'); A(f'v_bfe_u32 {t}, {s.vLane}, 2, 2'); A(f'v_add_u32 {be}, {be}, {t}')
        A(f'v_mul_u32_u24 {be}, 320, {be}'); A(f'v_and_b32 {t}, 3, {s.vLane}'); A(f'v_lshl_add_u32 {be}, {t}, 3, {be}')
        A(f'v_and_b32 {t}, 16, {s.vLane}'); A(f'v_lshlrev_b32 {t}, 1, {t}'); A(f'v_sub_u32 {bo}, {be}, {t}'); A(f'v_add_u32 {be}, {be}, {t}')
        s.fr2 = [s.dsaddr(be, (0, 1), [s.rF2[1]]), s.dsaddr(bo, (0, 1), [s.rF2[3]])]
        s.mk_nt_voff(3, 3072, s.vB3)
        s.fw3, _ = s.mk_nt_read(3, s.rW3)
        A(f's_mul_i32 {s.sT0}, {s.sTT}, 20480'); A(f'v_add_u32 {s.vA2}, {s.sT0}, {s.vL16}')
        A(f's_mul_i32 {s.sT0}, {s.sTw3}, 40960'); A(f'v_add_u32 {s.vA3}, {s.sT0}, {s.vL16}')
        A(f's_and_b32 {s.sT0}, {s.sW}, 1'); A(f's_lshl1_add_u32 {s.sT0}, {s.sT0}, {s.sTw}'); A(f's_add_u32 {s.sT0}, {s.sT0}, 63'); A(f's_and_b32 {s.sT0}, {s.sT0}, 63')
        A(f'v_and_b32 {t}, 8, {s.vLane}'); A(f'v_cmp_eq_u32 vcc, 0, {t}'); A(f'v_mov_b32 {t}, {s.sT0}'); A(f'v_mov_b32 {u}, {s.sTw}'); A(f'v_cndmask_b32 {q}, {t}, {u}, vcc')
        A(f'v_lshlrev_b32 {q}, 7, {q}'); A(f'v_and_b32 {t}, 7, {s.vLane}'); A(f'v_lshl_add_u32 {q}, {t}, 2, {q}'); A(f'v_add_u32 {s.paF1}, {F1}, {q}')
        pa = s.paS
        A(f'v_lshlrev_b32 {t}, 2, {t}'); A(f'v_and_b32 {u}, 8, {s.vLane}'); A(f'v_lshl_add_u32 {t}, {u}, 4, {t}')
        A(f's_lshl_b32 {s.sT0}, {s.sRb2}, 8'); A(f's_add_u32 {s.sT0}, {s.sT0}, {FQ}'); A(f'v_add_u32 {pa}, {s.sT0}, {t}')
        A(f's_lshr_b32 {s.sT1}, {s.sW}, 1'); A(f's_lshl1_add_u32 {s.sT0}, {s.sJ2}, {s.sT1}'); A(f's_lshl_b32 {s.sT0}, {s.sT0}, 7'); A(f's_add_u32 {s.sT0}, {s.sT0}, {FK}')
        A(f'v_add_u32 {u}, {s.sT0}, {s.vTok4}'); A(f'v_cmp_gt_u32 vcc, 16, {s.vLane}'); A(f'v_cndmask_b32 {pa}, {u}, {pa}, vcc')
        A(f's_lshr_b32 {s.sT0}, {s.sRb2}, 1'); A(f's_lshl_b32 {s.sT0}, {s.sT0}, 7'); A(f's_add_u32 {s.sT0}, {s.sT0}, {FK}')
        A(f'v_add_u32 {u}, {s.sT0}, {s.vTok4}'); A(f'v_cmp_gt_u32 vcc, 32, {s.vLane}'); A(f'v_cndmask_b32 {pa}, {u}, {pa}, vcc')
        A(f'v_and_b32 {t}, 31, {s.vLane}'); A(f'v_lshlrev_b32 {t}, 2, {t}'); A(f's_lshl_b32 {s.sT0}, {s.sJ2}, 7'); A(f's_add_u32 {s.sT0}, {s.sT0}, {FW}'); A(f'v_add_u32 {s.paW}, {s.sT0}, {t}')
        A(f'v_and_b32 {u}, 28, {t}'); A(f's_lshl_b32 {s.sT0}, {s.sRb2}, 7'); A(f's_add_u32 {s.sT0}, {s.sT0}, {FP}'); A(f'v_add_u32 {u}, {s.sT0}, {u}')
        A(f'v_cndmask_b32 {s.paW}, {u}, {s.paW}, vcc')
        A(f'v_lshlrev_b32 {t}, 3, {t}'); A(f'v_lshrrev_b32 {u}, 5, {s.vLane}'); A(f'v_lshl_add_u32 {s.vCsA}, {u}, 4, {t}')
        va, va2, vs = s.vSt
        A(f's_mul_i32 {s.sT0}, {s.sTw}, 40960'); A(f's_mul_i32 {s.sT1}, {s.sJ2}, 5120'); A(f's_add_u32 {s.sT0}, {s.sT0}, {s.sT1}')
        A(f's_and_b32 {s.sT1}, {s.sW}, 1'); A(f's_lshl_b32 {s.sT1}, {s.sT1}, 8'); A(f's_add_u32 {s.sT0}, {s.sT0}, {s.sT1}'); A(f's_add_u32 {s.sT0}, {s.sT0}, {X1}')
        A(f'v_lshl_add_u32 {va}, {s.vTok}, 4, {s.sT0}'); A(f'v_and_b32 {t}, 32, {s.vLane}'); A(f'v_lshl_add_u32 {va}, {t}, 4, {va}')
        A(f'v_and_b32 {t}, 16, {s.vLane}'); A(f'v_lshl_add_u32 {va2}, {t}, 26, {va}'); A(f'v_add_u32 {va2}, 4096, {va2}'); A(f'v_lshl_add_u32 {va}, {t}, 6, {va}')
        A(f's_lshl_b32 {s.sT0}, {s.sTT}, 10'); A(f's_lshl3_add_u32 {s.sT0}, {s.sJ2}, {s.sT0}'); A(f's_add_u32 {s.sT0}, {s.sT0}, {S2}')
        A(f'v_cmp_gt_u32 vcc, 16, {s.vLane}'); A(f'v_lshl_add_u32 {t}, {s.vLane}, 6, {s.sT0}'); A(f'v_mov_b32 {u}, {OOB}'); A(f'v_cndmask_b32 {vs}, {u}, {t}, vcc')
        A(f's_mul_i32 {s.sT0}, {s.sRb2}, 25600'); A(f's_add_u32 {s.sT0}, {s.sT0}, {s.sJ160}')
        for k in range(2):
            if k == 0: A(f'v_mov_b32 {t}, v0')
            else: A(f'v_add_u32 {t}, 256, {s.vLane}')
            A(f'v_mul_u32_u24 {u}, 6554, {t}'); A(f'v_lshrrev_b32 {u}, 16, {u}')
            A(f'v_mul_u32_u24 {u}, 1120, {u}'); A(f'v_lshl_add_u32 {t}, {t}, 4, {u}'); A(f'v_add_u32 {s.vwo[k]}, {s.sT0}, {t}')
        A(f's_mul_i32 {s.sT0}, {s.sTT}, 20480'); A(f's_add_u32 {s.sT0}, {s.sT0}, {s.sJ160}')
        for k in range(3):
            A(f'v_add_u32 {t}, {64 * k}, {s.vLane}'); A(f'v_mul_u32_u24 {u}, 6554, {t}'); A(f'v_lshrrev_b32 {u}, 16, {u}')
            A(f'v_mul_u32_u24 {u}, 1120, {u}'); A(f'v_add3_u32 {s.vXT[k]}, {u}, {s.vL16}, {s.sT0}')
        d40 = s.vk; E = s.vz
        A(f'v_and_b32 {t}, 31, {s.vLane}'); A(f'v_min_u32 {q}, 24, {t}'); A(f's_mul_i32 {s.sT0}, {s.sW}, 25'); A(f'v_add_u32 {q}, {s.sT0}, {q}')
        A(f'v_mul_u32_u24 {u}, 3277, {q}'); A(f'v_lshrrev_b32 {u}, 16, {u}'); A(f'v_mul_u32_u24 {d40}, 20, {u}'); A(f'v_sub_u32 {d40}, {q}, {d40}')
        A(f'v_lshlrev_b32 {q}, 6, {d40}'); A(f'v_lshl_add_u32 {q}, {u}, 3, {q}'); A(f'v_add_u32 {s.vkw}, {KVB}, {q}')
        A(f's_and_b32 {s.sT0}, {s.sRb2}, 1'); A(f's_mul_i32 {s.sT0}, {s.sT0}, 20'); A(f'v_add_u32 {d40}, {s.sT0}, {d40}')
        A(f's_add_u32 {s.sT0}, {s.sT0}, 8'); A(f'v_lshl_add_u32 {E}, {u}, 2, {s.sT0}')
        A(f'v_lshlrev_b32 {E}, 6, {E}')
        A(f'v_lshrrev_b32 {u}, 4, {d40}'); A(f'v_lshl_add_u32 {E}, {u}, 11, {E}'); A(f'v_and_b32 {d40}, 15, {d40}'); A(f'v_lshl_add_u32 {E}, {d40}, 4, {E}')
        A(f'v_and_b32 {u}, 32, {s.vLane}'); A(f'v_lshl_add_u32 {E}, {u}, 8, {E}')
        A(f's_lshr_b32 {s.sT0}, {s.sRb2}, 1'); A(f's_lshl_b32 {s.sT0}, {s.sT0}, 17'); A(f'v_add_u32 {s.vk}, {s.sT0}, {E}')
        A(f's_lshl2_add_u32 {s.sT1}, {s.sJ2}, {s.sW}'); A(f's_and_b32 {s.sT0}, {s.sW}, 1'); A(f's_lshl_b32 {s.sT0}, {s.sT0}, 2')
        A(f'v_min_u32 {s.vz}, 19, {t}'); A(f'v_add_u32 {s.vz}, {s.sT0}, {s.vz}'); A(f'v_subrev_u32 {t}, 20, {s.vz}'); A(f'v_min_u32 {s.vz}, {s.vz}, {t}')
        A(f'v_lshlrev_b32 {s.vz}, 2, {s.vz}'); A(f'v_lshl_add_u32 {s.vz}, {u}, 8, {s.vz}')
        A(f's_lshr_b32 {s.sT2}, {s.sT1}, 1'); A(f's_lshl_b32 {s.sT2}, {s.sT2}, 17'); A(f's_mul_i32 {s.sT3}, {s.sT0}, 20'); A(f's_add_u32 {s.sT2}, {s.sT2}, {s.sT3}')
        A(f's_add_u32 {s.sT2}, {s.sT2}, 7168'); A(f'v_add_u32 {s.vz}, {s.sT2}, {s.vz}')
        A(f's_mul_i32 {s.sT1}, {s.sT1}, 20'); A(f's_add_u32 {s.sT1}, {s.sT1}, {s.sT0}'); A(f's_lshl_b32 {s.sT1}, {s.sT1}, 5'); A(f's_mul_i32 {s.sT2}, {s.sRb2}, 81920'); A(f's_add_u32 {s.sT1}, {s.sT1}, {s.sT2}')
        A(f'v_lshrrev_b32 {t}, 4, {s.vLane}'); A(f'v_mul_u32_u24 {t}, 20480, {t}'); A(f'v_lshl_add_u32 {t}, {s.vTok}, 4, {t}'); A(f'v_add_u32 {s.vp}, {s.sT1}, {t}')
        z2 = V.get(2)
        A(f'v_mov_b32 {z2[0]}, 0'); A(f'v_mov_b32 {z2[1]}, 0'); A(f'v_lshlrev_b32 {t}, 3, v0'); A(f'v_add_u32 {t}, {KVB}, {t}'); A(f'ds_write_b64 {t}, {z2}')
        V.put(z2, t, u, q)

    def p0_compute(s):
        A = s.A; V = s.V; x = s.p0x
        A(f's_mul_i32 {s.sN}, {s.sN}, 1664525'); A(f's_add_u32 {s.sN}, {s.sN}, 1013904223')
        A(f'v_mov_b32 {s.vN}, {s.sN}')
        fr = V.get(20); ones = V.get(4); ad = V.get(); t = V.get(); D = V.get(4)
        A(f'v_lshrrev_b32 {ad}, 4, {s.vLane}'); A(f'v_lshlrev_b32 {ad}, 3, {ad}'); A(f'v_bfe_u32 {t}, {s.vLane}, 2, 2'); A(f'v_add_u32 {ad}, {ad}, {t}')
        A(f'v_lshlrev_b32 {ad}, 7, {ad}'); A(f'v_and_b32 {t}, 3, {s.vLane}'); A(f'v_lshl_add_u32 {ad}, {t}, 3, {ad}')
        A(f's_lshl_b32 {s.sT0}, {s.sW}, 5'); A(f's_add_u32 {s.sT0}, {s.sT0}, {s.pcs.addr}'); A(f'v_add_u32 {ad}, {s.sT0}, {ad}')
        s.vTrA = V.get(); A(f'v_add_u32 {s.vTrA}, {XT - s.pcs.addr}, {ad}')
        for i in range(4): A(f'v_mov_b32 {ones[i]}, 0x3f803f80')
        g = V.get(4); sm = g[1]; sq = V.get(); u = V.get()
        A(f'v_mov_b32 {sm}, 0'); A(f'v_mov_b32 {sq}, 0')
        s.barrier([s.pcs])
        s.lt.read(s.pcs)
        for ks in range(5):
            for t2 in range(2): A(f'ds_read_b64_tr_b16 {fr.sub(4*ks + 2*t2, 2)}, {ad} offset:{(32*ks + 4*t2) * 128}')
        s.pcs.dead = True
        for i in range(10):
            A(f'v_dot2c_f32_bf16 {sm}, {x[i]}, {ones[0]}'); A(f'v_dot2c_f32_bf16 {sq}, {x[i]}, {x[i]}')
        for ks in range(5): A(f'v_mfma_f32_16x16x32_bf16 {D}, {ones}, {fr.sub(4*ks, 4)}, {"0" if ks == 0 else D}')
        A(f'v_cmp_gt_u32 vcc, 16, {s.vLane}'); A(f'v_lshlrev_b32 {ad}, 5, {s.vLane}'); A(f'v_mov_b32 {fr[1]}, {OOB}'); A(f'v_cndmask_b32 {ad}, {fr[1]}, {ad}, vcc')
        for m in ['quad_perm:[1,0,3,2]', 'quad_perm:[2,3,0,1]', 'row_half_mirror', 'row_mirror']:
            A(f'v_add_f32_dpp {sm}, {sm}, {sm} {m} row_mask:0xf bank_mask:0xf'); A(f'v_add_f32_dpp {sq}, {sq}, {sq} {m} row_mask:0xf bank_mask:0xf')
        A(f'v_mov_b32 {t}, {sm}'); A(f'v_mov_b32 {u}, {sq}')
        A(f'v_mov_b32 {D[1]}, {s.sN}')
        A(f's_lshl_b32 {s.sT1}, {s.sW}, 9'); A(f's_add_u32 {s.sT0}, {s.sLc}, {s.sT1}'); A(f's_add_u32 {s.sT0}, {s.sT0}, {CS}')
        A(f'buffer_store_dwordx2 {D[0:2]}, {ad}, {sWS}, {s.sT0} offen sc1')
        A(f'v_permlane16_swap_b32 {sm}, {t}'); A(f'v_permlane16_swap_b32 {sq}, {u}')
        A(f'v_add_f32 {sm}, {sm}, {t}'); A(f'v_add_f32 {sq}, {sq}, {u}')
        A(f'v_mul_f32 {sm}, {hexf(1.0/640)}, {sm}'); A(f'v_mul_f32 {sq}, {hexf(1.0/640)}, {sq}')
        A(f'v_fma_f32 {sq}, -{sm}, {sm}, {sq}'); A(f'v_max_f32 {sq}, 0, {sq}')
        s.rstd(g[0], sq); A(f'v_rcp_f32 {g[0]}, {g[0]}')
        A(f'v_and_b32 {t}, 31, {s.vLane}'); A(f'v_cmp_eq_u32 vcc, 0, {t}')
        A(f'v_mul_f32 {sq}, {sq}, {g[0]}'); A(f'v_mul_f32 {sq}, {sq}, {g[0]}')
        s.rstd(g[2], sq); A(f'v_rcp_f32 {g[2]}, {g[2]}')
        A(f'v_mov_b32 {g[3]}, {s.sN}')
        A(f'v_lshrrev_b32 {t}, 1, v0'); A(f'v_cndmask_b32 {t}, {fr[1]}, {t}, vcc')
        A(f's_lshl_b32 {s.sT0}, {s.sRow0}, 7'); A(f's_add_u32 {s.sT0}, {s.sT0}, {RS}')
        A(f'buffer_store_dwordx4 {g}, {t}, {sWS}, {s.sT0} offen sc1')
        A(f'v_cmp_gt_u32 vcc, 7, {s.vLane}'); A(f'v_lshlrev_b32 {u}, 7, {s.vLane}'); A(f's_lshl2_add_u32 {s.sT0}, s2, {s.sW}'); A(f'v_cndmask_b32 {ad}, {fr[1]}, {u}, vcc')
        A(f's_mul_i32 {s.sT0}, {s.sT0}, {7 * 128}')
        A(f'buffer_load_dword {s.p0c[0]}, {ad}, {sW2}, {s.sT0} offen'); A(f'buffer_load_dword {s.p0c[2]}, {ad}, {sWO}, {s.sT0} offen')
        V.put(fr, ones, ad, t, D, g, sq, u, s.p0x)

    def p2_loads(s):
        A = s.A; g = s.V.get()
        A(f's_lshl_b32 {s.sT0}, {s.sTT}, 8'); A(f's_add_u32 {s.sT0}, {s.sT0}, {RS}'); A(f'v_lshl_add_u32 {g}, {s.vTok}, 4, {s.sT0}')
        return f'buffer_load_dwordx4 {s.gr2}, {g}, {sWS}, 0 offen sc1', g
    def lda2(s, i):
        s.A(f'buffer_load_dwordx4 {s.XA2[i]}, {s.vA2}, {sWS}, {s.sA2} offen offset:{1024 * (i % 4)} sc1'); s.charge(8)
        if i % 4 == 3: s.wrapadd(s.sA2, 4096, HS + 20480, HS)[0]()
    def f1txt(s): return f'buffer_load_dword {s.pF}, {s.paF1}, {sWS}, 0 offen sc1'
    def p2_pre(s, tail=None):
        A = s.A
        s.flush2(); assert not s.pend
        s.checked([s.f1txt()], [s.pF], pre=None if tail else s.flagtxt(s.sFlag))
        s.stamp(6)
        for i in range(s.o['LA2']): s.lda2(i)
        s.pace = False
        s.barrier(s.b2p)
        if tail: tail()
        A.ctl('endvar'); A('s_branch L_join')

    def flat(s, mf, rd, lag, cap, group=None, bars=(), hooks=None, n3=1, coarse=None, after_first=None, per=None):
        first = {}; lastu = {}
        for i, (_, ids) in enumerate(mf):
            for x in ids: first.setdefault(x, i); lastu[x] = i
        Rd = []; prev = {}; last_use = {}; pl = {}
        for x in sorted(rd, key=lambda x: first[x]):
            dest, p, fns = rd[x]; key = str(dest)
            free = lastu[prev[key]] if key in prev else -1
            assert free < first[x]
            prev[key] = x; pl[p] = max(pl.get(p, -1), lastu[x])
            for f in fns: Rd.append((first[x], free, p, f))
        for p, i in pl.items(): last_use.setdefault(i, []).append(p)
        def emit(i, cap):
            k = 0
            while Rd and Rd[0][1] <= i and (Rd[0][0] <= i + 1 or (Rd[0][0] <= i + lag and k < cap)):
                p = Rd[0][2]
                if p.waited is None: s.barrier([p] + [q for q in (group(p) if group else []) if q.waited is None], drain=False)
                s.lt.read(p); Rd.pop(0)[3](); k += 1
            return k
        emit(-1, 999)
        if after_first: after_first()
        for i, (m, _) in enumerate(mf):
            if hooks and i in hooks: hooks[i]()
            if coarse and i in coarse: s.A.touch(coarse[i])
            m()
            for p in last_use.get(i, []): p.dead = True; p.lastread = s.lt.epoch
            if i in bars: s.barrier(drain=False)
            if s.stbase is not None and per and i % per == per - 1: s.stamp(s.stbase + i // per)
            k = emit(i, cap); j = 0
            while s.q3 and (j + k < n3 or s.A.clk + 4 <= s.A.mf_free): s.q3.pop(0)(); j += 1
        assert not Rd
        s.barrier(drain=False)

    def xt_panel(s):
        A = s.A; p = Panel('xt', XT, 10 * KB)
        g = s.dma_ops(p, [((s.sW2560, XT), sX, '0', [(s.vXT[i], 1024 * i) for i in range(3)], 10)])
        g[3] = (lambda f=g[3][0]: (A('s_mov_b32 exec_hi, 0'), f(), A('s_mov_b32 exec_hi, -1')), 5)
        p.ops = g
        return p
    def rp_issue(s):
        A = s.A; V = s.V; S = s.S
        vo = V.get(); t = V.get(); so = [S.get(), S.get()]; do = [S.get(), S.get()]
        A(f'v_lshrrev_b32 {vo}, 3, v0'); A(f'v_mul_u32_u24 {vo}, 1280, {vo}'); A(f'v_and_b32 {t}, 7, v0'); A(f'v_lshl_add_u32 {vo}, {t}, 4, {vo}')
        for r in range(2):
            A(f's_add_u32 {s.sT0}, s2, {256 * r}'); A(f's_mul_i32 {s.sT1}, {s.sT0}, 6554'); A(f's_lshr_b32 {s.sT1}, {s.sT1}, 16')
            A(f's_mul_i32 {s.sT2}, {s.sT1}, 10'); A(f's_sub_u32 {s.sT0}, {s.sT0}, {s.sT2}')
            A(f's_mul_i32 {so[r]}, {s.sT1}, 40960'); A(f's_lshl_b32 {s.sT2}, {s.sT0}, 7'); A(f's_add_u32 {so[r]}, {so[r]}, {s.sT2}')
            A(f's_lshl2_add_u32 {s.sT0}, {s.sT0}, {s.sW}'); A(f's_mul_i32 {s.sT2}, {s.sT0}, 52'); A(f's_lshr_b32 {s.sT2}, {s.sT2}, 8')
            A(f's_mul_i32 {s.sT2}, {s.sT2}, 235'); A(f's_add_u32 {s.sT0}, {s.sT0}, {s.sT2}'); A(f's_mul_i32 {s.sT2}, {s.sT1}, 5'); A(f's_add_u32 {s.sT0}, {s.sT0}, {s.sT2}')
            A(f's_lshl_b32 {s.sT0}, {s.sT0}, 10'); A(f's_add_u32 {do[r]}, {s.sT0}, {W4R}')
            if r: A(f's_cmp_ge_u32 {s.sT1}, 48'); A(f's_cmov_b32 {do[r]}, {OOB}')
        p = Panel('rp', XT, 8 * KB)
        p.ops = s.dma_ops(p, [((s.sW1024, XT + 4096 * r), sW4, so[r], [(vo, 0)], 8) for r in range(2)])
        V.put(t); s.rp = dict(p=p, vo=vo, so=so, do=do)
        return p
    def rp_finish(s):
        A = s.A; V = s.V; R_ = s.rp; fr = [V.get(4), V.get(4)]; R_['fr'] = fr
        s.lt.read(R_['p'])
        def f():
            for r in range(2):
                for t2 in range(2): A(f'ds_read_b64_tr_b16 {fr[r].sub(2*t2, 2)}, {s.vTrA} offset:{4096 * r + 512 * t2}')
            for k in range(6): A('v_nop')
            for r in range(2): R_['last'] = A(f'buffer_store_dwordx4 {fr[r]}, {s.vL16}, {sWS}, {R_["do"][r]} offen sc1')
        s.defer(f)
    def rp_wait(s):
        assert not s.q3
        R_ = s.rp; R_['p'].dead = True; R_['p'].lastread = s.lt.epoch; s.A.waitvm(R_['last']); R_['ep'] = s.lt.epoch
    def rp_flag(s):
        A = s.A; R_ = s.rp; assert s.lt.epoch > R_['ep']
        A(f's_lshl_b32 {s.sT0}, {s.sW}, 28'); A(f's_lshl2_add_u32 {s.sT0}, s2, {s.sT0}'); A(f's_add_u32 {s.sT0}, {s.sT0}, {FR}')
        A(s.flagtxt(s.sT0))
        s.V.put(R_['vo'], *R_['fr'], s.vTrA); s.S.put(*R_['so'], *R_['do'])

    def b2_panels(s): return [s.w80_panel(f'b2_{i}', 20 * KB * i, sW2, s.sQ2, 5) for i in range(5)]
    def begin_variant(s, csaddr):
        s.A.ctl('restore', 'fork'); s.lt = LT(); s.A.clk = s.clk0; s.nxt = 0; s.q2 = []; s.q3 = []; s.pend = []; s.queued = []; s.pace = False
        p = Panel('cs', csaddr, 20 * KB); s.lt.issue(p); p.issued = True; p.last = s.cs_last; s.pcs = p
        s.b2p = [s.xt_panel()] + s.b2_panels()

    def t1(s):
        A = s.A; V = s.V; S = s.S; AG = s.AG
        A('L_T1:'); s.begin_variant(36 * KB)
        AG.get(80)
        sCb = S.get(); sWr = S.get(); sWc = S.get()
        A(f's_lshl2_add_u32 {sCb}, {s.sXc}, {s.sCl}'); A(f's_mul_i32 {s.sBB}, {sCb}, 160')
        A(f's_mul_i32 {s.sOB}, {s.sRot}, {64 * 3840}'); A(f's_add_u32 {s.sOB}, {s.sOB}, {s.sBB}')
        vB = [V.get() for _ in range(5)]; q = V.get(); c = V.get(); t = V.get()
        A(f's_lshl_b32 {s.sT0}, {s.sW}, 4')
        for i in range(5):
            s.div20(i, q, c)
            A(f'v_mov_b32 {t}, 1120'); A(f'v_add_u32 {q}, {s.sT0}, {q}'); A(f'v_cndmask_b32 {t}, 0, {t}, vcc')
            A(f'v_mul_u32_u24 {q}, 3840, {q}'); A(f'v_lshlrev_b32 {c}, 4, {c}'); A(f'v_add3_u32 {vB[i]}, {q}, {c}, {t}')
            A(f'v_add_u32 {vB[i]}, {1280 - (1024 * i if i < 4 else 0) & 0xffffffff}, {vB[i]}')
        slot = lambda st: ((st + 2) % 4) * 36 * KB
        stages = []
        for st in range(10):
            p = Panel(f's{st}', slot(st), 36 * KB)
            gs = [((s.sW4096, p.addr), sX, s.sOA, [(s.vXA[i], 1024 * i) for i in range(4)], 8),
                  ((s.sW5120, p.addr + 16 * KB), sWQKV, s.sOB, [(vB[i], 1024 * i) for i in range(4)], 12.8),
                  ((s.sW5120, p.addr + 20 * KB), sWQKV, s.sOB, [(vB[4], 0)], 12.8)]
            p.ops = s.dma_ops(p, gs[1:] if st == 0 else gs) + s.rot_step(3840)
            stages.append(p)
        s.q2 += stages[0].ops; s.flush2()
        s.pend = stages[1:3]; s.pump(); s.pace = True; s.nxt = A.clk + 400
        A(f's_lshr_b32 {sWr}, {s.sW}, 1'); A(f's_and_b32 {sWc}, {s.sW}, 1')
        s.setup()
        a0 = V.get(); a1 = V.get()
        A(f'v_lshrrev_b32 {t}, 1, {s.vTok}'); A(f'v_lshrrev_b32 {q}, 4, {s.vLane}'); A(f'v_xor_b32 {t}, {t}, {q}')
        A(f's_lshl_b32 {s.sT0}, {sWr}, 6'); A(f'v_add_u32 {a0}, {s.sT0}, {s.vTok}'); A(f'v_lshlrev_b32 {a0}, 7, {a0}'); A(f'v_lshl_add_u32 {a0}, {t}, 4, {a0}')
        A(f'v_xor_b32 {a1}, 64, {a0}')
        fa = [s.dsaddr(a0, (0, 1)), s.dsaddr(a1, (0, 1))]
        fb = []
        rowp = V.get(); hi = V.get(); x2 = V.get()
        A(f'v_lshlrev_b32 {rowp}, 3, {q}'); A(f'v_bfe_u32 {t}, {s.vLane}, 2, 2'); A(f'v_add_u32 {rowp}, {rowp}, {t}'); A(f'v_mul_u32_u24 {rowp}, 320, {rowp}')
        A(f'v_and_b32 {t}, 1, {s.vLane}'); A(f'v_lshl_add_u32 {rowp}, {t}, 3, {rowp}'); A(f'v_add_u32 {rowp}, {16 * KB}, {rowp}')
        A(f'v_bfe_u32 {hi}, {s.vLane}, 1, 1'); A(f'v_and_b32 {x2}, 1, {q}'); A(f'v_lshlrev_b32 {x2}, 1, {x2}')
        A(f's_mul_i32 {s.sT0}, {sWc}, 5')
        for tt, ba in enumerate([0, 2, 4, 11, 13]):
            b = V.get()
            A(f'v_mul_u32_u24 {b}, {6 if tt == 2 else 1}, {hi}'); A(f'v_add3_u32 {b}, {b}, {ba}, {s.sT0}')
            A(f'v_xor_b32 {b}, {b}, {x2}'); A(f'v_lshl_add_u32 {b}, {b}, 4, {rowp}')
            fb.append(s.dsaddr(b, (0, 1)))
        V.put(rowp, hi, x2, q, c)
        rp = s.rp_issue()
        s.pend += [stages[3], rp] + stages[4:] + s.b2p
        s.stamp(1)
        s.p0_compute()
        acc = [[V.get(4) for _ in range(5)] for _ in range(4)]
        XA = [[AG.get(4) for _ in range(4)] for _ in range(2)]; WB = [[AG.get(4) for _ in range(5)] for _ in range(2)]
        gr = [V.get(4) for _ in range(4)]; csg = [V.get(4) for _ in range(5)]; r1 = [V.get(4) for _ in range(4)]
        mf = []; rd = {}; at = {}
        for st in range(10):
            p = stages[st]
            for h in range(2):
                at[(st, h)] = len(mf)
                for mt in range(4): rd[('x', st, h, mt)] = (XA[h][mt], p, [lambda mt=mt, h=h, p=p: A(f'ds_read_b128 {XA[h][mt]}, {fa[h](p.addr + 2048 * mt)}')])
                for tt in range(5): rd[('w', st, h, tt)] = (WB[h][tt], p, [(lambda tt=tt, h=h, p=p, t2=t2: A(f'ds_read_b64_tr_b16 {WB[h][tt].sub(2*t2, 2)}, {fb[tt](p.addr + (32 * h + 4 * t2) * 320)}')) for t2 in range(2)])
                for tt in range(5):
                    for mt in range(4):
                        mf.append((lambda mt=mt, tt=tt, h=h, c0=(st == 0 and h == 0): A(f'v_mfma_f32_16x16x32_bf16 {acc[mt][tt]}, {XA[h][mt]}, {WB[h][tt]}, {"0" if c0 else acc[mt][tt]}'), [('x', st, h, mt), ('w', st, h, tt)]))
                if st == 8 and h == 0:
                    at['corr'] = len(mf)
                    mf += [(lambda mt=mt, tt=tt: A(f'v_mfma_f32_16x16x32_bf16 {acc[mt][tt]}, {gr[mt]}, {csg[tt]}, {acc[mt][tt]}'), []) for tt in range(5) for mt in range(4)]
        H = {}
        def h_load():
            vca = [V.get() for _ in range(3)]; vra = V.get()
            A(f's_lshl1_add_u32 {s.sT0}, {s.sRb}, {sWr}'); A(f's_lshl_b32 {s.sT0}, {s.sT0}, 10'); A(f's_add_u32 {s.sT0}, {s.sT0}, {RS}')
            A(f'v_lshl_add_u32 {vra}, {s.vTok}, 4, {s.sT0}')
            loads = [f'buffer_load_dwordx4 {gr[mt]}, {vra}, {sWS}, 0 offen offset:{256 * mt} sc1' for mt in range(4)]
            A(f's_lshl1_add_u32 {s.sT0}, {sCb}, {sWc}'); A(f's_mul_i32 {s.sT0}, {s.sT0}, 1280'); A(f's_add_u32 {s.sT0}, {s.sT0}, {CS + 640 * 32}')
            A(f'v_cmp_le_u32 vcc, 8, {s.vTok}'); A(f'v_lshl_add_u32 {vca[0]}, {s.vTok}, 5, {s.sT0}')
            A(f'v_lshrrev_b32 {t}, 4, {s.vLane}'); A(f'v_lshl_add_u32 {vca[0]}, {t}, 3, {vca[0]}')
            A(f'v_add_u32 {vca[1]}, {600 * 32}, {vca[0]}'); A(f'v_cndmask_b32 {vca[2]}, {vca[0]}, {vca[1]}, vcc')
            loads += [f'buffer_load_dwordx2 {csg[tt][0:2]}, {[vca[0], vca[0], vca[2], vca[1], vca[1]][tt]}, {sWS}, 0 offen offset:{512 * tt} sc1' for tt in range(5)]
            l2, g2 = s.p2_loads(); loads.append(l2)
            for ld in loads: s.q2.append((lambda ld=ld: A(ld), 4))
            H.update(loads=loads, regs=vca + [vra, g2], mark=s.q2[-1])
        def h_check():
            assert H['mark'] not in s.q2
            s.rp_flag()
            s.checked(H['loads'], [g[3] for g in gr] + [c_[1] for c_ in csg] + [s.gr2[3]])
            V.put(*H['regs'])
            def build():
                ad = V.get(); H['ad'] = ad
                A(f's_lshr_b32 {s.sT1}, {s.sW1024}, 2'); A(f's_add_u32 {s.sT1}, {s.sT1}, {144 * KB}'); A(f'v_add_u32 {ad}, {s.sT1}, {s.vTok4}')
                for mt in range(4): A(f'ds_write_b32 {ad}, {gr[mt][0]} offset:{64 * mt}')
                A(f'v_and_b32 {ad}, 48, {s.vLane}'); A(f'v_add_u32 {ad}, {s.sT1}, {ad}')
                for mt in range(4): A(f'v_mov_b32 {gr[mt][3]}, {gr[mt][1]}'); s.split_x(gr[mt], gr[mt][3])
                for mt in range(4): A(f'ds_read_b128 {r1[mt]}, {ad} offset:{64 * mt}')
                for c_ in csg: s.split_w(c_, c_[0])
            s.defer(build)
        hooks = {at[(3, 0)]: s.rp_finish, at[(4, 0)]: h_load, at[(5, 0)]: s.rp_wait, at[(6, 0)]: h_check, at['corr']: s.flush3}
        if 'st1' in s.dbg: s.stbase = 17
        s.flat(mf, rd, s.o['lag16'], 1, group=lambda p: [rp] if p is stages[3] else [], hooks=hooks, per=40)
        s.stbase = None
        s.stamp(2)
        for f in fa + fb: V.put(*f.regs)
        V.put(*vB, *gr, *csg, *s.vXA, H['ad'])
        eps = V.get(2); epm = V.get(2); l2e = V.get(2); sK = S.get(2)
        A(f'v_mov_b32 {eps[0]}, {hexf(1e-6)}'); A(f'v_mov_b32 {l2e[0]}, {hexf(LOG2E)}')
        A(f'v_and_b32 {t}, 8, {s.vLane}'); A(f'v_cmp_eq_u32 {sK}, 0, {t}'); A(f'v_cndmask_b32 {epm[0]}, 0, {eps[0]}, {sK}')
        pk = [[V.get(4) for _ in range(5)] for _ in range(2)]
        U = [V.get(2) for _ in range(4)]
        for tt in range(5):
            if tt == 2: A(s.f1txt())
            for u in range(2):
                prs = [(2 * u + m, h) for m in range(2) for h in range(2)]
                y = [acc[mt][tt].sub(2 * h, 2) for mt, h in prs]
                for k, (mt, h) in enumerate(prs):
                    if tt < 3: A(f'v_pk_fma_f32 {y[k]}, {y[k]}, {r1[mt].sub(2*h, 2)}, {eps if tt < 2 else epm} op_sel_hi:[1,1,0]')
                    else: A(f'v_pk_mul_f32 {y[k]}, {y[k]}, {r1[mt].sub(2*h, 2)}')
                if tt < 3:
                    for k in range(4): A(f'v_pk_mul_f32 {U[k]}, {y[k]}, {l2e} op_sel_hi:[1,0]')
                    for k in range(4): A(f'v_exp_f32_e64 {U[k][0]}, {U[k][0]} clamp'); A(f'v_exp_f32_e64 {U[k][1]}, {U[k][1]} clamp')
                    if tt < 2:
                        for k in range(4): A(f'v_max_f32 {y[k][0]}, {eps[0]}, {y[k][0]}'); A(f'v_max_f32 {y[k][1]}, {eps[0]}, {y[k][1]}')
                        for k in range(4): A(f'v_pk_add_f32 {y[k]}, {y[k]}, {U[k]}')
                    else:
                        for k in range(4):
                            for e in range(2):
                                A(f'v_max_f32 {t}, {eps[0]}, {y[k][e]}'); A(f'v_add_f32 {t}, {t}, {U[k][e]}'); A(f'v_cndmask_b32 {y[k][e]}, {y[k][e]}, {t}, {sK}')
                for k in range(4): A(f'v_cvt_pk_bf16_f32 {pk[u][tt][k]}, {y[k][0]}, {y[k][1]}')
        V.put(*U, eps, epm, l2e, *r1)
        for row in acc: V.put(*row)
        ones = V.get(4); ad = V.get()
        for i in range(4): A(f'v_mov_b32 {ones[i]}, 0x3f803f80')
        pairs = [(0, 2), (0, 3), (1, 2), (1, 3), (1, 4), (2, 3), (2, 4)]
        kv = [V.get(4) for _ in pairs]; zz = [V.get(4) for _ in range(3)]
        RED = 108 * KB
        for u in range(2):
            for dt in range(3): A(f'v_mfma_f32_16x16x32_bf16 {zz[dt]}, {ones}, {pk[u][dt]}, {"0" if u == 0 else zz[dt]}')
            for k, (dt, et) in enumerate(pairs): A(f'v_mfma_f32_16x16x32_bf16 {kv[k]}, {pk[u][et]}, {pk[u][dt]}, {"0" if u == 0 else kv[k]}')
            if u == 0:
                A(f's_lshl_b32 {s.sT0}, {sWc}, 13'); A(f's_add_u32 {s.sT0}, {s.sT0}, {RED}'); A(f'v_add_u32 {ad}, {s.sT0}, {s.vL16}')
        sKV = [S.get(), S.get()]
        A(f's_lshl1_add_u32 {s.sT0}, {sCb}, {sWc}')
        A(f's_lshl4_add_u32 {sKV[0]}, {s.sT0}, {s.sRb}'); A(f's_lshl_b32 {sKV[0]}, {sKV[0]}, 13'); A(f's_add_u32 {sKV[0]}, {sKV[0]}, {KV}'); A(f's_add_u32 {sKV[1]}, {sKV[0]}, 4096')
        A(f's_lshl_b32 {s.sT2}, {sWr}, 29')
        A(f's_lshl_b32 {s.sT0}, {s.sT0}, 7'); A(f's_add_u32 {s.sT0}, {s.sT0}, {s.sT2}'); A(f's_lshl2_add_u32 {s.sT0}, {s.sRb}, {s.sT0}'); A(f's_add_u32 {s.sFlag}, {s.sT0}, {FK}')
        A(f'v_mov_b32 {zz[0][1]}, {zz[1][0]}'); A(f'v_mov_b32 {zz[0][2]}, {zz[2][0]}')
        red = [zz[0]] + kv
        L1 = s.lab(); L2 = s.lab()
        s.flush2(); s.pace = False
        A('s_nop 3')
        A(f's_cmp_eq_u32 {sWr}, 0'); A(f's_cbranch_scc1 {L1}')
        for k, r in enumerate(red): A(f'ds_write_b128 {ad}, {r} offset:{1024 * k}')
        A('s_waitcnt lgkmcnt(0)')
        A(f'{L1}:')
        s.stamp(3)
        def tail():
            A(f's_cmp_eq_u32 {sWr}, 0'); A(f's_cbranch_scc0 {L2}')
            tmp = [V.get(4) for _ in red]
            for k, r in enumerate(red): A(f'ds_read_b128 {tmp[k]}, {ad} offset:{1024 * k}')
            for k, r in enumerate(red):
                for h in range(2): A(f'v_pk_add_f32 {r.sub(2*h, 2)}, {r.sub(2*h, 2)}, {tmp[k].sub(2*h, 2)}')
            for k, (dt, et) in enumerate(pairs):
                m = 0
                for l in range(64):
                    d40 = 16 * dt + (l & 15); e40 = 16 * et - 40 + 4 * (l >> 4)
                    if d40 < 40 and 0 <= e40 < 40 and d40 // 20 == e40 // 20: m |= 1 << l
                A(f's_mov_b32 exec_lo, 0x{m & 0xffffffff:x}'); A(f's_mov_b32 exec_hi, 0x{m >> 32:x}')
                A(f'buffer_store_dwordx4 {kv[k]}, {s.vL16}, {sWS}, {sKV[k // 4]} offen offset:{1024 * (k % 4)} sc1')
            A('s_mov_b64 exec, 0xffff')
            for dt in range(3): A(f'buffer_store_dword {zz[0][dt]}, {s.vTok4}, {sWS}, {sKV[1]} offen offset:{3072 + 64 * dt} sc1')
            A('s_mov_b64 exec, -1')
            A(f'{L2}:')
        s.p2_pre(tail)

    def cs_loads(s, NT, so):
        cg = [s.V.get(4) for _ in range(NT)]
        return [f'buffer_load_dwordx4 {cg[J]}, {s.vCsA}, {sWS}, {so} offen offset:{1024 * J} sc1' for J in range(NT)], cg
    def cs_build(s, cg):
        for c in cg: s.A(f'v_add_f32 {c[0]}, {c[0]}, {c[2]}'); s.split_w(c, c[0])
    def corr(s, acc, cg, xq):
        for J in range(len(acc)): s.A(f'v_mfma_f32_32x32x16_bf16 {acc[J]}, {cg[J]}, {xq}, {acc[J]}')
    def epi32(s, kind, acc, k0, k1, k2, addr, mid=None):
        A = s.A; V = s.V
        T = [V.get(2) for _ in range(4)]; P = [V.get(4) for _ in range(2)]
        for J in range(len(acc)):
            vo, so, imm = addr[J]
            if mid and J == len(acc) - 1: mid()
            for hf in range(2):
                y = [acc[J].sub(8 * hf + 2 * k, 2) for k in range(4)]
                if kind == 'gelu':
                    for k in range(4): A(f'v_pk_mul_f32 {T[k]}, {y[k]}, {y[k]}')
                    for k in range(4): A(f'v_pk_fma_f32 {T[k]}, {T[k]}, {k1}, {k0} op_sel_hi:[1,0,0]')
                    for k in range(4): A(f'v_pk_mul_f32 {T[k]}, {T[k]}, {y[k]}')
                    for k in range(4): A(f'v_exp_f32 {T[k][0]}, {T[k][0]}'); A(f'v_exp_f32 {T[k][1]}, {T[k][1]}')
                    for k in range(4): A(f'v_pk_fma_f32 {T[k]}, {T[k]}, {k2[J]}, {k2[J]} op_sel_hi:[1,0,0]')
                    for k in range(4): A(f'v_rcp_f32 {T[k][0]}, {T[k][0]}'); A(f'v_rcp_f32 {T[k][1]}, {T[k][1]}')
                    for k in range(4): A(f'v_pk_mul_f32 {y[k]}, {y[k]}, {T[k]}')
                else:
                    for k in range(4): A(f'v_pk_mul_f32 {T[k]}, {y[k]}, {k1} op_sel_hi:[1,0]')
                    for k in range(4): A(f'v_pk_fma_f32 {y[k]}, {y[k]}, {k0}, {k2} op_sel_hi:[1,0,0]')
                    for k in range(4): A(f'v_exp_f32_e64 {T[k][0]}, {T[k][0]} clamp'); A(f'v_exp_f32_e64 {T[k][1]}, {T[k][1]} clamp')
                    for k in range(4): A(f'v_max_f32 {y[k][0]}, {k2[0]}, {y[k][0]}'); A(f'v_max_f32 {y[k][1]}, {k2[0]}, {y[k][1]}')
                    for k in range(4): A(f'v_pk_add_f32 {y[k]}, {y[k]}, {T[k]}')
                p = P[hf]
                for k in (0, 2, 1, 3): A(f'v_cvt_pk_bf16_f32 {p[k]}, {y[k][0]}, {y[k][1]}')
                A(f'v_permlane32_swap_b32 {p[0]}, {p[2]}'); A(f'v_permlane32_swap_b32 {p[1]}, {p[3]}')
                last = A(f'buffer_store_dwordx4 {p}, {vo}, {sWS}, {so} offen offset:{imm + 512 * hf} sc1')
        V.put(*T, *P)
        return last
    def gelu_k(s, k0, k1, a):
        A = s.A
        A(f'v_mul_f32 {k0[0]}, {hexf(GC0)}, {a}'); A(f'v_mul_f32 {k1[0]}, {a}, {a}'); A(f'v_mul_f32 {k1[0]}, {k1[0]}, {a}'); A(f'v_mul_f32 {k1[0]}, {hexf(GC1)}, {k1[0]}')

    def gemm32(s, NT, panels, boff, XF, fw, acc, fx=None, hooks=None, xload=None, bars=(), group=None, after_first=None):
        A = s.A; AG = s.AG; NB = 12
        WB = [AG.get(4) for _ in range(NB)]
        mf = []; rd = {}
        for n in range(40):
            st, ks = divmod(n, 4); p = panels[st]
            if fx: rd[('x', n)] = (XF[n], p, [lambda n=n, ks=ks, p=p: A(f'ds_read_b128 {XF[n]}, {fx[ks](p.addr)}')])
            for J in range(NT):
                w = WB[(n * NT + J) % NB]
                rd[('w', n, J)] = (w, p, [(lambda ks=ks, J=J, t2=t2, w=w, p=p: A(f'ds_read_b64_tr_b16 {w.sub(2*t2, 2)}, {fw[J](p.addr + boff + (16 * ks + 4 * t2) * 64 * NT)}')) for t2 in range(2)])
                def m(J=J, n=n, w=w):
                    A(f'v_mfma_f32_32x32x16_bf16 {acc[J]}, {w}, {XF[n]}, {"0" if n == 0 else acc[J]}')
                    if xload and J == 0: xload(n)
                mf.append((m, [('w', n, J)] + ([('x', n)] if fx else [])))
        s.flat(mf, rd, s.o['lag32'] - (1 if fx else 0), 3, group=group, bars=[NT * b + NT - 1 for b in bars], hooks={NT * k: v for k, v in (hooks or {}).items()}, n3=4, after_first=after_first, per=4 * NT)
        AG.put(*WB)

    def t23(s, typ):
        A = s.A; V = s.V; S = s.S; AG = s.AG
        N1, N2 = (3, 2) if typ == 'A' else (2, 3)
        if typ == 'A': A('L_TA:')
        s.begin_variant(120 * KB)
        sA = S.get(); sC1 = S.get(); sC2 = S.get(); sWN = S.get()
        A(f's_lshl1_add_u32 {sA}, {s.sXc}, {s.sCl}'); A(f's_sub_u32 {sA}, {sA}, {4 if typ == "A" else 6}')
        c96, c64 = (sC1, sC2) if typ == 'A' else (sC2, sC1)
        A(f's_mul_i32 {c96}, {sA}, 96'); A(f's_lshl_b32 {c64}, {sA}, 6'); A(f's_add_u32 {c64}, {c64}, 384')
        A(f's_lshl_b32 {s.sBB}, {sC1}, 1'); A(f's_mul_i32 {s.sOB}, {s.sRot}, {64 * 1280}'); A(f's_add_u32 {s.sOB}, {s.sOB}, {s.sBB}')
        vB = s.mk_nt_voff(N1, 1280)
        A(f's_mul_i32 {sWN}, {s.sW}, {1024 * N1}')
        ssz = (16 + 4 * N1) * KB; ln = {3: 10.7, 2: 8}
        stages = []
        for st in range(10):
            p = Panel(f's{st}', (st % 4) * ssz, ssz)
            gs = [((s.sW4096, p.addr), sX, s.sOA, [(s.vXA[i], 1024 * i) for i in range(4)], 8),
                  ((sWN, p.addr + 16 * KB), sW1, s.sOB, [(vB[i], 1024 * i) for i in range(N1)], ln[N1])]
            p.ops = s.dma_ops(p, gs[1:] if st == 0 else gs) + s.rot_step(1280)
            stages.append(p)
        s.q2 += stages[0].ops; s.flush2()
        s.pend = stages[1:4]; s.pump(); s.pace = True; s.nxt = A.clk + 200
        s.setup()
        t = V.get(); u = V.get(); xb = [V.get() for _ in range(4)]
        A(f'v_and_b32 {xb[0]}, 31, {s.vLane}'); A(f'v_bfe_u32 {t}, {s.vLane}, 1, 3'); A(f'v_lshrrev_b32 {u}, 5, {s.vLane}'); A(f'v_xor_b32 {t}, {t}, {u}')
        A(f'v_lshlrev_b32 {xb[0]}, 7, {xb[0]}'); A(f'v_lshl_add_u32 {xb[0]}, {t}, 4, {xb[0]}'); A(f'v_add_u32 {xb[0]}, {s.sW4096}, {xb[0]}')
        for ks in range(1, 4): A(f'v_xor_b32 {xb[ks]}, {32 * ks}, {xb[0]}')
        fx = [s.dsaddr(b, (0, 1)) for b in xb]
        fw2x, r2regs = s.mk_nt_read(2)
        fw1, fw2 = (s.fw3, fw2x) if typ == 'A' else (fw2x, s.fw3)
        vQ = s.mk_nt_voff(N2, 3840)
        sWN2 = S.get(); sOQ = S.get(); sBQ = S.get()
        A(f's_mul_i32 {sWN2}, {s.sW}, {1024 * N2}')
        qsz = 4 * N2 * KB
        if typ == 'A': qaddr = [(116 + 8 * i) * KB for i in range(4)] + [(68 + 8 * i) * KB for i in range(6)]
        else: qaddr = [(100 + 12 * i) * KB for i in range(4)] + [(28 + 12 * i) * KB for i in range(6)]
        A(f's_lshl_b32 {sBQ}, {sC2}, 1'); A(f's_mul_i32 {sOQ}, {s.sRot}, {64 * 3840}'); A(f's_add_u32 {sOQ}, {sOQ}, {sBQ}')
        qp = []
        for i in range(10):
            p = Panel(f'q{i}', qaddr[i], qsz)
            p.ops = s.dma_ops(p, [((sWN2, p.addr), sWQKV, sOQ, [(vQ[k], 1024 * k) for k in range(N2)], ln[N2])]) + [s.wrapadd(sOQ, 64 * 3840, 640 * 3840, sBQ)]
            qp.append(p)
        rp = s.rp_issue()
        s.pend += [rp] + stages[4:] + qp + s.b2p
        tok = V.get(); vo1 = [V.get() for _ in range(N1)]; vo2 = V.get(); msk = [S.get(2) for _ in range(N1)]; so1 = S.get(); so2 = S.get(); sSh = s.sT1
        A(f's_lshl2_add_u32 {s.sT0}, {s.sRb}, {s.sW}'); A(f's_lshl_b32 {s.sFlag}, {s.sT0}, 7'); A(f's_lshl_b32 {s.sT0}, {s.sT0}, 5')
        A(f'v_and_b32 {tok}, 31, {s.vLane}'); A(f'v_add_u32 {tok}, {s.sT0}, {tok}')
        A(f's_lshl2_add_u32 {s.sFlag}, {sA}, {s.sFlag}'); A(f's_add_u32 {s.sFlag}, {s.sFlag}, {F1 + (0 if typ == "A" else 16)}')
        for J in range(N1):
            A(f's_lshr_b32 {so1}, {sC1}, 5'); A(f's_add_u32 {so1}, {so1}, {J}')
            A(f's_movk_i32 {sSh}, 1')
            for th, sh in [(5, -1), (10, 2), (15, -2)]: A(f's_cmp_ge_u32 {so1}, {th}'); A(f's_cmovk_i32 {sSh}, {sh}')
            A(f'v_add_u32 {t}, {sSh}, {tok}'); A(f'v_lshrrev_b32 {u}, 11, {t}'); A(f'v_cmp_eq_u32 {msk[J]}, 0, {u}'); A(f'v_and_b32 {t}, 0x7ff, {t}')
            s.f16_voff(vo1[J], t, 20)
        A(f's_lshl_b32 {so1}, {sC1}, 5'); A(f's_add_u32 {so1}, {so1}, {HS}')
        A(f's_lshl_b32 {so2}, {sC2}, 5'); A(f's_add_u32 {so2}, {so2}, {PQ}')
        s.f16_voff(vo2, tok, 20)
        vra = tok
        A(f'v_lshlrev_b32 {vra}, 4, {tok}'); A(f'v_add_u32 {vra}, {RS}, {vra}')
        sc1_, sc2_ = sC1, sC2
        A(f's_lshl_b32 {sc1_}, {sC1}, 5'); A(f's_add_u32 {sc1_}, {sc1_}, {CS + 1920 * 32}'); A(f's_lshl_b32 {sc2_}, {sC2}, 5'); A(f's_add_u32 {sc2_}, {sc2_}, {CS}')
        s.stamp(1)
        s.p0_compute()
        XF = [AG.get(4) for _ in range(40)]
        acc = [V.get(16) for _ in range(3)]
        gr = V.get(4); xq = V.get(4); k0 = V.get(2); k1 = V.get(2); ia = [V.get(2) for _ in range(N1)]
        H = {}
        def h_load():
            l1, cg1 = s.cs_loads(N1, sc1_); l2, cg2 = s.cs_loads(N2, sc2_); l3, g2 = s.p2_loads()
            H.update(loads=[f'buffer_load_dwordx4 {gr}, {vra}, {sWS}, 0 offen sc1'] + l1 + l2 + [l3], cg1=cg1, cg2=cg2, g2=g2)
            s.need([stages[9]])
            for ld in H['loads']: A(ld)
        def h_check():
            s.checked(H['loads'], [gr[3], s.gr2[3]] + [c[k] for c in H['cg1'] + H['cg2'] for k in (1, 3)])
            V.put(H['g2'])
            def build():
                s.split_x(xq, gr[1]); s.cs_build(H['cg1'])
                A(f'v_mul_f32 {t}, {gr[0]}, {gr[2]}'); s.gelu_k(k0, k1, t); A(f'v_rcp_f32 {t}, {t}'); A(f'v_mov_b32 {u}, 0x7f000000')
                for J in range(N1): A(f'v_cndmask_b32 {ia[J][0]}, {u}, {t}, {msk[J]}')
            s.defer(build)
        if 'st1' in s.dbg: s.stbase = 17
        s.gemm32(N1, stages, 16 * KB, XF, fw1, acc[:N1], fx=fx, hooks={16: s.rp_finish, 28: h_load, 29: s.rp_wait, 35: h_check}, group=lambda p: [rp] if p is stages[4] else [])
        s.stbase = None
        s.flush3()
        s.corr(acc[:N1], H['cg1'], xq)
        s.stamp(2)
        s.rp_flag()
        last1 = s.epi32('gelu', acc[:N1], k0, k1, ia, [(vo1[J], so1, 1024 * J) for J in range(N1)])
        s.stamp(3)
        def build2():
            s.cs_build(H['cg2']); A(f'v_mov_b32 {k0[0]}, {gr[0]}'); A(f'v_mul_f32 {k1[0]}, {hexf(LOG2E)}, {gr[0]}'); A(f'v_mov_b32 {ia[0][0]}, {hexf(1e-6)}')
        def flag1(): s.setflag(last1, s.sFlag); A(f's_add_u32 {s.sFlag}, {s.sFlag}, {FQ - F1}')
        grp = {0: [1, 2, 3], 4: [5], 6: [7], 8: [9]}
        s.gemm32(N2, qp, 0, XF, fw2, acc[:N2], hooks={1: lambda: s.defer(build2), s.o['f1d'] // N2: flag1}, group=lambda p: [qp[k] for k in grp.get(qp.index(p), [])], bars=(35,))
        s.flush3()
        s.corr(acc[:N2], H['cg2'], xq)
        s.stamp(4)
        s.epi32('phi', acc[:N2], k0, k1, ia[0], [(vo2, so2, 1024 * J) for J in range(N2)], mid=lambda: A(s.f1txt()))
        s.stamp(5)
        s.p2_pre()

    def common(s):
        A = s.A; V = s.V; S = s.S; AG = s.AG
        A('L_join:'); A.ctl('join'); s.lt = LT(); s.q2 = []; s.q3 = []; s.pend = []; s.queued = []; s.nxt = A.clk
        b2 = s.b2_panels(); pxt = s.xt_panel()
        for p in b2 + [pxt]: s.lt.issue(p); p.issued = True; p.waited = -1
        if s.stop <= 1:
            s.setflag('prejoin', s.sFlag); return
        NF = s.o['NF']; PRE = s.o['PRE']; XA = s.XA2; xa_all = AG.get(80); assert xa_all.i == 0
        WF = [AG.get(4) for _ in range(44)] + [V.get(4) for _ in range(NF - 44)]
        fr = s.fr2; t = V.get(); u = V.get()
        def rd2(n, t2):
            u_, nt = divmod(n, 5); p = b2[u_ // 4]; uu = u_ % 4; jj = 5 * (uu & 1) + nt
            s.lt.read(p)
            A(f'ds_read_b64_tr_b16 {WF[n % NF].sub(2*t2, 2)}, {fr[jj & 1](p.addr + (uu >> 1) * 10240 + t2 * 1280 + 32 * jj)}')
        acc = [V.get(4) for _ in range(5)]; resid = [V.get(4) for _ in range(5)]; gr = s.gr2
        A(f'v_mul_u32_u24 {t}, 160, {s.vTok}'); A(f'v_lshrrev_b32 {u}, 4, {s.vLane}'); A(f'v_lshl_add_u32 {t}, {u}, 3, {t}')
        A(f's_add_u32 {s.sT0}, {s.sW2560}, {XT}'); A(f'v_add_u32 {t}, {s.sT0}, {t}')
        for nt in range(5): A(f'ds_read_b64 {acc[nt][2:4]}, {t} offset:{32 * nt}')
        s.lt.read(pxt); pxt.dead = True
        sW3072 = S.get(); sO3 = S.get(); sC3 = S.get(); sA3 = S.get()
        def xn():
            A(f's_mul_i32 {sW3072}, {s.sW}, 3072'); A(f's_mul_i32 {sC3}, {s.sCb3}, 192')
            A(f'v_mul_f32 {gr[1]}, {gr[0]}, {gr[1]}')
            A(f's_bfe_u32 {s.sT0}, {s.sRb2}, 0x10001'); A(f's_mul_i32 {sO3}, {s.sT0}, {5 * 64 * 3072}'); A(f's_add_u32 {sO3}, {sO3}, {sC3}')
            A('v_nop')
            A(f's_mul_i32 {sA3}, {s.sT0}, 20480'); A(f's_add_u32 {sA3}, {sA3}, {X1}')
            for k in range(6): A('v_nop')
            for nt in range(5):
                for h in range(2):
                    x = resid[nt].sub(2 * h, 2); y = acc[nt].sub(2 * h, 2); src = acc[nt][2 + h]
                    A(f'v_lshlrev_b32 {x[0]}, 16, {src}'); A(f'v_and_b32 {x[1]}, 0xffff0000, {src}')
                    A(f'v_pk_fma_f32 {y}, {x}, {gr[0:2]}, {gr[0:2]} op_sel:[0,0,1] op_sel_hi:[1,0,1] neg_lo:[0,0,1] neg_hi:[0,0,1]')
                    A(f'v_cvt_pk_bf16_f32 {y[1]}, {y[0]}, {y[1]}')
                    A(f'v_lshlrev_b32 {y[0]}, 16, {y[1]}'); A(f'v_and_b32 {y[1]}, 0xffff0000, {y[1]}')
        s.defer(xn)
        nl = s.o['LA2']
        for n in range(PRE):
            for t2 in range(2):
                rd2(n, t2)
                if s.q3: s.q3.pop(0)()
            if n % 4 == 3 and nl < 20: s.lda2(nl); nl += 1
            if n == s.o['fk']: s.setflag('prejoin', s.sFlag)
        assert nl == 20
        s.flush3()
        s.stamp(7)
        b3 = []
        for i in range(10):
            p = Panel(f'b3_{i}', ((100 + 12 * i) if i < 4 else 12 * (i - 4)) * KB, 12 * KB)
            p.ops = s.dma_ops(p, [((sW3072, p.addr), sW3, sO3, [(s.vB3[k], 1024 * k) for k in range(3)], 10.7)]) + [s.wrapadd(sO3, 64 * 3072, 640 * 3072, sC3)]
            b3.append(p)
        pwo = Panel('wob', WOB, 5 * KB)
        pwo.ops = s.dma_ops(pwo, [((s.sW1024, WOB), sWO, '0', [(s.vwo[0], 0)], 12.8), ((None, WOB + 4096), sWO, '0', [(s.vwo[1], 0)], 4)])
        slot4 = lambda i: 20 * KB * i
        sWp = [S.get(), S.get()]; vWp = [V.get(), V.get()]
        def lin_panel(name, slot, k):
            base, span = ((WOP, 102400), (W4R, 245760))[k]
            p = Panel(name, slot4(slot), 20 * KB); p.sc = 'sc1'
            g1 = s.dma_ops(p, [((s.sW5120, p.addr), sWS, sWp[k], [(vWp[k], 1024 * j) for j in range(4)], 8), ((s.sW5120, p.addr + 1024), sWS, sWp[k], [(vWp[k], 3072)], 8)])
            p.ops = g1[:5] + [(lambda: A(f's_add_u32 {sWp[k]}, {sWp[k]}, 1024'), 0)] + g1[5:] + [s.wrapadd(sWp[k], 20480 - 1024, base + span, base)]
            return p
        b4a = [lin_panel(f'b4a_{i}', [6, 0, 1, 2, 3][i], 0) for i in range(5)]
        b4b = [lin_panel(f'b4b_{i}', [4, 5, 6, 0, 1, 2, 3, 4, 5, 6, 0, 1][i], 1) for i in range(12)]
        s.pend = [pwo] + b3
        pR = V.get(4)
        sidetxt = [f'buffer_load_dword {s.pF}, {s.paS}, {sWS}, 0 offen sc1', f'buffer_load_dwordx4 {pR}, {s.vL16}, {sWS}, {s.sT3} offen sc1']
        nr = 2 * PRE; rel = [(40, b2[0:2]), (80, b2[2:4]), (100, b2[4:5])]; relat = None
        s.pace = True
        for n in range(100):
            u_, nt = divmod(n, 5)
            if rel and relat is None and nr >= 2 * rel[0][0]: relat = n + (6 if n else 0)
            if rel and relat == n:
                f_, ps = rel.pop(0); relat = None
                A.touch([WF[(f_ - 1) % NF]])
                for p in ps: p.dead = True
                s.barrier(drain=False)
            A(f'v_mfma_f32_16x16x32_bf16 {acc[nt]}, {WF[n % NF]}, {XA[u_]}, {acc[nt]}')
            k = 0
            while nr < 200 and nr // 2 - NF <= n and k < (2 if n % 2 else 1): rd2(nr // 2, nr & 1); nr += 1; k += 1
            if n == 75:
                A(f's_mov_b32 {s.sT3}, {FR}')
                for x in sidetxt: A(x)
        assert not rel
        s.pace = False
        s.stamp(8)
        V.put(*WF[44:], *s.rF2, *s.vW80, *s.vXT); AG.put(*WF[:44], xa_all); S.put(s.sA2, s.sQ2)
        pk = [V.get(4) for _ in range(3)]; sm = V.get(2); T = V.get(2); one = V.get()
        va, va2, vs = s.vSt
        A(f'v_mov_b32 {pk[2][2]}, 0'); A(f'v_mov_b32 {pk[2][3]}, 0'); A(f'v_mov_b32 {sm[0]}, 0'); A(f'v_mov_b32 {sm[1]}, 0'); A(f'v_mov_b32 {one}, 0x3f803f80')
        sF2 = s.sFlag
        A(f's_and_b32 {s.sT1}, {s.sW}, 1'); A(f's_lshl3_add_u32 {s.sT1}, {s.sT1}, {s.sJ2}'); A(f's_lshl_b32 {s.sT0}, {s.sTw}, 7'); A(f's_lshl2_add_u32 {s.sT0}, {s.sT1}, {s.sT0}'); A(f's_add_u32 {sF2}, {s.sT0}, {F2}')
        for nt in range(5):
            for h in range(2): A(f'v_cvt_pk_bf16_f32 {pk[nt // 2][2 * (nt & 1) + h]}, {acc[nt][2*h]}, {acc[nt][2*h+1]}')
        for k in range(3):
            A(f'v_permlane16_swap_b32 {pk[k][0]}, {pk[k][2]}'); A(f'v_permlane16_swap_b32 {pk[k][1]}, {pk[k][3]}')
            A(f'buffer_store_dwordx4 {pk[k]}, {va if k < 2 else va2}, {sWS}, 0 offen offset:{2048 * (k & 1)} sc1')
        for k in range(3):
            for i in range(4): A(f'v_dot2c_f32_bf16 {sm[0]}, {pk[k][i]}, {one}'); A(f'v_dot2c_f32_bf16 {sm[1]}, {pk[k][i]}, {pk[k][i]}')
        for swp in ('16', '32'):
            A(f'v_mov_b32 {T[0]}, {sm[0]}'); A(f'v_mov_b32 {T[1]}, {sm[1]}')
            A(f'v_permlane{swp}_swap_b32 {sm[0]}, {T[0]}'); A(f'v_permlane{swp}_swap_b32 {sm[1]}, {T[1]}')
            A(f'v_pk_add_f32 {sm}, {sm}, {T}')
        last = A(f'buffer_store_dwordx2 {sm}, {vs}, {sWS}, 0 offen sc1')
        if s.stop <= 2:
            s.setflag(last, sF2); return
        s.checked(sidetxt, [s.pF] + [pR[i] for i in range(4)], pre=s.flagtxt(sF2)); V.put(pR)
        kq = [V.get(4) for _ in range(8)]; zq = [V.get() for _ in range(8)]; pq = V.get(10, 4)
        sKo = S.get(); sP = [S.get() for _ in range(2)]
        for i in range(8):
            A(f's_mov_b32 {sKo}, {KV + 16384 * i}')
            A(f'buffer_load_dwordx4 {kq[i]}, {s.vk}, {sWS}, {sKo} offen sc1')
            A(f'buffer_load_dword {zq[i]}, {s.vz}, {sWS}, {sKo} offen sc1')
        A(f's_mov_b32 {sP[0]}, {PQ}'); A(f's_bitcmp0_b32 {s.sW}, 0'); A(f's_mov_b32 {sP[1]}, {PQ + 512}'); A(f's_cselect_b32 {sP[1]}, {sP[1]}, {PQ - 248}')
        A(f'buffer_load_dwordx4 {pq[0:4]}, {s.vp}, {sWS}, {sP[0]} offen sc1')
        A(f'buffer_load_dwordx4 {pq[4:8]}, {s.vp}, {sWS}, {sP[0]} offen offset:256 sc1')
        A(f'buffer_load_dwordx2 {pq[8:10]}, {s.vp}, {sWS}, {sP[1]} offen sc1')
        so3 = S.get()
        A(f's_mul_i32 {so3}, {s.sCb3}, {96 * 32}'); A(f's_add_u32 {so3}, {so3}, {CS + 2560 * 32}')
        l3, cg = s.cs_loads(3, so3)
        for ld in l3: A(ld)
        for nt in range(5):
            for h in range(2): A(f'v_pk_add_f32 {resid[nt].sub(2*h, 2)}, {resid[nt].sub(2*h, 2)}, {acc[nt].sub(2*h, 2)}')
        vkw = s.vkw; vka = V.get(); vwb = [V.get() for _ in range(2)]; wa = [V.get() for _ in range(2)]; vpf = V.get()
        A(f's_and_b32 {s.sT1}, {s.sRb2}, 3')
        for k, (base, span, mul) in enumerate(((WOP, 102400, 20480), (W4R, 245760, 61440))):
            A(f's_mul_i32 {s.sT2}, {s.sJ2}, {span}'); A(f's_add_u32 {s.sT2}, {s.sT2}, {s.sW5120}'); A(f'v_add_u32 {vWp[k]}, {s.sT2}, {s.vL16}')
            A(f's_mul_i32 {sWp[k]}, {s.sT1}, {mul}'); A(f's_add_u32 {sWp[k]}, {sWp[k]}, {base}')
        A(f'v_lshlrev_b32 {t}, 6, {s.vTok}'); A(f'v_and_b32 {u}, 48, {s.vLane}'); A(f'v_add_u32 {t}, {t}, {u}'); A(f'v_add_u32 {vka}, {KVB}, {t}')
        A(f'v_lshrrev_b32 {t}, 4, {s.vLane}'); A(f'v_lshlrev_b32 {t}, 3, {t}'); A(f'v_bfe_u32 {u}, {s.vLane}, 2, 2'); A(f'v_add_u32 {t}, {t}, {u}'); A(f'v_mul_u32_u24 {t}, 160, {t}')
        A(f'v_and_b32 {u}, 3, {s.vLane}'); A(f'v_lshl_add_u32 {t}, {u}, 3, {t}'); A(f'v_add_u32 {vwb[1]}, {WOB}, {t}')
        A(f's_lshl_b32 {s.sT0}, {s.sW}, 5'); A(f'v_add_u32 {vwb[0]}, {s.sT0}, {vwb[1]}')
        A(f's_mul_i32 {s.sT0}, {s.sRb2}, 5')
        for m in range(2):
            A(f'v_lshrrev_b32 {t}, 4, {s.vLane}'); A(f'v_add3_u32 {t}, {t}, {s.sT0}, {4 * m}')
            A(f'v_lshrrev_b32 {u}, 3, {t}'); A(f'v_mul_u32_u24 {wa[m]}, 5120, {u}')
            A(f'v_bfe_u32 {u}, {t}, 1, 2'); A(f'v_lshl_add_u32 {wa[m]}, {u}, 8, {wa[m]}')
            A(f'v_and_b32 {u}, 1, {t}'); A(f'v_lshl_add_u32 {wa[m]}, {u}, 3, {wa[m]}'); A(f'v_lshl_add_u32 {wa[m]}, {s.vTok}, 4, {wa[m]}')
        A(f'v_cmp_gt_u32 vcc, 16, {s.vLane}'); A(f'v_mov_b32 {u}, {OOB}'); A(f'v_cndmask_b32 {wa[1]}, {u}, {wa[1]}, vcc')
        A(f'v_readfirstlane_b32 {s.sT0}, {va}'); A(f'v_min_u32 {t}, 19, {s.vLane}'); A(f'v_lshrrev_b32 {u}, 1, {t}'); A(f'v_and_b32 {t}, 1, {t}')
        A(f'v_lshlrev_b32 {u}, 9, {u}'); A(f'v_lshl_add_u32 {u}, {t}, 7, {u}'); A(f'v_add_u32 {vpf}, {s.sT0}, {u}')
        s.setflag(last, sF2)
        A(f'buffer_load_dword {vpf}, {vpf}, {sWS}, 0 offen sc1')
        s.stamp(9)
        V.put(*acc, *pk, sm, T, one, *s.vSt, s.gr2)
        s.pend += [b4b[0]]; s.pump(); s.pace = True; s.nxt = A.clk
        for st_ in (4, 2, 1):
            for i in range(st_):
                for h in range(2): A(f'v_pk_add_f32 {kq[i].sub(2*h, 2)}, {kq[i].sub(2*h, 2)}, {kq[i + st_].sub(2*h, 2)}')
        for i in range(4): A(f'v_mov_b32 {kq[1][i]}, {kq[0][i]}')
        for i in range(4): A(f'v_permlane32_swap_b32 {kq[0][i]}, {kq[1][i]}')
        for h in range(2): A(f'v_pk_add_f32 {kq[0].sub(2*h, 2)}, {kq[0].sub(2*h, 2)}, {kq[1].sub(2*h, 2)}')
        A(f'v_cvt_pk_bf16_f32 {kq[1][0]}, {kq[0][0]}, {kq[0][1]}'); A(f'v_cvt_pk_bf16_f32 {kq[1][1]}, {kq[0][2]}, {kq[0][3]}')
        A(f'ds_write_b64 {vkw}, {kq[1][0:2]}')
        for st_ in (4, 2, 1):
            for i in range(st_): A(f'v_add_f32 {zq[i]}, {zq[i]}, {zq[i + st_]}')
        A(f'v_mov_b32 {zq[1]}, {zq[0]}')
        s.barrier([pwo])
        ka = [V.get(4) for _ in range(2)]; wb = [V.get(4) for _ in range(2)]; D = [[V.get(4) for _ in range(2)] for _ in range(2)]
        for m in range(2): A(f'ds_read_b128 {ka[m]}, {vka} offset:{1024 * m}')
        s.lt.read(pwo)
        for t2 in range(2):
            A(f'ds_read_b64_tr_b16 {wb[0].sub(2*t2, 2)}, {vwb[0]} offset:{640 * t2}'); A(f'ds_read_b64_tr_b16 {wb[1].sub(2*t2, 2)}, {vwb[1]} offset:{128 + 640 * t2}')
        A(f'v_permlane32_swap_b32 {zq[0]}, {zq[1]}'); A(f'v_add_f32 {zq[0]}, {zq[0]}, {zq[1]}')
        pf = V.get(20); den = V.get(2)
        for i in range(10): A(f'v_lshlrev_b32 {pf[2*i]}, 16, {pq[i]}'); A(f'v_and_b32 {pf[2*i+1]}, 0xffff0000, {pq[i]}')
        for n in range(2):
            for m in range(2): A(f'v_mfma_f32_16x16x32_bf16 {D[n][m]}, {ka[m]}, {wb[n]}, 0')
        A(f'v_mov_b32 {den[0]}, {hexf(1e-6)}'); A(f'v_mov_b32 {den[1]}, 0')
        sZs = [S.get(2), S.get(2)]
        for i in range(10):
            z = sZs[i & 1]
            A(f'v_readlane_b32 {z[0]}, {zq[0]}, {2*i}'); A(f'v_readlane_b32 {z[1]}, {zq[0]}, {2*i+1}')
            if i: A(f'v_pk_fma_f32 {den}, {pf.sub(2*i-2, 2)}, {sZs[(i-1) & 1]}, {den}')
        sWs = [S.get(), S.get()]
        A(f's_mul_i32 {sWs[0]}, {s.sJ2}, 102400'); A(f's_add_u32 {sWs[0]}, {sWs[0]}, {WOP}')
        A(f's_cmp_eq_u32 {s.sW}, 0'); A(f's_movk_i32 {sWs[1]}, 4096'); A(f's_cselect_b32 {sWs[1]}, {sWs[1]}, 0x20000000'); A(f's_add_u32 {sWs[1]}, {sWs[1]}, {sWs[0]}')
        A(f's_lshl_b32 {s.sT2}, {s.sW}, 10'); A(f's_add_u32 {sWs[0]}, {sWs[0]}, {s.sT2}')
        A(f'v_pk_fma_f32 {den}, {pf.sub(18, 2)}, {sZs[1]}, {den}')
        A(f'v_add_f32 {den[0]}, {den[0]}, {den[1]}'); A(f'v_rcp_f32 {den[0]}, {den[0]}')
        for n in range(2):
            for m in range(2):
                d = D[n][m]
                A(f'v_cvt_pk_bf16_f32 {d[0]}, {d[0]}, {d[1]}'); A(f'v_cvt_pk_bf16_f32 {d[1]}, {d[2]}, {d[3]}')
                A(f'buffer_store_dwordx2 {d[0:2]}, {wa[m]}, {sWS}, {sWs[n]} offen sc1')
        for i in range(10): A(f'v_pk_mul_f32 {pf.sub(2*i, 2)}, {pf.sub(2*i, 2)}, {den} op_sel_hi:[1,0]')
        for i in range(10): A(f'v_cvt_pk_bf16_f32 {pq[i]}, {pf[2*i]}, {pf[2*i+1]}')
        A(f's_add_u32 {sP[0]}, {sP[0]}, {PP - PQ}'); A(f's_add_u32 {sP[1]}, {sP[1]}, {PP - PQ}')
        A(f'buffer_store_dwordx4 {pq[0:4]}, {s.vp}, {sWS}, {sP[0]} offen sc1')
        A(f'buffer_store_dwordx4 {pq[4:8]}, {s.vp}, {sWS}, {sP[0]} offen offset:256 sc1')
        last = A(f'buffer_store_dwordx2 {pq[8:10]}, {s.vp}, {sWS}, {sP[1]} offen sc1')
        V.put(*kq, *zq, s.vk, s.vz, *ka, *wb, pf, den, vkw, vka, *vwb); S.put(sKo, *sP, *sZs, *sWs)
        vfl = V.get()
        A(f's_lshl_b32 {s.sT0}, {s.sRb2}, 7'); A(f's_lshl2_add_u32 {s.sT0}, {s.sJ2}, {s.sT0}'); A(f's_add_u32 {s.sT0}, {s.sT0}, {FP}')
        A(f's_lshl_b32 {s.sT1}, {s.sJ2}, 7'); A(f's_lshl2_add_u32 {s.sT1}, {s.sRb2}, {s.sT1}'); A(f's_add_u32 {s.sT1}, {s.sT1}, {FW}')
        A(f'v_mov_b32 {t}, {OOB}'); A(f'v_mov_b32 {u}, {s.sT0}'); A(f'v_cmp_eq_u32 vcc, 0, v0'); A(f'v_cndmask_b32 {t}, {t}, {u}, vcc')
        A(f'v_mov_b32 {u}, {s.sT1}'); A(f'v_cmp_eq_u32 vcc, 1, v0'); A(f'v_cndmask_b32 {vfl}, {t}, {u}, vcc')
        fltxt = f'buffer_store_dword {s.vN}, {vfl}, {sWS}, 0 offen sc1'
        if s.stop <= 3:
            s.flush2(); A.waitvm(last); s.barrier(); A(fltxt); return
        s.checked(l3, [c[k] for c in cg for k in (1, 3)])
        s.cs_build(cg); S.put(so3)
        vst = V.get(); vo = V.get(); so = S.get()
        A(f'v_and_b32 {t}, 31, {s.vLane}'); s.f16_voff(vo, t, 48)
        A(f's_lshl_b32 {s.sT0}, {s.sTw3}, 11'); A(f's_add_u32 {s.sT0}, {s.sT0}, {S2}')
        A(f'v_lshl_add_u32 {t}, {t}, 6, {s.sT0}'); A(f'v_and_b32 {u}, 32, {s.vLane}'); A(f'v_add_u32 {vst}, {t}, {u}')
        A(f's_mul_i32 {so}, {s.sTw3}, {2 * 48 * 1024}'); A(f's_mul_i32 {s.sT0}, {s.sCb3}, 3072'); A(f's_add_u32 {so}, {so}, {s.sT0}'); A(f's_add_u32 {so}, {so}, {H3}')
        s.flush2()
        V.put(pq, s.vp, *D[0], *D[1], *wa, vpf, *s.vwo)
        s.stamp(10)
        A(f's_lshl_b32 {s.sT1}, {s.sTw3}, 7'); A(f's_add_u32 {s.sT1}, {s.sT1}, {F2}')
        s.poll(s.vTok4, s.sT1)
        s.stamp(11)
        XF = [AG.get(4) for _ in range(40)]; st2 = [V.get(4) for _ in range(2)]
        def ldx3(i):
            if i >= 40: return
            A(f'buffer_load_dwordx4 {XF[i]}, {s.vA3}, {sWS}, {sA3} offen offset:{1024 * (i % 4)} sc1'); s.charge(8)
            if i % 4 == 3: s.wrapadd(sA3, 4096, X1 + 40960, X1)[0]()
        LA3 = s.o['LA3']
        for i in range(4): ldx3(i)
        sA4 = S.get(); vA4 = [[V.get() for _ in range(2)] for _ in range(2)]
        pwtxt = f'buffer_load_dword {s.pF}, {s.paW}, {sWS}, 0 offen sc1'
        acc = [V.get(16) for _ in range(3)]; xq = V.get(4); k0 = V.get(2); k1 = V.get(2); ia = V.get(2)
        rL4 = [V.get() for _ in range(3)]; H = {}
        def after3():
            A(fltxt)
            for i in range(4, LA3): ldx3(i)
            for k in range(2): A(f'buffer_load_dwordx4 {st2[k]}, {vst}, {sWS}, 0 offen offset:{16 * k} sc1')
        def su():
            A(f's_and_b32 {s.sT1}, {s.sW}, 1'); A(f's_mul_i32 {s.sT2}, {s.sT1}, 10240'); A(f'v_add_u32 {rL4[0]}, {s.sT2}, {s.vL16}')
            H['fl'] = s.dsaddr(rL4[0], regs=rL4[1:])
            A(f's_lshl_b32 {s.sT1}, {s.sT1}, 11')
            for k, nkb in enumerate((20, 48)):
                for m in range(2):
                    A(f's_xor_b32 {s.sT2}, {s.sTT}, {m}'); A(f's_mul_i32 {s.sT2}, {s.sT2}, {nkb * 1024}'); A(f's_add_u32 {s.sT2}, {s.sT2}, {s.sT1}'); A(f'v_add_u32 {vA4[k][m]}, {s.sT2}, {s.vL16}')
            A(f's_and_b32 {s.sT1}, {s.sRb2}, 3'); A(f's_lshl_b32 {sA4}, {s.sT1}, 12'); A(f's_add_u32 {sA4}, {sA4}, {PP}'); A('v_nop')
        def ln():
            a, b = st2
            for e in range(2): A(f'v_add_f32 {a[e]}, {a[e]}, {a[e+2]}'); A(f'v_add_f32 {b[e]}, {b[e]}, {b[e+2]}')
            for e in range(2): A(f'v_add_f32 {a[e]}, {a[e]}, {b[e]}')
            for e in range(2): A(f'v_mov_b32 {a[e+2]}, {a[e]}')
            for e in range(2): A(f'v_permlane32_swap_b32 {a[e]}, {a[e+2]}')
            for e in range(2): A(f'v_add_f32 {a[e]}, {a[e]}, {a[e+2]}')
            for e in range(2): A(f'v_mul_f32 {a[e]}, {hexf(1.0/640)}, {a[e]}')
            A(f'v_fma_f32 {a[1]}, -{a[0]}, {a[0]}, {a[1]}'); A(f'v_max_f32 {a[1]}, 0, {a[1]}')
            s.rstd(ia[0], a[1]); A(f'v_rcp_f32 {a[2]}, {ia[0]}')
            s.split_x(xq, a[0]); s.gelu_k(k0, k1, a[2])
        def chkw():
            s.checked([pwtxt], [s.pF]); s.pend.extend(b4a); s.pump()
        s.pend.append(b4b[1])
        if 'st3' in s.dbg: s.stbase = 17
        s.gemm32(3, b3, 0, XF, s.fw3, acc, hooks={2: lambda: s.defer(su), 14: lambda: s.defer(ln), 21: lambda: A(pwtxt), 27: chkw},
                 xload=lambda n: ldx3(n + LA3), bars=(7, 23, 31, 35), group=lambda p: b3, after_first=after3)
        s.stbase = None
        s.flush3()
        s.corr(acc, cg, xq)
        s.stamp(12)
        AG.put(*XF); V.put(*s.rW3, *s.vB3, s.vA3, vst, vfl, *st2); S.put(sA3, sW3072, sO3, sC3)
        XA = [[AG.get(4) for _ in range(2)] for _ in range(24)]
        def lda4(n, k):
            lim, base, span = ((10, PP, 20480), (24, H3, 49152))[k]
            if n >= lim: return []
            ops = [(lambda m=m: A(f'buffer_load_dwordx4 {XA[n][m]}, {vA4[k][m]}, {sWS}, {sA4} offen offset:{1024 * (n % 2)} sc1'), 8) for m in range(2)]
            if n % 2 == 1: ops.append(s.wrapadd(sA4, 4096, base + span, base))
            return ops
        assert not s.pend
        for n in range(10): s.q2 += lda4(n, 0)
        last = s.epi32('gelu', acc, k0, k1, [ia] * 3, [(vo, so, 1024 * J) for J in range(3)])
        s.stamp(13)
        sF3 = s.sFlag
        A(f's_lshl_b32 {s.sT0}, {s.sTw3}, 7'); A(f's_lshl2_add_u32 {s.sT0}, {s.sCb3}, {s.sT0}'); A(f's_add_u32 {sF3}, {s.sT0}, {F3}')
        V.put(*acc, *cg, xq, k0, k1, ia)
        if s.stop <= 4:
            s.flush2(); s.setflag(last, sF3); return
        s.flush2()
        fl = H['fl']
        acc = [resid, [V.get(4) for _ in range(5)]]
        WB = [[V.get(4) for _ in range(5)] for _ in range(3)]
        def gemm4(k, panels, LA, hooks, bars, group):
            mf = []; rd = {}; coarse = {}
            for n in range(2 * len(panels)):
                p = panels[n // 2]; h = n % 2; W = WB[n % 3]
                coarse[len(mf)] = W + XA[n]
                for nt in range(5):
                    rd[(n, nt)] = (W[nt], p, [lambda nt=nt, W=W, p=p, h=h: A(f'ds_read_b128 {W[nt]}, {fl(p.addr + (5 * h + nt) * 1024)}')])
                    for m in range(2):
                        def f(nt=nt, m=m, n=n, W=W):
                            A(f'v_mfma_f32_16x16x32_bf16 {acc[m][nt]}, {W[nt]}, {XA[n][m]}, {"0" if k == 0 and n == 0 and m == 1 else acc[m][nt]}')
                            if LA and m == 0 and nt % 2 == 0:
                                ops = lda4(n + LA, k)
                                if nt // 2 < len(ops): ops[nt // 2][0]()
                        mf.append((f, [(n, nt)]))
            s.flat(mf, rd, 19, 1, group=group, bars=[20 * b + 19 for b in bars], hooks=hooks, coarse=coarse, per=20)
        s.pend = b4b[2:]
        def pfaddr():
            A(f'v_min_u32 {t}, 47, {s.vLane}'); A(f'v_cmp_le_u32 vcc, 24, {t}'); A(f'v_lshlrev_b32 {t}, 7, {t}'); A(f'v_add_u32 {u}, {49152 - 3072}, {t}'); A(f'v_cndmask_b32 {vo}, {t}, {u}, vcc')
        def flag3():
            s.setflag(last, sF3); A(f'buffer_load_dword {vo}, {vo}, {sWS}, {so} offen sc1')
        pfaddr()
        gemm4(0, b4a, 0, {s.o['f3d']: flag3}, (), None)
        va = V.get(); va2 = V.get(); vr = [V.get(), V.get()]
        RED = slot4(2)
        A(f's_add_u32 {s.sT0}, {s.sW5120}, {RED}'); A(f'v_add_u32 {vr[0]}, {s.sT0}, {s.vL16}')
        A(f's_xor_b32 {s.sT0}, {s.sW}, 1'); A(f's_mul_i32 {s.sT0}, {s.sT0}, 5120'); A(f's_add_u32 {s.sT0}, {s.sT0}, {RED}'); A(f'v_add_u32 {vr[1]}, {s.sT0}, {s.vL16}')
        A(f's_mul_i32 {s.sT0}, {s.sTT}, 20480'); A(f's_add_u32 {s.sT0}, {s.sT0}, {s.sJ160}')
        A(f'v_mul_u32_u24 {va}, 1280, {s.vTok}'); A(f'v_lshrrev_b32 {t}, 1, {s.vLane}'); A(f'v_and_b32 {t}, 16, {t}'); A(f'v_add3_u32 {va}, {va}, {t}, {s.sT0}')
        A(f'v_and_b32 {t}, 16, {s.vLane}'); A(f'v_lshl_add_u32 {va2}, {t}, 26, {va}'); A(f'v_lshl_add_u32 {va}, {t}, 1, {va}')
        A(f's_and_b32 {s.sT1}, {s.sRb2}, 3'); A(f's_mul_i32 {sA4}, {s.sT1}, 12288'); A(f's_add_u32 {sA4}, {sA4}, {H3}')
        s.flush2()
        s.stamp(14)
        A(f's_lshl_b32 {s.sT1}, {s.sTw}, 7'); A(f's_add_u32 {s.sT1}, {s.sT1}, {F3}')
        s.poll(s.vTok4, s.sT1)
        s.stamp(15)
        LA4 = s.o['LA4']
        for n in range(LA4):
            for f, c in lda4(n, 1): f(); s.charge(c)
        if 'st4' in s.dbg: s.stbase = 17
        s.nxt = A.clk
        g4 = {0: b4b[1:7], 7: [b4b[8]], 9: [b4b[10]]}
        gemm4(1, b4b, LA4, None, (0, 2, 4), lambda p: g4.get(b4b.index(p), []))
        s.stbase = None
        assert not s.pend and all(p.issued for p in b4b)
        s.q2 = []; s.pace = False
        if 'st4' in s.dbg: s.stamp(29)
        for nt in range(5): A(f'ds_write_b128 {vr[0]}, {acc[1][nt]} offset:{1024 * nt}')
        s.barrier()
        for nt in range(5): A(f'ds_read_b128 {WB[0][nt]}, {vr[1]} offset:{1024 * nt}')
        pk = [V.get(4) for _ in range(3)]
        for nt in range(5):
            for h in range(2):
                y = acc[0][nt].sub(2 * h, 2)
                A(f'v_pk_add_f32 {y}, {y}, {WB[0][nt].sub(2*h, 2)}')
                A(f'v_cvt_pk_bf16_f32 {pk[nt // 2][2 * (nt & 1) + h]}, {y[0]}, {y[1]}')
            if nt % 2 == 1 or nt == 4:
                k = nt // 2
                A(f'v_permlane16_swap_b32 {pk[k][0]}, {pk[k][2]}'); A(f'v_permlane16_swap_b32 {pk[k][1]}, {pk[k][3]}')
                A(f'buffer_store_dwordx4 {pk[k]}, {va if k < 2 else va2}, {sOUT}, 0 offen offset:{64 * k}')

    def finish(s):
        A = s.A; s.pace = False
        t = s.V.get(); u = s.V.get()
        if s.stop > 4:
            A(f'v_or_b32 {t}, s2, v0'); A(f'v_cmp_eq_u32 vcc, 0, {t}'); A(f'v_mov_b32 {u}, {OOB}'); A(f'v_cndmask_b32 {t}, {u}, {t}, vcc')
            A(f'buffer_store_dword {s.vN}, {t}, {sWS}, 0 offen')
        if s.stamps:
            A('s_waitcnt vmcnt(0)')
            s.stamp(16)
            A(f's_lshl_b32 {s.sT0}, s2, 2'); A(f's_add_u32 {s.sT0}, {s.sT0}, {s.sW}'); A(f's_lshl_b32 {s.sT0}, {s.sT0}, 7'); A(f's_add_u32 {s.sT0}, {s.sT0}, {STAMP}')
            A(f'v_and_b32 {t}, 31, {s.vLane}'); A(f'v_lshlrev_b32 {t}, 2, {t}'); A(f'v_and_b32 {u}, 32, {s.vLane}'); A(f'v_lshl_add_u32 {t}, {u}, 25, {t}')
            A(f'buffer_store_dword {s.vStamp}, {t}, {sWS}, {s.sT0} offen')
        A('L_end:'); A('s_endpgm')
        A.ins += s.cold
        A('s_endpgm')
        A('.p2align 8'); A('L_codeend:')

    def build(s):
        s.prologue()
        snap = (s.V.snapshot(), s.AG.snapshot(), s.S.snapshot())
        for var in ('B', 'A', 'T1'):
            s.V.restore(snap[0]); s.AG.restore(snap[1]); s.S.restore(snap[2])
            if var == 'T1': s.t1()
            else: s.t23(var)
        s.V.restore(snap[0]); s.AG.restore(snap[1]); s.S.restore(snap[2])
        s.V.put(*s.vXA, s.p0x, s.p0c, s.paF1); s.S.put(s.sRb, s.sCl, s.sXc, s.sRot, s.sOA, s.sOB, s.sBB, s.sCsA, s.sRow0, s.sLc)
        s.common()
        s.finish()
        hdr = open('cdna_kernels/' + NAME + '.s.ref').read().split('; Override launch')[0]
        txt = hdr + '; @launch grid=(256,1,1) block=(256,1,1) lds=163840\n'
        txt += f'.amdgcn_target "amdgcn-amd-amdhsa--gfx950"\n.text\n.globl {NAME}_kernel\n.p2align 8\n.type {NAME}_kernel,@function\n{NAME}_kernel:\n'
        if 'nomfma' in s.dbg: s.A.ins = [i for i in s.A.ins if i.cls != 'mfma']
        if 'nods' in s.dbg: s.A.ins = [i for i in s.A.ins if not (i.cls == 'ds' and i.w)]
        if 'now4' in s.dbg: s.A.ins = [i for i in s.A.ins if not (i.note == 'dma' and str(sW4) in i.text)]
        if 'nopf' in s.dbg: s.A.ins = [i for i in s.A.ins if not (i.op == 'buffer_load_dword' and i.ops[0] == i.ops[1])]
        if 'nosc1a' in s.dbg:
            for i in s.A.ins:
                if i.op == 'buffer_load_dwordx4' and i.ops[0].startswith('a['): i.text = i.text.replace(' sc1', '')
        if 'nodma' in s.dbg: s.A.ins = [i for i in s.A.ins if i.note != 'dma']
        txt += s.A.text()
        txt += f'''.section .rodata,"a"
.p2align 6
.amdhsa_kernel {NAME}_kernel
  .amdhsa_next_free_vgpr 512
  .amdhsa_next_free_sgpr 102
  .amdhsa_accum_offset 256
  .amdhsa_group_segment_fixed_size 0
  .amdhsa_kernarg_size 88
  .amdhsa_user_sgpr_count 2
  .amdhsa_user_sgpr_kernarg_segment_ptr 1
  .amdhsa_system_sgpr_workgroup_id_x 1
.end_amdhsa_kernel
'''
        return txt

if __name__ == '__main__':
    import argparse
    ap = argparse.ArgumentParser()
    ap.add_argument('-o', default='cdna_kernels/' + NAME + '.s')
    ap.add_argument('--stop', type=int, default=99)
    ap.add_argument('--stamps', action='store_true')
    ap.add_argument('--dbg', default='')
    a = ap.parse_args()
    g = G(stop=a.stop, stamps=a.stamps, dbg=a.dbg)
    txt = g.build()
    open(a.o, 'w').write(txt)
    print('written', a.o, 'vgpr top', g.V.top, 'agpr top', g.AG.top, 'sgpr top', g.S.top)
```

```python
import sys, struct, math, os
from asmgen import *

NAME = 'parallel_sum__linear_attn_block__mixer_s_mlp__prompt'
KB = 1024
F1, FQ, FK, F2, FP, FW, F3 = 0x2000, 0x4000, 0x6000, 0x7000, 0x9000, 0xA000, 0xB000
FR = 0x1000
RS, CS, S2, STAMP = 0x10000, 0x18000, 0x40000, 0x180000
HS, PQ, W2R, X1, H3, WOP = 0x200000, 0x480000, 0x700000, 0x980000, 0xC00000, 0x1200000
PP = PQ
KV, W4R = 0x1300000, 0x1580000
KVP = 8192 + 384
KVH = 16 * KVP + 128
WS_USED = 0x1780000
OOB = 0x40000000
XT = 148 * KB
KVB = 158 * KB
CTRL = KVB + 1536
RPB = 144 * KB
SPIN = 200000
NV = 176

def f2u(x): return struct.unpack('<I', struct.pack('<f', x))[0]
def hexf(x): return '0x%08x' % f2u(x)
LOG2E = 1.4426950408889634
GC0 = -2.0 * LOG2E * math.sqrt(2.0 / math.pi)
GC1 = GC0 * 0.044715

sX, sWQKV, sWO, sW1, sW2, sW3, sW4, sOUT, sWS, sD0, sD1 = [R('s', 4 + 4 * i, 4) for i in range(11)]

class Panel:
    def __init__(s, name, addr, size, seq): s.name, s.addr, s.size, s.seq = name, addr, size, seq; s.rel = None; s.minrel = 0
def ovl(p, q): return q.addr < p.addr + p.size and p.addr < q.addr + q.size

class G:
    def __init__(s, stop=99, stamps=False, dbg='', **opt):
        s.A = Asm(); s.stop = stop; s.stamps = stamps; s.dbg = dbg; s.stbase = None
        s.V = Pool('v', 1, NV); s.AG = Pool('a', 0, 256 - NV); s.S = Pool('s', 48, 101)
        s.cold = []; s.nlab = 0; s.q3 = []
        s.o = dict(NF=24, LA2=12, LA3=10, LA4=5, f3d=30, lag16=12, lag32=6, nph=2, W1x=16, W1w=20, W1=10, W2=9, W3=6, W4=12, W5=8, jd=0, lprio=3, ntr=1, A4e=4, jp=11, jsl=8, psl=0, pt=1, pm=1, pd2=0, nt0=0, nt1=0, nt2=0, prio=0, slp=1); s.o.update(opt)
        P = []
        def add(n, a, sz): p = Panel(n, a, sz, len(P) + 1); P.append(p); return p
        s.st = [add(f's{i}', ((i + 2) % 4) * 36 * KB, 36 * KB) for i in range(10)]
        s.pxt = add('xt', XT, 10 * KB)
        s.b2 = [add(f'b2_{i}', 25 * KB * i, 25 * KB) for i in range(4)]
        s.b3 = [add(f'b3_{i}', (100 + 12 * i) * KB, 12 * KB) for i in range(4)]
        s.b3 += [add(f'b3_{i}', 12 * (i - 4) * KB, 12 * KB) for i in range(4, 10)]
        sl = [4, 5, 6, 0, 1, 2, 3, 4, 5, 6, 0, 1]
        s.b4b = [add(f'b4b_{i}', 20 * KB * sl[i], 20 * KB) for i in range(2)]
        s.b4a = [add(f'b4a_{i}', 20 * KB * [6, 0, 1, 2, 3][i], 20 * KB) for i in range(5)]
        s.b4b += [add(f'b4b_{i}', 20 * KB * sl[i], 20 * KB) for i in range(2, 12)]
        s.P = P
        s.known = 0; s.nrel = 0

    def lab(s, p='L'): s.nlab += 1; return f'{p}{s.nlab}'
    def stamp(s, n):
        if s.stamps: s.A(f's_mem{"" if "cyc" in s.dbg else "real"}time {s.sStamp}'); s.A(f'v_writelane_b32 {s.vStamp}, {s.sStamp[0]}, {n}')
    def flush3(s):
        while s.q3: s.q3.pop(0)()
    def defer(s, fn):
        A = s.A; main = A.ins; A.ins = []; clk = (A.clk, A.mf_free, A.lds_free)
        fn(); cap = A.ins; A.ins = main; A.clk, A.mf_free, A.lds_free = clk
        grp = []
        for i in cap:
            grp.append(i)
            if i.cls != 'salu': s.q3.append(lambda g=grp: s.replay(g)); grp = []
        if grp: s.q3.append(lambda g=grp: s.replay(g))
    def replay(s, g):
        for i in g: s.A.ins.append(i); s.A.tick(i)
    def outline(s, fn):
        A = s.A; main = A.ins; A.ins = []; clk = (A.clk, A.mf_free, A.lds_free)
        fn(); s.cold += A.ins; A.ins = main; A.clk, A.mf_free, A.lds_free = clk
    def tick_spin(s, out, sl=0):
        if sl: s.A(f's_sleep {sl}')
        s.A(f's_sub_u32 {s.sSp}, {s.sSp}, 1'); s.A(f's_cmp_lt_i32 {s.sSp}, 0'); s.A(f's_cbranch_scc1 {out}')
    def lds_wait(s, off, val, pre=True, sl=0):
        A = s.A; Lr = s.lab('W'); Lb = s.lab('B')
        rdt = f'ds_read_b64 {s.vF}, {s.vCtl}' if off == 0 else f'ds_read_b32 {s.vF[0]}, {s.vCtl} offset:{off}'
        def cmp():
            if off == 0: A(f'v_min_u32 {s.vF[0]}, {s.vF[0]}, {s.vF[1]}')
            A(f'v_cmp_gt_u32 vcc, {val}, {s.vF[0]}'); A(f's_cbranch_vccnz {Lr}')
        if pre: A(rdt)
        cmp(); A(f'{Lb}:')
        def slow():
            A(f'{Lr}:'); A(rdt); s.tick_spin(Lb, sl); A('s_waitcnt lgkmcnt(0)'); cmp(); A(f's_branch {Lb}')
        s.outline(slow)
    def full(s, p, pre=True):
        if p.seq > s.known: s.lds_wait(0, p.seq, pre); s.known = p.seq
    def release(s, ps):
        s.nrel += 1
        for p in ps:
            assert p.rel is None or p.rel == s.nrel, p.name
            p.rel = s.nrel
        s.A(f'v_mov_b32 {s.vP}, {s.nrel}'); s.A(f'ds_write_b32 {s.vPa}, {s.vP}')
    def dsaddr(s, base, wins=(0, 1, 2), regs=None):
        rr = {0: base}; k = 0
        for wv in wins:
            if wv:
                r = regs[k] if regs else s.V.get(); k += 1
                s.A(f'v_add_u32 {r}, {wv * 65536}, {base}'); rr[wv] = r
        def at(c): return f'{rr[c >> 16]} offset:{c & 0xffff}'
        at.regs = list(rr.values())
        return at
    def wrapadd(s, r, step, lim, base):
        s.A(f's_add_u32 {r}, {r}, {step}'); s.A(f's_cmp_ge_u32 {r}, {lim}'); s.A(f's_cmov_b32 {r}, {base}')
    def tagcmp(s, tags):
        A = s.A
        if len(tags) == 1: A(f'v_cmp_ne_u32 vcc, {s.sN}, {tags[0]}'); return
        t = s.V.get()
        A(f'v_xor_b32 {t}, {s.sN}, {tags[0]}')
        for x in tags[1:]: A(f'v_bitop3_b32 {t}, {t}, {s.vN}, {x} bitop3:0xf6')
        A(f'v_cmp_ne_u32 vcc, 0, {t}'); s.V.put(t)
    def poll(s, loads, tags, sl=0, mask=None, d0=0):
        A = s.A; L = s.lab('P'); D = s.lab('PD'); L0 = s.lab('P')
        if mask == '0xffffffff': A('s_mov_b32 exec_hi, 0')
        elif mask: A(f's_mov_b64 exec, {mask}')
        if d0: A(f's_sleep {d0}')
        if sl: A(f's_branch {L0}')
        A(f'{L}:')
        if sl: A(f's_sleep {sl}'); A(f'{L0}:')
        for ld in loads: A(ld)
        s.tick_spin(D); s.tagcmp(tags); A(f's_cbranch_vccnz {L}')
        A(f'{D}:'); A('s_waitcnt vmcnt(0)')
        if mask: A('s_mov_b64 exec, -1')
    def checked(s, loads, tags, pre=None):
        A = s.A; Lr = s.lab('R'); Lb = s.lab('B'); L2 = s.lab('R')
        s.tagcmp(tags); A(f's_cbranch_vccnz {Lr}'); A(f'{Lb}:')
        def slow():
            A(f'{Lr}:')
            if callable(pre): pre()
            A('s_waitcnt vmcnt(0) lgkmcnt(0)')
            if pre and not callable(pre): A(pre)
            A(f'{L2}:')
            for ld in loads: A(ld)
            A('s_waitcnt vmcnt(0)'); s.tick_spin(Lb); s.tagcmp(tags); A(f's_cbranch_vccnz {L2}'); A('s_nop 4'); A(f's_branch {Lb}')
        s.outline(slow)
    def flagtxt(s, soff, va=None): return f'buffer_atomic_swap {s.vN}, {va or s.vL0}, {sWS}, {soff} offen sc1'
    def polltxt(s, d, va, soff): return f'v_mov_b32 {d}, 0\nbuffer_atomic_add {d}, {va}, {sWS}, {soff} offen sc0 sc1'
    def setflag(s, last_store, soff):
        if last_store == 'prejoin': s.A.wait_prejoin()
        else: s.A.waitvm(last_store)
        s.A(s.flagtxt(soff))
    def nonce(s):
        A = s.A
        A(f's_mul_i32 {s.sN}, {s.sN}, 1664525'); A(f's_add_u32 {s.sN}, {s.sN}, 1013904223'); A(f'v_mov_b32 {s.vN}, {s.sN}')
    def srd(s, *lst):
        sz = {str(sX): 2621440, str(sWQKV): 2457600, str(sW1): 819200, str(sW3): 1966080, str(sWS): WS_USED, str(sW2): 819200, str(sWO): 819200, str(sW4): 1966080, str(sOUT): 2621440}
        for r in lst: s.A(f's_mov_b32 {r[2]}, {sz[str(r)]}'); s.A(f's_mov_b32 {r[3]}, 0x20000')
    def rbf(s, d, x):
        s.A(f'v_cvt_pk_bf16_f32 {d}, {x}, {x}'); s.A(f'v_and_b32 {d}, 0xffff0000, {d}')
    def rstd(s, d, var):
        A = s.A
        s.rbf(d, var); A(f'v_add_f32 {d}, {hexf(1e-5)}, {d}'); s.rbf(d, d); A(f'v_sqrt_f32 {d}, {d}'); s.rbf(d, d)
    def split_w(s, q, v):
        A = s.A
        A(f'v_cvt_pk_bf16_f32 {q[1]}, {v}, {v}'); A(f'v_and_b32 {q[2]}, 0xffff0000, {q[1]}'); A(f'v_sub_f32 {q[3]}, {v}, {q[2]}')
        A(f'v_cvt_pk_bf16_f32 {q[0]}, {q[2]}, {q[3]}'); A(f'v_and_b32 {q[1]}, 0xffff, {q[1]}'); A(f'v_mov_b32 {q[2]}, 0'); A(f'v_mov_b32 {q[3]}, 0')
    def split_x(s, q, m):
        A = s.A
        A(f'v_cvt_pk_bf16_f32 {q[0]}, -{m}, -{m}'); A(f'v_and_b32 {q[2]}, 0xffff0000, {q[0]}'); A(f'v_sub_f32 {q[2]}, -{m}, {q[2]}')
        A(f'v_cvt_pk_bf16_f32 {q[1]}, {q[2]}, 0'); A(f'v_mov_b32 {q[2]}, 0'); A(f'v_mov_b32 {q[3]}, 0')
    def mk_nt_read(s, NT, regs=None, wins=(0, 1, 2), add=0):
        A = s.A; b = regs[0] if regs else s.V.get(); t = s.V.get(); rs = 64 * NT
        A(f'v_lshrrev_b32 {b}, 5, {s.vLane}'); A(f'v_lshlrev_b32 {b}, 3, {b}')
        A(f'v_bfe_u32 {t}, {s.vLane}, 2, 2'); A(f'v_add_u32 {b}, {b}, {t}'); A(f'v_mul_u32_u24 {b}, {rs}, {b}')
        A(f'v_and_b32 {t}, 3, {s.vLane}'); A(f'v_lshl_add_u32 {b}, {t}, 3, {b}')
        A(f'v_and_b32 {t}, 16, {s.vLane}'); A(f'v_lshl_add_u32 {b}, {t}, 1, {b}')
        if NT == 3:
            f = s.dsaddr(b, wins, regs=regs[1:] if regs else None); s.V.put(t)
            return [(lambda c, J=J: f(c + 64 * J)) for J in range(3)], f.regs
        A(f'v_and_b32 {t}, 8, {s.vLane}'); A(f'v_lshlrev_b32 {t}, 3, {t}')
        A(f'v_xor_b32 {b}, {b}, {t}'); A(f'v_add_u32 {b}, {add}, {b}'); A(f'v_xor_b32 {t}, 64, {b}')
        f0 = s.dsaddr(b, wins); f1 = s.dsaddr(t, wins)
        return [f0, f1], f0.regs + f1.regs
    def f16_voff(s, d, tok, nkb):
        A = s.A; t = s.V.get()
        A(f'v_lshrrev_b32 {t}, 4, {tok}'); A(f'v_mul_u32_u24 {t}, {nkb * 1024}, {t}')
        A(f'v_and_b32 {d}, 15, {tok}'); A(f'v_lshl_add_u32 {d}, {d}, 4, {t}')
        A(f'v_and_b32 {t}, 32, {s.vLane}'); A(f'v_lshl_add_u32 {d}, {t}, 3, {d}')
        s.V.put(t)
    def snap(s): return (s.V.snapshot(), s.AG.snapshot(), s.S.snapshot())
    def rest(s, x): s.V.restore(x[0]); s.AG.restore(x[1]); s.S.restore(x[2])

    def entry(s):
        A = s.A; S = s.S; V = s.V
        A('s_cmp_ge_u32 s2, 256'); A('s_cbranch_scc1 L_end')
        for srd, off in [(sX, 0), (sWQKV, 8), (sW1, 32), (sW3, 48), (sWS, 80), (sW2, 40), (sWO, 16), (sW4, 56), (sOUT, 64)]:
            A(f's_load_dwordx2 {srd[0:2]}, s[0:1], {off}')
        s.sT0, s.sT1, s.sT2, s.sT3 = S.get(), S.get(), S.get(), S.get()
        s.sW, s.sN, s.sSp, s.sIdx, s.sXr, s.sXc, s.sRb, s.sCl, s.sRb2, s.sJ2 = [S.get() for _ in range(10)]
        s.vLane, s.vN, s.vCtl, s.vL16, s.vL0 = [V.get() for _ in range(5)]; s.vF = V.get(2)
        t = V.get()
        A(f'v_lshrrev_b32 {t}, 6, v0'); A(f'v_and_b32 {s.vLane}, 63, v0')
        A(f'v_readfirstlane_b32 {s.sW}, {t}')
        if s.stamps: s.sStamp = S.get(2); s.vStamp = V.get(); A(f'v_mov_b32 {s.vStamp}, 0')
        A(f's_lshr_b32 {s.sIdx}, s2, 3'); A(f's_and_b32 {s.sXr}, s2, 3'); A(f's_bfe_u32 {s.sXc}, s2, 0x10002')
        A(f's_and_b32 {s.sT2}, {s.sIdx}, 3'); A(f's_lshl2_add_u32 {s.sRb}, {s.sXr}, {s.sT2}'); A(f's_lshr_b32 {s.sCl}, {s.sIdx}, 2')
        A(f's_lshl1_add_u32 {s.sT0}, {s.sXr}, {s.sXc}'); A(f's_lshr_b32 {s.sT2}, {s.sIdx}, 3'); A(f's_lshl2_add_u32 {s.sRb2}, {s.sT0}, {s.sT2}'); A(f's_and_b32 {s.sJ2}, {s.sIdx}, 7')
        A(f's_mov_b32 {s.sSp}, {SPIN}'); A(f'v_mov_b32 {s.vCtl}, {CTRL}'); A(f'v_lshlrev_b32 {s.vL16}, 4, {s.vLane}')
        V.put(t)
        A(f's_cmp_eq_u32 {s.sW}, 4'); A('s_cbranch_scc1 L_load0')
        A(f's_cmp_eq_u32 {s.sW}, 5'); A('s_cbranch_scc1 L_load1')
        A(f's_cmp_ge_u32 {s.sW}, 6'); A('s_cbranch_scc1 L_job')
        A.ctl('save', 'entry')
    def mkL0(s):
        A = s.A; t = s.V.get()
        A(f'v_cmp_eq_u32 vcc, 0, {s.vLane}'); A(f'v_mov_b32 {t}, {OOB}'); A(f'v_cndmask_b32 {s.vL0}, {t}, {s.vLane}, vcc'); s.V.put(t)

    def voff10(s):
        A = s.A; V = s.V; x = [V.get() for _ in range(5)]; t = V.get()
        for k in range(5):
            A(f'v_add_u32 {t}, {64 * k}, {s.vLane}'); A(f'v_mul_u32_u24 {t}, 6554, {t}'); A(f'v_lshrrev_b32 {t}, 16, {t}')
            A(f'v_mul_u32_u24 {t}, 1120, {t}'); A(f'v_add_u32 {x[k]}, {t}, {s.vL16}')
        A(f'v_add_u32 {x[4]}, 4096, {x[4]}'); V.put(t)
        return x
    def prog_wait(s, q4, val, sl=0):
        A = s.A; L4 = s.lab(); L5 = s.lab()
        A(f'{L4}:'); A(f'ds_read_b128 {q4}, {s.vCtl} offset:16'); s.tick_spin(L5, sl)
        A(f'v_min3_u32 {q4[0]}, {q4[0]}, {q4[1]}, {q4[2]}'); A(f'v_min_u32 {q4[0]}, {q4[0]}, {q4[3]}'); A(f'v_cmp_gt_u32 vcc, {val}, {q4[0]}'); A(f's_cbranch_vccnz {L4}')
        A(f'{L5}:')
    def job(s):
        A = s.A; S = s.S; V = s.V; o = s.o
        A('L_job:'); A.ctl('restore', 'entry')
        t = V.get(); u = V.get(); vC0 = V.get(); ad = V.get(); wb = [V.get(4) for _ in range(3)]; vo = [V.get() for _ in range(4)]; sK = S.get()
        A(f's_and_b32 {sK}, {s.sW}, 1')
        A(f'v_lshrrev_b32 {t}, 3, {s.vLane}'); A(f'v_and_b32 {u}, 7, {s.vLane}')
        A(f's_cmp_eq_u32 {s.sW}, 7'); A('s_cbranch_scc1 L_job1')
        A.ctl('save', 'jfork'); sn = s.snap()
        def after_bar():
            A(f's_load_dword {s.sN}, {sWS[0:2]}, 0')
            A('s_barrier')
            s.srd(sWO); s.mkL0()
            A(f'v_lshrrev_b32 {vC0}, 10, {s.vL0}'); A(f's_lshl_b32 {s.sT0}, {sK}, 2'); A(f's_add_u32 {s.sT0}, {s.sT0}, {CTRL}'); A(f'v_add_u32 {vC0}, {s.sT0}, {vC0}')
            A(f'v_lshrrev_b32 {ad}, 4, {s.vLane}'); A(f'v_lshlrev_b32 {ad}, 3, {ad}'); A(f'v_bfe_u32 {t}, {s.vLane}, 2, 2'); A(f'v_add_u32 {ad}, {ad}, {t}')
            A(f'v_and_b32 {t}, 3, {s.vLane}'); A(f'v_lshlrev_b32 {t}, 3, {t}')
            A(f'v_mul_u32_u24 {u}, 160, {ad}'); A(f'v_add_u32 {u}, {u}, {t}'); A(f'v_lshl_add_u32 {ad}, {ad}, 7, {t}')
        def wo_dma(addr):
            x = s.voff10()
            A(f's_mul_i32 {s.sT1}, {s.sRb2}, 25600'); A(f's_mul_i32 {s.sT2}, {s.sJ2}, 160'); A(f's_mov_b32 m0, {addr}'); A(f's_add_u32 {s.sT1}, {s.sT1}, {s.sT2}')
            for i in range(4): A(f'buffer_load_dwordx4 {x[i]}, {sWO}, {s.sT1} offen offset:{1024 * i} lds')
            A(f's_mov_b32 m0, {addr + 4096}'); last = A(f'buffer_load_dwordx4 {x[4]}, {sWO}, {s.sT1} offen lds')
            V.put(*x); return last
        def wo_read(addr, k):
            A(f'v_add_u32 {u}, {addr + 96 * k}, {u}')
            for i in range(3):
                for t2 in range(2): A(f'ds_read_b64_tr_b16 {wb[i].sub(2*t2, 2)}, {u} offset:{32 * i + 640 * t2}')
        sLc = S.get(); ml = s.sT2; idx = s.sIdx
        A(f's_movk_i32 {sLc}, 10'); A(f's_movk_i32 {ml}, 5')
        for th, a_, m_ in [(5, 15, None), (10, -10, 3), (13, 17, None), (16, -10, 2), (18, 18, None), (20, 20, 12)]:
            A(f's_cmp_ge_u32 {idx}, {th}'); A(f's_cmovk_i32 {sLc}, {a_}')
            if m_: A(f's_cmovk_i32 {ml}, {m_}')
        A(f's_mul_i32 {ml}, {ml}, {s.sXc}'); A(f's_add_u32 {sLc}, {sLc}, {idx}'); A(f's_add_u32 {sLc}, {sLc}, {ml}')
        s.srd(sWQKV, sW1, sW3, sWS)
        st = s.sT1; lc = s.sT0
        A(f's_cmp_lt_u32 {sLc}, 40'); A(f's_movk_i32 {st}, 3072'); A(f's_cmovk_i32 {st}, 1280'); A(f's_cselect_b32 {s.sT2}, 30, 40')
        A(f's_cmp_lt_u32 {sLc}, 30'); A(f's_cmovk_i32 {st}, 3840'); A(f's_cmovk_i32 {s.sT2}, 0')
        A(f's_sub_u32 {lc}, {sLc}, {s.sT2}'); A(f's_lshl_b32 {lc}, {lc}, 7')
        A(f's_mul_i32 {s.sT2}, {s.sXr}, 160'); A(f's_mul_i32 {s.sT2}, {s.sT2}, {st}'); A(f's_add_u32 {lc}, {lc}, {s.sT2}')
        A(f'v_mul_lo_u32 {vo[0]}, {t}, {st}'); A(f'v_lshl_add_u32 {vo[0]}, {u}, 4, {vo[0]}')
        A(f's_lshl_b32 {s.sT2}, {st}, 3'); A(f's_sub_u32 {s.sT2}, {s.sT2}, 1024')
        for i in range(1, 4): A(f'v_add_u32 {vo[i]}, {s.sT2}, {vo[i-1]}')
        A(f's_lshl_b32 {st}, {st}, 5')
        A(f's_cmp_lt_u32 {sLc}, 40')
        A(f's_cselect_b64 {sD0[0:2]}, {sW1[0:2]}, {sW3[0:2]}'); A(f's_cselect_b32 {sD0[2]}, {sW1[2]}, {sW3[2]}')
        A(f's_cmp_lt_u32 {sLc}, 30')
        A(f's_cselect_b64 {sD0[0:2]}, {sWQKV[0:2]}, {sD0[0:2]}'); A(f's_cselect_b32 {sD0[2]}, {sWQKV[2]}, {sD0[2]}')
        A(f's_mov_b32 {sD0[3]}, 0x20000')
        CSA = s.st[3].addr
        for g in range(5):
            A(f's_mov_b32 m0, {CSA + 4096 * g}')
            if g: A(f's_add_u32 {lc}, {lc}, {st}')
            for i in range(4): cs_last = A(f'buffer_load_dwordx4 {vo[i]}, {sD0}, {lc} offen offset:{1024 * i} lds')
            if g == 1: A(f's_mov_b32 {s.sT3}, {lc}'); lc = s.sT3; sSt = S.get(); A(f's_mov_b32 {sSt}, {st}'); st = sSt; s.stamp(0); after_bar()
        wl = wo_dma(CSA + 20 * KB)
        s.nonce()
        ones = V.get(4); fr = V.get(80); D = [V.get(4) for _ in range(4)]
        for i in range(4): A(f'v_mov_b32 {ones[i]}, 0x3f803f80')
        A(f'v_mov_b32 {t}, 1')
        A.waitvm(cs_last)
        for w in range(4):
            for ks in range(5):
                for t2 in range(2): A(f'ds_read_b64_tr_b16 {fr.sub(20*w + 4*ks + 2*t2, 2)}, {ad} offset:{CSA + 32 * w + (32*ks + 4*t2) * 128}')
        A.waitvm(wl); wo_read(CSA + 20 * KB, 0)
        A(f'ds_write_b32 {vC0}, {t} offset:8')
        for w in range(4):
            for ks in range(5): A(f'v_mfma_f32_16x16x32_bf16 {D[w]}, {ones}, {fr.sub(20*w + 4*ks, 4)}, {"0" if ks == 0 else D[w]}')
        A(f's_lshl_b32 {sLc}, {sLc}, 9'); A(f's_lshl_b32 {s.sT0}, {s.sXr}, 15'); A(f's_add_u32 {sLc}, {sLc}, {s.sT0}'); A(f's_add_u32 {sLc}, {sLc}, {CS}'); A(f'v_lshlrev_b32 {u}, 3, {s.vLane}')
        for w in range(1, 4):
            A(f'v_cmp_le_u32 vcc, {16 * w}, {s.vLane}'); A(f'v_cndmask_b32 {D[0][0]}, {D[0][0]}, {D[w][0]}, vcc')
        A(f'v_mov_b32 {D[0][1]}, {s.sN}')
        A(f'buffer_store_dwordx2 {D[0][0:2]}, {u}, {sWS}, {sLc} offen sc1')
        s.stamp(1)
        A('s_waitcnt vmcnt(0) lgkmcnt(0)'); A('s_branch L_jobj')
        s.rest(sn); A('L_job1:'); A.ctl('restore', 'jfork')
        pc = S.get(2); junk = V.get(16); q = V.get()
        A(f's_getpc_b64 {pc}'); A('L_pc:')
        A(f's_sub_u32 {pc[0]}, {pc[0]}, L_pc-{NAME}_kernel'); A(f's_subb_u32 {pc[1]}, {pc[1]}, 0')
        A(f's_mul_i32 {s.sT2}, {s.sIdx}, 3072'); A(f'v_add_u32 {q}, {s.sT2}, {s.vL16}'); A(f'v_min_u32 {q}, L_codeend-{NAME}_kernel-3072, {q}')
        for i in range(3): A(f'global_load_dwordx4 {junk.sub(4*i, 4)}, {q}, {pc} offset:{1024 * i}')
        A(f'v_mul_u32_u24 {vo[0]}, 1280, {t}'); A(f'v_lshl_add_u32 {vo[0]}, {u}, 4, {vo[0]}')
        for i in range(1, 4): A(f'v_add_u32 {vo[i]}, {8 * 1280 - 1024}, {vo[i-1]}')
        s.srd(sWS, sW4, sW2)
        A('s_waitcnt lgkmcnt(0)')
        s.stamp(0)
        after_bar()
        if o['jd']: s.lds_wait(0, o['jd'], sl=4)
        kb = [S.get() for _ in range(3)]; lcc = [S.get() for _ in range(3)]; sM = S.get(); sBs = S.get(); nt = 'nt' if o['ntr'] else ''
        A('s_cmp_lt_u32 s2, 200')
        A(f's_cselect_b64 {sD0[0:2]}, {sW2[0:2]}, {sW4[0:2]}'); A(f's_cselect_b32 {sD0[2]}, {sW2[2]}, {sW4[2]}'); A(f's_mov_b32 {sD0[3]}, 0x20000')
        A(f's_movk_i32 {sM}, 235'); A(f's_cmovk_i32 {sM}, 95'); A(f's_mov_b32 {sBs}, {W4R}'); A(f's_cmov_b32 {sBs}, {W2R}'); A(f's_cselect_b32 {s.sT0}, 0, 200')
        for r in range(3):
            if r == 0: A(f's_sub_u32 {lcc[r]}, s2, {s.sT0}')
            else: A(f's_add_u32 {lcc[r]}, s2, {256 * r - 200}')
            A(f's_mul_i32 {kb[r]}, {lcc[r]}, 6554'); A(f's_lshr_b32 {kb[r]}, {kb[r]}, 16')
            A(f's_mul_i32 {s.sT2}, {kb[r]}, 10'); A(f's_sub_u32 {lcc[r]}, {lcc[r]}, {s.sT2}')
            A(f's_mul_i32 {s.sT0}, {kb[r]}, 40960'); A(f's_lshl_b32 {s.sT2}, {lcc[r]}, 7'); A(f's_mov_b32 m0, {RPB + 4096 * r}'); A(f's_add_u32 {s.sT0}, {s.sT0}, {s.sT2}')
            for i in range(4): rp_last = A(f'buffer_load_dwordx4 {vo[i]}, {sW4 if r else sD0}, {s.sT0} offen offset:{1024 * i} {nt} lds')
        A(f'v_min_u32 {t}, 30, {s.vLane}'); A(f'v_lshlrev_b32 {t}, 7, {t}')
        A(f's_mul_i32 {s.sT0}, s2, {25 * 128}'); A(f's_add_u32 {s.sT0}, {s.sT0}, {WOP - 6 * 128}'); A(f'v_add_u32 {q}, {s.sT0}, {t}')
        A(f'v_cmp_gt_u32 vcc, 6, {s.vLane}'); A(f's_and_b32 {s.sT0}, s2, 7'); A(f's_lshl_b32 {s.sT0}, {s.sT0}, 7'); A(f's_add_u32 {s.sT0}, {s.sT0}, {FR}'); A(f'v_mov_b32 {vo[0]}, {s.sT0}'); A(f'v_cndmask_b32 {q}, {q}, {vo[0]}, vcc')
        if o['pt']:
            A(f'buffer_load_dword {junk[12]}, {q}, {sWS}, 0 offen sc1')
            A(f's_lshl_b32 {s.sT0}, s2, 8'); A(f's_min_u32 {s.sT0}, {s.sT0}, {0xAF00}'); A(f's_add_u32 {s.sT0}, {s.sT0}, {F1}'); A(f'v_mov_b32 {junk[13]}, 0'); A('s_mov_b64 exec, 3')
            A(f'buffer_atomic_add {junk[13]}, {t}, {sWS}, {s.sT0} offen sc1'); A('s_mov_b64 exec, -1')
        s.nonce()
        fr = V.get(48)
        A(f'v_add_u32 {ad}, {RPB}, {ad}')
        A.waitvm(rp_last)
        for r in range(3):
            for w in range(4):
                for t2 in range(2): A(f'ds_read_b64_tr_b16 {fr.sub(16*r + 4*w + 2*t2, 2)}, {ad} offset:{4096 * r + 32 * w + 512 * t2}')
        for r in range(3):
            A(f's_mul_i32 {kb[r]}, {kb[r]}, 5')
            for w in range(4):
                A(f's_lshl_b32 {s.sT0}, {lcc[r]}, 2'); A(f's_add_u32 {s.sT0}, {s.sT0}, {w}'); A(f's_mul_i32 {s.sT2}, {s.sT0}, 52'); A(f's_lshr_b32 {s.sT2}, {s.sT2}, 8')
                A(f's_mul_i32 {s.sT2}, {s.sT2}, {235 if r else sM}'); A(f's_add_u32 {s.sT0}, {s.sT0}, {s.sT2}'); A(f's_add_u32 {s.sT0}, {s.sT0}, {kb[r]}')
                A(f's_lshl_b32 {s.sT0}, {s.sT0}, 10'); A(f's_add_u32 {s.sT0}, {s.sT0}, {W4R if r else sBs}')
                if r == 2: A(f's_cmp_ge_u32 {kb[r]}, 240'); A(f's_cmov_b32 {s.sT0}, {OOB}')
                last = A(f'buffer_store_dwordx4 {fr.sub(16*r + 4*w, 4)}, {s.vL16}, {sWS}, {s.sT0} offen sc1')
        s.stamp(1)
        wl = wo_dma(RPB)
        A(f's_lshl_b32 {s.sT0}, s2, 2'); A(f's_add_u32 {s.sT0}, {s.sT0}, {FR}'); A(f'v_mov_b32 {t}, 1')
        A.waitvm(last); A(f'buffer_store_dword {s.vN}, {s.vL0}, {sWS}, {s.sT0} offen sc1')
        A.waitvm(wl); wo_read(RPB, 1)
        A(f'ds_write_b32 {vC0}, {t} offset:8')
        A('s_waitcnt vmcnt(0) lgkmcnt(0)')
        s.rest(sn); A('L_jobj:')
        s.stamp(2)
        if s.stop > 2:
            vTok, pa, vk, vz, vp, vkw, vka, q, vfl = [V.get() for _ in range(9)]; wa = [V.get() for _ in range(2)]
            sHp = S.get()
            A(f'v_and_b32 {vTok}, 15, {s.vLane}'); A(f's_lshl1_add_u32 {sHp}, {s.sJ2}, {sK}')
            A(f'v_and_b32 {t}, 7, {s.vLane}'); A(f'v_lshlrev_b32 {t}, 2, {t}'); A(f'v_and_b32 {u}, 8, {s.vLane}'); A(f'v_lshl_add_u32 {t}, {u}, 4, {t}')
            A(f's_lshl_b32 {s.sT0}, {s.sRb2}, 8'); A(f's_add_u32 {s.sT0}, {s.sT0}, {FQ}'); A(f'v_add_u32 {pa}, {s.sT0}, {t}')
            A(f's_lshl_b32 {s.sT0}, {s.sJ2}, 8'); A(f's_add_u32 {s.sT0}, {s.sT0}, {FK}'); A(f'v_lshlrev_b32 {t}, 2, {vTok}')
            A(f'v_and_b32 {u}, 32, {s.vLane}'); A(f'v_lshl_add_u32 {u}, {u}, 2, {t}'); A(f'v_add_u32 {u}, {s.sT0}, {u}'); A(f'v_cmp_gt_u32 vcc, 16, {s.vLane}'); A(f'v_cndmask_b32 {pa}, {u}, {pa}, vcc')
            A(f's_lshr_b32 {s.sT0}, {s.sRb2}, 1'); A(f's_lshl_b32 {s.sT0}, {s.sT0}, 7'); A(f's_add_u32 {s.sT0}, {s.sT0}, {FK}')
            A(f'v_add_u32 {u}, {s.sT0}, {t}'); A(f'v_cmp_gt_u32 vcc, 48, {s.vLane}'); A(f'v_cndmask_b32 {pa}, {u}, {pa}, vcc')
            d40 = vk; E = vz
            A(f'v_min_u32 {q}, 49, {s.vLane}'); A(f's_mul_i32 {s.sT0}, {sK}, 50'); A(f'v_add_u32 {q}, {s.sT0}, {q}')
            A(f'v_mul_u32_u24 {u}, 3277, {q}'); A(f'v_lshrrev_b32 {u}, 16, {u}'); A(f'v_mul_u32_u24 {d40}, 20, {u}'); A(f'v_sub_u32 {d40}, {q}, {d40}')
            A(f'v_lshlrev_b32 {q}, 6, {d40}'); A(f'v_lshl_add_u32 {q}, {u}, 3, {q}'); A(f'v_add_u32 {vkw}, {KVB}, {q}')
            A(f's_and_b32 {s.sT0}, {s.sRb2}, 1'); A(f's_mul_i32 {s.sT0}, {s.sT0}, 20'); A(f'v_add_u32 {d40}, {s.sT0}, {d40}')
            A(f's_add_u32 {s.sT0}, {s.sT0}, 8'); A(f'v_lshl_add_u32 {E}, {u}, 2, {s.sT0}'); A(f'v_lshlrev_b32 {E}, 6, {E}')
            A(f'v_lshrrev_b32 {u}, 4, {d40}'); A(f'v_lshl_add_u32 {E}, {u}, 11, {E}'); A(f'v_and_b32 {d40}, 15, {d40}'); A(f'v_lshl_add_u32 {E}, {d40}, 4, {E}')
            A(f's_lshr_b32 {s.sT0}, {s.sRb2}, 1'); A(f's_mul_i32 {s.sT0}, {s.sT0}, {KVH}'); A(f'v_add_u32 {vk}, {s.sT0}, {E}')
            A(f'v_lshrrev_b32 {t}, 4, {s.vLane}'); A(f'v_lshlrev_b32 {u}, 4, {vTok}')
            A(f's_mul_i32 {s.sT0}, {sHp}, {KVH}'); A(f's_add_u32 {s.sT0}, {s.sT0}, 7168'); A(f'v_mul_u32_u24 {vz}, {KVP}, {t}'); A(f'v_add3_u32 {vz}, {vz}, {u}, {s.sT0}')
            A(f's_mul_i32 {s.sT0}, {s.sRb2}, 81920'); A(f's_mul_i32 {s.sT1}, {sHp}, 1280'); A(f's_add_u32 {s.sT0}, {s.sT0}, {s.sT1}'); A(f's_add_u32 {s.sT0}, {s.sT0}, {PQ}')
            A(f'v_mul_u32_u24 {vp}, 20480, {t}'); A(f'v_add3_u32 {vp}, {vp}, {u}, {s.sT0}')
            A(f'v_lshlrev_b32 {vka}, 6, {vTok}'); A(f'v_lshl_add_u32 {vka}, {t}, 4, {vka}'); A(f'v_add_u32 {vka}, {KVB}, {vka}')
            A(f's_mul_i32 {s.sT0}, {s.sRb2}, 5'); A(f's_mul_i32 {s.sT1}, {s.sJ2}, 102400'); A(f's_mul_i32 {s.sT2}, {sK}, 3072'); A(f's_add_u32 {s.sT1}, {s.sT1}, {s.sT2}'); A(f's_add_u32 {s.sT1}, {s.sT1}, {WOP}')
            for m in range(2):
                A(f'v_add3_u32 {q}, {t}, {s.sT0}, {4 * m}')
                A(f'v_lshrrev_b32 {ad}, 3, {q}'); A(f'v_mul_u32_u24 {wa[m]}, 5120, {ad}')
                A(f'v_bfe_u32 {ad}, {q}, 1, 2'); A(f'v_lshl_add_u32 {wa[m]}, {ad}, 8, {wa[m]}')
                A(f'v_and_b32 {ad}, 1, {q}'); A(f'v_lshl_add_u32 {wa[m]}, {ad}, 3, {wa[m]}'); A(f'v_add3_u32 {wa[m]}, {wa[m]}, {u}, {s.sT1}')
            A(f'v_cmp_gt_u32 vcc, 16, {s.vLane}'); A(f'v_mov_b32 {q}, {OOB}'); A(f'v_cndmask_b32 {wa[1]}, {q}, {wa[1]}, vcc')
            A(f's_lshl_b32 {s.sT0}, {s.sRb2}, 7'); A(f's_lshl2_add_u32 {s.sT0}, {s.sJ2}, {s.sT0}'); A(f's_add_u32 {s.sT0}, {s.sT0}, {FP}')
            A(f's_lshl_b32 {s.sT1}, {s.sJ2}, 7'); A(f's_lshl2_add_u32 {s.sT1}, {s.sRb2}, {s.sT1}'); A(f's_add_u32 {s.sT1}, {s.sT1}, {FW}')
            A(f'v_add_u32 {t}, {s.sT0}, {s.vL0}'); A(f'v_mov_b32 {u}, {s.sT1}'); A(f'v_cmp_eq_u32 vcc, 1, {s.vLane}'); A(f'v_cndmask_b32 {vfl}, {t}, {u}, vcc')
            A(f'v_min_u32 {t}, 59, {s.vLane}'); A(f'v_mul_u32_u24 {u}, 21846, {t}'); A(f'v_lshrrev_b32 {u}, 16, {u}'); A(f'v_mul_u32_u24 {u}, 40, {u}'); A(f'v_lshl_add_u32 {t}, {t}, 3, {u}'); A(f'v_add_u32 {ad}, {KVB + 40}, {t}')
            kq = [V.get(4) for _ in range(16)]; zq = [V.get(4) for _ in range(4)]; pq = [V.get(4) for _ in range(5)]; sKo = S.get(); z2 = V.get(2)
            A(f'v_mov_b32 {z2[0]}, 0'); A(f'v_mov_b32 {z2[1]}, 0')
            s.prog_wait(kq[0], o['jp'], sl=8)
            A(f'ds_write_b64 {ad}, {z2}')
            Lj = s.lab(); Lk = s.lab()
            A(f's_cmp_eq_u32 {sK}, 0'); A(f's_cbranch_scc0 {Lj}')
            s.poll([s.polltxt(q, pa, 0)], [q], sl=o['jsl'])
            A(f'v_mov_b32 {t}, 2'); A(f'ds_write_b32 {vC0}, {t} offset:8'); A('s_waitcnt lgkmcnt(0)'); A(f's_branch {Lk}')
            A(f'{Lj}:'); s.lds_wait(8, 2, sl=2); A(f'{Lk}:')
            s.stamp(3)
            for i in range(0 if 'nokv' in s.dbg else 16):
                A(f's_mov_b32 {sKo}, {KV + KVP * i}'); A(f'buffer_load_dwordx4 {kq[i]}, {vk}, {sWS}, {sKo} offen sc1')
            for i in range(0 if 'noz' in s.dbg else 4):
                A(f's_mov_b32 {sKo}, {KV + 4 * KVP * i}'); A(f'buffer_load_dwordx4 {zq[i]}, {vz}, {sWS}, {sKo} offen sc1')
            for i in range(0 if 'nopq' in s.dbg else 5): A(f'buffer_load_dwordx4 {pq[i]}, {vp}, {sWS}, 0 offen offset:{256 * i} sc1')
            s.stamp(6)
            for i in range(1, 16):
                for e in range(4): A(f'v_add_f32 {kq[0][e]}, {kq[0][e]}, {kq[i][e]}')
            A(f'v_cvt_pk_bf16_f32 {z2[0]}, {kq[0][0]}, {kq[0][1]}'); A(f'v_cvt_pk_bf16_f32 {z2[1]}, {kq[0][2]}, {kq[0][3]}')
            A(f'v_mov_b32 {t}, 1')
            A(f'ds_write_b64 {vkw}, {z2}'); A(f'ds_write_b32 {vC0}, {t} offset:56')
            V.put(*kq); s.stamp(7)
            for i in range(1, 4):
                for e in range(3): A(f'v_add_f32 {zq[0][e]}, {zq[0][e]}, {zq[i][e]}')
            for swp in ('16', '32'):
                for e in range(3): A(f'v_mov_b32 {zq[1][e]}, {zq[0][e]}')
                for e in range(3): A(f'v_permlane{swp}_swap_b32 {zq[0][e]}, {zq[1][e]}')
                for e in range(3): A(f'v_add_f32 {zq[0][e]}, {zq[0][e]}, {zq[1][e]}')
            L4 = s.lab(); L5 = s.lab()
            A(f'{L4}:'); A(f'ds_read_b64 {s.vF}, {s.vCtl} offset:56'); s.tick_spin(L5); A(f'v_min_u32 {s.vF[0]}, {s.vF[0]}, {s.vF[1]}'); A(f'v_cmp_eq_u32 vcc, 0, {s.vF[0]}'); A(f's_cbranch_vccnz {L4}'); A(f'{L5}:')
            s.stamp(8)
            pf = V.get(40); ka = [V.get(4) for _ in range(2)]; D = [[V.get(4) for _ in range(2)] for _ in range(3)]; den = [V.get() for _ in range(2)]
            for m in range(2): A(f'ds_read_b128 {ka[m]}, {vka} offset:{1024 * m}')
            for i in range(20): A(f'v_lshlrev_b32 {pf[2*i]}, 16, {pq[i // 4][i % 4]}'); A(f'v_and_b32 {pf[2*i+1]}, 0xffff0000, {pq[i // 4][i % 4]}')
            for n in range(3):
                for m in range(2): A(f'v_mfma_f32_16x16x32_bf16 {D[n][m]}, {ka[m]}, {wb[n]}, 0')
            A(f's_lshl_b32 {sKo}, {sK}, 29'); s.stamp(9)
            for hh in range(2): A(f'v_mov_b32 {den[hh]}, {hexf(1e-6)}')
            for d in range(20):
                for hh in range(2):
                    f = 20 * hh + d
                    A(f'v_fmac_f32_dpp {den[hh]}, {zq[0][f >> 4]}, {pf[f]} row_newbcast:{f & 15} row_mask:0xf bank_mask:0xf')
                if d == 6:
                    for n in range(3):
                        for m in range(2):
                            dd = D[n][m]
                            A(f'v_cvt_pk_bf16_f32 {dd[0]}, {dd[0]}, {dd[1]}'); A(f'v_cvt_pk_bf16_f32 {dd[1]}, {dd[2]}, {dd[3]}')
                            A(f'buffer_store_dwordx2 {dd[0:2]}, {wa[m]}, {sWS}, {sKo if n == 2 else 0} offen offset:{1024 * n} sc1')
            s.stamp(10)
            for hh in range(2): A(f'v_rcp_f32 {den[hh]}, {den[hh]}')
            for i in range(20):
                for e in range(2): A(f'v_mul_f32 {pf[2*i+e]}, {den[i // 10]}, {pf[2*i+e]}')
                A(f'v_cvt_pk_bf16_f32 {pq[i // 4][i % 4]}, {pf[2*i]}, {pf[2*i+1]}')
                if i % 4 == 3: last = A(f'buffer_store_dwordx4 {pq[i // 4]}, {vp}, {sWS}, 0 offen offset:{256 * (i // 4)} sc1')
            s.stamp(4)
            A.waitvm(last); A(f'v_mov_b32 {t}, 2'); A(f'ds_write_b32 {vC0}, {t} offset:56')
            A(f's_cmp_eq_u32 {sK}, 0'); A('s_cbranch_scc0 L_fin')
            s.lds_wait(60, 2, sl=1)
            A(s.flagtxt(0, vfl))
            s.stamp(5)
        A('s_branch L_fin')

    def ld_begin(s):
        s.L_n = 0; s.L_out = []; s.L_seen = 0
    def ld_pub(s, p): s.A(f'v_mov_b32 {s.vS}, {p.seq}'); s.A(f'ds_max_u32 {s.vC0}, {s.vS}')
    def ld_window(s, keep):
        A = s.A
        if s.L_n - s.L_low > keep:
            A(f's_waitcnt vmcnt({keep})'); s.L_low = s.L_n - keep
        pub = None
        while s.L_out and s.L_out[0][1] <= s.L_low: pub = s.L_out.pop(0)[0]
        if pub: s.ld_pub(pub)
    def ld_drain_code(s):
        for p, idx in s.L_out:
            s.A(f's_waitcnt vmcnt({min(63, s.L_n - idx)})'); s.ld_pub(p)
    def ld_space(s, p):
        A = s.A
        need = max([p.minrel] + [q.rel for q in s.P[:p.seq - 1] if ovl(p, q)])
        if need <= s.L_seen: return
        s.L_seen = need
        Lr = s.lab('S'); Lb = s.lab('B'); L2 = s.lab('S'); q = s.vQ
        def rd(): A(f'ds_read_b128 {q}, {s.vCtl} offset:16'); A('s_waitcnt lgkmcnt(0)'); A(f'v_min3_u32 {q[0]}, {q[0]}, {q[1]}, {q[2]}'); A(f'v_min_u32 {q[0]}, {q[0]}, {q[3]}'); A(f'v_cmp_gt_u32 vcc, {need}, {q[0]}')
        rd(); A(f's_cbranch_vccnz {Lr}'); A(f'{Lb}:')
        def slow():
            A(f'{Lr}:')
            for pp, idx in s.L_out:
                A(f's_waitcnt vmcnt({min(63, s.L_n - idx)})'); s.ld_pub(pp); rd(); A(f's_cbranch_vccz {Lb}')
            A(f'{L2}:'); s.tick_spin(Lb, s.o['slp']); rd(); A(f's_cbranch_vccnz {L2}'); A(f's_branch {Lb}')
        s.outline(slow)
    def ld_panel(s, p, groups, W, sc=''):
        A = s.A
        if not groups:
            s.L_out.append((p, s.L_n)); return
        s.ld_space(p)
        for (lo, pre, srd, so, lst) in groups:
            s.ld_window(max(0, W - len(lst)))
            A(f's_mov_b32 m0, {p.addr + lo}')
            if pre: A(pre)
            for vo, imm in lst:
                A(f'buffer_load_dwordx4 {vo}, {srd}, {so} offen offset:{imm} {sc} lds'); s.L_n += 1
        s.L_out.append((p, s.L_n))
    def g5(s, lo, srd, base, add, regs):
        so = s.sT0 if add else base
        return [(lo, f's_add_u32 {so}, {base}, {add}' if add else None, srd, so, [(regs[i], 1024 * i) for i in range(4)]), (lo + 4096, None, srd, so, [(regs[4], 0)])]
    def div20(s, i, q, c20):
        A = s.A; t = s.V.get()
        A(f'v_add_u32 {t}, {64*i}, {s.vLane}')
        A(f'v_mul_u32_u24 {q}, 3277, {t}'); A(f'v_lshrrev_b32 {q}, 16, {q}')
        A(f'v_mul_u32_u24 {c20}, 20, {q}'); A(f'v_sub_u32 {c20}, {t}, {c20}')
        A(f'v_lshrrev_b32 {t}, 2, {q}'); A(f'v_and_b32 {t}, 2, {t}'); A(f'v_xor_b32 {c20}, {c20}, {t}')
        A(f'v_cmp_le_u32 vcc, 10, {c20}')
        s.V.put(t)
    def voff20(s, stride, hi, add):
        A = s.A; V = s.V; out = [V.get() for _ in range(5)]; q = V.get(); c = V.get(); t = V.get()
        for i in range(5):
            s.div20(i, q, c)
            A(f'v_mov_b32 {t}, {hi}'); A(f'v_mul_u32_u24 {q}, {stride}, {q}'); A(f'v_cndmask_b32 {t}, 0, {t}, vcc')
            A(f'v_lshlrev_b32 {c}, 4, {c}'); A(f'v_add3_u32 {out[i]}, {q}, {c}, {t}')
            k = (add - (1024 * i if i < 4 else 0)) & 0xffffffff
            if k: A(f'v_add_u32 {out[i]}, {k}, {out[i]}')
        V.put(q, c, t); return out
    def voff12(s, stride):
        A = s.A; V = s.V; vo = [V.get() for _ in range(3)]; t = V.get(); c = V.get()
        for i in range(3):
            q = vo[i]
            A(f'v_add_u32 {t}, {64*i}, {s.vLane}'); A(f'v_mul_u32_u24 {q}, 5462, {t}'); A(f'v_lshrrev_b32 {q}, 16, {q}')
            A(f'v_mul_u32_u24 {c}, 12, {q}'); A(f'v_sub_u32 {c}, {t}, {c}'); A(f'v_mul_u32_u24 {q}, {stride}, {q}'); A(f'v_lshl_add_u32 {q}, {c}, 4, {q}')
            if i: A(f'v_subrev_u32 {q}, {1024*i}, {q}')
        V.put(t, c); return vo
    def loader(s, me):
        A = s.A; S = s.S; V = s.V; o = s.o
        A(f'L_load{me}:'); A.ctl('restore', 'entry')
        if o['lprio']: A(f's_setprio {o["lprio"]}')
        s.vS = V.get(); s.vQ = V.get(4); s.vC0 = V.get()
        sRot, sOA, sOB, sBB, sOC, sBC = [S.get() for _ in range(6)]
        A(f's_lshl3_add_u32 {s.sT0}, {s.sXc}, {s.sCl}'); A(f's_add_u32 {s.sT0}, {s.sT0}, {s.sRb}')
        nph = o['nph']
        if nph == 10:
            A(f's_mul_i32 {s.sT1}, {s.sT0}, 26'); A(f's_lshr_b32 {s.sT1}, {s.sT1}, 8'); A(f's_mul_i32 {s.sT1}, {s.sT1}, 10'); A(f's_sub_u32 {sRot}, {s.sT0}, {s.sT1}')
        else:
            A(f's_and_b32 {s.sT0}, {s.sT0}, {nph - 1}'); A(f's_mul_i32 {s.sT0}, {s.sT0}, {20 // nph}'); A(f's_lshr_b32 {sRot}, {s.sT0}, 1')
        A(f's_lshl_b32 {sOA}, {sRot}, 7')
        t = V.get(); u = V.get()
        late = {}
        vR = V.get(4)
        def late_setup():
            s.srd(*([sWS, sW3] + ([sX] if me else [])))
            A(f's_load_dword {s.sN}, {sWS[0:2]}, 0')
            late['b3'] = s.voff12(3072); late['xt'] = s.voff10()
            s.nonce()
        frtxt = f'buffer_load_dwordx4 {vR}, {s.vL16}, {sWS}, {s.sT3} offen sc1'
        def stages(gs, rot, W):
            s.ld_begin(); s.L_low = 0
            hold = V.get(4)
            s.defer(late_setup); chunks = s.q3; s.q3 = []
            for st in range(10):
                if st == 3: s.lds_wait(8, 1, sl=1)
                if st == 9: A(f's_mov_b32 {s.sT3}, {FR}'); A(frtxt); s.L_n += 1
                if st == 0:
                    s.ld_panel(s.st[0], gs[:2], 63, 'nt' if o['nt1'] else ''); s.L_out.pop()
                    s.stamp(0); A('s_barrier')
                    s.mkL0(); A(f'v_lshrrev_b32 {s.vC0}, 10, {s.vL0}'); A(f'v_add_u32 {s.vC0}, {CTRL + 4 * me}, {s.vC0}')
                    s.ld_panel(s.st[0], gs[2:], W, 'nt' if o['nt1'] else '')
                else: s.ld_panel(s.st[st], gs, W, 'nt' if (o['nt1'] > st) else '')
                if st < 9: rot()
                if st >= 1:
                    k = 0
                    while chunks and (k < 20 or st == 8 or 'v_cmp' in A.ins[-1].text or 'v_cmp' in A.ins[-2].text or 'v_cmp' in A.ins[-3].text): chunks.pop(0)(); k += 1
                s.stamp(1 + st)
            assert not chunks
            return (s.L_n, s.L_low, [(p.name, i) for p, i in s.L_out], s.L_seen, str(late))
        if me == 0:
            vXA = [V.get() for _ in range(4)]
            A(f's_mul_i32 {s.sT0}, {s.sRb}, 163840')
            A(f'v_lshrrev_b32 {u}, 3, {s.vLane}'); A(f'v_mul_u32_u24 {u}, 1280, {u}'); A(f'v_add_u32 {t}, {s.sT0}, {u}')
            A(f'v_lshrrev_b32 {u}, 4, {s.vLane}'); A(f'v_xor_b32 {u}, {u}, {s.vLane}'); A(f'v_and_b32 {u}, 7, {u}'); A(f'v_lshlrev_b32 {u}, 4, {u}')
            A(f'v_add_u32 {vXA[0]}, {t}, {u}'); A(f'v_xor_b32 {u}, 64, {u}'); A(f'v_add_u32 {u}, 9216, {u}'); A(f'v_add_u32 {vXA[1]}, {t}, {u}')
            A(f'v_add_u32 {vXA[2]}, 18432, {vXA[0]}'); A(f'v_add_u32 {vXA[3]}, 18432, {vXA[1]}')
            s.srd(sX)
            gA = [(4096 * g, f's_add_u32 {s.sT0}, {sOA}, {40960 * g}', sX, s.sT0, [(vXA[i], 1024 * i) for i in range(4)]) for g in range(4)]
            def rot(): A(f's_add_u32 {sOA}, {sOA}, 128'); A(f's_cmpk_eq_u32 {sOA}, 1280'); A(f's_cmovk_i32 {sOA}, 0')
            stages(gA, rot, o['W1x'])
        else:
            s.srd(sWQKV, sW1)
            A(f's_cmp_lt_u32 {s.sCl}, 4'); A('s_cbranch_scc0 L_load23')
            A.ctl('save', 'ldfork'); sn = s.snap()
            for var in ('T1', 'T23'):
                s.rest(sn)
                pad = V.get(12)
                sub = Pool('v', pad.i, pad.i + 12); Vm = s.V; s.V = sub
                if var == 'T1':
                    A(f's_lshl2_add_u32 {sBB}, {s.sXc}, {s.sCl}'); A(f's_mul_i32 {sBB}, {sBB}, 160'); A(f's_mul_i32 {sOB}, {sRot}, {64 * 3840}'); A(f's_add_u32 {sOB}, {sOB}, {sBB}')
                    vB = s.voff20(3840, 1120, 1280)
                    gB = sum([s.g5(16 * KB + 5120 * g, sWQKV, sOB, 16 * 3840 * g, vB) for g in range(4)], [])
                    def rot(): A(f's_add_u32 {sOA}, {sOA}, 128'); A(f's_add_u32 {sOB}, {sOB}, {64 * 3840}'); A(f's_cmpk_eq_u32 {sOA}, 1280'); A(f's_cmov_b32 {sOB}, {sBB}'); A(f's_cmovk_i32 {sOA}, 0')
                else:
                    A('L_load23:'); A.ctl('restore', 'ldfork')
                    s96, s64, g96, g64 = [S.get() for _ in range(4)]
                    A(f's_lshl1_add_u32 {s.sT0}, {s.sXc}, {s.sCl}'); A(f's_cmp_lt_u32 {s.sCl}, 6'); A(f's_cselect_b32 {s.sT1}, 4, 6')
                    A(f's_movk_i32 {s96}, 3840'); A(f's_cmovk_i32 {s96}, 1280'); A(f's_movk_i32 {s64}, 1280'); A(f's_cmovk_i32 {s64}, 3840')
                    A(f's_sub_u32 {s.sT0}, {s.sT0}, {s.sT1}')
                    A(f's_mul_i32 {sBB}, {s.sT0}, 192'); A(f's_lshl_b32 {sBC}, {s.sT0}, 7'); A(f's_add_u32 {sBC}, {sBC}, 768')
                    vB = s.voff12(s96); vC = [sub.get() for _ in range(4)]
                    A(f'v_lshrrev_b32 {t}, 3, {s.vLane}'); A(f'v_mul_u32_u24 {t}, {s64}, {t}')
                    A(f'v_lshrrev_b32 {u}, 2, {s.vLane}'); A(f'v_and_b32 {u}, 4, {u}'); A(f'v_xor_b32 {u}, {u}, {s.vLane}'); A(f'v_and_b32 {u}, 7, {u}'); A(f'v_lshl_add_u32 {vC[0]}, {u}, 4, {t}')
                    A(f's_lshl_b32 {s.sT1}, {s64}, 3'); A(f's_sub_u32 {s.sT1}, {s.sT1}, 1024')
                    for i in range(1, 4): A(f'v_add_u32 {vC[i]}, {s.sT1}, {vC[i-1]}')
                    A(f's_lshl_b32 {g96}, {s96}, 4'); A(f's_lshl_b32 {g64}, {s64}, 5')
                    A(f's_mul_i32 {sOB}, {sRot}, {g96}'); A(f's_lshl2_add_u32 {sOB}, {sOB}, {sBB}'); A(f's_mul_i32 {sOC}, {sRot}, {g64}'); A(f's_lshl1_add_u32 {sOC}, {sOC}, {sBC}')
                    A(f's_cmp_lt_u32 {s.sCl}, 6')
                    A(f's_cselect_b64 {sD0[0:2]}, {sW1[0:2]}, {sWQKV[0:2]}'); A(f's_cselect_b32 {sD0[2]}, {sW1[2]}, {sWQKV[2]}'); A(f's_mov_b32 {sD0[3]}, 0x20000')
                    A(f's_cselect_b64 {sD1[0:2]}, {sWQKV[0:2]}, {sW1[0:2]}'); A(f's_cselect_b32 {sD1[2]}, {sWQKV[2]}, {sW1[2]}'); A(f's_mov_b32 {sD1[3]}, 0x20000')
                    gB = [(16 * KB + 3072 * g, f's_add_u32 {sOB}, {sOB}, {g96}' if g else None, sD0, sOB, [(vB[i], 1024 * i) for i in range(3)]) for g in range(4)]
                    gB += [(28 * KB + 4096 * g, f's_add_u32 {sOC}, {sOC}, {g64}' if g else None, sD1, sOC, [(vC[i], 1024 * i) for i in range(4)]) for g in range(2)]
                    def rot():
                        A(f's_add_u32 {sOA}, {sOA}, 128'); A(f's_add_u32 {sOB}, {sOB}, {g96}'); A(f's_add_u32 {sOC}, {sOC}, {g64}')
                        A(f's_cmpk_eq_u32 {sOA}, 1280'); A(f's_cmov_b32 {sOB}, {sBB}'); A(f's_cmov_b32 {sOC}, {sBC}'); A(f's_cmovk_i32 {sOA}, 0')
                s.V = Vm
                state = stages(gB, rot, o['W1w'])
                if var == 'T1': st1 = state; A('s_branch L_loadj')
                else: assert state == st1, (state, st1)
            A('L_loadj:')
        sQ, sB = S.get(), S.get()
        A(f's_mul_i32 {s.sT1}, {s.sJ2}, 160'); A(f's_mul_i32 {sB}, {s.sRb2}, 81920'); A(f's_add_u32 {sB}, {sB}, {s.sT1}')
        s.lds_wait(12, 1, sl=1)
        s.ld_panel(s.pxt, s.g5(5120 * me, sX, sB, 40960 * me, late['xt']), o['W1'])
        LIN = ((WOP, 102400, 20480, 20480), (W4R, 245760, 61440, 20480), (W2R, 102400, 25600, 25600))
        sL = [S.get() for _ in LIN]; vL = [V.get(), V.get()]; vL.append(vL[0])
        A(f's_and_b32 {s.sT1}, {s.sRb2}, 3')
        for k, (base, span, mul, sz) in enumerate(LIN):
            if k < 2: A(f's_mul_i32 {s.sT2}, {s.sJ2}, {span}'); A(f'v_add_u32 {vL[k]}, {s.sT2}, {s.vL16}')
            A(f's_mul_i32 {sL[k]}, {s.sT1}, {mul}'); A(f's_add_u32 {sL[k]}, {sL[k]}, {base}')
        def lin(p, k, W):
            base, span, _, sz = LIN[k]; n = sz // 1024; lo, hi = (0, (n + 1) // 2) if me == 0 else ((n + 1) // 2, n)
            gs = [(1024 * a, f's_add_u32 {s.sT0}, {sL[k]}, {1024 * a}', sWS, s.sT0, [(vL[k], 1024 * i) for i in range(min(4, hi - a))]) for a in range(lo, hi, 4)]
            s.ld_panel(p, gs, W, 'sc1')
            s.wrapadd(sL[k], sz, base + span, base)
        s.checked([frtxt], [vR[i] for i in range(4)], pre=s.ld_drain_code)
        for p in s.b2: lin(p, 2, o['W1'])
        s.stamp(11)
        nt2 = 'nt' if o['nt2'] else ''
        if s.stop > 1:
            A(f's_and_b32 {sB}, {s.sIdx}, 15'); A(f's_mul_i32 {sB}, {sB}, 192'); A(f's_bfe_u32 {s.sT0}, {s.sRb2}, 0x10001'); A(f's_mul_i32 {sQ}, {s.sT0}, {5 * 64 * 3072}'); A(f's_add_u32 {sQ}, {sQ}, {sB}')
            for i, p in enumerate(s.b3):
                s.ld_panel(p, [(3072 * g, f's_add_u32 {s.sT0}, {sQ}, {16 * 3072 * g}', sW3, s.sT0, [(late['b3'][k], 1024 * k) for k in range(3)]) for g in (2 * me, 2 * me + 1)], o['W2'], nt2)
                s.wrapadd(sQ, 64 * 3072, 640 * 3072, sB)
            s.stamp(12)
        if s.stop > 4:
            lin(s.b4b[0], 1, o['W2'])
            s.ld_space(s.b4b[1])
            lin(s.b4b[1], 1, o['W3'])
            s.stamp(13)
            s.ld_space(s.b4a[0])
            s.ld_drain_code(); s.L_out = []; s.L_low = s.L_n
            if me == 0:
                A(f's_lshl_b32 {s.sT3}, {s.sJ2}, 7'); A(f's_add_u32 {s.sT3}, {s.sT3}, {FW}'); A(f'v_lshlrev_b32 {t}, 2, {s.vLane}')
                s.poll([s.polltxt(vR[0], t, s.sT3)], [vR[0]], sl=o['jsl'], mask='0xffffffff')
                A(f'v_mov_b32 {s.vS}, 1'); A(f'ds_write_b32 {s.vC0}, {s.vS} offset:32')
            else: s.lds_wait(32, 1, sl=2)
            for i, p in enumerate(s.b4a): lin(p, 0, o['W3'] if i < 3 else o['W4'])
            s.stamp(14)
            for i, p in enumerate(s.b4b[2:]): lin(p, 1, o['W4'] if i < 5 else o['W5'])
        s.ld_drain_code()
        s.stamp(15)
        A('s_waitcnt vmcnt(0) lgkmcnt(0)')
        A('s_branch L_fin')

    def cpro(s):
        A = s.A; S = s.S; V = s.V
        s.vP, s.vPa, s.vTok, s.vTok4 = [V.get() for _ in range(4)]
        s.sFlag, s.sJ160, s.sCb3, s.sTw, s.sTw3, s.sTT = [S.get() for _ in range(6)]
        s.vA2 = [V.get() for _ in range(4)]; s.rW3 = [V.get() for _ in range(3)]
        s.vL1, s.paF1, s.vCsA, s.pF = [V.get() for _ in range(4)]
        s.gr2 = V.get(4)
        x = V.get(10, 2); t = V.get(); u = V.get(); q = V.get(); sRow0 = S.get()
        if s.o['prio']: A(f's_setprio {s.o["prio"]}')
        z2 = V.get(2)
        A(f'v_mov_b32 {z2[0]}, 0'); A(f'v_mov_b32 {z2[1]}, 0'); A(f'v_lshlrev_b32 {t}, 3, v0'); A(f'v_add_u32 {t}, {KVB}, {t}'); A(f'ds_write_b64 {t}, {z2}')
        V.put(z2)
        A(f's_lshl1_add_u32 {sRow0}, {s.sXr}, {s.sXc}'); A(f's_lshl_b32 {sRow0}, {sRow0}, 5'); A(f's_add_u32 {sRow0}, {sRow0}, {s.sIdx}')
        A(f'v_lshrrev_b32 {t}, 5, v0'); A(f'v_mul_u32_u24 {t}, 1280, {t}'); A(f'v_and_b32 {u}, 31, v0'); A(f'v_lshl_add_u32 {t}, {u}, 3, {t}')
        A(f's_mul_i32 {s.sT0}, {sRow0}, 10240')
        s.srd(sX, sWS, sOUT)
        for i in range(5): A(f'buffer_load_dwordx2 {x.sub(2*i, 2)}, {t}, {sX}, {s.sT0} offen offset:{256*i} {"nt" if s.o["nt0"] else ""}')
        A(f's_lshl_b32 {s.sT0}, {sRow0}, 7'); A(f's_add_u32 {s.sT0}, {s.sT0}, {RS}'); A(f'buffer_load_dword {s.pF}, off, {sWS}, {s.sT0} sc1')
        s.stamp(0)
        A(f's_load_dword {s.sN}, {sWS[0:2]}, 0')
        A('s_barrier')
        s.mkL0()
        A(f'v_and_b32 {s.vTok}, 15, {s.vLane}'); A(f'v_lshlrev_b32 {s.vTok4}, 2, {s.vTok}')
        A(f's_lshl_b32 {s.sT0}, {s.sW}, 2'); A(f's_add_u32 {s.sT0}, {s.sT0}, {CTRL + 16}'); A(f'v_lshrrev_b32 {s.vPa}, 10, {s.vL0}'); A(f'v_add_u32 {s.vPa}, {s.sT0}, {s.vPa}')
        A(f's_mul_i32 {s.sJ160}, {s.sJ2}, 160'); A(f's_and_b32 {s.sCb3}, {s.sIdx}, 15')
        A(f's_lshr_b32 {s.sT0}, {s.sW}, 1'); A(f's_lshl1_add_u32 {s.sTw}, {s.sRb2}, {s.sT0}'); A(f's_lshl2_add_u32 {s.sTT}, {s.sRb2}, {s.sW}')
        A(f's_lshr_b32 {s.sTw3}, {s.sRb2}, 1'); A(f's_lshl2_add_u32 {s.sTw3}, {s.sTw3}, {s.sW}')
        A(f'v_add_u32 {s.vL1}, 65536, {s.vL16}')
        A(f's_lshl_b32 {s.sT2}, {s.sTT}, 4'); A(f'v_and_b32 {q}, 48, {s.vLane}'); A(f'v_lshlrev_b32 {q}, 4, {q}')
        for i in range(4):
            A(f's_add_u32 {s.sT0}, {s.sRb2}, {i}'); A(f's_and_b32 {s.sT0}, {s.sT0}, 3')
            A(f's_lshl_b32 {s.sT1}, {s.sT0}, 2'); A(f's_lshr_b32 {s.sT1}, 0x4031, {s.sT1}'); A(f's_and_b32 {s.sT1}, {s.sT1}, 15'); A(f's_add_u32 {s.sT1}, {s.sT1}, {s.sT2}'); A(f's_sub_u32 {s.sT1}, {s.sT1}, 2')
            A(f's_mul_i32 {s.sT0}, {s.sT0}, 5120')
            A(f'v_add_u32 {t}, {s.sT1}, {s.vTok}'); A(f'v_cmp_gt_u32 vcc, 0x800, {t}'); A(f'v_lshrrev_b32 {u}, 4, {t}'); A(f'v_mul_u32_u24 {u}, 20480, {u}')
            A(f'v_and_b32 {t}, 15, {t}'); A(f'v_lshl_add_u32 {u}, {t}, 4, {u}'); A(f'v_add3_u32 {u}, {u}, {q}, {s.sT0}'); A(f'v_mov_b32 {t}, {OOB}'); A(f'v_cndmask_b32 {s.vA2[i]}, {t}, {u}, vcc')
        s.fw3, _ = s.mk_nt_read(3, s.rW3)
        A(f's_and_b32 {s.sT0}, {s.sW}, 1'); A(f's_lshl1_add_u32 {s.sT0}, {s.sT0}, {s.sTw}'); A(f's_add_u32 {s.sT0}, {s.sT0}, 63'); A(f's_and_b32 {s.sT0}, {s.sT0}, 63')
        A(f'v_and_b32 {t}, 8, {s.vLane}'); A(f'v_cmp_eq_u32 vcc, 0, {t}'); A(f'v_mov_b32 {t}, {s.sT0}'); A(f'v_mov_b32 {u}, {s.sTw}'); A(f'v_cndmask_b32 {q}, {t}, {u}, vcc')
        A(f'v_lshlrev_b32 {q}, 7, {q}'); A(f'v_and_b32 {t}, 7, {s.vLane}'); A(f'v_lshl_add_u32 {q}, {t}, 2, {q}'); A(f'v_add_u32 {s.paF1}, {F1}, {q}')
        A(f'v_and_b32 {t}, 31, {s.vLane}'); A(f'v_lshlrev_b32 {t}, 3, {t}'); A(f'v_lshrrev_b32 {u}, 5, {s.vLane}'); A(f'v_lshl_add_u32 {s.vCsA}, {u}, 16, {t}')
        s.nonce()
        s.p0 = (x, sRow0); V.put(t, u, q)
        A(f's_cmp_lt_u32 {s.sCl}, 4'); A('s_cbranch_scc1 L_T1')
        A(f's_cmp_lt_u32 {s.sCl}, 6'); A('s_cbranch_scc1 L_TA')
        A.ctl('save', 'fork')
    def stats(s):
        A = s.A; V = s.V; x, sRow0 = s.p0
        g = V.get(4); sm = g[1]; sq = V.get(); u = V.get(); t = V.get(); one = V.get()
        A(f'v_mov_b32 {one}, 0x3f803f80'); A(f'v_mov_b32 {sm}, 0'); A(f'v_mov_b32 {sq}, 0')
        for i in range(10):
            A(f'v_dot2c_f32_bf16 {sm}, {x[i]}, {one}'); A(f'v_dot2c_f32_bf16 {sq}, {x[i]}, {x[i]}')
        for m in ['quad_perm:[1,0,3,2]', 'quad_perm:[2,3,0,1]', 'row_half_mirror', 'row_mirror']:
            A(f'v_add_f32_dpp {sm}, {sm}, {sm} {m} row_mask:0xf bank_mask:0xf'); A(f'v_add_f32_dpp {sq}, {sq}, {sq} {m} row_mask:0xf bank_mask:0xf')
        A(f'v_mov_b32 {t}, {sm}'); A(f'v_mov_b32 {u}, {sq}'); A(f'v_mov_b32 {one}, {OOB}')
        A(f'v_permlane16_swap_b32 {sm}, {t}'); A(f'v_permlane16_swap_b32 {sq}, {u}')
        A(f'v_add_f32 {sm}, {sm}, {t}'); A(f'v_add_f32 {sq}, {sq}, {u}')
        A(f'v_mul_f32 {sm}, {hexf(1.0/640)}, {sm}'); A(f'v_mul_f32 {sq}, {hexf(1.0/640)}, {sq}')
        A(f'v_fma_f32 {sq}, -{sm}, {sm}, {sq}'); A(f'v_max_f32 {sq}, 0, {sq}')
        s.rstd(g[0], sq); A(f'v_rcp_f32 {g[0]}, {g[0]}')
        A(f'v_and_b32 {t}, 31, {s.vLane}'); A(f'v_cmp_eq_u32 vcc, 0, {t}')
        A(f'v_mul_f32 {sq}, {sq}, {g[0]}'); A(f'v_mul_f32 {sq}, {sq}, {g[0]}')
        s.rstd(g[2], sq); A(f'v_rcp_f32 {g[2]}, {g[2]}')
        A(f'v_mov_b32 {g[3]}, {s.sN}')
        A(f'v_lshrrev_b32 {t}, 1, v0'); A(f'v_cndmask_b32 {t}, {one}, {t}, vcc')
        A(f's_lshl_b32 {s.sT0}, {sRow0}, 7'); A(f's_add_u32 {s.sT0}, {s.sT0}, {RS}')
        A(f'buffer_store_dwordx4 {g}, {t}, {sWS}, {s.sT0} offen sc1')
        A('s_nop 1')
        V.put(g, sq, u, t, one, x)
    def p2_loads(s):
        A = s.A; g = s.V.get()
        A(f's_lshl_b32 {s.sT0}, {s.sTT}, 8'); A(f's_add_u32 {s.sT0}, {s.sT0}, {RS}'); A(f'v_lshl_add_u32 {g}, {s.vTok}, 4, {s.sT0}')
        return f'buffer_load_dwordx4 {s.gr2}, {g}, {sWS}, 0 offen sc1', g

    def flat(s, mf, rd, lag, cap, group=None, relmap=None, hooks=None, n3=1, coarse=None, after_first=None, per=None):
        first = {}; lastu = {}
        for i, (_, ids) in enumerate(mf):
            for x in ids: first.setdefault(x, i); lastu[x] = i
        Rd = []; prev = {}
        for x in sorted(rd, key=lambda x: first[x]):
            dest, p, fns = rd[x]; key = str(dest)
            free = lastu[prev[key]] if key in prev else -1
            assert free < first[x]
            prev[key] = x
            for f in fns: Rd.append([first[x], free, p, f, None])
        known = s.known; lastidx = {}
        for k, r in enumerate(Rd):
            lastidx[r[2]] = k
            g = group(r[2]) if group else r[2]
            if r[2].seq > known:
                known = g.seq; r[4] = g
                if k >= 5: Rd[k - 5].append('pre')
        for p, k in lastidx.items():
            rl = relmap.get(p) if relmap is not None else [p]
            if rl: Rd[k].append(rl)
        cnt = [0]
        def emit(i, cap):
            k = 0
            while Rd and Rd[0][1] <= i and (Rd[0][0] <= i + 1 or (Rd[0][0] <= i + lag and k < cap)):
                r = Rd.pop(0)
                if r[4]: s.full(r[4], pre=cnt[0] < 5)
                assert r[2].seq <= s.known and (r[2].rel is None or r[2].rel > s.nrel), r[2].name
                r[3](); k += 1; cnt[0] += 1
                for e in r[5:]:
                    if e == 'pre': s.A(f'ds_read_b64 {s.vF}, {s.vCtl}')
                    else: s.release(e)
            return k
        emit(-1, 999)
        if after_first: after_first()
        for i, (m, _) in enumerate(mf):
            if hooks and i in hooks: hooks[i]()
            if coarse and i in coarse: s.A.touch(coarse[i])
            m()
            if s.stbase is not None and per and i % per == per - 1: s.stamp(s.stbase + i // per)
            k = emit(i, cap); j = 0
            while s.q3 and (j + k < n3 or s.A.clk + 4 <= s.A.mf_free): s.q3.pop(0)(); j += 1
        assert not Rd

    def begin_variant(s):
        s.A.ctl('restore', 'fork'); s.q3 = []; s.known = 0; s.nrel = 0
    def end_variant(s):
        A = s.A
        s.release([]); assert s.nrel == 11
        A('s_waitcnt lgkmcnt(0)'); A.ctl('endvar'); A('s_branch L_join')

    def t1(s):
        A = s.A; V = s.V; S = s.S; AG = s.AG; stages = s.st
        A('L_T1:'); s.begin_variant()
        sCb = S.get(); sWr = S.get(); sWc = S.get()
        A(f's_lshl2_add_u32 {sCb}, {s.sXc}, {s.sCl}'); A(f's_lshr_b32 {sWr}, {s.sW}, 1'); A(f's_and_b32 {sWc}, {s.sW}, 1')
        q = V.get(); t = V.get(); a0 = V.get(); a1 = V.get()
        A(f'v_lshrrev_b32 {t}, 1, {s.vTok}'); A(f'v_lshrrev_b32 {q}, 4, {s.vLane}'); A(f'v_xor_b32 {t}, {t}, {q}')
        A(f's_lshl_b32 {s.sT0}, {sWr}, 6'); A(f'v_add_u32 {a0}, {s.sT0}, {s.vTok}'); A(f'v_lshlrev_b32 {a0}, 7, {a0}'); A(f'v_lshl_add_u32 {a0}, {t}, 4, {a0}')
        A(f'v_xor_b32 {a1}, 64, {a0}')
        fa = [s.dsaddr(a0, (0, 1)), s.dsaddr(a1, (0, 1))]
        fb = []
        rowp = V.get(); hi = V.get(); x2 = V.get()
        A(f'v_lshlrev_b32 {rowp}, 3, {q}'); A(f'v_bfe_u32 {t}, {s.vLane}, 2, 2'); A(f'v_add_u32 {rowp}, {rowp}, {t}'); A(f'v_mul_u32_u24 {rowp}, 320, {rowp}')
        A(f'v_and_b32 {t}, 1, {s.vLane}'); A(f'v_lshl_add_u32 {rowp}, {t}, 3, {rowp}'); A(f'v_add_u32 {rowp}, {16 * KB}, {rowp}')
        A(f'v_bfe_u32 {hi}, {s.vLane}, 1, 1'); A(f'v_and_b32 {x2}, 1, {q}'); A(f'v_lshlrev_b32 {x2}, 1, {x2}')
        A(f's_mul_i32 {s.sT0}, {sWc}, 5')
        for tt, ba in enumerate([0, 2, 4, 11, 13]):
            b = V.get()
            A(f'v_mul_u32_u24 {b}, {6 if tt == 2 else 1}, {hi}'); A(f'v_add3_u32 {b}, {b}, {ba}, {s.sT0}')
            A(f'v_xor_b32 {b}, {b}, {x2}'); A(f'v_lshl_add_u32 {b}, {b}, 4, {rowp}')
            fb.append(s.dsaddr(b, (0, 1)))
        V.put(rowp, hi, x2, q)
        sKV = [S.get(), S.get()]
        A(f's_lshl1_add_u32 {s.sT0}, {sCb}, {sWc}')
        A(f's_mul_i32 {sKV[0]}, {s.sT0}, {KVH}'); A(f's_mul_i32 {sKV[1]}, {s.sRb}, {KVP}'); A(f's_add_u32 {sKV[0]}, {sKV[0]}, {sKV[1]}'); A(f's_add_u32 {sKV[0]}, {sKV[0]}, {KV}'); A(f's_add_u32 {sKV[1]}, {sKV[0]}, 4096')
        A(f's_lshl_b32 {s.sT2}, {sWr}, 29')
        A(f's_lshl_b32 {s.sT0}, {s.sT0}, 7'); A(f's_add_u32 {s.sT0}, {s.sT0}, {s.sT2}'); A(f's_lshl2_add_u32 {s.sT0}, {s.sRb}, {s.sT0}'); A(f's_add_u32 {s.sFlag}, {s.sT0}, {FK}')
        s.stats()
        s.stamp(1)
        acc = [[V.get(4) for _ in range(5)] for _ in range(4)]
        XA = [[AG.get(4) for _ in range(4)] for _ in range(2)]; WB = [[AG.get(4) for _ in range(5)] for _ in range(2)]
        gr = [V.get(4) for _ in range(4)]; csg = [V.get(4) for _ in range(5)]
        mf = []; rd = {}; at = {}
        for st in range(10):
            p = stages[st]
            for h in range(2):
                at[(st, h)] = len(mf)
                for mt in range(4): rd[('x', st, h, mt)] = (XA[h][mt], p, [lambda mt=mt, h=h, p=p: A(f'ds_read_b128 {XA[h][mt]}, {fa[h](p.addr + 2048 * mt)}')])
                for tt in range(5): rd[('w', st, h, tt)] = (WB[h][tt], p, [(lambda tt=tt, h=h, p=p, t2=t2: A(f'ds_read_b64_tr_b16 {WB[h][tt].sub(2*t2, 2)}, {fb[tt](p.addr + (32 * h + 4 * t2) * 320)}')) for t2 in range(2)])
                for tt in range(5):
                    for mt in range(4):
                        mf.append((lambda mt=mt, tt=tt, h=h, c0=(st == 0 and h == 0): A(f'v_mfma_f32_16x16x32_bf16 {acc[mt][tt]}, {XA[h][mt]}, {WB[h][tt]}, {"0" if c0 else acc[mt][tt]}'), [('x', st, h, mt), ('w', st, h, tt)]))
                if st == 8 and h == 0:
                    at['corr'] = len(mf)
                    mf += [(lambda mt=mt, tt=tt: A(f'v_mfma_f32_16x16x32_bf16 {acc[mt][tt]}, {gr[mt]}, {csg[tt]}, {acc[mt][tt]}'), []) for tt in range(5) for mt in range(4)]
        H = {}
        def h_load():
            vca = [V.get() for _ in range(3)]; vra = V.get()
            def f():
                A(f's_lshl1_add_u32 {s.sT0}, {s.sRb}, {sWr}'); A(f's_lshl_b32 {s.sT0}, {s.sT0}, 10'); A(f's_add_u32 {s.sT0}, {s.sT0}, {RS}')
                A(f'v_lshl_add_u32 {vra}, {s.vTok}, 4, {s.sT0}')
                loads = [f'buffer_load_dwordx4 {gr[mt]}, {vra}, {sWS}, 0 offen offset:{256 * mt} sc1' for mt in range(4)]
                A(f's_lshl1_add_u32 {s.sT0}, {sCb}, {sWc}'); A(f's_mul_i32 {s.sT0}, {s.sT0}, 320'); A(f's_add_u32 {s.sT0}, {s.sT0}, {CS + 640 * 8}')
                A(f'v_lshl_add_u32 {vca[0]}, {s.vTok}, 3, {s.sT0}')
                A(f'v_lshrrev_b32 {t}, 4, {s.vLane}'); A(f'v_lshl_add_u32 {vca[0]}, {t}, 15, {vca[0]}')
                A(f'v_add_u32 {vca[1]}, {600 * 8}, {vca[0]}'); A(f'v_lshrrev_b32 {t}, 3, {s.vTok}'); A(f'v_mul_u32_u24 {t}, {600 * 8}, {t}'); A(f'v_add_u32 {vca[2]}, {t}, {vca[0]}')
                loads += [f'buffer_load_dwordx2 {csg[tt][0:2]}, {[vca[0], vca[0], vca[2], vca[1], vca[1]][tt]}, {sWS}, 0 offen offset:{128 * tt} sc1' for tt in range(5)]
                l2, g2 = s.p2_loads(); loads.append(l2)
                for ld in loads: A(ld)
                H.update(loads=loads, regs=vca + [vra, g2])
            s.defer(f)
        def h_check():
            s.flush3()
            s.checked(H['loads'], [g[3] for g in gr] + [c_[1] for c_ in csg] + [s.gr2[3]])
            V.put(*H['regs'])
            def build():
                ad = V.get(); H['ad'] = ad
                A(f's_lshl_b32 {s.sT1}, {s.sW}, 8'); A(f's_add_u32 {s.sT1}, {s.sT1}, {KVB}'); A(f'v_add_u32 {ad}, {s.sT1}, {s.vTok4}')
                for mt in range(4): A(f'ds_write_b32 {ad}, {gr[mt][0]} offset:{64 * mt}')
                A(f'v_and_b32 {ad}, 48, {s.vLane}'); A(f'v_add_u32 {ad}, {s.sT1}, {ad}')
                for mt in range(4): A(f'v_mov_b32 {gr[mt][3]}, {gr[mt][1]}'); s.split_x(gr[mt], gr[mt][3])
                for c_ in csg: s.split_w(c_, c_[0])
            s.defer(build)
        def h_r1():
            for mt in range(4): A(f'ds_read_b128 {gr[mt]}, {H["ad"]} offset:{64 * mt}')
        hooks = {at[(3, 0)]: h_load, at[(6, 0)]: h_check, at['corr']: s.flush3, at[(9, 1)]: h_r1}
        if 'st1' in s.dbg: s.stbase = 17
        s.flat(mf, rd, s.o['lag16'], 1, hooks=hooks, per=40, n3=2)
        s.stbase = None
        s.stamp(2)
        r1 = gr
        for f in fa + fb: V.put(*f.regs)
        V.put(*csg, H['ad'])
        eps = V.get(2); epm = V.get(2); l2e = V.get(2); sK = S.get(2)
        A(f'v_mov_b32 {eps[0]}, {hexf(1e-6)}'); A(f'v_mov_b32 {l2e[0]}, {hexf(LOG2E)}')
        A(f'v_and_b32 {t}, 8, {s.vLane}'); A(f'v_cmp_eq_u32 {sK}, 0, {t}'); A(f'v_cndmask_b32 {epm[0]}, 0, {eps[0]}, {sK}')
        pk = [[acc[2 * u][tt] for tt in range(5)] for u in range(2)]
        U = [V.get(2) for _ in range(4)]
        for tt in range(5):
            for u in range(2):
                prs = [(2 * u + m, h) for m in range(2) for h in range(2)]
                y = [acc[mt][tt].sub(2 * h, 2) for mt, h in prs]
                for k, (mt, h) in enumerate(prs):
                    if tt < 3: A(f'v_pk_fma_f32 {y[k]}, {y[k]}, {r1[mt].sub(2*h, 2)}, {eps if tt < 2 else epm} op_sel_hi:[1,1,0]')
                    else: A(f'v_pk_mul_f32 {y[k]}, {y[k]}, {r1[mt].sub(2*h, 2)}')
                if tt < 3:
                    for k in range(4): A(f'v_pk_mul_f32 {U[k]}, {y[k]}, {l2e} op_sel_hi:[1,0]')
                    for k in range(4): A(f'v_exp_f32_e64 {U[k][0]}, {U[k][0]} clamp'); A(f'v_exp_f32_e64 {U[k][1]}, {U[k][1]} clamp')
                    if tt < 2:
                        for k in range(4): A(f'v_max_f32 {y[k][0]}, {eps[0]}, {y[k][0]}'); A(f'v_max_f32 {y[k][1]}, {eps[0]}, {y[k][1]}')
                        for k in range(4): A(f'v_pk_add_f32 {y[k]}, {y[k]}, {U[k]}')
                    else:
                        for k in range(4):
                            for e in range(2):
                                A(f'v_max_f32 {t}, {eps[0]}, {y[k][e]}'); A(f'v_add_f32 {t}, {t}, {U[k][e]}'); A(f'v_cndmask_b32 {y[k][e]}, {y[k][e]}, {t}, {sK}')
                for k in range(4): A(f'v_cvt_pk_bf16_f32 {pk[u][tt][k]}, {y[k][0]}, {y[k][1]}')
        V.put(*U, eps, epm, l2e, *r1, *acc[1], *acc[3])
        ones = V.get(4); ad = V.get(); tw = V.get()
        for i in range(4): A(f'v_mov_b32 {ones[i]}, 0x3f803f80')
        pairs = [(0, 2), (0, 3), (1, 2), (1, 3), (1, 4), (2, 3), (2, 4)]
        kv = [V.get(4) for _ in pairs]; zz = [V.get(4) for _ in range(3)]
        RED = 108 * KB
        for u in range(2):
            for dt in range(3): A(f'v_mfma_f32_16x16x32_bf16 {zz[dt]}, {ones}, {pk[u][dt]}, {"0" if u == 0 else zz[dt]}')
            for k, (dt, et) in enumerate(pairs): A(f'v_mfma_f32_16x16x32_bf16 {kv[k]}, {pk[u][et]}, {pk[u][dt]}, {"0" if u == 0 else kv[k]}')
            if u == 0:
                A(f's_lshl_b32 {s.sT0}, {sWc}, 13'); A(f's_add_u32 {s.sT0}, {s.sT0}, {RED}'); A(f'v_add_u32 {ad}, {s.sT0}, {s.vL16}')
                A(f's_lshl_b32 {s.sT0}, {sWc}, 2'); A(f'v_add_u32 {t}, {s.sT0}, {s.vCtl}'); A(f'v_lshrrev_b32 {tw}, 10, {s.vL0}'); A(f'v_add_u32 {tw}, {tw}, {t}')
        V.put(*acc[0], *acc[2])
        A(f'v_mov_b32 {zz[0][1]}, {zz[1][0]}'); A(f'v_mov_b32 {zz[0][2]}, {zz[2][0]}')
        red = [zz[0]] + kv
        L1 = s.lab(); L2 = s.lab(); L3 = s.lab(); L4 = s.lab(); L5 = s.lab()
        q4 = V.get(4)
        A('s_nop 7')
        A(f's_cmp_eq_u32 {sWr}, 0'); A(f's_cbranch_scc1 {L1}')
        s.prog_wait(q4, 10)
        for k, r in enumerate(red): A(f'ds_write_b128 {ad}, {r} offset:{1024 * k}')
        A(f'ds_write_b32 {tw}, {ones[0]} offset:48')
        A('s_waitcnt lgkmcnt(0)')
        A(f's_branch {L2}')
        A(f'{L1}:'); A(f'ds_read_b32 {q4[0]}, {t} offset:48'); s.tick_spin(L3); A(f'v_cmp_eq_u32 vcc, 0, {q4[0]}'); A(f's_cbranch_vccnz {L1}')
        A(f'{L3}:')
        tmp = [V.get(4) for _ in red]
        for k, r in enumerate(red): A(f'ds_read_b128 {tmp[k]}, {ad} offset:{1024 * k}')
        for k, r in enumerate(red):
            for h in range(2): A(f'v_pk_add_f32 {r.sub(2*h, 2)}, {r.sub(2*h, 2)}, {tmp[k].sub(2*h, 2)}')
            kk = (k + 7) % 8
            A(f'buffer_store_dwordx4 {r}, {s.vL16}, {sWS}, {sKV[kk // 4]} offen offset:{1024 * (kk % 4)} sc1')
        A(f'{L2}:')
        s.stamp(3)
        s.end_variant()

    def cs_loads(s, NT, so):
        cg = [s.V.get(4) for _ in range(NT)]
        return [f'buffer_load_dwordx2 {cg[J].sub(2*e, 2)}, {s.vCsA}, {sWS}, {so[e]} offen offset:{256 * J} sc1' for J in range(NT) for e in range(2)], cg
    def cs_build(s, cg):
        for c in cg: s.A(f'v_add_f32 {c[0]}, {c[0]}, {c[2]}'); s.split_w(c, c[0])
    def epi32(s, kind, acc, k0, k1, k2, addr, mid=None, hold=None):
        A = s.A; V = s.V
        T = [V.get(2) for _ in range(4)]; P = [V.get(4) for _ in range(2)]
        for J in range(len(acc)):
            vo, so, imm = addr[J]
            for hf in range(2):
                y = [acc[J].sub(8 * hf + 2 * k, 2) for k in range(4)]
                if kind == 'gelu':
                    for k in range(4): A(f'v_pk_mul_f32 {T[k]}, {y[k]}, {y[k]}')
                    for k in range(4): A(f'v_pk_fma_f32 {T[k]}, {T[k]}, {k1}, {k0} op_sel_hi:[1,0,0]')
                    for k in range(4): A(f'v_pk_mul_f32 {T[k]}, {T[k]}, {y[k]}')
                    for k in range(4): A(f'v_exp_f32 {T[k][0]}, {T[k][0]}'); A(f'v_exp_f32 {T[k][1]}, {T[k][1]}')
                    for k in range(4): A(f'v_pk_fma_f32 {T[k]}, {T[k]}, {k2[J]}, {k2[J]} op_sel_hi:[1,0,0]')
                    for k in range(4): A(f'v_rcp_f32 {T[k][0]}, {T[k][0]}'); A(f'v_rcp_f32 {T[k][1]}, {T[k][1]}')
                    for k in range(4): A(f'v_pk_mul_f32 {y[k]}, {y[k]}, {T[k]}')
                else:
                    for k in range(4): A(f'v_pk_mul_f32 {T[k]}, {y[k]}, {k1} op_sel_hi:[1,0]')
                    for k in range(4): A(f'v_pk_fma_f32 {y[k]}, {y[k]}, {k0}, {k2} op_sel_hi:[1,0,0]')
                    for k in range(4): A(f'v_exp_f32_e64 {T[k][0]}, {T[k][0]} clamp'); A(f'v_exp_f32_e64 {T[k][1]}, {T[k][1]} clamp')
                    for k in range(4): A(f'v_max_f32 {y[k][0]}, {k2[0]}, {y[k][0]}'); A(f'v_max_f32 {y[k][1]}, {k2[0]}, {y[k][1]}')
                    for k in range(4): A(f'v_pk_add_f32 {y[k]}, {y[k]}, {T[k]}')
                p = P[hf] if hold is None else acc[J].sub(8 * hf, 4)
                for k in ((0, 2, 1, 3) if hold is None else (0, 1, 2, 3)): A(f'v_cvt_pk_bf16_f32 {p[k]}, {y[k][0]}, {y[k][1]}')
                if mid: mid(2 * J + hf)
                A(f'v_permlane32_swap_b32 {p[0]}, {p[2]}'); A(f'v_permlane32_swap_b32 {p[1]}, {p[3]}')
                txt = f'buffer_store_dwordx4 {p}, {vo}, {sWS}, {so} offen offset:{imm + 512 * hf} sc1'
                if hold is None: last = A(txt)
                else: hold.append(txt); last = None
        V.put(*T, *P)
        return last
    def gelu_k(s, k0, k1, a):
        A = s.A
        A(f'v_mul_f32 {k0[0]}, {hexf(GC0)}, {a}'); A(f'v_mul_f32 {k1[0]}, {a}, {a}'); A(f'v_mul_f32 {k1[0]}, {k1[0]}, {a}'); A(f'v_mul_f32 {k1[0]}, {hexf(GC1)}, {k1[0]}')

    def t23(s, typ):
        A = s.A; V = s.V; S = s.S; AG = s.AG; stages = s.st
        G1, G2 = ([0, 1, 2], [3, 4]) if typ == 'A' else ([3, 4], [0, 1, 2])
        N1 = len(G1)
        if typ == 'A': A('L_TA:')
        s.begin_variant()
        sA = S.get(); sC1 = S.get(); sC2 = S.get()
        A(f's_lshl1_add_u32 {sA}, {s.sXc}, {s.sCl}'); A(f's_sub_u32 {sA}, {sA}, {4 if typ == "A" else 6}')
        c96, c64 = (sC1, sC2) if typ == 'A' else (sC2, sC1)
        A(f's_mul_i32 {c96}, {sA}, 96'); A(f's_lshl_b32 {c64}, {sA}, 6'); A(f's_add_u32 {c64}, {c64}, 384')
        t = V.get(); u = V.get(); xb = [V.get() for _ in range(4)]
        A(f'v_and_b32 {xb[0]}, 31, {s.vLane}'); A(f'v_bfe_u32 {t}, {s.vLane}, 1, 3'); A(f'v_lshrrev_b32 {u}, 5, {s.vLane}'); A(f'v_xor_b32 {t}, {t}, {u}')
        A(f's_lshl_b32 {s.sT0}, {s.sW}, 12')
        A(f'v_lshlrev_b32 {xb[0]}, 7, {xb[0]}'); A(f'v_lshl_add_u32 {xb[0]}, {t}, 4, {xb[0]}'); A(f'v_add_u32 {xb[0]}, {s.sT0}, {xb[0]}')
        for ks in range(1, 4): A(f'v_xor_b32 {xb[ks]}, {32 * ks}, {xb[0]}')
        fx = [s.dsaddr(b, (0, 1)) for b in xb]
        fw2, r2regs = s.mk_nt_read(2, wins=(0, 1), add=28 * KB)
        tok = V.get(); vo2 = V.get(); so1 = S.get(); so2 = S.get(); sC1b = S.get(); sC2b = S.get()
        A(f's_lshl2_add_u32 {s.sT0}, {s.sRb}, {s.sW}'); A(f's_lshl_b32 {s.sFlag}, {s.sT0}, 7'); A(f's_lshl_b32 {s.sT0}, {s.sT0}, 5')
        A(f'v_and_b32 {tok}, 31, {s.vLane}'); A(f'v_add_u32 {tok}, {s.sT0}, {tok}')
        A(f's_lshl2_add_u32 {s.sFlag}, {sA}, {s.sFlag}'); A(f's_add_u32 {s.sFlag}, {s.sFlag}, {F1 + (0 if typ == "A" else 16)}')
        A(f's_lshl_b32 {so1}, {sC1}, 5'); A(f's_add_u32 {so1}, {so1}, {HS}')
        A(f's_lshl_b32 {so2}, {sC2}, 5'); A(f's_add_u32 {so2}, {so2}, {PQ}')
        s.f16_voff(vo2, tok, 20)
        vra = tok
        A(f'v_lshlrev_b32 {vra}, 4, {tok}'); A(f'v_add_u32 {vra}, {RS}, {vra}')
        A(f's_lshl_b32 {sC1}, {sC1}, 3'); A(f's_add_u32 {sC1}, {sC1}, {CS + 1920 * 8}'); A(f's_lshl_b32 {sC2}, {sC2}, 3'); A(f's_add_u32 {sC2}, {sC2}, {CS}')
        A(f's_add_u32 {sC1b}, {sC1}, 32768'); A(f's_add_u32 {sC2b}, {sC2}, 32768')
        s.stats()
        s.stamp(1)
        acc = [V.get(16) for _ in range(5)]
        XF = [AG.get(4) for _ in range(4)]; WB = [AG.get(4) for _ in range(10)]
        gr = V.get(4); xq = V.get(4); k0 = V.get(2); k1 = V.get(2); ia = V.get(2)
        l1, cg1 = s.cs_loads(N1, (sC1, sC1b)); l2, cg2 = s.cs_loads(5 - N1, (sC2, sC2b))
        cg = {J: c for J, c in list(zip(G1, cg1)) + list(zip(G2, cg2))}
        mf = []; rd = {}; at = {}
        for n in range(40):
            st, ks = divmod(n, 4); p = stages[st]; x = XF[n % 4]; at[n] = len(mf)
            rd[('x', n)] = (x, p, [lambda x=x, ks=ks, p=p: A(f'ds_read_b128 {x}, {fx[ks](p.addr)}')])
            for J in range(5):
                w = WB[(n * 5 + J) % 10]
                ad = (lambda t2, J=J, ks=ks, p=p: s.fw3[J](p.addr + 16 * KB + (16 * ks + 4 * t2) * 192)) if J < 3 else (lambda t2, J=J, ks=ks, p=p: fw2[J - 3](p.addr + (16 * ks + 4 * t2) * 128))
                rd[('w', n, J)] = (w, p, [(lambda t2=t2, w=w, ad=ad: A(f'ds_read_b64_tr_b16 {w.sub(2*t2, 2)}, {ad(t2)}')) for t2 in range(2)])
                mf.append((lambda J=J, n=n, w=w, x=x: A(f'v_mfma_f32_32x32x16_bf16 {acc[J]}, {w}, {x}, {"0" if n == 0 else acc[J]}'), [('w', n, J), ('x', n)]))
            if n == 33:
                at['corr'] = len(mf)
                mf += [(lambda J=J: A(f'v_mfma_f32_32x32x16_bf16 {acc[J]}, {cg[J]}, {xq}, {acc[J]}'), []) for J in range(5)]
        H = {}
        def h_load():
            def f():
                l3, g2 = s.p2_loads()
                H.update(loads=[f'buffer_load_dwordx4 {gr}, {vra}, {sWS}, 0 offen sc1'] + l1 + l2 + [l3], g2=g2)
                for ld in H['loads']: A(ld)
            s.defer(f)
        def h_check():
            s.flush3()
            s.checked(H['loads'], [gr[3], s.gr2[3]] + [c[k] for c in cg1 + cg2 for k in (1, 3)])
            V.put(H['g2'])
            def build():
                s.split_x(xq, gr[1]); s.cs_build(cg1 + cg2)
                A(f'v_mul_f32 {t}, {gr[0]}, {gr[2]}'); s.gelu_k(k0, k1, t); A(f'v_rcp_f32 {ia[0]}, {t}')
            s.defer(build)
        if 'st1' in s.dbg: s.stbase = 17
        s.flat(mf, rd, s.o['lag32'], 3, hooks={at[14]: h_load, at[26]: h_check, at['corr']: s.flush3}, n3=4, per=20)
        s.stbase = None
        s.stamp(2)
        for f in fx: V.put(*f.regs)
        V.put(*r2regs, *cg1, *cg2, xq)
        last1 = s.epi32('gelu', [acc[J] for J in G1], k0, k1, [ia] * N1, [(vo2, so1, 1024 * J) for J in range(N1)])
        s.stamp(3)
        A(f'v_mov_b32 {k0[0]}, {gr[0]}'); A(f'v_mul_f32 {k1[0]}, {hexf(LOG2E)}, {gr[0]}'); A(f'v_mov_b32 {ia[0]}, {hexf(1e-6)}')
        hold = []
        def mid(i):
            if i == 3: s.setflag(last1, s.sFlag); A(f's_add_u32 {s.sFlag}, {s.sFlag}, {FQ - F1}'); s.stamp(4)
        s.epi32('phi', [acc[J] for J in G2], k0, k1, ia, [(vo2, so2, 1024 * J) for J in range(5 - N1)], mid=mid, hold=hold)
        for x in hold: A(x)
        s.stamp(5)
        s.end_variant()

    def common(s):
        A = s.A; V = s.V; S = s.S; AG = s.AG; o = s.o
        A('L_join:'); A.ctl('join'); s.q3 = []; s.known = 10; s.nrel = 11
        b2, b3, b4a, b4b = s.b2, s.b3, s.b4a, s.b4b
        for p in b3[:4]: p.minrel = 11
        if s.stop <= 1:
            s.setflag('prejoin', s.sFlag); return
        NF = o['NF']; XA = [AG.get(4) for _ in range(20)]
        WF = [V.get(4) for _ in range(NF)]
        t = V.get(); u = V.get()
        def rd2(n):
            p = b2[n // 25]; c = p.addr + (n % 25) * 1024
            s.full(p if p is not b2[1] else b2[3])
            A(f'ds_read_b128 {WF[n % NF]}, {s.vL1 if c >> 16 else s.vL16} offset:{c & 0xffff}')
            if n == 49: s.release([b2[0], b2[1], s.pxt])
            if n == 74: s.release([b2[2]])
            if n == 99: s.release([b2[3]])
        acc = [V.get(4) for _ in range(5)]; resid = [V.get(4) for _ in range(5)]; gr = s.gr2
        A(f'v_mul_u32_u24 {t}, 160, {s.vTok}'); A(f'v_lshrrev_b32 {u}, 4, {s.vLane}'); A(f'v_lshl_add_u32 {t}, {u}, 3, {t}')
        A(f's_mul_i32 {s.sT0}, {s.sW}, 2560'); A(f's_add_u32 {s.sT0}, {s.sT0}, {XT}'); A(f'v_add_u32 {t}, {s.sT0}, {t}')
        s.full(b2[0])
        for nt in range(5): A(f'ds_read_b64 {acc[nt][2:4]}, {t} offset:{32 * nt}')
        vSt = [V.get() for _ in range(3)]; va, va2, vs = vSt; sH = [S.get(), S.get()]; sF2 = S.get()
        def xn():
            A(f'v_mul_f32 {gr[1]}, {gr[0]}, {gr[1]}')
            A(f's_mul_i32 {s.sT0}, {s.sTw}, 40960'); A(f's_mul_i32 {s.sT1}, {s.sJ2}, 5120'); A(f's_add_u32 {s.sT0}, {s.sT0}, {s.sT1}')
            A(f's_and_b32 {s.sT1}, {s.sW}, 1'); A(f's_lshl_b32 {s.sT1}, {s.sT1}, 8'); A(f's_add_u32 {s.sT0}, {s.sT0}, {s.sT1}'); A(f's_add_u32 {s.sT0}, {s.sT0}, {X1}')
            A(f'v_lshl_add_u32 {va}, {s.vTok}, 4, {s.sT0}'); A(f'v_and_b32 {u}, 32, {s.vLane}'); A(f'v_lshl_add_u32 {va}, {u}, 4, {va}')
            A(f'v_and_b32 {u}, 16, {s.vLane}'); A(f'v_lshl_add_u32 {va2}, {u}, 26, {va}'); A(f'v_add_u32 {va2}, 4096, {va2}'); A(f'v_lshl_add_u32 {va}, {u}, 6, {va}')
            A(f's_lshl3_add_u32 {s.sT0}, {s.sTw}, {s.sJ2}'); A(f's_lshl_b32 {s.sT0}, {s.sT0}, 8'); A(f's_lshr_b32 {s.sT1}, {s.sT1}, 1'); A(f's_add_u32 {s.sT0}, {s.sT0}, {s.sT1}'); A(f's_add_u32 {s.sT0}, {s.sT0}, {S2}')
            A(f'v_lshl_add_u32 {vs}, {s.vTok}, 3, {s.sT0}'); A(f'v_and_b32 {u}, 48, {s.vLane}'); A(f'v_lshl_add_u32 {vs}, {u}, 25, {vs}')
            for nt in range(5):
                for h in range(2):
                    x = resid[nt].sub(2 * h, 2); y = acc[nt].sub(2 * h, 2); src = acc[nt][2 + h]
                    A(f'v_lshlrev_b32 {x[0]}, 16, {src}'); A(f'v_and_b32 {x[1]}, 0xffff0000, {src}')
                    A(f'v_pk_fma_f32 {y}, {x}, {gr[0:2]}, {gr[0:2]} op_sel:[0,0,1] op_sel_hi:[1,0,1] neg_lo:[0,0,1] neg_hi:[0,0,1]')
                    A(f'v_cvt_pk_bf16_f32 {y[1]}, {y[0]}, {y[1]}')
                    A(f'v_lshlrev_b32 {y[0]}, 16, {y[1]}'); A(f'v_and_b32 {y[1]}, 0xffff0000, {y[1]}')
        s.defer(xn)
        for n in range(NF):
            rd2(n)
            for k in range(3):
                if s.q3: s.q3.pop(0)()
        s.flush3()
        A(f's_and_b32 {s.sT1}, {s.sW}, 1'); A(f's_lshl3_add_u32 {s.sT1}, {s.sT1}, {s.sJ2}'); A(f's_lshl_b32 {s.sT0}, {s.sTw}, 7'); A(f's_lshl2_add_u32 {s.sT0}, {s.sT1}, {s.sT0}'); A(f's_add_u32 {sF2}, {s.sT0}, {F2}')
        A(f's_mov_b32 {sH[0]}, {HS}'); A(f's_mov_b32 {sH[1]}, {HS + 4096}')
        s.stamp(6)
        f1txt = s.polltxt(s.pF, s.paF1, 0)
        A('s_mov_b64 exec, 0xffff'); A(f1txt); A('s_mov_b64 exec, -1'); A.touch([s.pF]); A(s.flagtxt(s.sFlag))
        A('s_mov_b64 exec, 0xffff'); s.checked([f1txt], [s.pF]); A('s_mov_b64 exec, -1')
        def lda2(i): A(f'buffer_load_dwordx4 {XA[i]}, {s.vA2[i // 5]}, {sWS}, {sH[i % 5 // 4]} offen offset:{1024 * (i % 5 % 4)} sc1')
        for i in range(o['LA2']): lda2(i)
        s.stamp(7)
        nr = NF; nl = o['LA2']
        for n in range(100):
            u_, nt = divmod(n, 5)
            A(f'v_mfma_f32_16x16x32_bf16 {acc[nt]}, {WF[n % NF]}, {XA[u_]}, {acc[nt]}')
            if nr < 100: rd2(nr); nr += 1
            if nt == 4 and nl < 20: lda2(nl); nl += 1
        s.stamp(8)
        V.put(*WF, *s.vA2, s.paF1); AG.put(*XA); S.put(*sH)
        pk = [V.get(4) for _ in range(3)]; sm = V.get(2); T = V.get(2); one = V.get()
        A(f'v_mov_b32 {pk[2][2]}, 0'); A(f'v_mov_b32 {pk[2][3]}, 0'); A(f'v_mov_b32 {sm[0]}, 0'); A(f'v_mov_b32 {sm[1]}, 0'); A(f'v_mov_b32 {one}, 0x3f803f80')
        for nt in range(5):
            for h in range(2): A(f'v_cvt_pk_bf16_f32 {pk[nt // 2][2 * (nt & 1) + h]}, {acc[nt][2*h]}, {acc[nt][2*h+1]}')
        for k in range(3):
            A(f'v_permlane16_swap_b32 {pk[k][0]}, {pk[k][2]}'); A(f'v_permlane16_swap_b32 {pk[k][1]}, {pk[k][3]}')
            A(f'buffer_store_dwordx4 {pk[k]}, {va if k < 2 else va2}, {sWS}, 0 offen offset:{2048 * (k & 1)} sc1')
        for k in range(3):
            for i in range(4): A(f'v_dot2c_f32_bf16 {sm[0]}, {pk[k][i]}, {one}'); A(f'v_dot2c_f32_bf16 {sm[1]}, {pk[k][i]}, {pk[k][i]}')
        for swp in ('16', '32'):
            A(f'v_mov_b32 {T[0]}, {sm[0]}'); A(f'v_mov_b32 {T[1]}, {sm[1]}')
            A(f'v_permlane{swp}_swap_b32 {sm[0]}, {T[0]}'); A(f'v_permlane{swp}_swap_b32 {sm[1]}, {T[1]}')
            A(f'v_pk_add_f32 {sm}, {sm}, {T}')
        last = A(f'buffer_store_dwordx2 {sm}, {vs}, {sWS}, 0 offen sc1')
        if s.stop <= 3:
            s.setflag(last, sF2); return
        so3 = [S.get(), S.get()]
        A(f's_mul_i32 {so3[0]}, {s.sCb3}, {96 * 8}'); A(f's_add_u32 {so3[0]}, {so3[0]}, {CS + 2560 * 8}'); A(f's_add_u32 {so3[1]}, {so3[0]}, 32768')
        l3, cg = s.cs_loads(3, so3)
        for ld in l3: A(ld)
        for nt in range(5):
            for h in range(2): A(f'v_pk_add_f32 {resid[nt].sub(2*h, 2)}, {resid[nt].sub(2*h, 2)}, {acc[nt].sub(2*h, 2)}')
        vst = V.get(); vo = V.get(); vA3 = V.get(); so = S.get(); sA3 = S.get()
        A(f'v_and_b32 {t}, 31, {s.vLane}'); s.f16_voff(vo, t, 48)
        A(f's_lshl_b32 {s.sT0}, {s.sTw3}, 11'); A(f's_add_u32 {s.sT0}, {s.sT0}, {S2}')
        A(f'v_lshl_add_u32 {t}, {t}, 3, {s.sT0}'); A(f'v_and_b32 {u}, 32, {s.vLane}'); A(f'v_lshl_add_u32 {vst}, {u}, 5, {t}')
        A(f's_mul_i32 {so}, {s.sTw3}, {2 * 48 * 1024}'); A(f's_mul_i32 {s.sT0}, {s.sCb3}, 3072'); A(f's_add_u32 {so}, {so}, {s.sT0}'); A(f's_add_u32 {so}, {so}, {H3}')
        A(f's_mul_i32 {s.sT0}, {s.sTw3}, 40960'); A(f'v_add_u32 {vA3}, {s.sT0}, {s.vL16}')
        A(f's_bfe_u32 {s.sT0}, {s.sRb2}, 0x10001'); A(f's_mul_i32 {sA3}, {s.sT0}, 20480'); A(f's_add_u32 {sA3}, {sA3}, {X1}')
        s.setflag(last, sF2)
        s.stamp(9)
        V.put(*acc, *pk, sm, T, *vSt, s.gr2, one); S.put(sF2)
        s.checked(l3, [c[k] for c in cg for k in (1, 3)])
        s.cs_build(cg); S.put(*so3)
        s.stamp(10)
        A(f's_lshl_b32 {s.sT1}, {s.sTw3}, 7'); A(f's_add_u32 {s.sT1}, {s.sT1}, {F2}')
        s.poll([s.polltxt(s.pF, s.vTok4, s.sT1)], [s.pF], sl=o['psl'], mask=0xffff if o['pm'] else None, d0=o['pd2'])
        s.stamp(11)
        LA3 = o['LA3']; NX = LA3 + 1; NB = 20 - NX
        XF = [AG.get(4) for _ in range(NX)]; WB = [AG.get(4) for _ in range(NB)]; st2 = [V.get(4) for _ in range(2)]
        def ldx3(i):
            if i >= 40: return
            A(f'buffer_load_dwordx4 {XF[i % NX]}, {vA3}, {sWS}, {sA3} offen offset:{1024 * (i % 4)} sc1')
            if i % 4 == 3: s.wrapadd(sA3, 4096, X1 + 40960, X1)
        for i in range(LA3): ldx3(i)
        for k in range(4): A(f'buffer_load_dwordx2 {st2[k // 2].sub(2 * (k % 2), 2)}, {vst}, {sWS}, 0 offen offset:{256 * k} sc1')
        sA4 = S.get(); vA4 = [[V.get() for _ in range(2)] for _ in range(2)]; paP = V.get()
        pwtxt = s.polltxt(s.pF, paP, 0)
        acc = [V.get(16) for _ in range(3)]; xq = V.get(4); k0 = V.get(2); k1 = V.get(2); ia = V.get(2)
        rL4 = [V.get() for _ in range(3)]; H = {}
        def su():
            A(f's_and_b32 {s.sT1}, {s.sW}, 1'); A(f's_mul_i32 {s.sT2}, {s.sT1}, 10240'); A(f'v_add_u32 {rL4[0]}, {s.sT2}, {s.vL16}')
            H['fl'] = s.dsaddr(rL4[0], regs=rL4[1:])
            A(f's_lshl_b32 {s.sT1}, {s.sT1}, 11')
            for k, nkb in enumerate((20, 48)):
                for m in range(2):
                    A(f's_xor_b32 {s.sT2}, {s.sTT}, {m}'); A(f's_mul_i32 {s.sT2}, {s.sT2}, {nkb * 1024}'); A(f's_add_u32 {s.sT2}, {s.sT2}, {s.sT1}'); A(f'v_add_u32 {vA4[k][m]}, {s.sT2}, {s.vL16}')
            A(f's_and_b32 {s.sT1}, {s.sRb2}, 3'); A(f's_lshl_b32 {sA4}, {s.sT1}, 12'); A(f's_add_u32 {sA4}, {sA4}, {PP}')
            A(f's_lshl_b32 {s.sT2}, {s.sRb2}, 7'); A(f's_add_u32 {s.sT2}, {s.sT2}, {FP}'); A(f'v_add_u32 {paP}, {s.sT2}, {s.vTok4}')
            A(f's_lshl_b32 {s.sT2}, {s.sTw3}, 7'); A(f's_lshl2_add_u32 {s.sT2}, {s.sCb3}, {s.sT2}'); A(f's_add_u32 {s.sFlag}, {s.sT2}, {F3}'); A('v_nop')
        def ln():
            a, b = st2
            for e in range(2): A(f'v_add_f32 {a[e]}, {a[e]}, {a[e+2]}'); A(f'v_add_f32 {b[e]}, {b[e]}, {b[e+2]}')
            for e in range(2): A(f'v_add_f32 {a[e]}, {a[e]}, {b[e]}')
            for e in range(2): A(f'v_mov_b32 {a[e+2]}, {a[e]}')
            for e in range(2): A(f'v_permlane32_swap_b32 {a[e]}, {a[e+2]}')
            for e in range(2): A(f'v_add_f32 {a[e]}, {a[e]}, {a[e+2]}')
            for e in range(2): A(f'v_mul_f32 {a[e]}, {hexf(1.0/640)}, {a[e]}')
            A(f'v_fma_f32 {a[1]}, -{a[0]}, {a[0]}, {a[1]}'); A(f'v_max_f32 {a[1]}, 0, {a[1]}')
            s.rstd(ia[0], a[1]); A(f'v_rcp_f32 {a[2]}, {ia[0]}')
            s.split_x(xq, a[0]); s.gelu_k(k0, k1, a[2])
        mf = []; rd = {}
        for n in range(40):
            st, ks = divmod(n, 4); p = b3[st]
            for J in range(3):
                w = WB[(n * 3 + J) % NB]
                rd[('w', n, J)] = (w, p, [(lambda ks=ks, J=J, t2=t2, w=w, p=p: A(f'ds_read_b64_tr_b16 {w.sub(2*t2, 2)}, {s.fw3[J](p.addr + (16 * ks + 4 * t2) * 192)}')) for t2 in range(2)])
                def m(J=J, n=n, w=w):
                    A(f'v_mfma_f32_32x32x16_bf16 {acc[J]}, {w}, {XF[n % NX]}, {"0" if n == 0 else acc[J]}')
                    if J == 0: ldx3(n + LA3)
                mf.append((m, [('w', n, J)]))
        mf += [(lambda J=J: A(f'v_mfma_f32_32x32x16_bf16 {acc[J]}, {cg[J]}, {xq}, {acc[J]}'), []) for J in range(3)]
        g3 = {b3[0]: b3[3], b3[4]: b3[6], b3[7]: b3[9]}
        if 'st3' in s.dbg: s.stbase = 17
        s.flat(mf, rd, o['lag32'], 3, group=lambda p: g3.get(p, p), relmap={b3[1]: b3[0:2], b3[3]: b3[2:4], b3[5]: b3[4:6], b3[7]: b3[6:8], b3[8]: [b3[8]], b3[9]: [b3[9]]},
               hooks={6: lambda: s.defer(su), 42: lambda: s.defer(ln), 96: lambda: (A('s_mov_b64 exec, 0xff'), A(pwtxt), A('s_mov_b64 exec, -1')), 120: s.flush3}, n3=4, per=12)
        s.stbase = None
        s.stamp(12)
        AG.put(*XF, *WB); V.put(*s.rW3, vA3, vst, *st2, *cg, xq); S.put(sA3)
        NA = 10
        XA = [[AG.get(4) for _ in range(2)] for _ in range(NA)]
        def lda4(n, k):
            lim, base, span = ((10, PP, 20480), (24, H3, 49152))[k]
            if n >= lim: return []
            ops = [(lambda m=m: A(f'buffer_load_dwordx4 {XA[n % NA][m]}, {vA4[k][m]}, {sWS}, {sA4} offen offset:{1024 * (n % 2)} sc1')) for m in range(2)]
            if n % 2 == 1: ops.append(lambda: s.wrapadd(sA4, 4096, base + span, base))
            return ops
        def mid3(i):
            if s.stop <= 4: return
            if i == 0:
                A('s_mov_b64 exec, 0xff'); s.checked([pwtxt], [s.pF]); A('s_mov_b64 exec, -1')
                for n in range(o['A4e']):
                    for f in lda4(n, 0): f()
        last = s.epi32('gelu', acc, k0, k1, [ia] * 3, [(vo, so, 1024 * J) for J in range(3)], mid=mid3)
        s.stamp(13)
        sF3 = s.sFlag
        V.put(*acc, k0, k1, ia, paP)
        if s.stop <= 4:
            s.setflag(last, sF3); return
        fl = H['fl']
        acc = [resid, [V.get(4) for _ in range(5)]]
        WB = [[V.get(4) for _ in range(5)] for _ in range(3)]
        def gemm4(k, panels, LA, hooks, group, relmap):
            mf = []; rd = {}; coarse = {}
            for n in range(2 * len(panels)):
                p = panels[n // 2]; h = n % 2; W = WB[n % 3]; X = XA[n % NA]
                coarse[len(mf)] = W + X
                for nt in range(5):
                    rd[(n, nt)] = (W[nt], p, [lambda nt=nt, W=W, p=p, h=h: A(f'ds_read_b128 {W[nt]}, {fl(p.addr + (5 * h + nt) * 1024)}')])
                    for m in range(2):
                        def f(nt=nt, m=m, n=n, W=W, X=X):
                            A(f'v_mfma_f32_16x16x32_bf16 {acc[m][nt]}, {W[nt]}, {X[m]}, {"0" if k == 0 and n == 0 and m == 1 else acc[m][nt]}')
                            if LA and m == 0 and nt % 2 == 0:
                                ops = lda4(n + LA, k)
                                if nt // 2 < len(ops): ops[nt // 2]()
                        mf.append((f, [(n, nt)]))
            s.flat(mf, rd, 19, 1, group=group, relmap=relmap, hooks=hooks, coarse=coarse, per=20)
        def flag3(): s.setflag(last, sF3)
        va = V.get(); va2 = V.get(); vr = [V.get(), V.get()]
        RED = 40 * KB
        A(f's_mul_i32 {s.sT0}, {s.sW}, 5120'); A(f's_add_u32 {s.sT0}, {s.sT0}, {RED}'); A(f'v_add_u32 {vr[0]}, {s.sT0}, {s.vL16}')
        A(f's_xor_b32 {s.sT0}, {s.sW}, 1'); A(f's_mul_i32 {s.sT0}, {s.sT0}, 5120'); A(f's_add_u32 {s.sT0}, {s.sT0}, {RED}'); A(f'v_add_u32 {vr[1]}, {s.sT0}, {s.vL16}')
        A(f's_mul_i32 {s.sT0}, {s.sTT}, 20480'); A(f's_add_u32 {s.sT0}, {s.sT0}, {s.sJ160}')
        A(f'v_mul_u32_u24 {va}, 1280, {s.vTok}'); A(f'v_lshrrev_b32 {t}, 1, {s.vLane}'); A(f'v_and_b32 {t}, 16, {t}'); A(f'v_add3_u32 {va}, {va}, {t}, {s.sT0}')
        A(f'v_and_b32 {t}, 16, {s.vLane}'); A(f'v_lshl_add_u32 {va2}, {t}, 26, {va}'); A(f'v_lshl_add_u32 {va}, {t}, 1, {va}')
        flag3(); s.stamp(28)
        gemm4(0, b4a, o['A4e'], None, None, None)
        A(f's_and_b32 {s.sT1}, {s.sRb2}, 3'); A(f's_mul_i32 {sA4}, {s.sT1}, 12288'); A(f's_add_u32 {sA4}, {sA4}, {H3}')
        s.stamp(14)
        A(f's_lshl_b32 {s.sT1}, {s.sTw}, 7'); A(f's_add_u32 {s.sT1}, {s.sT1}, {F3}')
        s.poll([s.polltxt(s.pF, s.vTok4, s.sT1)], [s.pF], sl=o['psl'], mask=0xffff if o['pm'] else None)
        s.stamp(15)
        LA4 = o['LA4']
        for n in range(LA4):
            for f in lda4(n, 1): f()
        if 'st4' in s.dbg: s.stbase = 17
        g4 = {b4b[2]: b4b[3], b4b[4]: b4b[6]}
        rm = {p: [p] for p in b4b[:6]}
        gemm4(1, b4b, LA4, None, lambda p: g4.get(p, p), rm)
        redrel = b4b[5].rel
        s.stbase = None
        if 'st4' in s.dbg: s.stamp(29)
        s.prog_wait(WB[1][0], redrel)
        for nt in range(5): A(f'ds_write_b128 {vr[0]}, {acc[1][nt]} offset:{1024 * nt}')
        A('s_waitcnt lgkmcnt(0)'); A('s_barrier')
        for nt in range(5): A(f'ds_read_b128 {WB[0][nt]}, {vr[1]} offset:{1024 * nt}')
        pk = [V.get(4) for _ in range(3)]
        for nt in range(5):
            for h in range(2):
                y = acc[0][nt].sub(2 * h, 2)
                A(f'v_pk_add_f32 {y}, {y}, {WB[0][nt].sub(2*h, 2)}')
                A(f'v_cvt_pk_bf16_f32 {pk[nt // 2][2 * (nt & 1) + h]}, {y[0]}, {y[1]}')
            if nt % 2 == 1 or nt == 4:
                k = nt // 2
                A(f'v_permlane16_swap_b32 {pk[k][0]}, {pk[k][2]}'); A(f'v_permlane16_swap_b32 {pk[k][1]}, {pk[k][3]}')
                A(f'buffer_store_dwordx4 {pk[k]}, {va if k < 2 else va2}, {sOUT}, 0 offen offset:{64 * k} nt')
        A(f'v_or_b32 {t}, s2, v0'); A(f'v_cmp_eq_u32 vcc, 0, {t}'); A(f'v_mov_b32 {u}, {OOB}'); A(f'v_cndmask_b32 {t}, {u}, {t}, vcc')
        A(f'buffer_store_dword {s.vN}, {t}, {sWS}, 0 offen')

    def finish(s):
        A = s.A
        A('L_fin:')
        if s.stamps:
            t = s.vF[0]; u = s.vCtl
            A('s_waitcnt vmcnt(0) lgkmcnt(0)')
            s.stamp(16)
            A(f's_getreg_b32 {s.sT0}, hwreg(HW_REG_HW_ID)'); A(f'v_writelane_b32 {s.vStamp}, {s.sT0}, 31')
            A(f's_lshl_b32 {s.sT0}, s2, 3'); A(f's_add_u32 {s.sT0}, {s.sT0}, {s.sW}'); A(f's_lshl_b32 {s.sT0}, {s.sT0}, 7'); A(f's_add_u32 {s.sT0}, {s.sT0}, {STAMP}')
            A(f'v_and_b32 {t}, 31, {s.vLane}'); A(f'v_lshlrev_b32 {t}, 2, {t}'); A(f'v_and_b32 {u}, 32, {s.vLane}'); A(f'v_lshl_add_u32 {t}, {u}, 25, {t}')
            A(f'buffer_store_dword {s.vStamp}, {t}, {sWS}, {s.sT0} offen')
        A('L_end:'); A('s_endpgm')

    def build(s):
        A = s.A
        s.entry(); e = s.snap()
        s.cpro(); c = s.snap()
        for var in ('B', 'A', 'T1'):
            s.rest(c)
            if var == 'T1': s.t1()
            else: s.t23(var)
        s.rest(c); s.V.put(s.p0[0]); s.S.put(s.p0[1])
        s.common()
        s.finish()
        for p in s.P:
            if p.rel is None: p.rel = 0
        s.rest(e); s.loader(0)
        s.rest(e); s.loader(1)
        s.rest(e); s.job()
        A('s_waitcnt vmcnt(0) lgkmcnt(0)')
        A.ins += s.cold
        A('s_endpgm'); A('.p2align 8'); A('L_codeend:')
        hdr = open('cdna_kernels/' + NAME + '.s.ref').read().split('; Override launch')[0]
        txt = hdr + '; @launch grid=(256,1,1) block=(512,1,1) lds=163840\n'
        txt += f'.amdgcn_target "amdgcn-amd-amdhsa--gfx950"\n.text\n.globl {NAME}_kernel\n.p2align 8\n.type {NAME}_kernel,@function\n{NAME}_kernel:\n'
        if 'nomfma' in s.dbg: A.ins = [i for i in A.ins if i.cls != 'mfma']
        if 'nob3' in s.dbg: A.ins = [i for i in A.ins if not (i.note == 'dma' and str(sW3) in i.text)]
        if 'nos2' in s.dbg: A.ins = [i for i in A.ins if not (i.op == 'buffer_store_dwordx2')]
        if 'nodma' in s.dbg: A.ins = [i for i in A.ins if i.note != 'dma']
        if 'nopf' in s.dbg: A.ins = [i for i in A.ins if not (i.op == 'buffer_load_dword' and i.ops[0] == i.ops[1])]
        txt += A.text()
        txt += f'''.section .rodata,"a"
.p2align 6
.amdhsa_kernel {NAME}_kernel
  .amdhsa_next_free_vgpr 256
  .amdhsa_next_free_sgpr 102
  .amdhsa_accum_offset {NV}
  .amdhsa_group_segment_fixed_size 0
  .amdhsa_kernarg_size 88
  .amdhsa_user_sgpr_count 2
  .amdhsa_user_sgpr_kernarg_segment_ptr 1
  .amdhsa_system_sgpr_workgroup_id_x 1
.end_amdhsa_kernel
'''
        return txt

if __name__ == '__main__':
    import argparse
    ap = argparse.ArgumentParser()
    ap.add_argument('-o', default='cdna_kernels/' + NAME + '.s')
    ap.add_argument('--stop', type=int, default=99)
    ap.add_argument('--stamps', action='store_true')
    ap.add_argument('--dbg', default='')
    a = ap.parse_args()
    opt = {k.split('=')[0]: int(k.split('=')[1]) for k in a.dbg.split(',') if '=' in k}
    g = G(stop=a.stop, stamps=a.stamps, dbg=a.dbg, **opt)
    txt = g.build()
    open(a.o, 'w').write(txt)
    print('written', a.o, 'vgpr top', g.V.top, 'agpr top', g.AG.top, 'sgpr top', g.S.top)
```

```python
import sys, struct, math, os
from asmgen import *

NAME = 'parallel_sum__linear_attn_block__mixer_s_mlp__prompt'
KB = 1024
F1, FQ, FK, F2, FP, FW, F3 = 0x2000, 0x4000, 0x6000, 0x7000, 0x9000, 0xA000, 0xB000
FR2, FR4 = 0xD000, 0xD800
RS, CS, S2, STAMP = 0x10000, 0x18000, 0x40000, 0x180000
HS, PQ, W2R, X1, H3, WOP = 0x200000, 0x480000, 0x700000, 0x980000, 0xC00000, 0x1200000
PP = PQ
KV, W4R = 0x1300000, 0x1580000
KVP = 8192 + 384
KVH = 16 * KVP + 128
WS_USED = 0x1780000
OOB = 0x40000000
XT = 148 * KB
KVB = 158 * KB
CTRL = KVB + 1536
RPB = 144 * KB
GW, GX, GK, G1, G2 = 152 * KB, 154 * KB, 155 * KB, 157 * KB, 157 * KB + 512
SPIN = 200000
NV = 176

def f2u(x): return struct.unpack('<I', struct.pack('<f', x))[0]
def hexf(x): return '0x%08x' % f2u(x)
LOG2E = 1.4426950408889634
GC0 = -2.0 * LOG2E * math.sqrt(2.0 / math.pi)
GC1 = GC0 * 0.044715

sX, sWQKV, sWO, sW1, sW2, sW3, sW4, sOUT, sWS, sD0, sD1 = [R('s', 4 + 4 * i, 4) for i in range(11)]

class Panel:
    def __init__(s, name, addr, size, seq): s.name, s.addr, s.size, s.seq = name, addr, size, seq; s.rel = None; s.minrel = 0
def ovl(p, q): return q.addr < p.addr + p.size and p.addr < q.addr + q.size

class G:
    def __init__(s, stop=99, stamps=False, dbg='', **opt):
        s.A = Asm(); s.stop = stop; s.stamps = stamps; s.dbg = dbg; s.stbase = None
        s.V = Pool('v', 1, NV); s.AG = Pool('a', 0, 256 - NV); s.S = Pool('s', 48, 101)
        s.cold = []; s.nlab = 0; s.q3 = []; s.hold = []; s.slowpre = None
        s.o = dict(NF=24, LA2=8, LA3=10, LA4=5, lag16=12, lag32=6, nph=2, W1x=16, W1w=20, W1=10, W2=9, W3=10, W4=12, W5=12, jd=8, gd=4, iss=1, stg=0, rj=2, r3=2, Wa=14, ost=0, pp=5, f3d=50, fke=1, tlb=0, jprio=2, wsl=4, lprio=3, ntr=1, A4e=4, jp=11, jsl=2, psl=0, pt=1, pm=1, pd2=0, nt0=0, nt1=0, nt2=0, prio=0, slp=1); s.o.update(opt)
        P = []
        def add(n, a, sz): p = Panel(n, a, sz, len(P) + 1); P.append(p); return p
        s.st = [add(f's{i}', ((i + 2) % 4) * 36 * KB, 36 * KB) for i in range(10)]
        s.b2 = [add(f'b2_{i}', 25 * KB * i, 25 * KB) for i in range(4)]
        s.pxt = add('xt', XT, 10 * KB)
        s.b3 = [add(f'b3_{i}', (100 + 12 * i) * KB, 12 * KB) for i in range(4)]
        s.b3 += [add(f'b3_{i}', 12 * (i - 4) * KB, 12 * KB) for i in range(4, 10)]
        sl = [4, 5, 6, 0, 1, 2, 3, 4, 5, 6, 0, 1]
        s.b4b = [add(f'b4b_{i}', 20 * KB * sl[i], 20 * KB) for i in range(2)]
        s.b4a = [add(f'b4a_{i}', 20 * KB * [6, 0, 1, 2, 3][i], 20 * KB) for i in range(5)]
        s.b4b += [add(f'b4b_{i}', 20 * KB * sl[i], 20 * KB) for i in range(2, 12)]
        s.P = P
        s.known = 0; s.nrel = 0

    def lab(s, p='L'): s.nlab += 1; return f'{p}{s.nlab}'
    def stamp(s, n):
        if s.stamps: s.A(f's_mem{"" if "cyc" in s.dbg else "real"}time {s.sStamp}'); s.A(f'v_writelane_b32 {s.vStamp}, {s.sStamp[0]}, {n}')
    def flush3(s):
        while s.q3: s.q3.pop(0)()
    def defer(s, fn):
        A = s.A; main = A.ins; A.ins = []; clk = (A.clk, A.mf_free, A.lds_free)
        fn(); cap = A.ins; A.ins = main; A.clk, A.mf_free, A.lds_free = clk
        grp = []
        for i in cap:
            grp.append(i)
            if i.cls != 'salu': s.q3.append(lambda g=grp: s.replay(g)); grp = []
        if grp: s.q3.append(lambda g=grp: s.replay(g))
    def replay(s, g):
        for i in g: s.A.ins.append(i); s.A.tick(i)
    def outline(s, fn):
        A = s.A; main = A.ins; A.ins = []; clk = (A.clk, A.mf_free, A.lds_free)
        fn(); s.cold += A.ins; A.ins = main; A.clk, A.mf_free, A.lds_free = clk
    def tick_spin(s, out, sl=0):
        if sl: s.A(f's_sleep {sl}')
        s.A(f's_sub_u32 {s.sSp}, {s.sSp}, 1'); s.A(f's_cmp_lt_i32 {s.sSp}, 0'); s.A(f's_cbranch_scc1 {out}')
    def lds_wait(s, off, val, pre=True, sl=0, slowpre=None):
        A = s.A; Lr = s.lab('W'); Lb = s.lab('B')
        rdt = f'ds_read_b64 {s.vF}, {s.vCtl} offset:{off}' if off in (0, 40, 64) else f'ds_read_b32 {s.vF[0]}, {s.vCtl} offset:{off}'
        L0 = s.lab('W') if slowpre else Lr
        def cmp(L=Lr):
            if off in (0, 40, 64): A(f'v_min_u32 {s.vF[0]}, {s.vF[0]}, {s.vF[1]}')
            A(f'v_cmp_gt_u32 vcc, {val}, {s.vF[0]}'); A(f's_cbranch_vccnz {L}')
        if pre: A(rdt)
        cmp(L0); A(f'{Lb}:')
        def slow():
            if slowpre: A(f'{L0}:'); slowpre()
            A(f'{Lr}:'); A(rdt); s.tick_spin(Lb, sl); A('s_waitcnt lgkmcnt(0)'); cmp(); A(f's_branch {Lb}')
        s.outline(slow)
    def full(s, p, pre=True):
        if p.seq > s.known: s.lds_wait(0, p.seq, pre, slowpre=s.slowpre); s.known = p.seq
    def release(s, ps):
        s.nrel += 1
        for p in ps:
            assert p.rel is None or p.rel == s.nrel, p.name
            p.rel = s.nrel
        s.A(f'v_mov_b32 {s.vP}, {s.nrel}'); s.A(f'ds_write_b32 {s.vPa}, {s.vP}')
    def dsaddr(s, base, wins=(0, 1, 2), regs=None):
        rr = {0: base}; k = 0
        for wv in wins:
            if wv:
                r = regs[k] if regs else s.V.get(); k += 1
                s.A(f'v_add_u32 {r}, {wv * 65536}, {base}'); rr[wv] = r
        def at(c): return f'{rr[c >> 16]} offset:{c & 0xffff}'
        at.regs = list(rr.values())
        return at
    def wrapadd(s, r, step, lim, base):
        s.A(f's_add_u32 {r}, {r}, {step}'); s.A(f's_cmp_ge_u32 {r}, {lim}'); s.A(f's_cmov_b32 {r}, {base}')
    def tagcmp(s, tags):
        A = s.A
        if len(tags) == 1: A(f'v_cmp_ne_u32 vcc, {s.sN}, {tags[0]}'); return
        t = s.V.get()
        A(f'v_xor_b32 {t}, {s.sN}, {tags[0]}')
        for x in tags[1:]: A(f'v_bitop3_b32 {t}, {t}, {s.vN}, {x} bitop3:0xf6')
        A(f'v_cmp_ne_u32 vcc, 0, {t}'); s.V.put(t)
    def poll(s, loads, tags, sl=0, mask=None, d0=0):
        A = s.A; L = s.lab('P'); D = s.lab('PD'); L0 = s.lab('P')
        if mask == '0xffffffff': A('s_mov_b32 exec_hi, 0')
        elif mask: A(f's_mov_b64 exec, {mask}')
        if d0: A(f's_sleep {d0}')
        if sl: A(f's_branch {L0}')
        A(f'{L}:')
        if sl: A(f's_sleep {sl}'); A(f'{L0}:')
        for ld in loads: A(ld)
        s.tick_spin(D); s.tagcmp(tags); A(f's_cbranch_vccnz {L}')
        A(f'{D}:'); A('s_waitcnt vmcnt(0)')
        if mask: A('s_mov_b64 exec, -1')
    def poll2(s, va, soff, mask=0xffff):
        A = s.A; L = s.lab('P'); D = s.lab('PD'); a = s.pF; b = s.V.get()
        if not s.o['pp']:
            s.poll([s.polltxt(a, va, soff)], [a], mask=mask); s.V.put(b); return
        A(f's_mov_b64 exec, {mask}')
        A(s.polltxt(a, va, soff)); A(f's_sleep {s.o["pp"]}')
        A(f'{L}:')
        A(s.polltxt(b, va, soff)); s.tick_spin(D)
        A('s_waitcnt vmcnt(1)'); A(f'v_cmp_ne_u32 vcc, {s.sN}, {a}'); A(f's_cbranch_vccz {D}')
        A(s.polltxt(a, va, soff))
        A('s_waitcnt vmcnt(1)'); A(f'v_cmp_ne_u32 vcc, {s.sN}, {b}'); A(f's_cbranch_vccnz {L}')
        A(f'{D}:'); A('s_mov_b64 exec, -1')
        A.ctl('pend', (a, b)); s.hold.append(b)
    def checked(s, loads, tags, pre=None, sl=0):
        A = s.A; Lr = s.lab('R'); Lb = s.lab('B'); L2 = s.lab('R')
        s.tagcmp(tags); A(f's_cbranch_vccnz {Lr}'); A(f'{Lb}:')
        def slow():
            A(f'{Lr}:')
            if callable(pre): pre()
            A('s_waitcnt vmcnt(0) lgkmcnt(0)')
            if pre and not callable(pre): A(pre)
            A(f'{L2}:')
            if sl: A(f's_sleep {sl}')
            for ld in loads: A(ld)
            A('s_waitcnt vmcnt(0)'); s.tick_spin(Lb); s.tagcmp(tags); A(f's_cbranch_vccnz {L2}'); A('s_nop 4'); A(f's_branch {Lb}')
        s.outline(slow)
    def flagtxt(s, soff, va=None): return f'buffer_atomic_swap {s.vN}, {va or s.vL0}, {sWS}, {soff} offen sc1'
    def polltxt(s, d, va, soff): return f'v_mov_b32 {d}, 0\nbuffer_atomic_add {d}, {va}, {sWS}, {soff} offen sc0 sc1'
    def setflag(s, last_store, soff):
        if last_store == 'prejoin': s.A.wait_prejoin()
        else: s.A.waitvm(last_store)
        s.A(s.flagtxt(soff))
    def nonce(s):
        A = s.A
        A(f's_mul_i32 {s.sN}, {s.sN}, 1664525'); A(f's_add_u32 {s.sN}, {s.sN}, 1013904223'); A(f'v_mov_b32 {s.vN}, {s.sN}')
    def srd(s, *lst):
        sz = {str(sX): 2621440, str(sWQKV): 2457600, str(sW1): 819200, str(sW3): 1966080, str(sWS): WS_USED, str(sW2): 819200, str(sWO): 819200, str(sW4): 1966080, str(sOUT): 2621440}
        for r in lst: s.A(f's_mov_b32 {r[2]}, {sz[str(r)]}'); s.A(f's_mov_b32 {r[3]}, 0x20000')
    def rbf(s, d, x):
        s.A(f'v_cvt_pk_bf16_f32 {d}, {x}, {x}'); s.A(f'v_and_b32 {d}, 0xffff0000, {d}')
    def rstd(s, d, var):
        A = s.A
        s.rbf(d, var); A(f'v_add_f32 {d}, {hexf(1e-5)}, {d}'); s.rbf(d, d); A(f'v_sqrt_f32 {d}, {d}'); s.rbf(d, d)
    def split_w(s, q, v):
        A = s.A
        A(f'v_cvt_pk_bf16_f32 {q[1]}, {v}, {v}'); A(f'v_and_b32 {q[2]}, 0xffff0000, {q[1]}'); A(f'v_sub_f32 {q[3]}, {v}, {q[2]}')
        A(f'v_cvt_pk_bf16_f32 {q[0]}, {q[2]}, {q[3]}'); A(f'v_and_b32 {q[1]}, 0xffff, {q[1]}'); A(f'v_mov_b32 {q[2]}, 0'); A(f'v_mov_b32 {q[3]}, 0')
    def split_x(s, q, m):
        A = s.A
        A(f'v_cvt_pk_bf16_f32 {q[0]}, -{m}, -{m}'); A(f'v_and_b32 {q[2]}, 0xffff0000, {q[0]}'); A(f'v_sub_f32 {q[2]}, -{m}, {q[2]}')
        A(f'v_cvt_pk_bf16_f32 {q[1]}, {q[2]}, 0'); A(f'v_mov_b32 {q[2]}, 0'); A(f'v_mov_b32 {q[3]}, 0')
    def mk_nt_read(s, NT, regs=None, wins=(0, 1, 2), add=0):
        A = s.A; b = regs[0] if regs else s.V.get(); t = s.V.get(); rs = 64 * NT
        A(f'v_lshrrev_b32 {b}, 5, {s.vLane}'); A(f'v_lshlrev_b32 {b}, 3, {b}')
        A(f'v_bfe_u32 {t}, {s.vLane}, 2, 2'); A(f'v_add_u32 {b}, {b}, {t}'); A(f'v_mul_u32_u24 {b}, {rs}, {b}')
        A(f'v_and_b32 {t}, 3, {s.vLane}'); A(f'v_lshl_add_u32 {b}, {t}, 3, {b}')
        A(f'v_and_b32 {t}, 16, {s.vLane}'); A(f'v_lshl_add_u32 {b}, {t}, 1, {b}')
        if NT == 3:
            f = s.dsaddr(b, wins, regs=regs[1:] if regs else None); s.V.put(t)
            return [(lambda c, J=J: f(c + 64 * J)) for J in range(3)], f.regs
        A(f'v_and_b32 {t}, 8, {s.vLane}'); A(f'v_lshlrev_b32 {t}, 3, {t}')
        A(f'v_xor_b32 {b}, {b}, {t}'); A(f'v_add_u32 {b}, {add}, {b}'); A(f'v_xor_b32 {t}, 64, {b}')
        f0 = s.dsaddr(b, wins); f1 = s.dsaddr(t, wins)
        return [f0, f1], f0.regs + f1.regs
    def f16_voff(s, d, tok, nkb):
        A = s.A; t = s.V.get()
        A(f'v_lshrrev_b32 {t}, 4, {tok}'); A(f'v_mul_u32_u24 {t}, {nkb * 1024}, {t}')
        A(f'v_and_b32 {d}, 15, {tok}'); A(f'v_lshl_add_u32 {d}, {d}, 4, {t}')
        A(f'v_and_b32 {t}, 32, {s.vLane}'); A(f'v_lshl_add_u32 {d}, {t}, 3, {d}')
        s.V.put(t)
    def snap(s): return (s.V.snapshot(), s.AG.snapshot(), s.S.snapshot())
    def rest(s, x): s.V.restore(x[0]); s.AG.restore(x[1]); s.S.restore(x[2])

    def entry(s):
        A = s.A; S = s.S; V = s.V
        if s.stamps: s.sEnt = S.get(2); A(f's_mem{"" if "cyc" in s.dbg else "real"}time {s.sEnt}')
        A('s_cmp_ge_u32 s2, 256'); A('s_cbranch_scc1 L_end')
        s.sT0, s.sT1, s.sT2, s.sT3 = S.get(), S.get(), S.get(), S.get()
        s.sW, s.sN, s.sSp, s.sIdx, s.sXr, s.sXc, s.sRb, s.sCl, s.sRb2, s.sJ2 = [S.get() for _ in range(10)]
        s.vLane, s.vN, s.vCtl, s.vL16, s.vL0 = [V.get() for _ in range(5)]; s.vF = V.get(2)
        t = V.get(); pc = S.get(2); s.vJunk = R('a', s.AG.hi - 4, 4)
        A(f's_getpc_b64 {pc}'); A('L_pc:')
        A(f's_lshr_b32 {s.sIdx}, s2, 3'); A(f's_mul_i32 {s.sT2}, {s.sIdx}, 3072')
        A(f'v_min_u32 {t}, 191, v0'); A(f'v_lshl_add_u32 {t}, {t}, 4, {s.sT2}'); A(f'v_min_u32 {t}, L_codeend-L_pc-16, {t}')
        A(f'global_load_dwordx4 {s.vJunk}, {t}, {pc}')
        A(f'v_and_b32 {s.vLane}, 63, v0'); A(f'v_mov_b32 {s.vCtl}, {CTRL}'); A(f'v_mov_b32 {s.vN}, 0'); A(f'v_lshl_add_u32 {t}, {s.vLane}, 2, {s.vCtl}'); A(f'ds_write_b32 {t}, {s.vN}')
        A(f'v_lshrrev_b32 {t}, 6, v0'); A(f'v_lshlrev_b32 {s.vL16}, 4, {s.vLane}')
        A(f'v_readfirstlane_b32 {s.sW}, {t}')
        A('s_waitcnt lgkmcnt(0)')
        for srd, off in [(sX, 0), (sWQKV, 8), (sW1, 32), (sW3, 48), (sWS, 80), (sW2, 40), (sWO, 16), (sW4, 56), (sOUT, 64)]:
            A(f's_load_dwordx2 {srd[0:2]}, s[0:1], {off}')
        A('s_barrier'); S.put(pc)
        if s.stamps: s.sStamp = S.get(2); s.vStamp = V.get(); A(f'v_mov_b32 {s.vStamp}, 0')
        A(f's_and_b32 {s.sXr}, s2, 3'); A(f's_bfe_u32 {s.sXc}, s2, 0x10002')
        A(f's_and_b32 {s.sT2}, {s.sIdx}, 3'); A(f's_lshl2_add_u32 {s.sRb}, {s.sXr}, {s.sT2}'); A(f's_lshr_b32 {s.sCl}, {s.sIdx}, 2')
        A(f's_lshl1_add_u32 {s.sT0}, {s.sXr}, {s.sXc}'); A(f's_lshr_b32 {s.sT2}, {s.sIdx}, 3'); A(f's_lshl2_add_u32 {s.sRb2}, {s.sT0}, {s.sT2}'); A(f's_and_b32 {s.sJ2}, {s.sIdx}, 7')
        A(f's_mov_b32 {s.sSp}, {SPIN}')
        V.put(t)
        A(f's_cmp_eq_u32 {s.sW}, 4'); A('s_cbranch_scc1 L_load0')
        A(f's_cmp_lt_u32 {s.sW}, 4'); A('s_cbranch_scc1 L_comp')
        A(f's_cmp_ge_u32 {s.sW}, 6'); A('s_cbranch_scc1 L_job')
        A.ctl('save', 'entry')
    def rot4(s, d):
        A = s.A; rj = s.o['rj']
        if rj == 0: A(f's_and_b32 {d}, {s.sRb2}, 3'); return
        A(f's_lshl1_add_u32 {d}, {s.sJ2}, {s.sRb2}' if rj == 2 else f's_add_u32 {d}, {s.sJ2}, {s.sRb2}'); A(f's_and_b32 {d}, {d}, 3')
    def rot2(s, d):
        A = s.A
        if not s.o['r3']: A(f's_bfe_u32 {d}, {s.sRb2}, 0x10001'); return
        A(f's_lshr_b32 {d}, {s.sRb2}, 1'); A(f's_lshr_b32 {s.sT3}, {s.sIdx}, {s.o["r3"] - 1}'); A(f's_add_u32 {d}, {d}, {s.sT3}'); A(f's_and_b32 {d}, {d}, 1')
    def mkL0(s):
        A = s.A; t = s.V.get()
        A(f'v_cmp_eq_u32 vcc, 0, {s.vLane}'); A(f'v_mov_b32 {t}, {OOB}'); A(f'v_cndmask_b32 {s.vL0}, {t}, {s.vLane}, vcc'); s.V.put(t)

    def voff10(s):
        A = s.A; V = s.V; x = [V.get() for _ in range(5)]; t = V.get()
        for k in range(5):
            A(f'v_add_u32 {t}, {64 * k}, {s.vLane}'); A(f'v_mul_u32_u24 {t}, 6554, {t}'); A(f'v_lshrrev_b32 {t}, 16, {t}')
            A(f'v_mul_u32_u24 {t}, 1120, {t}'); A(f'v_add_u32 {x[k]}, {t}, {s.vL16}')
        A(f'v_add_u32 {x[4]}, 4096, {x[4]}'); V.put(t)
        return x
    def prog_wait(s, q4, val, sl=0):
        A = s.A; L4 = s.lab(); L5 = s.lab()
        A(f'{L4}:'); A(f'ds_read_b128 {q4}, {s.vCtl} offset:16'); s.tick_spin(L5, sl)
        A(f'v_min3_u32 {q4[0]}, {q4[0]}, {q4[1]}, {q4[2]}'); A(f'v_min_u32 {q4[0]}, {q4[0]}, {q4[3]}'); A(f'v_cmp_gt_u32 vcc, {val}, {q4[0]}'); A(f's_cbranch_vccnz {L4}')
        A(f'{L5}:')
    def job(s):
        A = s.A; S = s.S; V = s.V; o = s.o
        A('L_job:'); A.ctl('restore', 'entry')
        t = V.get(); u = V.get(); vC0 = V.get(); ad = V.get(); wb = [V.get(4) for _ in range(3)]; vo = [V.get() for _ in range(4)]; sK = S.get()
        A(f's_and_b32 {sK}, {s.sW}, 1')
        A(f'v_lshrrev_b32 {t}, 3, {s.vLane}'); A(f'v_and_b32 {u}, 7, {s.vLane}')
        A(f's_cmp_eq_u32 {s.sW}, 7'); A('s_cbranch_scc1 L_job1')
        A.ctl('save', 'jfork'); sn = s.snap()
        def after_bar():
            A(f's_load_dword {s.sN}, {sWS[0:2]}, 0')
            s.srd(sWO); s.mkL0()
            A(f'v_lshrrev_b32 {vC0}, 10, {s.vL0}'); A(f's_lshl_b32 {s.sT0}, {sK}, 2'); A(f's_add_u32 {s.sT0}, {s.sT0}, {CTRL}'); A(f'v_add_u32 {vC0}, {s.sT0}, {vC0}')
            A(f'v_lshrrev_b32 {ad}, 4, {s.vLane}'); A(f'v_lshlrev_b32 {ad}, 3, {ad}'); A(f'v_bfe_u32 {t}, {s.vLane}, 2, 2'); A(f'v_add_u32 {ad}, {ad}, {t}')
            A(f'v_and_b32 {t}, 3, {s.vLane}'); A(f'v_lshlrev_b32 {t}, 3, {t}')
            A(f'v_mul_u32_u24 {u}, 160, {ad}'); A(f'v_add_u32 {u}, {u}, {t}'); A(f'v_lshl_add_u32 {ad}, {ad}, 7, {t}')
        def wo_dma(addr):
            x = s.voff10()
            A(f's_mul_i32 {s.sT1}, {s.sRb2}, 25600'); A(f's_mul_i32 {s.sT2}, {s.sJ2}, 160'); A(f's_mov_b32 m0, {addr}'); A(f's_add_u32 {s.sT1}, {s.sT1}, {s.sT2}')
            for i in range(4): A(f'buffer_load_dwordx4 {x[i]}, {sWO}, {s.sT1} offen offset:{1024 * i} nt lds')
            A(f's_mov_b32 m0, {addr + 4096}'); last = A(f'buffer_load_dwordx4 {x[4]}, {sWO}, {s.sT1} offen nt lds')
            V.put(*x); return last
        def wo_read(addr, k):
            A(f'v_add_u32 {u}, {addr + 96 * k}, {u}')
            for i in range(3):
                for t2 in range(2): A(f'ds_read_b64_tr_b16 {wb[i].sub(2*t2, 2)}, {u} offset:{32 * i + 640 * t2}')
        sLc = S.get(); ml = s.sT2; idx = s.sIdx
        A(f's_movk_i32 {sLc}, 10'); A(f's_movk_i32 {ml}, 5')
        for th, a_, m_ in [(5, 15, None), (10, -10, 3), (13, 17, None), (16, -10, 2), (18, 18, None), (20, 20, 12)]:
            A(f's_cmp_ge_u32 {idx}, {th}'); A(f's_cmovk_i32 {sLc}, {a_}')
            if m_: A(f's_cmovk_i32 {ml}, {m_}')
        A(f's_mul_i32 {ml}, {ml}, {s.sXc}'); A(f's_add_u32 {sLc}, {sLc}, {idx}'); A(f's_add_u32 {sLc}, {sLc}, {ml}')
        s.srd(sWQKV, sW1, sW3, sWS)
        st = s.sT1; lc = s.sT0
        A(f's_cmp_lt_u32 {sLc}, 40'); A(f's_movk_i32 {st}, 3072'); A(f's_cmovk_i32 {st}, 1280'); A(f's_cselect_b32 {s.sT2}, 30, 40')
        A(f's_cmp_lt_u32 {sLc}, 30'); A(f's_cmovk_i32 {st}, 3840'); A(f's_cmovk_i32 {s.sT2}, 0')
        A(f's_sub_u32 {lc}, {sLc}, {s.sT2}'); A(f's_lshl_b32 {lc}, {lc}, 7')
        A(f's_mul_i32 {s.sT2}, {s.sXr}, 160'); A(f's_mul_i32 {s.sT2}, {s.sT2}, {st}'); A(f's_add_u32 {lc}, {lc}, {s.sT2}')
        A(f'v_mul_lo_u32 {vo[0]}, {t}, {st}'); A(f'v_lshl_add_u32 {vo[0]}, {u}, 4, {vo[0]}')
        A(f's_lshl_b32 {s.sT2}, {st}, 3'); A(f's_sub_u32 {s.sT2}, {s.sT2}, 1024')
        for i in range(1, 4): A(f'v_add_u32 {vo[i]}, {s.sT2}, {vo[i-1]}')
        A(f's_lshl_b32 {st}, {st}, 5')
        A(f's_cmp_lt_u32 {sLc}, 40')
        A(f's_cselect_b64 {sD0[0:2]}, {sW1[0:2]}, {sW3[0:2]}'); A(f's_cselect_b32 {sD0[2]}, {sW1[2]}, {sW3[2]}')
        A(f's_cmp_lt_u32 {sLc}, 30')
        A(f's_cselect_b64 {sD0[0:2]}, {sWQKV[0:2]}, {sD0[0:2]}'); A(f's_cselect_b32 {sD0[2]}, {sWQKV[2]}, {sD0[2]}')
        A(f's_mov_b32 {sD0[3]}, 0x20000')
        CSA = s.st[3].addr
        if o['iss']: s.lds_wait(64, 1)
        for g in range(5):
            A(f's_mov_b32 m0, {CSA + 4096 * g}')
            if g: A(f's_add_u32 {lc}, {lc}, {st}')
            for i in range(4): cs_last = A(f'buffer_load_dwordx4 {vo[i]}, {sD0}, {lc} offen offset:{1024 * i} lds')
        s.stamp(0); after_bar()
        s.nonce()
        ones = V.get(4); fr = V.get(80); D = [V.get(4) for _ in range(4)]
        for i in range(4): A(f'v_mov_b32 {ones[i]}, 0x3f803f80')
        A(f'v_mov_b32 {t}, 1')
        A.waitvm(cs_last)
        for w in range(4):
            for ks in range(5):
                for t2 in range(2): A(f'ds_read_b64_tr_b16 {fr.sub(20*w + 4*ks + 2*t2, 2)}, {ad} offset:{CSA + 32 * w + (32*ks + 4*t2) * 128}')
        A(f'ds_write_b32 {vC0}, {t} offset:8')
        for w in range(4):
            for ks in range(5): A(f'v_mfma_f32_16x16x32_bf16 {D[w]}, {ones}, {fr.sub(20*w + 4*ks, 4)}, {"0" if ks == 0 else D[w]}')
        A(f's_lshl_b32 {sLc}, {sLc}, 9'); A(f's_lshl_b32 {s.sT0}, {s.sXr}, 15'); A(f's_add_u32 {sLc}, {sLc}, {s.sT0}'); A(f's_add_u32 {sLc}, {sLc}, {CS}'); A(f'v_lshlrev_b32 {vo[0]}, 3, {s.vLane}')
        for w in range(1, 4):
            A(f'v_cmp_le_u32 vcc, {16 * w}, {s.vLane}'); A(f'v_cndmask_b32 {D[0][0]}, {D[0][0]}, {D[w][0]}, vcc')
        A(f'v_mov_b32 {D[0][1]}, {s.sN}')
        A(f'buffer_store_dwordx2 {D[0][0:2]}, {vo[0]}, {sWS}, {sLc} offen sc1')
        s.stamp(1)
        s.lds_wait(12, 1, sl=2); wo_read(RPB + 4 * KB, 0); A(f'v_mov_b32 {t}, 1'); A(f'ds_write_b32 {vC0}, {t} offset:40')
        V.put(ones, fr, *D)
        a0, b0, nA = S.get(), S.get(), S.get(); sl_ = [S.get() for _ in range(4)]
        A(f's_lshl1_add_u32 {s.sT0}, {s.sXc}, {s.sCl}'); A(f's_cmp_lt_u32 {s.sCl}, 6'); A(f's_cselect_b32 {s.sT1}, 4, 6'); A(f's_cselect_b32 {a0}, 1920, 0'); A(f's_cselect_b32 {b0}, 0, 1920')
        A(f's_sub_u32 {s.sT0}, {s.sT0}, {s.sT1}'); A(f's_mul_i32 {s.sT1}, {s.sT0}, 96'); A(f's_add_u32 {a0}, {a0}, {s.sT1}'); A(f's_lshl_b32 {s.sT1}, {s.sT0}, 6'); A(f's_add_u32 {b0}, {b0}, {s.sT1}'); A(f's_add_u32 {b0}, {b0}, {384 - 96}')
        A(f's_lshl2_add_u32 {s.sT0}, {s.sXc}, {s.sCl}'); A(f's_mul_i32 {s.sT0}, {s.sT0}, 80'); A(f's_add_u32 {s.sT1}, {s.sT0}, 640'); A(f's_add_u32 {s.sT0}, {s.sT0}, {1280 - 80}')
        A(f's_movk_i32 {nA}, 96'); A(f's_cmp_lt_u32 {s.sCl}, 4'); A(f's_cmov_b32 {a0}, {s.sT1}'); A(f's_cmov_b32 {b0}, {s.sT0}'); A(f's_cmovk_i32 {nA}, 80')
        A(f's_and_b32 {s.sT2}, {s.sIdx}, 15'); A(f's_mul_i32 {s.sT2}, {s.sT2}, 96'); A(f's_add_u32 {s.sT2}, {s.sT2}, {2560 - 160}')
        for g in range(4):
            A(f'v_add_u32 {t}, {64 * g}, {s.vLane}')
            if g == 0: A(f'v_add_u32 {vo[g]}, {a0}, {t}')
            elif g == 3: A(f'v_add_u32 {vo[g]}, {s.sT2}, {t}')
            else:
                lo, hi, th = (a0, b0, nA) if g == 1 else (b0, s.sT2, 160)
                A(f'v_cmp_gt_u32 vcc, {th}, {t}'); A(f'v_add_u32 {vo[g]}, {lo}, {t}'); A(f'v_add_u32 {t}, {hi}, {t}'); A(f'v_cndmask_b32 {vo[g]}, {t}, {vo[g]}, vcc')
            A(f'v_lshlrev_b32 {vo[g]}, 3, {vo[g]}'); A(f's_mov_b32 {sl_[g]}, {CS + 32768 * g}')
        A(f's_lshl_b32 {a0}, {s.sRb}, 11'); A(f's_add_u32 {a0}, {a0}, {RS}'); A(f's_lshl_b32 {b0}, {s.sRb2}, 10'); A(f's_add_u32 {b0}, {b0}, {RS}')
        gr = [V.get(4) for _ in range(3)]; cg = [[V.get(2) for _ in range(4)] for _ in range(4)]; q4 = V.get(4); v8 = V.get()
        loads = [f'buffer_load_dwordx4 {gr[i]}, {s.vL16}, {sWS}, {a0} offen offset:{1024 * i} sc1' for i in range(2)] + [f'buffer_load_dwordx4 {gr[2]}, {s.vL16}, {sWS}, {b0} offen sc1']
        loads += [f'buffer_load_dwordx2 {cg[g][e]}, {vo[g]}, {sWS}, {sl_[e]} offen sc1' for g in range(4) for e in range(4)]
        A(f'v_lshlrev_b32 {v8}, 3, {s.vLane}'); A(f'v_add_u32 {v8}, {GW}, {v8}'); A(f'v_add_u32 {ad}, {GK}, {s.vL16}'); A(f'v_lshlrev_b32 {u}, 2, {s.vLane}'); A(f'v_add_u32 {u}, {G1}, {u}')
        s.lds_wait(0, o['gd'], sl=4)
        for ld in loads: A(ld)
        s.checked(loads, [g[3] for g in gr] + [c[1] for r_ in cg for c in r_], sl=8)
        for g in range(4):
            c = cg[g]
            A(f'v_add_f32 {c[0][0]}, {c[0][0]}, {c[1][0]}'); A(f'v_add_f32 {c[2][0]}, {c[2][0]}, {c[3][0]}'); A(f'v_add_f32 {c[0][0]}, {c[0][0]}, {c[2][0]}')
            A(f'v_cvt_pk_bf16_f32 {c[1][1]}, {c[0][0]}, {c[0][0]}'); A(f'v_and_b32 {c[2][0]}, 0xffff0000, {c[1][1]}'); A(f'v_sub_f32 {c[2][1]}, {c[0][0]}, {c[2][0]}')
            A(f'v_cvt_pk_bf16_f32 {c[1][0]}, {c[2][0]}, {c[2][1]}'); A(f'v_and_b32 {c[1][1]}, 0xffff, {c[1][1]}')
            A(f'ds_write_b64 {v8}, {c[1]} offset:{512 * g}')
        for i in range(2):
            g = gr[i]; c = cg[i][0]
            A(f'v_cvt_pk_bf16_f32 {c[0]}, -{g[1]}, -{g[1]}'); A(f'v_and_b32 {c[1]}, 0xffff0000, {c[0]}'); A(f'v_sub_f32 {c[1]}, -{g[1]}, {c[1]}'); A(f'v_cvt_pk_bf16_f32 {c[1]}, {c[1]}, 0')
            A(f'ds_write_b64 {v8}, {c} offset:{GX - GW + 512 * i}'); A(f'ds_write_b32 {u}, {g[0]} offset:{256 * i}')
            A(f'v_mul_f32 {t}, {g[0]}, {g[2]}'); A(f'v_mov_b32 {g[3]}, {g[0]}'); A(f'v_rcp_f32 {g[2]}, {t}')
            A(f'v_mul_f32 {g[0]}, {hexf(GC0)}, {t}'); A(f'v_mul_f32 {g[1]}, {t}, {t}'); A(f'v_mul_f32 {g[1]}, {g[1]}, {t}'); A(f'v_mul_f32 {g[1]}, {hexf(GC1)}, {g[1]}')
            A(f'ds_write_b128 {ad}, {g} offset:{1024 * i}')
        A(f'v_mul_f32 {gr[2][1]}, {gr[2][0]}, {gr[2][1]}'); A(f'ds_write_b64 {v8}, {gr[2][0:2]} offset:{G2 - GW}')
        A(f'v_mov_b32 {t}, 1'); A(f'ds_write_b32 {vC0}, {t} offset:36')
        A('s_waitcnt vmcnt(0) lgkmcnt(0)'); A('s_branch L_jobj')
        s.rest(sn); A('L_job1:'); A.ctl('restore', 'jfork')
        junk = V.get(2); q = V.get()
        A(f'v_mul_u32_u24 {vo[0]}, 1280, {t}'); A(f'v_lshl_add_u32 {vo[0]}, {u}, 4, {vo[0]}')
        for i in range(1, 4): A(f'v_add_u32 {vo[i]}, {8 * 1280 - 1024}, {vo[i-1]}')
        s.srd(sWS, sW4, sW2)
        kb = [S.get() for _ in range(2)]; lcc = [S.get() for _ in range(2)]; nt = 'nt' if o['ntr'] else ''
        for r in range(2):
            A(f's_add_u32 {lcc[r]}, s2, {256 * r}'); A(f's_mul_i32 {kb[r]}, {lcc[r]}, 6554'); A(f's_lshr_b32 {kb[r]}, {kb[r]}, 16')
            A(f's_mul_i32 {s.sT2}, {kb[r]}, 10'); A(f's_sub_u32 {lcc[r]}, {lcc[r]}, {s.sT2}')
        fr = V.get(32)
        def rp_ld(srd, r):
            A(f's_mul_i32 {s.sT0}, {kb[r]}, 40960'); A(f's_lshl_b32 {s.sT2}, {lcc[r]}, 7'); A(f's_mov_b32 m0, {RPB + 4096 * r}'); A(f's_add_u32 {s.sT0}, {s.sT0}, {s.sT2}')
            for i in range(4): x = A(f'buffer_load_dwordx4 {vo[i]}, {srd}, {s.sT0} offen offset:{1024 * i} {nt} lds')
            return x
        def rp_st(r, nkb, base):
            for w in range(4):
                for t2 in range(2): A(f'ds_read_b64_tr_b16 {fr.sub(16*r + 4*w + 2*t2, 2)}, {ad} offset:{4096 * r + 32 * w + 512 * t2}')
            A(f's_mul_i32 {s.sT1}, {kb[r]}, 5')
            for w in range(4):
                A(f's_lshl_b32 {s.sT0}, {lcc[r]}, 2'); A(f's_add_u32 {s.sT0}, {s.sT0}, {w}'); A(f's_mul_i32 {s.sT2}, {s.sT0}, 52'); A(f's_lshr_b32 {s.sT2}, {s.sT2}, 8')
                A(f's_mul_i32 {s.sT2}, {s.sT2}, {5 * nkb - 5}'); A(f's_add_u32 {s.sT0}, {s.sT0}, {s.sT2}'); A(f's_add_u32 {s.sT0}, {s.sT0}, {s.sT1}')
                A(f's_lshl_b32 {s.sT0}, {s.sT0}, 10'); A(f's_add_u32 {s.sT0}, {s.sT0}, {base}')
                A(f's_cmp_ge_u32 {kb[r]}, {nkb}'); A(f's_cmov_b32 {s.sT0}, {OOB}')
                x = A(f'buffer_store_dwordx4 {fr.sub(16*r + 4*w, 4)}, {s.vL16}, {sWS}, {s.sT0} offen sc1')
            return x
        def rp_fl(r, fb, sh): A(f's_lshl_b32 {s.sT0}, {lcc[r]}, {sh}'); A(f's_lshl2_add_u32 {s.sT0}, {kb[r]}, {s.sT0}'); A(f's_add_u32 {s.sT0}, {s.sT0}, {fb}'); A(s.flagtxt(s.sT0))
        xs = V.get(40); sRow0 = S.get()
        s.srd(sX)
        A(f's_lshl1_add_u32 {sRow0}, {s.sXr}, {s.sXc}'); A(f's_lshl_b32 {sRow0}, {sRow0}, 5'); A(f's_add_u32 {sRow0}, {sRow0}, {s.sIdx}'); A(f's_mul_i32 {s.sT3}, {sRow0}, 10240')
        if o['iss']: s.lds_wait(64, 1)
        for i in range(10): A(f'buffer_load_dwordx4 {xs.sub(4*i, 4)}, {vo[0]}, {sX}, {s.sT3} offen offset:{128 * i}')
        x = rp_ld(sW2, 0)
        s.stamp(0)
        after_bar()
        wl = wo_dma(RPB + 4 * KB)
        A(f'v_lshlrev_b32 {t}, 7, {s.vLane}')
        A(f's_lshl_b32 {s.sT0}, s2, 8'); A(f's_min_u32 {s.sT0}, {s.sT0}, {0xC300}'); A(f's_add_u32 {s.sT0}, {s.sT0}, {F1}'); A(f'v_mov_b32 {junk[1]}, 0'); A('s_mov_b64 exec, 3')
        A(f'buffer_atomic_add {junk[1]}, {t}, {sWS}, {s.sT0} offen sc1'); A('s_mov_b64 exec, -1')
        s.nonce()
        A(f'v_add_u32 {ad}, {RPB}, {ad}')
        g = V.get(4); sm = g[1]; sq = V.get(); one = V.get()
        A(f'v_mov_b32 {one}, 0x3f803f80'); A(f'v_mov_b32 {sm}, 0'); A(f'v_mov_b32 {sq}, 0')
        for i in range(40): A(f'v_dot2c_f32_bf16 {sm}, {xs[i]}, {one}'); A(f'v_dot2c_f32_bf16 {sq}, {xs[i]}, {xs[i]}')
        for m in ['quad_perm:[1,0,3,2]', 'quad_perm:[2,3,0,1]', 'row_half_mirror']:
            A(f'v_add_f32_dpp {sm}, {sm}, {sm} {m} row_mask:0xf bank_mask:0xf'); A(f'v_add_f32_dpp {sq}, {sq}, {sq} {m} row_mask:0xf bank_mask:0xf')
        A(f'v_mul_f32 {sm}, {hexf(1.0/640)}, {sm}'); A(f'v_mul_f32 {sq}, {hexf(1.0/640)}, {sq}')
        A(f'v_fma_f32 {sq}, -{sm}, {sm}, {sq}'); A(f'v_max_f32 {sq}, 0, {sq}')
        s.rstd(g[0], sq); A(f'v_rcp_f32 {g[0]}, {g[0]}')
        A(f'v_mov_b32 {g[3]}, {s.sN}')
        A(f'v_mul_f32 {sq}, {sq}, {g[0]}'); A(f'v_mul_f32 {sq}, {sq}, {g[0]}')
        s.rstd(g[2], sq); A(f'v_rcp_f32 {g[2]}, {g[2]}')
        A(f'v_lshlrev_b32 {t}, 5, {s.vLane}')
        for e in range(3): A(f'ds_bpermute_b32 {g[e]}, {t}, {g[e]}')
        A(f's_lshl_b32 {s.sT0}, {sRow0}, 7'); A(f's_add_u32 {s.sT0}, {s.sT0}, {RS}')
        A('s_mov_b64 exec, 0xff')
        A(f'buffer_store_dwordx4 {g}, {s.vL16}, {sWS}, {s.sT0} offen sc1'); A('s_mov_b64 exec, -1')
        A.waitvm(x); x = rp_st(0, 20, W2R)
        A(f'v_mov_b32 {t}, 1')
        A.waitvm(wl); wo_read(RPB + 4 * KB, 1); A(f'ds_write_b32 {vC0}, {t} offset:8')
        A.waitvm(x); rp_fl(0, FR2, 7)
        s.stamp(1)
        s.lds_wait(36, 1, sl=8)
        s.lds_wait(0, o['jd'], sl=8)
        rp_ld(sW4, 0); x = rp_ld(sW4, 1)
        A(f'v_min_u32 {t}, 24, {s.vLane}'); A(f'v_lshlrev_b32 {t}, 7, {t}'); A(f's_mul_i32 {s.sT0}, s2, {25 * 128}'); A(f's_add_u32 {s.sT0}, {s.sT0}, {WOP}')
        if o['pt']: A(f'buffer_load_dword {junk[0]}, {t}, {sWS}, {s.sT0} offen sc1')
        A(f'v_mov_b32 {t}, 1')
        A.waitvm(x)
        rp_st(0, 48, W4R); x = rp_st(1, 48, W4R)
        A(f'ds_write_b32 {vC0}, {t} offset:40')
        A.waitvm(x); rp_fl(0, FR4, 8); rp_fl(1, FR4, 8)
        A('s_waitcnt vmcnt(0) lgkmcnt(0)')
        s.rest(sn); A('L_jobj:')
        s.stamp(2)
        if s.stop > 2:
            vTok, pa, vk, vz, vp, vkw, vka, q, vfl = [V.get() for _ in range(9)]; wa = [V.get() for _ in range(2)]
            sHp = S.get()
            A(f'v_and_b32 {vTok}, 15, {s.vLane}'); A(f's_lshl1_add_u32 {sHp}, {s.sJ2}, {sK}')
            A(f'v_and_b32 {t}, 7, {s.vLane}'); A(f'v_lshlrev_b32 {t}, 2, {t}'); A(f'v_and_b32 {u}, 8, {s.vLane}'); A(f'v_lshl_add_u32 {t}, {u}, 4, {t}')
            A(f's_lshl_b32 {s.sT0}, {s.sRb2}, 8'); A(f's_add_u32 {s.sT0}, {s.sT0}, {FQ}'); A(f'v_add_u32 {pa}, {s.sT0}, {t}')
            A(f's_lshl_b32 {s.sT0}, {s.sJ2}, 8'); A(f's_add_u32 {s.sT0}, {s.sT0}, {FK}'); A(f'v_lshlrev_b32 {t}, 2, {vTok}')
            A(f'v_and_b32 {u}, 32, {s.vLane}'); A(f'v_lshl_add_u32 {u}, {u}, 2, {t}'); A(f'v_add_u32 {u}, {s.sT0}, {u}'); A(f'v_cmp_gt_u32 vcc, 16, {s.vLane}'); A(f'v_cndmask_b32 {pa}, {u}, {pa}, vcc')
            A(f's_lshr_b32 {s.sT0}, {s.sRb2}, 1'); A(f's_lshl_b32 {s.sT0}, {s.sT0}, 7'); A(f's_add_u32 {s.sT0}, {s.sT0}, {FK}')
            A(f'v_add_u32 {u}, {s.sT0}, {t}'); A(f'v_cmp_gt_u32 vcc, 48, {s.vLane}'); A(f'v_cndmask_b32 {pa}, {u}, {pa}, vcc')
            d40 = vk; E = vz
            A(f'v_min_u32 {q}, 49, {s.vLane}'); A(f's_mul_i32 {s.sT0}, {sK}, 50'); A(f'v_add_u32 {q}, {s.sT0}, {q}')
            A(f'v_mul_u32_u24 {u}, 3277, {q}'); A(f'v_lshrrev_b32 {u}, 16, {u}'); A(f'v_mul_u32_u24 {d40}, 20, {u}'); A(f'v_sub_u32 {d40}, {q}, {d40}')
            A(f'v_lshlrev_b32 {q}, 6, {d40}'); A(f'v_lshl_add_u32 {q}, {u}, 3, {q}'); A(f'v_add_u32 {vkw}, {KVB}, {q}')
            A(f's_and_b32 {s.sT0}, {s.sRb2}, 1'); A(f's_mul_i32 {s.sT0}, {s.sT0}, 20'); A(f'v_add_u32 {d40}, {s.sT0}, {d40}')
            A(f's_add_u32 {s.sT0}, {s.sT0}, 8'); A(f'v_lshl_add_u32 {E}, {u}, 2, {s.sT0}'); A(f'v_lshlrev_b32 {E}, 6, {E}')
            A(f'v_lshrrev_b32 {u}, 4, {d40}'); A(f'v_lshl_add_u32 {E}, {u}, 11, {E}'); A(f'v_and_b32 {d40}, 15, {d40}'); A(f'v_lshl_add_u32 {E}, {d40}, 4, {E}')
            A(f's_lshr_b32 {s.sT0}, {s.sRb2}, 1'); A(f's_mul_i32 {s.sT0}, {s.sT0}, {KVH}'); A(f'v_add_u32 {vk}, {s.sT0}, {E}')
            A(f'v_lshrrev_b32 {t}, 4, {s.vLane}'); A(f'v_lshlrev_b32 {u}, 4, {vTok}')
            A(f's_mul_i32 {s.sT0}, {sHp}, {KVH}'); A(f's_add_u32 {s.sT0}, {s.sT0}, 7168'); A(f'v_mul_u32_u24 {vz}, {KVP}, {t}'); A(f'v_add3_u32 {vz}, {vz}, {u}, {s.sT0}')
            A(f's_mul_i32 {s.sT0}, {s.sRb2}, 81920'); A(f's_mul_i32 {s.sT1}, {sHp}, 1280'); A(f's_add_u32 {s.sT0}, {s.sT0}, {s.sT1}'); A(f's_add_u32 {s.sT0}, {s.sT0}, {PQ}')
            A(f'v_mul_u32_u24 {vp}, 20480, {t}'); A(f'v_add3_u32 {vp}, {vp}, {u}, {s.sT0}')
            A(f'v_lshlrev_b32 {vka}, 6, {vTok}'); A(f'v_lshl_add_u32 {vka}, {t}, 4, {vka}'); A(f'v_add_u32 {vka}, {KVB}, {vka}')
            A(f's_mul_i32 {s.sT0}, {s.sRb2}, 5'); A(f's_mul_i32 {s.sT1}, {s.sJ2}, 102400'); A(f's_mul_i32 {s.sT2}, {sK}, 3072'); A(f's_add_u32 {s.sT1}, {s.sT1}, {s.sT2}'); A(f's_add_u32 {s.sT1}, {s.sT1}, {WOP}')
            for m in range(2):
                A(f'v_add3_u32 {q}, {t}, {s.sT0}, {4 * m}')
                A(f'v_lshrrev_b32 {ad}, 3, {q}'); A(f'v_mul_u32_u24 {wa[m]}, 5120, {ad}')
                A(f'v_bfe_u32 {ad}, {q}, 1, 2'); A(f'v_lshl_add_u32 {wa[m]}, {ad}, 8, {wa[m]}')
                A(f'v_and_b32 {ad}, 1, {q}'); A(f'v_lshl_add_u32 {wa[m]}, {ad}, 3, {wa[m]}'); A(f'v_add3_u32 {wa[m]}, {wa[m]}, {u}, {s.sT1}')
            A(f'v_cmp_gt_u32 vcc, 16, {s.vLane}'); A(f'v_mov_b32 {q}, {OOB}'); A(f'v_cndmask_b32 {wa[1]}, {q}, {wa[1]}, vcc')
            A(f's_lshl_b32 {s.sT0}, {s.sRb2}, 7'); A(f's_lshl2_add_u32 {s.sT0}, {s.sJ2}, {s.sT0}'); A(f's_add_u32 {s.sT0}, {s.sT0}, {FP}')
            A(f's_lshl_b32 {s.sT1}, {s.sJ2}, 7'); A(f's_lshl2_add_u32 {s.sT1}, {s.sRb2}, {s.sT1}'); A(f's_add_u32 {s.sT1}, {s.sT1}, {FW}')
            A(f'v_add_u32 {t}, {s.sT0}, {s.vL0}'); A(f'v_mov_b32 {u}, {s.sT1}'); A(f'v_cmp_eq_u32 vcc, 1, {s.vLane}'); A(f'v_cndmask_b32 {vfl}, {t}, {u}, vcc')
            A(f'v_min_u32 {t}, 59, {s.vLane}'); A(f'v_mul_u32_u24 {u}, 21846, {t}'); A(f'v_lshrrev_b32 {u}, 16, {u}'); A(f'v_mul_u32_u24 {u}, 40, {u}'); A(f'v_lshl_add_u32 {t}, {t}, 3, {u}'); A(f'v_add_u32 {ad}, {KVB + 40}, {t}')
            kq = [V.get(4) for _ in range(16)]; zq = [V.get(4) for _ in range(4)]; pq = [V.get(4) for _ in range(5)]; sKo = S.get(); z2 = V.get(2)
            A(f'v_mov_b32 {z2[0]}, 0'); A(f'v_mov_b32 {z2[1]}, 0')
            s.prog_wait(kq[0], o['jp'], sl=8)
            A(f'ds_write_b64 {ad}, {z2}')
            Lj = s.lab(); Lk = s.lab()
            A(f's_cmp_eq_u32 {sK}, 0'); A(f's_cbranch_scc0 {Lj}')
            s.poll([s.polltxt(q, pa, 0)], [q], sl=o['jsl'])
            A(f'v_mov_b32 {t}, 2'); A(f'ds_write_b32 {vC0}, {t} offset:8'); A('s_waitcnt lgkmcnt(0)'); A(f's_branch {Lk}')
            A(f'{Lj}:'); s.lds_wait(8, 2, sl=2); A(f'{Lk}:')
            s.stamp(3)
            if o['jprio']: A(f's_setprio {o["jprio"]}')
            for i in range(0 if 'nokv' in s.dbg else 16):
                A(f's_mov_b32 {sKo}, {KV + KVP * i}'); A(f'buffer_load_dwordx4 {kq[i]}, {vk}, {sWS}, {sKo} offen sc1')
            for i in range(0 if 'noz' in s.dbg else 4):
                A(f's_mov_b32 {sKo}, {KV + 4 * KVP * i}'); A(f'buffer_load_dwordx4 {zq[i]}, {vz}, {sWS}, {sKo} offen sc1')
            for i in range(0 if 'nopq' in s.dbg else 5): A(f'buffer_load_dwordx4 {pq[i]}, {vp}, {sWS}, 0 offen offset:{256 * i} sc1')
            s.stamp(6)
            for i in range(1, 16):
                for e in range(4): A(f'v_add_f32 {kq[0][e]}, {kq[0][e]}, {kq[i][e]}')
            A(f'v_cvt_pk_bf16_f32 {z2[0]}, {kq[0][0]}, {kq[0][1]}'); A(f'v_cvt_pk_bf16_f32 {z2[1]}, {kq[0][2]}, {kq[0][3]}')
            A(f'v_mov_b32 {t}, 1')
            A(f'ds_write_b64 {vkw}, {z2}'); A(f'ds_write_b32 {vC0}, {t} offset:56')
            V.put(*kq); s.stamp(7)
            for i in range(1, 4):
                for e in range(3): A(f'v_add_f32 {zq[0][e]}, {zq[0][e]}, {zq[i][e]}')
            for swp in ('16', '32'):
                for e in range(3): A(f'v_mov_b32 {zq[1][e]}, {zq[0][e]}')
                for e in range(3): A(f'v_permlane{swp}_swap_b32 {zq[0][e]}, {zq[1][e]}')
                for e in range(3): A(f'v_add_f32 {zq[0][e]}, {zq[0][e]}, {zq[1][e]}')
            L4 = s.lab(); L5 = s.lab()
            A(f'{L4}:'); A(f'ds_read_b64 {s.vF}, {s.vCtl} offset:56'); s.tick_spin(L5); A(f'v_min_u32 {s.vF[0]}, {s.vF[0]}, {s.vF[1]}'); A(f'v_cmp_eq_u32 vcc, 0, {s.vF[0]}'); A(f's_cbranch_vccnz {L4}'); A(f'{L5}:')
            s.stamp(8)
            pf = V.get(40); ka = [V.get(4) for _ in range(2)]; D = [[V.get(4) for _ in range(2)] for _ in range(3)]; den = [V.get() for _ in range(2)]
            for m in range(2): A(f'ds_read_b128 {ka[m]}, {vka} offset:{1024 * m}')
            for i in range(20): A(f'v_lshlrev_b32 {pf[2*i]}, 16, {pq[i // 4][i % 4]}'); A(f'v_and_b32 {pf[2*i+1]}, 0xffff0000, {pq[i // 4][i % 4]}')
            for n in range(3):
                for m in range(2): A(f'v_mfma_f32_16x16x32_bf16 {D[n][m]}, {ka[m]}, {wb[n]}, 0')
            A(f's_lshl_b32 {sKo}, {sK}, 29'); s.stamp(9)
            for hh in range(2): A(f'v_mov_b32 {den[hh]}, {hexf(1e-6)}')
            for d in range(20):
                for hh in range(2):
                    f = 20 * hh + d
                    A(f'v_fmac_f32_dpp {den[hh]}, {zq[0][f >> 4]}, {pf[f]} row_newbcast:{f & 15} row_mask:0xf bank_mask:0xf')
                if d == 6:
                    for n in range(3):
                        for m in range(2):
                            dd = D[n][m]
                            A(f'v_cvt_pk_bf16_f32 {dd[0]}, {dd[0]}, {dd[1]}'); A(f'v_cvt_pk_bf16_f32 {dd[1]}, {dd[2]}, {dd[3]}')
                            A(f'buffer_store_dwordx2 {dd[0:2]}, {wa[m]}, {sWS}, {sKo if n == 2 else 0} offen offset:{1024 * n} sc1')
            s.stamp(10)
            for hh in range(2): A(f'v_rcp_f32 {den[hh]}, {den[hh]}')
            for i in range(20):
                for e in range(2): A(f'v_mul_f32 {pf[2*i+e]}, {den[i // 10]}, {pf[2*i+e]}')
                A(f'v_cvt_pk_bf16_f32 {pq[i // 4][i % 4]}, {pf[2*i]}, {pf[2*i+1]}')
                if i % 4 == 3: last = A(f'buffer_store_dwordx4 {pq[i // 4]}, {vp}, {sWS}, 0 offen offset:{256 * (i // 4)} sc1')
            s.stamp(4)
            A.waitvm(last); A(f'v_mov_b32 {t}, 2'); A(f'ds_write_b32 {vC0}, {t} offset:56')
            A(f's_cmp_eq_u32 {sK}, 0'); A('s_cbranch_scc0 L_fin')
            s.lds_wait(60, 2, sl=1)
            A(s.flagtxt(0, vfl))
            s.stamp(5)
            if s.stop > 4:
                A('s_setprio 0')
                A(f's_lshl_b32 {s.sT0}, {s.sJ2}, 7'); A(f's_add_u32 {s.sT0}, {s.sT0}, {FW}'); A(f's_lshl_b32 {s.sT1}, {s.sRb2}, 7'); A(f's_add_u32 {s.sT1}, {s.sT1}, {FP - 128}')
                A(f'v_lshlrev_b32 {t}, 2, {s.vLane}'); A(f'v_add_u32 {pa}, {s.sT0}, {t}'); A(f'v_add_u32 {u}, {s.sT1}, {t}'); A(f'v_cmp_gt_u32 vcc, 32, {s.vLane}'); A(f'v_cndmask_b32 {pa}, {u}, {pa}, vcc')
                A('s_mov_b32 exec_hi, 0xff')
                s.poll([s.polltxt(q, pa, 0)], [q], sl=o['wsl'])
                A('s_mov_b64 exec, -1'); A(f'v_mov_b32 {t}, 2'); A(f'ds_write_b32 {vC0}, {t} offset:36')
                s.stamp(11)
        A('s_branch L_fin')

    def ld_begin(s):
        s.L_n = 0; s.L_out = []; s.L_seen = 0
    def ld_pub(s, p): s.A(f'v_mov_b32 {s.vS}, {p.seq}'); s.A(f'ds_max_u32 {s.vC0}, {s.vS}')
    def ld_window(s, keep):
        A = s.A
        if s.L_n - s.L_low > keep:
            A(f's_waitcnt vmcnt({keep})'); s.L_low = s.L_n - keep
        pub = None
        while s.L_out and s.L_out[0][1] <= s.L_low: pub = s.L_out.pop(0)[0]
        if pub: s.ld_pub(pub)
    def ld_drain_code(s):
        for p, idx in s.L_out:
            s.A(f's_waitcnt vmcnt({min(63, s.L_n - idx)})'); s.ld_pub(p)
    def ld_space(s, p):
        A = s.A
        need = max([p.minrel] + [q.rel for q in s.P[:p.seq - 1] if ovl(p, q)])
        if need <= s.L_seen: return
        s.L_seen = need
        Lr = s.lab('S'); Lb = s.lab('B'); L2 = s.lab('S'); q = s.vQ
        def rd(): A(f'ds_read_b128 {q}, {s.vCtl} offset:16'); A('s_waitcnt lgkmcnt(0)'); A(f'v_min3_u32 {q[0]}, {q[0]}, {q[1]}, {q[2]}'); A(f'v_min_u32 {q[0]}, {q[0]}, {q[3]}'); A(f'v_cmp_gt_u32 vcc, {need}, {q[0]}')
        rd(); A(f's_cbranch_vccnz {Lr}'); A(f'{Lb}:')
        def slow():
            A(f'{Lr}:')
            for pp, idx in s.L_out:
                A(f's_waitcnt vmcnt({min(63, s.L_n - idx)})'); s.ld_pub(pp); rd(); A(f's_cbranch_vccz {Lb}')
            A(f'{L2}:'); s.tick_spin(Lb, s.o['slp']); rd(); A(f's_cbranch_vccnz {L2}'); A(f's_branch {Lb}')
        s.outline(slow)
    def ld_panel(s, p, groups, W, sc=''):
        A = s.A
        if not groups:
            s.L_out.append((p, s.L_n)); return
        s.ld_space(p)
        for (lo, pre, srd, so, lst) in groups:
            s.ld_window(max(0, W - len(lst)))
            A(f's_mov_b32 m0, {p.addr + lo}')
            if pre: A(pre)
            for vo, imm in lst:
                A(f'buffer_load_dwordx4 {vo}, {srd}, {so} offen offset:{imm} {sc} lds'); s.L_n += 1
        s.L_out.append((p, s.L_n))
    def g5(s, lo, srd, base, add, regs):
        so = s.sT0 if add else base
        return [(lo, f's_add_u32 {so}, {base}, {add}' if add else None, srd, so, [(regs[i], 1024 * i) for i in range(4)]), (lo + 4096, None, srd, so, [(regs[4], 0)])]
    def div20(s, i, q, c20):
        A = s.A; t = s.V.get()
        A(f'v_add_u32 {t}, {64*i}, {s.vLane}')
        A(f'v_mul_u32_u24 {q}, 3277, {t}'); A(f'v_lshrrev_b32 {q}, 16, {q}')
        A(f'v_mul_u32_u24 {c20}, 20, {q}'); A(f'v_sub_u32 {c20}, {t}, {c20}')
        A(f'v_lshrrev_b32 {t}, 2, {q}'); A(f'v_and_b32 {t}, 2, {t}'); A(f'v_xor_b32 {c20}, {c20}, {t}')
        A(f'v_cmp_le_u32 vcc, 10, {c20}')
        s.V.put(t)
    def voff20(s, stride, hi, add):
        A = s.A; V = s.V; out = [V.get() for _ in range(5)]; q = V.get(); c = V.get(); t = V.get()
        for i in range(5):
            s.div20(i, q, c)
            A(f'v_mov_b32 {t}, {hi}'); A(f'v_mul_u32_u24 {q}, {stride}, {q}'); A(f'v_cndmask_b32 {t}, 0, {t}, vcc')
            A(f'v_lshlrev_b32 {c}, 4, {c}'); A(f'v_add3_u32 {out[i]}, {q}, {c}, {t}')
            k = (add - (1024 * i if i < 4 else 0)) & 0xffffffff
            if k: A(f'v_add_u32 {out[i]}, {k}, {out[i]}')
        V.put(q, c, t); return out
    def voff12(s, stride):
        A = s.A; V = s.V; vo = [V.get() for _ in range(3)]; t = V.get(); c = V.get()
        for i in range(3):
            q = vo[i]
            A(f'v_add_u32 {t}, {64*i}, {s.vLane}'); A(f'v_mul_u32_u24 {q}, 5462, {t}'); A(f'v_lshrrev_b32 {q}, 16, {q}')
            A(f'v_mul_u32_u24 {c}, 12, {q}'); A(f'v_sub_u32 {c}, {t}, {c}'); A(f'v_mul_u32_u24 {q}, {stride}, {q}'); A(f'v_lshl_add_u32 {q}, {c}, 4, {q}')
            if i: A(f'v_subrev_u32 {q}, {1024*i}, {q}')
        V.put(t, c); return vo
    def loader(s, me):
        A = s.A; S = s.S; V = s.V; o = s.o
        A(f'L_load{me}:'); A.ctl('restore', 'entry')
        if o['lprio']: A(f's_setprio {o["lprio"]}')
        s.vS = V.get(); s.vQ = V.get(4); s.vC0 = V.get()
        sRot, sOA, sOB, sBB, sOC, sBC = [S.get() for _ in range(6)]
        A(f's_lshl3_add_u32 {s.sT0}, {s.sXc}, {s.sCl}'); A(f's_add_u32 {s.sT0}, {s.sT0}, {s.sRb}')
        nph = o['nph']
        if nph == 10:
            A(f's_mul_i32 {s.sT1}, {s.sT0}, 26'); A(f's_lshr_b32 {s.sT1}, {s.sT1}, 8'); A(f's_mul_i32 {s.sT1}, {s.sT1}, 10'); A(f's_sub_u32 {sRot}, {s.sT0}, {s.sT1}')
        else:
            A(f's_and_b32 {s.sT0}, {s.sT0}, {nph - 1}'); A(f's_mul_i32 {s.sT0}, {s.sT0}, {20 // nph}'); A(f's_lshr_b32 {sRot}, {s.sT0}, 1')
        A(f's_lshl_b32 {sOA}, {sRot}, 7')
        t = V.get(); u = V.get()
        late = {}
        vR = V.get(4)
        def late_setup():
            s.srd(*([sWS, sW3] + ([sX] if me else [])))
            A(f's_load_dword {s.sN}, {sWS[0:2]}, 0')
            late['b3'] = s.voff12(3072); late['xt'] = s.voff10()
            if me == 0:
                A(f's_mul_i32 {s.sT3}, {s.sJ2}, 5'); A(f's_lshr_b32 {s.sT3}, {s.sT3}, 2'); A(f'v_lshrrev_b32 {t}, 5, {s.vLane}'); A(f'v_add_u32 {t}, {s.sT3}, {t}')
                A(f'v_and_b32 {u}, 31, {s.vLane}'); A(f'v_min_u32 {vR[2]}, 19, {u}'); A(f'v_lshlrev_b32 {vR[2]}, 2, {vR[2]}'); A(f'v_lshl_add_u32 {vR[2]}, {t}, 7, {vR[2]}'); A(f'v_add_u32 {vR[2]}, {FR2}, {vR[2]}')
                A(f'v_min_u32 {vR[3]}, 23, {u}'); A(f'v_lshlrev_b32 {vR[3]}, 3, {vR[3]}'); A(f'v_lshl_add_u32 {vR[3]}, {t}, 8, {vR[3]}'); A(f'v_add_u32 {vR[3]}, {FR4}, {vR[3]}')
            s.nonce()
        frtxt = f'v_mov_b32 {vR[0]}, {s.vN}\ns_mov_b32 exec_lo, 0xfffff\ns_mov_b32 exec_hi, 0xfffff\n' + s.polltxt(vR[0], vR[2], 0) + '\ns_mov_b64 exec, -1'
        fr4txt = f'v_mov_b32 {vR[0]}, {s.vN}\nv_mov_b32 {vR[1]}, {s.vN}\ns_mov_b32 exec_lo, 0xffffff\ns_mov_b32 exec_hi, 0xffffff\nv_mov_b32 {vR[0]}, 0\nv_mov_b32 {vR[1]}, 0\nbuffer_atomic_add_x2 {vR[0:2]}, {vR[3]}, {sWS}, 0 offen sc0 sc1\ns_mov_b64 exec, -1'
        def stages(gs, rot, W):
            s.ld_begin(); s.L_low = 0
            hold = V.get(4)
            s.defer(late_setup); chunks = s.q3; s.q3 = []
            for st in range(10):
                if st == 3: s.lds_wait(8, 1, sl=1, slowpre=s.ld_drain_code)
                if st == 9 and me == 0: A(frtxt); s.L_n += 1
                if st == 0:
                    s.ld_panel(s.st[0], gs, 63, 'nt' if o['nt1'] else '')
                    s.mkL0(); A(f'v_lshrrev_b32 {s.vC0}, 10, {s.vL0}'); A(f'v_add_u32 {s.vC0}, {CTRL + 4 * me}, {s.vC0}')
                    A(f'v_mov_b32 {s.vS}, 1'); A(f'ds_write_b32 {s.vC0}, {s.vS} offset:64')
                    s.stamp(0)
                    if o['iss'] == 2: s.ld_window(0)
                else: s.ld_panel(s.st[st], gs, W, 'nt' if (o['nt1'] > st) else '')
                if st < 9: rot()
                if st >= 1:
                    k = 0
                    while chunks and (k < 20 or st == 8 or 'v_cmp' in A.ins[-1].text or 'v_cmp' in A.ins[-2].text or 'v_cmp' in A.ins[-3].text): chunks.pop(0)(); k += 1
                s.stamp(1 + st)
            assert not chunks
            return (s.L_n, s.L_low, [(p.name, i) for p, i in s.L_out], s.L_seen, str(late))
        if me == 0:
            vXA = [V.get() for _ in range(4)]
            A(f's_mul_i32 {s.sT0}, {s.sRb}, 163840')
            A(f'v_lshrrev_b32 {u}, 3, {s.vLane}'); A(f'v_mul_u32_u24 {u}, 1280, {u}'); A(f'v_add_u32 {t}, {s.sT0}, {u}')
            A(f'v_lshrrev_b32 {u}, 4, {s.vLane}'); A(f'v_xor_b32 {u}, {u}, {s.vLane}'); A(f'v_and_b32 {u}, 7, {u}'); A(f'v_lshlrev_b32 {u}, 4, {u}')
            A(f'v_add_u32 {vXA[0]}, {t}, {u}'); A(f'v_xor_b32 {u}, 64, {u}'); A(f'v_add_u32 {u}, 9216, {u}'); A(f'v_add_u32 {vXA[1]}, {t}, {u}')
            A(f'v_add_u32 {vXA[2]}, 18432, {vXA[0]}'); A(f'v_add_u32 {vXA[3]}, 18432, {vXA[1]}')
            s.srd(sX)
            gA = [(4096 * g, f's_add_u32 {s.sT0}, {sOA}, {40960 * g}', sX, s.sT0, [(vXA[i], 1024 * i) for i in range(4)]) for g in range(4)]
            def rot(): A(f's_add_u32 {sOA}, {sOA}, 128'); A(f's_cmpk_eq_u32 {sOA}, 1280'); A(f's_cmovk_i32 {sOA}, 0')
            stages(gA, rot, o['W1x'])
        else:
            s.srd(sWQKV, sW1)
            A(f's_cmp_lt_u32 {s.sCl}, 4'); A('s_cbranch_scc0 L_load23')
            A.ctl('save', 'ldfork'); sn = s.snap()
            for var in ('T1', 'T23'):
                s.rest(sn)
                pad = V.get(12)
                sub = Pool('v', pad.i, pad.i + 12); Vm = s.V; s.V = sub
                if var == 'T1':
                    A(f's_lshl2_add_u32 {sBB}, {s.sXc}, {s.sCl}'); A(f's_mul_i32 {sBB}, {sBB}, 160'); A(f's_mul_i32 {sOB}, {sRot}, {64 * 3840}'); A(f's_add_u32 {sOB}, {sOB}, {sBB}')
                    vB = s.voff20(3840, 1120, 1280)
                    gB = sum([s.g5(16 * KB + 5120 * g, sWQKV, sOB, 16 * 3840 * g, vB) for g in range(4)], [])
                    def rot(): A(f's_add_u32 {sOA}, {sOA}, 128'); A(f's_add_u32 {sOB}, {sOB}, {64 * 3840}'); A(f's_cmpk_eq_u32 {sOA}, 1280'); A(f's_cmov_b32 {sOB}, {sBB}'); A(f's_cmovk_i32 {sOA}, 0')
                else:
                    A('L_load23:'); A.ctl('restore', 'ldfork')
                    s96, s64, g96, g64 = [S.get() for _ in range(4)]
                    A(f's_lshl1_add_u32 {s.sT0}, {s.sXc}, {s.sCl}'); A(f's_cmp_lt_u32 {s.sCl}, 6'); A(f's_cselect_b32 {s.sT1}, 4, 6')
                    A(f's_movk_i32 {s96}, 3840'); A(f's_cmovk_i32 {s96}, 1280'); A(f's_movk_i32 {s64}, 1280'); A(f's_cmovk_i32 {s64}, 3840')
                    A(f's_sub_u32 {s.sT0}, {s.sT0}, {s.sT1}')
                    A(f's_mul_i32 {sBB}, {s.sT0}, 192'); A(f's_lshl_b32 {sBC}, {s.sT0}, 7'); A(f's_add_u32 {sBC}, {sBC}, 768')
                    vB = s.voff12(s96); vC = [sub.get() for _ in range(4)]
                    A(f'v_lshrrev_b32 {t}, 3, {s.vLane}'); A(f'v_mul_u32_u24 {t}, {s64}, {t}')
                    A(f'v_lshrrev_b32 {u}, 2, {s.vLane}'); A(f'v_and_b32 {u}, 4, {u}'); A(f'v_xor_b32 {u}, {u}, {s.vLane}'); A(f'v_and_b32 {u}, 7, {u}'); A(f'v_lshl_add_u32 {vC[0]}, {u}, 4, {t}')
                    A(f's_lshl_b32 {s.sT1}, {s64}, 3'); A(f's_sub_u32 {s.sT1}, {s.sT1}, 1024')
                    for i in range(1, 4): A(f'v_add_u32 {vC[i]}, {s.sT1}, {vC[i-1]}')
                    A(f's_lshl_b32 {g96}, {s96}, 4'); A(f's_lshl_b32 {g64}, {s64}, 5')
                    A(f's_mul_i32 {sOB}, {sRot}, {g96}'); A(f's_lshl2_add_u32 {sOB}, {sOB}, {sBB}'); A(f's_mul_i32 {sOC}, {sRot}, {g64}'); A(f's_lshl1_add_u32 {sOC}, {sOC}, {sBC}')
                    A(f's_cmp_lt_u32 {s.sCl}, 6')
                    A(f's_cselect_b64 {sD0[0:2]}, {sW1[0:2]}, {sWQKV[0:2]}'); A(f's_cselect_b32 {sD0[2]}, {sW1[2]}, {sWQKV[2]}'); A(f's_mov_b32 {sD0[3]}, 0x20000')
                    A(f's_cselect_b64 {sD1[0:2]}, {sWQKV[0:2]}, {sW1[0:2]}'); A(f's_cselect_b32 {sD1[2]}, {sWQKV[2]}, {sW1[2]}'); A(f's_mov_b32 {sD1[3]}, 0x20000')
                    gB = [(16 * KB + 3072 * g, f's_add_u32 {sOB}, {sOB}, {g96}' if g else None, sD0, sOB, [(vB[i], 1024 * i) for i in range(3)]) for g in range(4)]
                    gB += [(28 * KB + 4096 * g, f's_add_u32 {sOC}, {sOC}, {g64}' if g else None, sD1, sOC, [(vC[i], 1024 * i) for i in range(4)]) for g in range(2)]
                    def rot():
                        A(f's_add_u32 {sOA}, {sOA}, 128'); A(f's_add_u32 {sOB}, {sOB}, {g96}'); A(f's_add_u32 {sOC}, {sOC}, {g64}')
                        A(f's_cmpk_eq_u32 {sOA}, 1280'); A(f's_cmov_b32 {sOB}, {sBB}'); A(f's_cmov_b32 {sOC}, {sBC}'); A(f's_cmovk_i32 {sOA}, 0')
                s.V = Vm
                state = stages(gB, rot, o['W1w'])
                if var == 'T1': st1 = state; A('s_branch L_loadj')
                else: assert state == st1, (state, st1)
            A('L_loadj:')
        sQ, sB = S.get(), S.get()
        A(f's_mul_i32 {s.sT1}, {s.sJ2}, 160'); A(f's_mul_i32 {sB}, {s.sRb2}, 81920'); A(f's_add_u32 {sB}, {sB}, {s.sT1}')
        LIN = ((WOP, 102400, 20480, 20480), (W4R, 245760, 61440, 20480), (W2R, 102400, 25600, 25600))
        sL = [S.get() for _ in LIN]; vL = [V.get(), V.get()]; vL.append(vL[0])
        s.rot4(s.sT1)
        for k, (base, span, mul, sz) in enumerate(LIN):
            if k < 2: A(f's_mul_i32 {s.sT2}, {s.sJ2}, {span}'); A(f'v_add_u32 {vL[k]}, {s.sT2}, {s.vL16}')
            A(f's_mul_i32 {sL[k]}, {s.sT1}, {mul}'); A(f's_add_u32 {sL[k]}, {sL[k]}, {base}')
        def lin(p, k, W):
            base, span, _, sz = LIN[k]; n = sz // 1024; lo, hi = (0, (n + 1) // 2) if me == 0 else ((n + 1) // 2, n)
            gs = [(1024 * a, f's_add_u32 {s.sT0}, {sL[k]}, {1024 * a}', sWS, s.sT0, [(vL[k], 1024 * i) for i in range(min(4, hi - a))]) for a in range(lo, hi, 4)]
            s.ld_panel(p, gs, W, 'sc1')
            s.wrapadd(sL[k], sz, base + span, base)
        def frcheck(txt, tags, word):
            if me == 0:
                s.checked([txt], tags, pre=s.ld_drain_code, sl=8)
                A(f'v_mov_b32 {s.vS}, {word}'); A(f'ds_write_b32 {s.vC0}, {s.vS} offset:32')
            else: s.lds_wait(32, word, sl=1, slowpre=s.ld_drain_code)
        frcheck(frtxt, [vR[0]], 1)
        for p in s.b2: lin(p, 2, o['W1'])
        s.lds_wait(40, 1, sl=1, slowpre=s.ld_drain_code)
        s.ld_panel(s.pxt, s.g5(5120 * me, sX, sB, 40960 * me, late['xt']), o['W1'])
        s.stamp(11)
        nt2 = 'nt' if o['nt2'] else ''
        if s.stop > 1:
            A(f's_and_b32 {sB}, {s.sIdx}, 15'); A(f's_mul_i32 {sB}, {sB}, 192'); s.rot2(s.sT0); A(f's_mul_i32 {sQ}, {s.sT0}, {5 * 64 * 3072}'); A(f's_add_u32 {sQ}, {sQ}, {sB}')
            for i, p in enumerate(s.b3):
                if i == 8 and me == 0 and s.stop > 4: s.ld_space(p); A(fr4txt); s.L_n += 1
                s.ld_panel(p, [(3072 * g, f's_add_u32 {s.sT0}, {sQ}, {16 * 3072 * g}', sW3, s.sT0, [(late['b3'][k], 1024 * k) for k in range(3)]) for g in (2 * me, 2 * me + 1)], o['W2'], nt2)
                s.wrapadd(sQ, 64 * 3072, 640 * 3072, sB)
            s.stamp(12)
        if s.stop > 4:
            frcheck(fr4txt, [vR[0], vR[1]], 2)
            lin(s.b4b[0], 1, o['W2'])
            lin(s.b4b[1], 1, o['W3'])
            s.stamp(13)
            def fwcheck(): s.lds_wait(36, 2, sl=1, slowpre=s.ld_drain_code)
            if not o['stg']:
                s.ld_space(s.b4a[0]); fwcheck(); s.stamp(17)
                for i, p in enumerate(s.b4a):
                    s.ld_space(p)
                    if 'stl' in s.dbg: s.stamp(18 + i)
                    lin(p, 0, o['Wa'])
                s.stamp(14)
                for i, p in enumerate(s.b4b[2:]):
                    s.ld_space(p)
                    if 'stl' in s.dbg and i % 2 == 0: s.stamp([23, 24, 25, 26, 28][i // 2])
                    lin(p, 1, o['W4'] if i < 5 else o['W5'])
            else:
                V.put(*late['b3'], *late['xt'])
                buf = [s.AG.get(40), s.AG.get(40), V.get(40), V.get(40), V.get(40)]
                wa = V.get(); A(f'v_add_u32 {wa}, {10240 * me}, {s.vL16}'); fwa = s.dsaddr(wa)
                def stage(i, W):
                    b = buf[(i - 2) % 5]
                    for a, n in ((0, 4), (4, 4), (8, 2)):
                        s.ld_window(max(0, W - n))
                        A(f's_add_u32 {s.sT0}, {sL[1]}, {10240 * me + 1024 * a}')
                        for k in range(n): A(f'buffer_load_dwordx4 {b.sub(4 * (a + k), 4)}, {vL[1]}, {sWS}, {s.sT0} offen offset:{1024 * k} sc1'); s.L_n += 1
                    s.wrapadd(sL[1], 20480, W4R + 245760, W4R)
                def put(i):
                    p = s.b4b[i]; b = buf[(i - 2) % 5]
                    s.ld_space(p)
                    for k in range(10):
                        r_, im = fwa(p.addr + 1024 * k).split(' ')
                        A(f'ds_write_b128 {r_}, {b.sub(4 * k, 4)} {im}')
                    s.ld_pub(p)
                stage(2, o['W3']); stage(3, o['W3'])
                s.ld_space(s.b4a[0]); fwcheck()
                lin(s.b4a[0], 0, o['W3']); stage(4, o['W3']); lin(s.b4a[1], 0, o['W3']); stage(5, o['W3']); lin(s.b4a[2], 0, o['W3']); lin(s.b4a[3], 0, o['W4']); lin(s.b4a[4], 0, o['W4']); stage(6, o['W4'])
                s.stamp(14)
                s.ld_drain_code(); s.L_out = []
                for i in range(2, 12):
                    put(i)
                    if i + 5 < 12: A('s_waitcnt lgkmcnt(0)'); stage(i + 5, o['W4'])
        s.ld_drain_code()
        s.stamp(15)
        A('s_waitcnt vmcnt(0) lgkmcnt(0)')
        A('s_branch L_fin')

    def cpro(s):
        A = s.A; S = s.S; V = s.V
        s.vP, s.vPa, s.vTok, s.vTok4 = [V.get() for _ in range(4)]
        s.sFlag, s.sJ160, s.sCb3, s.sTw, s.sTw3, s.sTT = [S.get() for _ in range(6)]
        s.vA2 = [V.get() for _ in range(4)]; s.rW3 = [V.get() for _ in range(3)]
        s.vL1, s.paF1, s.pF = [V.get() for _ in range(3)]
        s.gr2 = V.get(2); s.cg3 = [V.get(2) for _ in range(3)]
        t = V.get(); u = V.get(); q = V.get()
        if s.o['prio']: A(f's_setprio {s.o["prio"]}')
        s.srd(sWS, sOUT)
        s.mkL0()
        A(f'v_and_b32 {s.vTok}, 15, {s.vLane}'); A(f'v_lshlrev_b32 {s.vTok4}, 2, {s.vTok}')
        A(f's_lshl_b32 {s.sT0}, {s.sW}, 2'); A(f's_add_u32 {s.sT0}, {s.sT0}, {CTRL + 16}'); A(f'v_lshrrev_b32 {s.vPa}, 10, {s.vL0}'); A(f'v_add_u32 {s.vPa}, {s.sT0}, {s.vPa}')
        A(f's_mul_i32 {s.sJ160}, {s.sJ2}, 160'); A(f's_and_b32 {s.sCb3}, {s.sIdx}, 15')
        A(f's_lshr_b32 {s.sT0}, {s.sW}, 1'); A(f's_lshl1_add_u32 {s.sTw}, {s.sRb2}, {s.sT0}'); A(f's_lshl2_add_u32 {s.sTT}, {s.sRb2}, {s.sW}')
        A(f's_lshr_b32 {s.sTw3}, {s.sRb2}, 1'); A(f's_lshl2_add_u32 {s.sTw3}, {s.sTw3}, {s.sW}')
        A(f'v_add_u32 {s.vL1}, 65536, {s.vL16}')
        A(f's_lshl_b32 {s.sT2}, {s.sTT}, 4'); A(f'v_and_b32 {q}, 48, {s.vLane}'); A(f'v_lshlrev_b32 {q}, 4, {q}')
        for i in range(4):
            if i == 0: s.rot4(s.sT3)
            A(f's_add_u32 {s.sT0}, {s.sT3}, {i}'); A(f's_and_b32 {s.sT0}, {s.sT0}, 3')
            A(f's_lshl_b32 {s.sT1}, {s.sT0}, 2'); A(f's_lshr_b32 {s.sT1}, 0x4031, {s.sT1}'); A(f's_and_b32 {s.sT1}, {s.sT1}, 15'); A(f's_add_u32 {s.sT1}, {s.sT1}, {s.sT2}'); A(f's_sub_u32 {s.sT1}, {s.sT1}, 2')
            A(f's_mul_i32 {s.sT0}, {s.sT0}, 5120')
            A(f'v_add_u32 {t}, {s.sT1}, {s.vTok}'); A(f'v_cmp_gt_u32 vcc, 0x800, {t}'); A(f'v_lshrrev_b32 {u}, 4, {t}'); A(f'v_mul_u32_u24 {u}, 20480, {u}')
            A(f'v_and_b32 {t}, 15, {t}'); A(f'v_lshl_add_u32 {u}, {t}, 4, {u}'); A(f'v_add3_u32 {u}, {u}, {q}, {s.sT0}'); A(f'v_mov_b32 {t}, {OOB}'); A(f'v_cndmask_b32 {s.vA2[i]}, {t}, {u}, vcc')
        s.fw3, _ = s.mk_nt_read(3, s.rW3)
        A(f's_and_b32 {s.sT0}, {s.sW}, 1'); A(f's_lshl1_add_u32 {s.sT0}, {s.sT0}, {s.sTw}'); A(f's_add_u32 {s.sT0}, {s.sT0}, 63'); A(f's_and_b32 {s.sT0}, {s.sT0}, 63')
        A(f'v_and_b32 {t}, 8, {s.vLane}'); A(f'v_cmp_eq_u32 vcc, 0, {t}'); A(f'v_mov_b32 {t}, {s.sT0}'); A(f'v_mov_b32 {u}, {s.sTw}'); A(f'v_cndmask_b32 {q}, {t}, {u}, vcc')
        A(f'v_lshlrev_b32 {q}, 7, {q}'); A(f'v_and_b32 {t}, 7, {s.vLane}'); A(f'v_lshl_add_u32 {q}, {t}, 2, {q}'); A(f'v_add_u32 {s.paF1}, {F1}, {q}')
        A(f's_load_dword {s.sN}, {sWS[0:2]}, 0')
        if s.o['tlb']:
            sh = s.o['tlb']
            A(f'v_lshlrev_b32 {t}, {sh}, v0'); A(f's_mov_b32 {s.sT0}, 0x100000')
            A(f'buffer_load_dword {s.pF}, {t}, {sWS}, 0 offen sc1')
            s.srd(sW3, sW4)
            A(f'buffer_load_dword {q}, {t}, {sOUT}, 0 offen nt'); A(f'buffer_load_dword {u}, {t}, {sW3}, 0 offen'); A(f'buffer_load_dword {t}, {t}, {sW4}, 0 offen')
        s.stamp(0)
        V.put(t, u, q)
        A(f's_cmp_lt_u32 {s.sCl}, 4'); A('s_cbranch_scc1 L_T1')
        A(f's_cmp_lt_u32 {s.sCl}, 6'); A('s_cbranch_scc1 L_TA')
        A.ctl('save', 'fork')
    def gr_common(s, t):
        A = s.A
        A(f's_lshl_b32 {s.sT0}, {s.sW}, 7'); A(f's_add_u32 {s.sT0}, {s.sT0}, {G2}'); A(f'v_lshl_add_u32 {t}, {s.vTok}, 3, {s.sT0}'); A(f'ds_read_b64 {s.gr2}, {t}')
        A(f'v_and_b32 {t}, 31, {s.vLane}'); A(f'v_lshlrev_b32 {t}, 3, {t}'); A(f'v_add_u32 {t}, {GW}, {t}')
        for J in range(3): A(f'ds_read_b64 {s.cg3[J]}, {t} offset:{(160 + 32 * J) * 8}')

    def flat(s, mf, rd, lag, cap, group=None, relmap=None, hooks=None, n3=1, coarse=None, after_first=None, per=None):
        first = {}; lastu = {}
        for i, (_, ids) in enumerate(mf):
            for x in ids: first.setdefault(x, i); lastu[x] = i
        Rd = []; prev = {}
        for x in sorted(rd, key=lambda x: first[x]):
            dest, p, fns = rd[x]; key = str(dest)
            free = lastu[prev[key]] if key in prev else -1
            assert free < first[x]
            prev[key] = x
            for f in fns: Rd.append([first[x], free, p, f, None])
        known = s.known; lastidx = {}
        for k, r in enumerate(Rd):
            lastidx[r[2]] = k
            g = group(r[2]) if group else r[2]
            if r[2].seq > known:
                known = g.seq; r[4] = g
                if k >= 5: Rd[k - 5].append('pre')
        for p, k in lastidx.items():
            rl = relmap.get(p) if relmap is not None else [p]
            if rl: Rd[k].append(rl)
        cnt = [0]
        def emit(i, cap):
            k = 0
            while Rd and Rd[0][1] <= i and (Rd[0][0] <= i + 1 or (Rd[0][0] <= i + lag and k < cap)):
                r = Rd.pop(0)
                if r[4]: s.full(r[4], pre=cnt[0] < 5)
                assert r[2].seq <= s.known and (r[2].rel is None or r[2].rel > s.nrel), r[2].name
                r[3](); k += 1; cnt[0] += 1
                for e in r[5:]:
                    if e == 'pre': s.A(f'ds_read_b64 {s.vF}, {s.vCtl}')
                    else: s.release(e)
            return k
        emit(-1, 999)
        if after_first: after_first()
        for i, (m, _) in enumerate(mf):
            if hooks and i in hooks: hooks[i]()
            if coarse and i in coarse: s.A.touch(coarse[i])
            m()
            if s.stbase is not None and per and i % per == per - 1: s.stamp(s.stbase + i // per)
            k = emit(i, cap); j = 0
            while s.q3 and (j + k < n3 or s.A.clk + 4 <= s.A.mf_free): s.q3.pop(0)(); j += 1
        assert not Rd

    def begin_variant(s):
        s.A.ctl('restore', 'fork'); s.q3 = []; s.known = 0; s.nrel = 0
    def end_variant(s):
        A = s.A
        s.release([]); assert s.nrel == 11
        A('s_waitcnt lgkmcnt(0)'); A.ctl('endvar'); A('s_branch L_join')

    def t1(s):
        A = s.A; V = s.V; S = s.S; AG = s.AG; stages = s.st
        A('L_T1:'); s.begin_variant()
        sCb = S.get(); sWr = S.get(); sWc = S.get()
        A(f's_lshl2_add_u32 {sCb}, {s.sXc}, {s.sCl}'); A(f's_lshr_b32 {sWr}, {s.sW}, 1'); A(f's_and_b32 {sWc}, {s.sW}, 1')
        q = V.get(); t = V.get(); a0 = V.get(); a1 = V.get()
        A(f'v_lshrrev_b32 {t}, 1, {s.vTok}'); A(f'v_lshrrev_b32 {q}, 4, {s.vLane}'); A(f'v_xor_b32 {t}, {t}, {q}')
        A(f's_lshl_b32 {s.sT0}, {sWr}, 6'); A(f'v_add_u32 {a0}, {s.sT0}, {s.vTok}'); A(f'v_lshlrev_b32 {a0}, 7, {a0}'); A(f'v_lshl_add_u32 {a0}, {t}, 4, {a0}')
        A(f'v_xor_b32 {a1}, 64, {a0}')
        fa = [s.dsaddr(a0, (0, 1)), s.dsaddr(a1, (0, 1))]
        fb = []
        rowp = V.get(); hi = V.get(); x2 = V.get()
        A(f'v_lshlrev_b32 {rowp}, 3, {q}'); A(f'v_bfe_u32 {t}, {s.vLane}, 2, 2'); A(f'v_add_u32 {rowp}, {rowp}, {t}'); A(f'v_mul_u32_u24 {rowp}, 320, {rowp}')
        A(f'v_and_b32 {t}, 1, {s.vLane}'); A(f'v_lshl_add_u32 {rowp}, {t}, 3, {rowp}'); A(f'v_add_u32 {rowp}, {16 * KB}, {rowp}')
        A(f'v_bfe_u32 {hi}, {s.vLane}, 1, 1'); A(f'v_and_b32 {x2}, 1, {q}'); A(f'v_lshlrev_b32 {x2}, 1, {x2}')
        A(f's_mul_i32 {s.sT0}, {sWc}, 5')
        for tt, ba in enumerate([0, 2, 4, 11, 13]):
            b = V.get()
            A(f'v_mul_u32_u24 {b}, {6 if tt == 2 else 1}, {hi}'); A(f'v_add3_u32 {b}, {b}, {ba}, {s.sT0}')
            A(f'v_xor_b32 {b}, {b}, {x2}'); A(f'v_lshl_add_u32 {b}, {b}, 4, {rowp}')
            fb.append(s.dsaddr(b, (0, 1)))
        V.put(rowp, hi, x2, q)
        sKV = [S.get(), S.get()]
        A(f's_lshl1_add_u32 {s.sT0}, {sCb}, {sWc}')
        A(f's_mul_i32 {sKV[0]}, {s.sT0}, {KVH}'); A(f's_mul_i32 {sKV[1]}, {s.sRb}, {KVP}'); A(f's_add_u32 {sKV[0]}, {sKV[0]}, {sKV[1]}'); A(f's_add_u32 {sKV[0]}, {sKV[0]}, {KV}'); A(f's_add_u32 {sKV[1]}, {sKV[0]}, 4096')
        A(f's_lshl_b32 {s.sT2}, {sWr}, 29')
        A(f's_lshl_b32 {s.sT0}, {s.sT0}, 7'); A(f's_add_u32 {s.sT0}, {s.sT0}, {s.sT2}'); A(f's_lshl2_add_u32 {s.sT0}, {s.sRb}, {s.sT0}'); A(f's_add_u32 {s.sFlag}, {s.sT0}, {FK}')
        s.nonce()
        s.stamp(1)
        acc = [[V.get(4) for _ in range(5)] for _ in range(4)]
        XA = [[AG.get(4) for _ in range(4)] for _ in range(2)]; WB = [[AG.get(4) for _ in range(5)] for _ in range(2)]
        gr = [V.get(4) for _ in range(4)]; csg = [V.get(4) for _ in range(5)]
        mf = []; rd = {}; at = {}
        for st in range(10):
            p = stages[st]
            for h in range(2):
                at[(st, h)] = len(mf)
                for mt in range(4): rd[('x', st, h, mt)] = (XA[h][mt], p, [lambda mt=mt, h=h, p=p: A(f'ds_read_b128 {XA[h][mt]}, {fa[h](p.addr + 2048 * mt)}')])
                for tt in range(5): rd[('w', st, h, tt)] = (WB[h][tt], p, [(lambda tt=tt, h=h, p=p, t2=t2: A(f'ds_read_b64_tr_b16 {WB[h][tt].sub(2*t2, 2)}, {fb[tt](p.addr + (32 * h + 4 * t2) * 320)}')) for t2 in range(2)])
                for tt in range(5):
                    for mt in range(4):
                        mf.append((lambda mt=mt, tt=tt, h=h, c0=(st == 0 and h == 0): A(f'v_mfma_f32_16x16x32_bf16 {acc[mt][tt]}, {XA[h][mt]}, {WB[h][tt]}, {"0" if c0 else acc[mt][tt]}'), [('x', st, h, mt), ('w', st, h, tt)]))
                if st == 8 and h == 0:
                    at['corr'] = len(mf)
                    mf += [(lambda mt=mt, tt=tt: A(f'v_mfma_f32_16x16x32_bf16 {acc[mt][tt]}, {gr[mt]}, {csg[tt]}, {acc[mt][tt]}'), []) for tt in range(5) for mt in range(4)]
        ga = [V.get() for _ in range(4)]
        A(f's_lshl_b32 {s.sT0}, {sWr}, 9'); A(f's_add_u32 {s.sT0}, {s.sT0}, {GX}'); A(f'v_lshl_add_u32 {ga[0]}, {s.vTok}, 3, {s.sT0}')
        A(f's_mul_i32 {s.sT0}, {sWc}, 320'); A(f's_add_u32 {s.sT0}, {s.sT0}, {GW}'); A(f'v_lshl_add_u32 {ga[1]}, {s.vTok}, 3, {s.sT0}')
        A(f'v_lshrrev_b32 {t}, 3, {s.vTok}'); A(f'v_mul_u32_u24 {t}, 320, {t}'); A(f'v_add_u32 {ga[2]}, {t}, {ga[1]}')
        A(f's_lshl_b32 {s.sT0}, {sWr}, 8'); A(f's_add_u32 {s.sT0}, {s.sT0}, {G1}'); A(f'v_and_b32 {ga[3]}, 48, {s.vLane}'); A(f'v_add_u32 {ga[3]}, {s.sT0}, {ga[3]}')
        for g in gr: A(f'v_mov_b32 {g[2]}, 0'); A(f'v_mov_b32 {g[3]}, 0')
        for c_ in csg:
            for e in range(4): A(f'v_mov_b32 {c_[e]}, 0')
        def h_get():
            s.lds_wait(36, 1)
            A('s_mov_b64 exec, 0xffff')
            for tt in range(5): A(f'ds_read_b64 {csg[tt][0:2]}, {ga[2] if tt == 2 else ga[1]} offset:{128 * tt + (320 if tt > 2 else 0)}')
            A('s_mov_b64 exec, -1')
            def f():
                for mt in range(4): A(f'ds_read_b64 {gr[mt][0:2]}, {ga[0]} offset:{128 * mt}')
                s.gr_common(t)
            s.defer(f)
        def h_r1():
            for mt in range(4): A(f'ds_read_b128 {gr[mt]}, {ga[3]} offset:{64 * mt}')
        hooks = {at[(7, 0)] + 10: h_get, at['corr']: s.flush3, at[(9, 1)]: h_r1}
        if 'st1' in s.dbg: s.stbase = 17
        s.flat(mf, rd, s.o['lag16'], 1, hooks=hooks, per=40, n3=2)
        s.stbase = None
        s.stamp(2)
        r1 = gr
        for f in fa + fb: V.put(*f.regs)
        V.put(*csg, *ga)
        eps = V.get(2); epm = V.get(2); l2e = V.get(2); sK = S.get(2)
        A(f'v_mov_b32 {eps[0]}, {hexf(1e-6)}'); A(f'v_mov_b32 {l2e[0]}, {hexf(LOG2E)}')
        A(f'v_and_b32 {t}, 8, {s.vLane}'); A(f'v_cmp_eq_u32 {sK}, 0, {t}'); A(f'v_cndmask_b32 {epm[0]}, 0, {eps[0]}, {sK}')
        pk = [[acc[2 * u][tt] for tt in range(5)] for u in range(2)]
        U = [V.get(2) for _ in range(4)]
        for tt in range(5):
            for u in range(2):
                prs = [(2 * u + m, h) for m in range(2) for h in range(2)]
                y = [acc[mt][tt].sub(2 * h, 2) for mt, h in prs]
                for k, (mt, h) in enumerate(prs):
                    if tt < 3: A(f'v_pk_fma_f32 {y[k]}, {y[k]}, {r1[mt].sub(2*h, 2)}, {eps if tt < 2 else epm} op_sel_hi:[1,1,0]')
                    else: A(f'v_pk_mul_f32 {y[k]}, {y[k]}, {r1[mt].sub(2*h, 2)}')
                if tt < 3:
                    for k in range(4): A(f'v_pk_mul_f32 {U[k]}, {y[k]}, {l2e} op_sel_hi:[1,0]')
                    for k in range(4): A(f'v_exp_f32_e64 {U[k][0]}, {U[k][0]} clamp'); A(f'v_exp_f32_e64 {U[k][1]}, {U[k][1]} clamp')
                    if tt < 2:
                        for k in range(4): A(f'v_max_f32 {y[k][0]}, {eps[0]}, {y[k][0]}'); A(f'v_max_f32 {y[k][1]}, {eps[0]}, {y[k][1]}')
                        for k in range(4): A(f'v_pk_add_f32 {y[k]}, {y[k]}, {U[k]}')
                    else:
                        for k in range(4):
                            for e in range(2):
                                A(f'v_max_f32 {t}, {eps[0]}, {y[k][e]}'); A(f'v_add_f32 {t}, {t}, {U[k][e]}'); A(f'v_cndmask_b32 {y[k][e]}, {y[k][e]}, {t}, {sK}')
                for k in range(4): A(f'v_cvt_pk_bf16_f32 {pk[u][tt][k]}, {y[k][0]}, {y[k][1]}')
        V.put(*U, eps, epm, l2e, *r1, *acc[1], *acc[3])
        ones = V.get(4); ad = V.get(); tw = V.get()
        for i in range(4): A(f'v_mov_b32 {ones[i]}, 0x3f803f80')
        pairs = [(0, 2), (0, 3), (1, 2), (1, 3), (1, 4), (2, 3), (2, 4)]
        kv = [V.get(4) for _ in pairs]; zz = [V.get(4) for _ in range(3)]
        RED = 108 * KB
        for u in range(2):
            for dt in range(3): A(f'v_mfma_f32_16x16x32_bf16 {zz[dt]}, {ones}, {pk[u][dt]}, {"0" if u == 0 else zz[dt]}')
            for k, (dt, et) in enumerate(pairs): A(f'v_mfma_f32_16x16x32_bf16 {kv[k]}, {pk[u][et]}, {pk[u][dt]}, {"0" if u == 0 else kv[k]}')
            if u == 0:
                A(f's_lshl_b32 {s.sT0}, {sWc}, 13'); A(f's_add_u32 {s.sT0}, {s.sT0}, {RED}'); A(f'v_add_u32 {ad}, {s.sT0}, {s.vL16}')
                A(f's_lshl_b32 {s.sT0}, {sWc}, 2'); A(f'v_add_u32 {t}, {s.sT0}, {s.vCtl}'); A(f'v_lshrrev_b32 {tw}, 10, {s.vL0}'); A(f'v_add_u32 {tw}, {tw}, {t}')
        V.put(*acc[0], *acc[2])
        A(f'v_mov_b32 {zz[0][1]}, {zz[1][0]}'); A(f'v_mov_b32 {zz[0][2]}, {zz[2][0]}')
        red = [zz[0]] + kv
        L1 = s.lab(); L2 = s.lab(); L3 = s.lab(); L4 = s.lab(); L5 = s.lab()
        q4 = V.get(4)
        A('s_nop 7')
        A(f's_cmp_eq_u32 {sWr}, 0'); A(f's_cbranch_scc1 {L1}')
        s.prog_wait(q4, 10)
        for k, r in enumerate(red): A(f'ds_write_b128 {ad}, {r} offset:{1024 * k}')
        A(f'ds_write_b32 {tw}, {ones[0]} offset:48')
        A('s_waitcnt lgkmcnt(0)')
        A(f's_branch {L2}')
        A(f'{L1}:'); A(f'ds_read_b32 {q4[0]}, {t} offset:48'); s.tick_spin(L3); A(f'v_cmp_eq_u32 vcc, 0, {q4[0]}'); A(f's_cbranch_vccnz {L1}')
        A(f'{L3}:')
        tmp = [V.get(4) for _ in red]
        for k, r in enumerate(red): A(f'ds_read_b128 {tmp[k]}, {ad} offset:{1024 * k}')
        for k, r in enumerate(red):
            for h in range(2): A(f'v_pk_add_f32 {r.sub(2*h, 2)}, {r.sub(2*h, 2)}, {tmp[k].sub(2*h, 2)}')
            kk = (k + 7) % 8
            A(f'buffer_store_dwordx4 {r}, {s.vL16}, {sWS}, {sKV[kk // 4]} offen offset:{1024 * (kk % 4)} sc1')
        A(f'{L2}:')
        s.stamp(3)
        s.end_variant()

    def cs_loads(s, NT, so):
        cg = [s.V.get(4) for _ in range(NT)]
        return [f'buffer_load_dwordx2 {cg[J].sub(2*e, 2)}, {s.vCsA}, {sWS}, {so[e]} offen offset:{256 * J} sc1' for J in range(NT) for e in range(2)], cg
    def cs_build(s, cg):
        for c in cg: s.A(f'v_add_f32 {c[0]}, {c[0]}, {c[2]}'); s.split_w(c, c[0])
    def epi32(s, kind, acc, k0, k1, k2, addr, mid=None, hold=None):
        A = s.A; V = s.V
        T = [V.get(2) for _ in range(4)]; P = [V.get(4) for _ in range(2)]
        for J in range(len(acc)):
            vo, so, imm = addr[J]
            for hf in range(2):
                y = [acc[J].sub(8 * hf + 2 * k, 2) for k in range(4)]
                if kind == 'gelu':
                    for k in range(4): A(f'v_pk_mul_f32 {T[k]}, {y[k]}, {y[k]}')
                    for k in range(4): A(f'v_pk_fma_f32 {T[k]}, {T[k]}, {k1}, {k0} op_sel_hi:[1,0,0]')
                    for k in range(4): A(f'v_pk_mul_f32 {T[k]}, {T[k]}, {y[k]}')
                    for k in range(4): A(f'v_exp_f32 {T[k][0]}, {T[k][0]}'); A(f'v_exp_f32 {T[k][1]}, {T[k][1]}')
                    for k in range(4): A(f'v_pk_fma_f32 {T[k]}, {T[k]}, {k2[J]}, {k2[J]} op_sel_hi:[1,0,0]')
                    for k in range(4): A(f'v_rcp_f32 {T[k][0]}, {T[k][0]}'); A(f'v_rcp_f32 {T[k][1]}, {T[k][1]}')
                    for k in range(4): A(f'v_pk_mul_f32 {y[k]}, {y[k]}, {T[k]}')
                else:
                    for k in range(4): A(f'v_pk_mul_f32 {T[k]}, {y[k]}, {k1} op_sel_hi:[1,0]')
                    for k in range(4): A(f'v_pk_fma_f32 {y[k]}, {y[k]}, {k0}, {k2} op_sel_hi:[1,0,0]')
                    for k in range(4): A(f'v_exp_f32_e64 {T[k][0]}, {T[k][0]} clamp'); A(f'v_exp_f32_e64 {T[k][1]}, {T[k][1]} clamp')
                    for k in range(4): A(f'v_max_f32 {y[k][0]}, {k2[0]}, {y[k][0]}'); A(f'v_max_f32 {y[k][1]}, {k2[0]}, {y[k][1]}')
                    for k in range(4): A(f'v_pk_add_f32 {y[k]}, {y[k]}, {T[k]}')
                p = P[hf] if hold is None else acc[J].sub(8 * hf, 4)
                for k in ((0, 2, 1, 3) if hold is None else (0, 1, 2, 3)): A(f'v_cvt_pk_bf16_f32 {p[k]}, {y[k][0]}, {y[k][1]}')
                if mid: mid(2 * J + hf)
                A(f'v_permlane32_swap_b32 {p[0]}, {p[2]}'); A(f'v_permlane32_swap_b32 {p[1]}, {p[3]}')
                txt = f'buffer_store_dwordx4 {p}, {vo}, {sWS}, {so} offen offset:{imm + 512 * hf} sc1'
                if hold is None: last = A(txt)
                else: hold.append(txt); last = None
        V.put(*T, *P)
        return last
    def gelu_k(s, k0, k1, a):
        A = s.A
        A(f'v_mul_f32 {k0[0]}, {hexf(GC0)}, {a}'); A(f'v_mul_f32 {k1[0]}, {a}, {a}'); A(f'v_mul_f32 {k1[0]}, {k1[0]}, {a}'); A(f'v_mul_f32 {k1[0]}, {hexf(GC1)}, {k1[0]}')

    def t23(s, typ):
        A = s.A; V = s.V; S = s.S; AG = s.AG; stages = s.st
        G1, G2 = ([0, 1, 2], [3, 4]) if typ == 'A' else ([3, 4], [0, 1, 2])
        N1 = len(G1)
        if typ == 'A': A('L_TA:')
        s.begin_variant()
        sA = S.get(); sC1 = S.get(); sC2 = S.get()
        A(f's_lshl1_add_u32 {sA}, {s.sXc}, {s.sCl}'); A(f's_sub_u32 {sA}, {sA}, {4 if typ == "A" else 6}')
        c96, c64 = (sC1, sC2) if typ == 'A' else (sC2, sC1)
        A(f's_mul_i32 {c96}, {sA}, 96'); A(f's_lshl_b32 {c64}, {sA}, 6'); A(f's_add_u32 {c64}, {c64}, 384')
        t = V.get(); u = V.get(); xb = [V.get() for _ in range(4)]
        A(f'v_and_b32 {xb[0]}, 31, {s.vLane}'); A(f'v_bfe_u32 {t}, {s.vLane}, 1, 3'); A(f'v_lshrrev_b32 {u}, 5, {s.vLane}'); A(f'v_xor_b32 {t}, {t}, {u}')
        A(f's_lshl_b32 {s.sT0}, {s.sW}, 12')
        A(f'v_lshlrev_b32 {xb[0]}, 7, {xb[0]}'); A(f'v_lshl_add_u32 {xb[0]}, {t}, 4, {xb[0]}'); A(f'v_add_u32 {xb[0]}, {s.sT0}, {xb[0]}')
        for ks in range(1, 4): A(f'v_xor_b32 {xb[ks]}, {32 * ks}, {xb[0]}')
        fx = [s.dsaddr(b, (0, 1)) for b in xb]
        fw2, r2regs = s.mk_nt_read(2, wins=(0, 1), add=28 * KB)
        tok = V.get(); vo2 = V.get(); so1 = S.get(); so2 = S.get()
        A(f's_lshl2_add_u32 {s.sT0}, {s.sRb}, {s.sW}'); A(f's_lshl_b32 {s.sFlag}, {s.sT0}, 7'); A(f's_lshl_b32 {s.sT0}, {s.sT0}, 5')
        A(f'v_and_b32 {tok}, 31, {s.vLane}'); A(f'v_add_u32 {tok}, {s.sT0}, {tok}')
        A(f's_lshl2_add_u32 {s.sFlag}, {sA}, {s.sFlag}'); A(f's_add_u32 {s.sFlag}, {s.sFlag}, {F1 + (0 if typ == "A" else 16)}')
        A(f's_lshl_b32 {so1}, {sC1}, 5'); A(f's_add_u32 {so1}, {so1}, {HS}')
        A(f's_lshl_b32 {so2}, {sC2}, 5'); A(f's_add_u32 {so2}, {so2}, {PQ}')
        s.f16_voff(vo2, tok, 20)
        s.nonce()
        s.stamp(1)
        acc = [V.get(16) for _ in range(5)]
        XF = [AG.get(4) for _ in range(4)]; WB = [AG.get(4) for _ in range(10)]
        gr = V.get(4); xq = V.get(4); k0 = V.get(2); k1 = V.get(2); ia = V.get(2)
        cg = [V.get(4) for _ in range(5)]; ga = [tok, V.get(), V.get()]
        A(f'v_and_b32 {t}, 31, {s.vLane}'); A(f'v_lshlrev_b32 {ga[1]}, 3, {t}'); A(f's_lshl_b32 {s.sT0}, {s.sW}, 8'); A(f's_add_u32 {s.sT0}, {s.sT0}, {GX}'); A(f'v_add_u32 {ga[0]}, {s.sT0}, {ga[1]}')
        A(f's_lshl_b32 {s.sT0}, {s.sW}, 9'); A(f's_add_u32 {s.sT0}, {s.sT0}, {GK}'); A(f'v_lshl_add_u32 {ga[2]}, {t}, 4, {s.sT0}'); A(f'v_add_u32 {ga[1]}, {GW}, {ga[1]}')
        A(f'v_mov_b32 {xq[2]}, 0'); A(f'v_mov_b32 {xq[3]}, 0')
        for c_ in cg:
            for e in range(4): A(f'v_mov_b32 {c_[e]}, 0')
        mf = []; rd = {}; at = {}
        for n in range(40):
            st, ks = divmod(n, 4); p = stages[st]; x = XF[n % 4]; at[n] = len(mf)
            rd[('x', n)] = (x, p, [lambda x=x, ks=ks, p=p: A(f'ds_read_b128 {x}, {fx[ks](p.addr)}')])
            for J in range(5):
                w = WB[(n * 5 + J) % 10]
                ad = (lambda t2, J=J, ks=ks, p=p: s.fw3[J](p.addr + 16 * KB + (16 * ks + 4 * t2) * 192)) if J < 3 else (lambda t2, J=J, ks=ks, p=p: fw2[J - 3](p.addr + (16 * ks + 4 * t2) * 128))
                rd[('w', n, J)] = (w, p, [(lambda t2=t2, w=w, ad=ad: A(f'ds_read_b64_tr_b16 {w.sub(2*t2, 2)}, {ad(t2)}')) for t2 in range(2)])
                mf.append((lambda J=J, n=n, w=w, x=x: A(f'v_mfma_f32_32x32x16_bf16 {acc[J]}, {w}, {x}, {"0" if n == 0 else acc[J]}'), [('w', n, J), ('x', n)]))
            if n == 33:
                at['corr'] = len(mf)
                mf += [(lambda J=J: A(f'v_mfma_f32_32x32x16_bf16 {acc[J]}, {cg[J]}, {xq}, {acc[J]}'), []) for J in range(5)]
        def h_get():
            s.lds_wait(36, 1)
            A('s_mov_b32 exec_hi, 0')
            for J in range(5): A(f'ds_read_b64 {cg[J][0:2]}, {ga[1]} offset:{256 * J}')
            A('s_mov_b32 exec_hi, -1')
            def f():
                A(f'ds_read_b64 {xq[0:2]}, {ga[0]}'); A(f'ds_read_b128 {gr}, {ga[2]}')
                s.gr_common(t)
                A(f'v_mov_b32 {k0[0]}, {gr[0]}'); A(f'v_mov_b32 {k1[0]}, {gr[1]}'); A(f'v_mov_b32 {ia[0]}, {gr[2]}')
            s.defer(f)
        if 'st1' in s.dbg: s.stbase = 17
        s.flat(mf, rd, s.o['lag32'], 3, hooks={at[29]: h_get, at['corr']: s.flush3}, n3=4, per=20)
        s.stbase = None
        s.stamp(2)
        for f in fx: V.put(*f.regs)
        V.put(*r2regs, *cg, xq)
        last1 = s.epi32('gelu', [acc[J] for J in G1], k0, k1, [ia] * N1, [(vo2, so1, 1024 * J) for J in range(N1)])
        s.stamp(3)
        A(f'v_mov_b32 {k0[0]}, {gr[3]}'); A(f'v_mul_f32 {k1[0]}, {hexf(LOG2E)}, {gr[3]}'); A(f'v_mov_b32 {ia[0]}, {hexf(1e-6)}')
        hold = []
        def mid(i):
            if i == 3: s.setflag(last1, s.sFlag); A(f's_add_u32 {s.sFlag}, {s.sFlag}, {FQ - F1}'); s.stamp(4)
        s.epi32('phi', [acc[J] for J in G2], k0, k1, ia, [(vo2, so2, 1024 * J) for J in range(5 - N1)], mid=mid, hold=hold)
        for x in hold: A(x)
        s.stamp(5)
        s.end_variant()

    def common(s):
        A = s.A; V = s.V; S = s.S; AG = s.AG; o = s.o
        A('L_join:'); A.ctl('join'); s.q3 = []; s.known = 10; s.nrel = 11
        b2, b3, b4a, b4b = s.b2, s.b3, s.b4a, s.b4b
        for p in b3[:4]: p.minrel = 11
        s.pxt.minrel = 10
        if s.stop <= 1:
            s.setflag('prejoin', s.sFlag); return
        NF = o['NF']; XA = [AG.get(4) for _ in range(20)]
        WF = [V.get(4) for _ in range(NF)]
        t = V.get(); u = V.get()
        def rd2(n):
            p = b2[n // 25]; c = p.addr + (n % 25) * 1024
            s.full(p if p is not b2[1] else b2[3])
            A(f'ds_read_b128 {WF[n % NF]}, {s.vL1 if c >> 16 else s.vL16} offset:{c & 0xffff}')
            if n == 49: s.release([b2[0], b2[1], s.pxt])
            if n == 74: s.release([b2[2]])
            if n == 99: s.release([b2[3]])
        acc = [V.get(4) for _ in range(5)]; resid = [V.get(4) for _ in range(5)]; gr = s.gr2
        A(f'v_mul_u32_u24 {t}, 160, {s.vTok}'); A(f'v_lshrrev_b32 {u}, 4, {s.vLane}'); A(f'v_lshl_add_u32 {t}, {u}, 3, {t}')
        A(f's_mul_i32 {s.sT0}, {s.sW}, 2560'); A(f's_add_u32 {s.sT0}, {s.sT0}, {XT}'); A(f'v_add_u32 {t}, {s.sT0}, {t}')
        if o['fke']: s.setflag('prejoin', s.sFlag)
        s.full(s.pxt)
        for nt in range(5): A(f'ds_read_b64 {acc[nt][2:4]}, {t} offset:{32 * nt}')
        vSt = [V.get() for _ in range(3)]; va, va2, vs = vSt; sH = [S.get(), S.get()]; sF2 = S.get()
        def xn():
            A(f's_mul_i32 {s.sT0}, {s.sTw}, 40960'); A(f's_mul_i32 {s.sT1}, {s.sJ2}, 5120'); A(f's_add_u32 {s.sT0}, {s.sT0}, {s.sT1}')
            A(f's_and_b32 {s.sT1}, {s.sW}, 1'); A(f's_lshl_b32 {s.sT1}, {s.sT1}, 8'); A(f's_add_u32 {s.sT0}, {s.sT0}, {s.sT1}'); A(f's_add_u32 {s.sT0}, {s.sT0}, {X1}')
            A(f'v_lshl_add_u32 {va}, {s.vTok}, 4, {s.sT0}'); A(f'v_and_b32 {u}, 32, {s.vLane}'); A(f'v_lshl_add_u32 {va}, {u}, 4, {va}')
            A(f'v_and_b32 {u}, 16, {s.vLane}'); A(f'v_lshl_add_u32 {va2}, {u}, 26, {va}'); A(f'v_add_u32 {va2}, 4096, {va2}'); A(f'v_lshl_add_u32 {va}, {u}, 6, {va}')
            A(f's_lshl3_add_u32 {s.sT0}, {s.sTw}, {s.sJ2}'); A(f's_lshl_b32 {s.sT0}, {s.sT0}, 9'); A(f's_add_u32 {s.sT0}, {s.sT0}, {s.sT1}'); A(f's_add_u32 {s.sT0}, {s.sT0}, {S2}')
            A(f'v_lshl_add_u32 {vs}, {s.vTok}, 4, {s.sT0}'); A(f'v_and_b32 {u}, 48, {s.vLane}'); A(f'v_lshl_add_u32 {vs}, {u}, 25, {vs}')
            for nt in range(5):
                for h in range(2):
                    x = resid[nt].sub(2 * h, 2); y = acc[nt].sub(2 * h, 2); src = acc[nt][2 + h]
                    A(f'v_lshlrev_b32 {x[0]}, 16, {src}'); A(f'v_and_b32 {x[1]}, 0xffff0000, {src}')
                    A(f'v_pk_fma_f32 {y}, {x}, {gr[0:2]}, {gr[0:2]} op_sel:[0,0,1] op_sel_hi:[1,0,1] neg_lo:[0,0,1] neg_hi:[0,0,1]')
                    A(f'v_cvt_pk_bf16_f32 {y[1]}, {y[0]}, {y[1]}')
                    A(f'v_lshlrev_b32 {y[0]}, 16, {y[1]}'); A(f'v_and_b32 {y[1]}, 0xffff0000, {y[1]}')
        s.defer(xn)
        for n in range(NF):
            rd2(n)
            for k in range(3):
                if s.q3: s.q3.pop(0)()
        s.flush3()
        A(f's_and_b32 {s.sT1}, {s.sW}, 1'); A(f's_lshl3_add_u32 {s.sT1}, {s.sT1}, {s.sJ2}'); A(f's_lshl_b32 {s.sT0}, {s.sTw}, 7'); A(f's_lshl2_add_u32 {s.sT0}, {s.sT1}, {s.sT0}'); A(f's_add_u32 {sF2}, {s.sT0}, {F2}')
        A(f's_mov_b32 {sH[0]}, {HS}'); A(f's_mov_b32 {sH[1]}, {HS + 4096}')
        s.stamp(6)
        if not o['fke']: s.setflag('prejoin', s.sFlag)
        s.poll2(s.paF1, 0)
        def lda2(i): A(f'buffer_load_dwordx4 {XA[i]}, {s.vA2[i // 5]}, {sWS}, {sH[i % 5 // 4]} offen offset:{1024 * (i % 5 % 4)} sc1')
        for i in range(o['LA2']): lda2(i)
        s.stamp(7)
        nr = NF; nl = o['LA2']
        for n in range(100):
            u_, nt = divmod(n, 5)
            A(f'v_mfma_f32_16x16x32_bf16 {acc[nt]}, {WF[n % NF]}, {XA[u_]}, {acc[nt]}')
            if nr < 100: rd2(nr); nr += 1
            if nt % 3 == 1 and nl < 20: lda2(nl); nl += 1
        s.stamp(8)
        V.put(*WF, *s.vA2, s.paF1); AG.put(*XA); S.put(*sH)
        pk = [V.get(4) for _ in range(3)]; sm4 = V.get(4); sm = sm4[0:2]; T = V.get(2); one = V.get()
        A(f'v_mov_b32 {pk[2][2]}, 0'); A(f'v_mov_b32 {pk[2][3]}, 0'); A(f'v_mov_b32 {sm[0]}, 0'); A(f'v_mov_b32 {sm[1]}, 0'); A(f'v_mov_b32 {one}, 0x3f803f80')
        for nt in range(5):
            for h in range(2): A(f'v_cvt_pk_bf16_f32 {pk[nt // 2][2 * (nt & 1) + h]}, {acc[nt][2*h]}, {acc[nt][2*h+1]}')
        for k in range(3):
            A(f'v_permlane16_swap_b32 {pk[k][0]}, {pk[k][2]}'); A(f'v_permlane16_swap_b32 {pk[k][1]}, {pk[k][3]}')
            last = A(f'buffer_store_dwordx4 {pk[k]}, {va if k < 2 else va2}, {sWS}, 0 offen offset:{2048 * (k & 1)} sc1')
        for k in range(3):
            for i in range(4): A(f'v_dot2c_f32_bf16 {sm[0]}, {pk[k][i]}, {one}'); A(f'v_dot2c_f32_bf16 {sm[1]}, {pk[k][i]}, {pk[k][i]}')
        for swp in ('16', '32'):
            A(f'v_mov_b32 {T[0]}, {sm[0]}'); A(f'v_mov_b32 {T[1]}, {sm[1]}')
            A(f'v_permlane{swp}_swap_b32 {sm[0]}, {T[0]}'); A(f'v_permlane{swp}_swap_b32 {sm[1]}, {T[1]}')
            A(f'v_pk_add_f32 {sm}, {sm}, {T}')
        A(f'v_mov_b32 {sm4[2]}, {s.sN}'); A(f'v_mov_b32 {sm4[3]}, {s.sN}')
        A(f'buffer_store_dwordx4 {sm4}, {vs}, {sWS}, 0 offen sc1')
        if s.stop <= 3:
            s.setflag(last, sF2); return
        cg = [V.get(4) for _ in range(3)]
        A(f'v_cmp_gt_u32 vcc, 32, {s.vLane}')
        for J in range(3):
            A(f'v_mov_b32 {cg[J][2]}, 0'); A(f'v_mov_b32 {cg[J][3]}, 0')
            for e in range(2): A(f'v_cndmask_b32 {cg[J][e]}, 0, {s.cg3[J][e]}, vcc')
        V.put(*s.cg3)
        for nt in range(5):
            for h in range(2): A(f'v_pk_add_f32 {resid[nt].sub(2*h, 2)}, {resid[nt].sub(2*h, 2)}, {acc[nt].sub(2*h, 2)}')
        vst = V.get(); vo = V.get(); vA3 = V.get(); so = S.get(); sA3 = S.get()
        A(f'v_and_b32 {t}, 31, {s.vLane}'); s.f16_voff(vo, t, 48)
        A(f's_lshl_b32 {s.sT0}, {s.sTw3}, 12'); A(f's_add_u32 {s.sT0}, {s.sT0}, {S2}')
        A(f'v_lshl_add_u32 {t}, {t}, 4, {s.sT0}'); A(f'v_and_b32 {u}, 32, {s.vLane}'); A(f'v_lshl_add_u32 {vst}, {u}, 6, {t}')
        A(f's_mul_i32 {so}, {s.sTw3}, {2 * 48 * 1024}'); A(f's_mul_i32 {s.sT0}, {s.sCb3}, 3072'); A(f's_add_u32 {so}, {so}, {s.sT0}'); A(f's_add_u32 {so}, {so}, {H3}')
        A(f's_mul_i32 {s.sT0}, {s.sTw3}, 40960'); A(f'v_add_u32 {vA3}, {s.sT0}, {s.vL16}')
        s.rot2(s.sT0); A(f's_mul_i32 {sA3}, {s.sT0}, 20480'); A(f's_add_u32 {sA3}, {sA3}, {X1}')
        s.setflag(last, sF2)
        s.stamp(9)
        V.put(*acc, *pk, sm4, T, *vSt, s.gr2, one, *s.hold); s.hold = []; S.put(sF2)
        s.stamp(10)
        LA3 = o['LA3']; NX = LA3 + 1; NB = 20 - NX
        XF = [AG.get(4) for _ in range(NX)]; WB = [AG.get(4) for _ in range(NB)]; st2 = [V.get(4) for _ in range(4)]
        def ldx3(i):
            if i >= 40: return
            A(f'buffer_load_dwordx4 {XF[i % NX]}, {vA3}, {sWS}, {sA3} offen offset:{1024 * (i % 4)} sc1')
            if i % 4 == 3: s.wrapadd(sA3, 4096, X1 + 40960, X1)
        def start3():
            A(f's_lshl_b32 {s.sT1}, {s.sTw3}, 7'); A(f's_add_u32 {s.sT1}, {s.sT1}, {F2}')
            s.poll2(s.vTok4, s.sT1)
            s.stamp(11)
            for i in range(LA3): ldx3(i)
        s2txt = [f'buffer_load_dwordx4 {st2[k]}, {vst}, {sWS}, 0 offen offset:{512 * k} sc1' for k in range(4)]
        def lds2():
            for x in s2txt: A(x)
        sA4 = S.get(); vA4 = [[V.get() for _ in range(2)] for _ in range(2)];
        acc = [V.get(16) for _ in range(3)]; xq = V.get(4); k0 = V.get(2); k1 = V.get(2); ia = V.get(2)
        rL4 = [V.get() for _ in range(3)]; H = {}
        def su():
            A(f's_and_b32 {s.sT1}, {s.sW}, 1'); A(f's_mul_i32 {s.sT2}, {s.sT1}, 10240'); A(f'v_add_u32 {rL4[0]}, {s.sT2}, {s.vL16}')
            H['fl'] = s.dsaddr(rL4[0], regs=rL4[1:])
            A(f's_lshl_b32 {s.sT1}, {s.sT1}, 11')
            for k, nkb in enumerate((20, 48)):
                for m in range(2):
                    A(f's_xor_b32 {s.sT2}, {s.sTT}, {m}'); A(f's_mul_i32 {s.sT2}, {s.sT2}, {nkb * 1024}'); A(f's_add_u32 {s.sT2}, {s.sT2}, {s.sT1}'); A(f'v_add_u32 {vA4[k][m]}, {s.sT2}, {s.vL16}')
            s.rot4(s.sT1); A(f's_lshl_b32 {sA4}, {s.sT1}, 12'); A(f's_add_u32 {sA4}, {sA4}, {PP}')
            A(f's_lshl_b32 {s.sT2}, {s.sTw3}, 7'); A(f's_lshl2_add_u32 {s.sT2}, {s.sCb3}, {s.sT2}'); A(f's_add_u32 {s.sFlag}, {s.sT2}, {F3}'); A('v_nop')
        def ln():
            a = st2[0]
            for k in range(1, 4):
                for e in range(2): A(f'v_add_f32 {a[e]}, {a[e]}, {st2[k][e]}')
            for e in range(2): A(f'v_mov_b32 {a[e+2]}, {a[e]}')
            for e in range(2): A(f'v_permlane32_swap_b32 {a[e]}, {a[e+2]}')
            for e in range(2): A(f'v_add_f32 {a[e]}, {a[e]}, {a[e+2]}')
            for e in range(2): A(f'v_mul_f32 {a[e]}, {hexf(1.0/640)}, {a[e]}')
            A(f'v_fma_f32 {a[1]}, -{a[0]}, {a[0]}, {a[1]}'); A(f'v_max_f32 {a[1]}, 0, {a[1]}')
            s.rstd(ia[0], a[1]); A(f'v_rcp_f32 {a[2]}, {ia[0]}')
            s.split_x(xq, a[0]); s.gelu_k(k0, k1, a[2])
        NA = 10
        order = [XF[(40 + i) % NX] for i in range(NX)] + WB
        XA = [[order[2 * n], order[2 * n + 1]] for n in range(NA)]
        def lda4(n, k):
            lim, base, span = ((10, PP, 20480), (24, H3, 49152))[k]
            if n >= lim: return []
            ops = [(lambda m=m: A(f'buffer_load_dwordx4 {XA[n % NA][m]}, {vA4[k][m]}, {sWS}, {sA4} offen offset:{1024 * (n % 2)} sc1')) for m in range(2)]
            if n % 2 == 1: ops.append(lambda: s.wrapadd(sA4, 4096, base + span, base))
            return ops
        A4e = LA3 // 2
        mf = []; rd = {}
        for n in range(40):
            st, ks = divmod(n, 4); p = b3[st]
            for J in range(3):
                w = WB[(n * 3 + J) % NB]
                rd[('w', n, J)] = (w, p, [(lambda ks=ks, J=J, t2=t2, w=w, p=p: A(f'ds_read_b64_tr_b16 {w.sub(2*t2, 2)}, {s.fw3[J](p.addr + (16 * ks + 4 * t2) * 192)}')) for t2 in range(2)])
                def m(J=J, n=n, w=w):
                    A(f'v_mfma_f32_32x32x16_bf16 {acc[J]}, {w}, {XF[n % NX]}, {"0" if n == 0 else acc[J]}')
                    if J == 0:
                        ldx3(n + LA3)
                        i = n + LA3 - 40
                        if 0 <= i < 2 * A4e and s.stop > 4:
                            ops = lda4(i // 2, 0)
                            for f in (ops[:1] if i % 2 == 0 else ops[1:]): f()
                mf.append((m, [('w', n, J)]))
            if n == 36: ic = len(mf); mf += [(lambda J=J: A(f'v_mfma_f32_32x32x16_bf16 {acc[J]}, {cg[J]}, {xq}, {acc[J]}'), []) for J in range(3)]
        g3 = {b3[0]: b3[3], b3[4]: b3[6], b3[7]: b3[9]}
        if 'st3' in s.dbg: s.stbase = 17
        su()
        def chk_s2(): s.checked(s2txt, [x[2] for x in st2], sl=4); s.defer(ln)
        def chk_p():
            if s.stop > 4: s.lds_wait(36, 2)
        fp = 3 * (40 - LA3)
        s.flat(mf, rd, o['lag32'], 3, group=lambda p: g3.get(p, p), relmap={b3[1]: b3[0:2], b3[3]: b3[2:4], b3[5]: b3[4:6], b3[7]: b3[6:8], b3[8]: [b3[8]], b3[9]: [b3[9]]},
               after_first=start3, hooks={24: lambda: s.defer(lds2), 66: chk_s2, fp: chk_p, ic: s.flush3}, n3=4, per=12)
        s.stbase = None
        s.stamp(12)
        V.put(*s.rW3, vA3, vst, *st2, *cg, xq, *s.hold); S.put(sA3); s.hold = []
        last = s.epi32('gelu', acc, k0, k1, [ia] * 3, [(vo, so, 1024 * J) for J in range(3)])
        s.stamp(13)
        sF3 = s.sFlag
        V.put(*acc, k0, k1, ia)
        if s.stop <= 4:
            s.setflag(last, sF3); return
        fl = H['fl']
        acc = [resid, [V.get(4) for _ in range(5)]]
        WB = [[V.get(4) for _ in range(5)] for _ in range(3)]
        va = V.get(); va2 = V.get(); vr = [V.get(), V.get()]
        RED = 40 * KB
        def gemm4(k, panels, LA, hooks, group, relmap, af=None):
            mf = []; rd = {}; coarse = {}; N = 2 * len(panels)
            def mk(n, nt, m):
                W = WB[n % 3]; X = XA[n % NA]
                def f():
                    A(f'v_mfma_f32_16x16x32_bf16 {acc[m][nt]}, {W[nt]}, {X[m]}, {"0" if k == 0 and n == 0 and m == 1 else acc[m][nt]}')
                    if LA and m == 0 and nt % 2 == 0:
                        ops = lda4(n + LA, k)
                        if nt // 2 < len(ops): ops[nt // 2]()
                    if k == 1 and m == 0 and n >= N - 2:
                        i = 5 * (n - N + 2) + nt
                        if i % 2 == 1: A(f'ds_write_b128 {vr[0]}, {acc[1][i // 2]} offset:{1024 * (i // 2)}')
                return (f, [(n, nt)])
            for n in range(N):
                p = panels[n // 2]; h = n % 2; W = WB[n % 3]
                for nt in range(5): rd[(n, nt)] = (W[nt], p, [lambda nt=nt, W=W, p=p, h=h: A(f'ds_read_b128 {W[nt]}, {fl(p.addr + (5 * h + nt) * 1024)}')])
                if k == 1 and n >= N - 2: continue
                coarse[len(mf)] = W + XA[n % NA]
                mf += [mk(n, nt, m) for nt in range(5) for m in range(2)]
            if k == 1: mf += [mk(n, nt, m) for m in (1, 0) for n in (N - 2, N - 1) for nt in range(5)]
            s.flat(mf, rd, 19, 1, group=group, relmap=relmap, hooks=hooks, coarse=coarse, per=20, after_first=af)
        def flag3(): s.setflag(last, sF3); s.slowpre = None; s.stamp(28)
        def addr4():
            A(f's_mul_i32 {s.sT0}, {s.sW}, 5120'); A(f's_add_u32 {s.sT0}, {s.sT0}, {RED}'); A(f'v_add_u32 {vr[0]}, {s.sT0}, {s.vL16}')
            A(f's_xor_b32 {s.sT0}, {s.sW}, 1'); A(f's_mul_i32 {s.sT0}, {s.sT0}, 5120'); A(f's_add_u32 {s.sT0}, {s.sT0}, {RED}'); A(f'v_add_u32 {vr[1]}, {s.sT0}, {s.vL16}')
            A(f's_mul_i32 {s.sT0}, {s.sTT}, 20480'); A(f's_add_u32 {s.sT0}, {s.sT0}, {s.sJ160}')
            A(f'v_mul_u32_u24 {va}, 1280, {s.vTok}'); A(f'v_lshrrev_b32 {t}, 1, {s.vLane}'); A(f'v_and_b32 {t}, 16, {t}'); A(f'v_add3_u32 {va}, {va}, {t}, {s.sT0}')
            A(f'v_and_b32 {t}, 16, {s.vLane}'); A(f'v_lshl_add_u32 {va2}, {t}, 26, {va}'); A(f'v_lshl_add_u32 {va}, {t}, 1, {va}')
        s.slowpre = lambda: (A('s_waitcnt vmcnt(0)'), A(s.flagtxt(sF3)))
        gemm4(0, b4a, A4e, {min(o['f3d'], 10 * A4e): flag3}, None, None)
        addr4()
        s.rot4(s.sT1); A(f's_mul_i32 {sA4}, {s.sT1}, 12288'); A(f's_add_u32 {sA4}, {sA4}, {H3}')
        s.stamp(14)
        LA4 = o['LA4']
        def start4():
            A(f's_lshl_b32 {s.sT1}, {s.sTw}, 7'); A(f's_add_u32 {s.sT1}, {s.sT1}, {F3}')
            s.poll2(s.vTok4, s.sT1)
            s.stamp(15)
            for n in range(LA4):
                for f in lda4(n, 1): f()
        if 'st4' in s.dbg: s.stbase = 17
        g4 = {b4b[2]: b4b[3], b4b[4]: b4b[6]}
        rm = {p: [p] for p in b4b[:6]}
        gemm4(1, b4b, LA4, None, lambda p: g4.get(p, p), rm, start4)
        redrel = b4b[5].rel
        s.stbase = None
        if 'st4' in s.dbg: s.stamp(29)
        b4b[11].minrel = redrel
        A('s_waitcnt lgkmcnt(0)'); A('s_barrier')
        for nt in range(5): A(f'ds_read_b128 {WB[0][nt]}, {vr[1]} offset:{1024 * nt}')
        pk = [V.get(4) for _ in range(3)]
        for nt in range(5):
            for h in range(2):
                y = acc[0][nt].sub(2 * h, 2)
                A(f'v_pk_add_f32 {y}, {y}, {WB[0][nt].sub(2*h, 2)}')
                A(f'v_cvt_pk_bf16_f32 {pk[nt // 2][2 * (nt & 1) + h]}, {y[0]}, {y[1]}')
            if nt % 2 == 1 or nt == 4:
                k = nt // 2
                A(f'v_permlane16_swap_b32 {pk[k][0]}, {pk[k][2]}'); A(f'v_permlane16_swap_b32 {pk[k][1]}, {pk[k][3]}')
                A(f'buffer_store_dwordx4 {pk[k]}, {va if k < 2 else va2}, {sOUT}, 0 offen offset:{64 * k} ' + ['', 'nt', 'sc1', 'sc0 sc1 nt'][o['ost']])
        A(f'v_or_b32 {t}, s2, v0'); A(f'v_cmp_eq_u32 vcc, 0, {t}'); A(f'v_mov_b32 {u}, {OOB}'); A(f'v_cndmask_b32 {t}, {u}, {t}, vcc')
        A(f'buffer_store_dword {s.vN}, {t}, {sWS}, 0 offen')

    def finish(s):
        A = s.A
        A('L_fin:')
        if s.stamps:
            t = s.vF[0]; u = s.vCtl
            A('s_waitcnt vmcnt(0) lgkmcnt(0)')
            s.stamp(16); A(f'v_writelane_b32 {s.vStamp}, {s.sEnt[0]}, 27')
            A(f's_getreg_b32 {s.sT0}, hwreg(HW_REG_HW_ID)'); A(f'v_writelane_b32 {s.vStamp}, {s.sT0}, 31')
            A(f's_lshl_b32 {s.sT0}, s2, 3'); A(f's_add_u32 {s.sT0}, {s.sT0}, {s.sW}'); A(f's_lshl_b32 {s.sT0}, {s.sT0}, 7'); A(f's_add_u32 {s.sT0}, {s.sT0}, {STAMP}')
            A(f'v_and_b32 {t}, 31, {s.vLane}'); A(f'v_lshlrev_b32 {t}, 2, {t}'); A(f'v_and_b32 {u}, 32, {s.vLane}'); A(f'v_lshl_add_u32 {t}, {u}, 25, {t}')
            A(f'buffer_store_dword {s.vStamp}, {t}, {sWS}, {s.sT0} offen')
        A('L_end:'); A('s_endpgm')

    def build(s):
        A = s.A
        s.entry(); e = s.snap(); head = A.ins; A.ins = []
        A('L_comp:'); A.ctl('restore', 'entry')
        s.cpro(); c = s.snap()
        for var in ('B', 'A', 'T1'):
            s.rest(c)
            if var == 'T1': s.t1()
            else: s.t23(var)
        s.rest(c)
        s.common()
        s.finish()
        comp = A.ins; A.ins = []
        for p in s.P:
            if p.rel is None: p.rel = 0
        s.rest(e); s.loader(1)
        s.rest(e); s.loader(0)
        s.rest(e); s.job()
        A.ins = head + A.ins + comp
        A('s_waitcnt vmcnt(0) lgkmcnt(0)')
        A.ins += s.cold
        A('s_endpgm'); A('.p2align 8'); A('L_codeend:')
        hdr = open('cdna_kernels/' + NAME + '.s.ref').read().split('; Override launch')[0]
        txt = hdr + '; @launch grid=(256,1,1) block=(512,1,1) lds=163840\n'
        txt += f'.amdgcn_target "amdgcn-amd-amdhsa--gfx950"\n.text\n.globl {NAME}_kernel\n.p2align 8\n.type {NAME}_kernel,@function\n{NAME}_kernel:\n'
        if 'nomfma' in s.dbg: A.ins = [i for i in A.ins if i.cls != 'mfma']
        if 'nob3' in s.dbg: A.ins = [i for i in A.ins if not (i.note == 'dma' and str(sW3) in i.text)]
        if 'nos2' in s.dbg: A.ins = [i for i in A.ins if not (i.op == 'buffer_store_dwordx2')]
        if 'noa' in s.dbg: A.ins = [i for i in A.ins if not (i.op == 'buffer_load_dwordx4' and i.ops[0].startswith('a['))]
        if 'notr' in s.dbg: A.ins = [i for i in A.ins if not (i.op == 'ds_read_b64_tr_b16' and i.ops[0].startswith('a[') and (int(i.ops[0][2:].split(':')[0]) & 2))]
        if 'nodma' in s.dbg: A.ins = [i for i in A.ins if i.note != 'dma']
        if 'nopf' in s.dbg: A.ins = [i for i in A.ins if not (i.op == 'buffer_load_dword' and i.ops[0] == i.ops[1])]
        txt += A.text()
        txt += f'''.section .rodata,"a"
.p2align 6
.amdhsa_kernel {NAME}_kernel
  .amdhsa_next_free_vgpr 256
  .amdhsa_next_free_sgpr 102
  .amdhsa_accum_offset {NV}
  .amdhsa_group_segment_fixed_size 0
  .amdhsa_kernarg_size 88
  .amdhsa_user_sgpr_count 2
  .amdhsa_user_sgpr_kernarg_segment_ptr 1
  .amdhsa_system_sgpr_workgroup_id_x 1
.end_amdhsa_kernel
'''
        return txt

if __name__ == '__main__':
    import argparse
    ap = argparse.ArgumentParser()
    ap.add_argument('-o', default='cdna_kernels/' + NAME + '.s')
    ap.add_argument('--stop', type=int, default=99)
    ap.add_argument('--stamps', action='store_true')
    ap.add_argument('--dbg', default='')
    a = ap.parse_args()
    opt = {k.split('=')[0]: int(k.split('=')[1]) for k in a.dbg.split(',') if '=' in k}
    g = G(stop=a.stop, stamps=a.stamps, dbg=a.dbg, **opt)
    txt = g.build()
    open(a.o, 'w').write(txt)
    print('written', a.o, 'vgpr top', g.V.top, 'agpr top', g.AG.top, 'sgpr top', g.S.top)
```

```python
import sys, struct, math, os
from asmgen import *

NAME = 'parallel_sum__linear_attn_block__mixer_s_mlp__prompt'
KB = 1024
F1, FQ, FK, F2, FP, FW, F3 = 0x2000, 0x4000, 0x6000, 0x7000, 0x9000, 0xA000, 0xB000
FR2, FR4 = 0xD000, 0xD800
RS, CS, S2, STAMP = 0x10000, 0x18000, 0x40000, 0x180000
HS, PQ, W2R, X1, H3, WOP = 0x200000, 0x480000, 0x700000, 0x980000, 0xC00000, 0x1200000
PP = PQ
KV, W4R = 0x1300000, 0x1580000
KVP = 8192 + 384
KVH = 16 * KVP + 128
WS_USED = 0x1780000
OOB = 0x40000000
XT = 148 * KB
KVB = 158 * KB
CTRL = KVB + 1536
RPB = 144 * KB
GW, GX, GK, G1, G2 = 152 * KB, 154 * KB, 155 * KB, 157 * KB, 157 * KB + 512
SPIN = 200000
NV = 176

def f2u(x): return struct.unpack('<I', struct.pack('<f', x))[0]
def hexf(x): return '0x%08x' % f2u(x)
LOG2E = 1.4426950408889634
GC0 = -2.0 * LOG2E * math.sqrt(2.0 / math.pi)
GC1 = GC0 * 0.044715

sX, sWQKV, sWO, sW1, sW2, sW3, sW4, sOUT, sWS, sD0, sD1 = [R('s', 4 + 4 * i, 4) for i in range(11)]

class Panel:
    def __init__(s, name, addr, size, seq): s.name, s.addr, s.size, s.seq = name, addr, size, seq; s.rel = None; s.minrel = 0
def ovl(p, q): return q.addr < p.addr + p.size and p.addr < q.addr + q.size

class G:
    def __init__(s, stop=99, stamps=False, dbg='', **opt):
        s.A = Asm(); s.stop = stop; s.stamps = stamps; s.dbg = dbg; s.stbase = None
        s.V = Pool('v', 1, NV); s.AG = Pool('a', 0, 256 - NV); s.S = Pool('s', 48, 101)
        s.cold = []; s.nlab = 0; s.q3 = []; s.hold = []; s.slowpre = None
        s.o = dict(NF=24, LA2=8, LA3=10, LA4=5, lag16=12, lag32=6, nph=2, W1x=16, W1w=20, W1v=20, W1=14, W2=9, W3=10, W4=12, W5=12, jd=8, jd2=0, frs=9, gd=4, iss=1, stg=0, rj=0, m4=1, f1i=1, csl=0, Wa=14, ost=0, pp=0, f3d=24, fke=3, f1p=10, f1w=20, f1s=0, jw=0, wm=0, Ww=1, r2a=49, r2b=74, tlb=0, fix=0, fixp=0, jprio=2, wsl=4, lprio=3, ntr=1, A4e=4, jp=11, jsl=2, psl=0, pt=1, pm=1, pd2=0, nt0=0, nt1=0, nt2=0, prio=0, slp=1); s.o.update(opt)
        P = []
        def add(n, a, sz): p = Panel(n, a, sz, len(P) + 1); P.append(p); return p
        s.st = [add(f's{i}', ((i + 2) % 4) * 36 * KB, 36 * KB) for i in range(10)]
        s.b2 = [add(f'b2_{i}', 25 * KB * i, 25 * KB) for i in range(4)]
        s.pxt = add('xt', XT, 10 * KB)
        s.b3 = [add(f'b3_{i}', (100 + 12 * i) * KB, 12 * KB) for i in range(4)]
        s.b3 += [add(f'b3_{i}', 12 * (i - 4) * KB, 12 * KB) for i in range(4, 10)]
        sl = [4, 5, 6, 0, 1, 2, 3, 4, 5, 6, 0, 1]
        s.b4b = [add(f'b4b_{i}', 20 * KB * sl[i], 20 * KB) for i in range(2)]
        s.b4a = [add(f'b4a_{i}', 20 * KB * [6, 0, 1, 2, 3][i], 20 * KB) for i in range(5)]
        s.b4b += [add(f'b4b_{i}', 20 * KB * sl[i], 20 * KB) for i in range(2, 12)]
        s.P = P
        s.known = 0; s.nrel = 0

    def lab(s, p='L'): s.nlab += 1; return f'{p}{s.nlab}'
    def stamp(s, n):
        if s.stamps: s.A(f's_mem{"" if "cyc" in s.dbg else "real"}time {s.sStamp}'); s.A(f'v_writelane_b32 {s.vStamp}, {s.sStamp[0]}, {n}')
    def flush3(s):
        while s.q3: s.q3.pop(0)()
    def defer(s, fn):
        A = s.A; main = A.ins; A.ins = []; clk = (A.clk, A.mf_free, A.lds_free)
        fn(); cap = A.ins; A.ins = main; A.clk, A.mf_free, A.lds_free = clk
        grp = []
        for i in cap:
            grp.append(i)
            if i.cls != 'salu': s.q3.append(lambda g=grp: s.replay(g)); grp = []
        if grp: s.q3.append(lambda g=grp: s.replay(g))
    def replay(s, g):
        for i in g: s.A.ins.append(i); s.A.tick(i)
    def outline(s, fn):
        A = s.A; main = A.ins; A.ins = []; clk = (A.clk, A.mf_free, A.lds_free)
        fn(); s.cold += A.ins; A.ins = main; A.clk, A.mf_free, A.lds_free = clk
    def tick_spin(s, out, sl=0):
        if sl: s.A(f's_sleep {sl}')
        s.A(f's_sub_u32 {s.sSp}, {s.sSp}, 1'); s.A(f's_cmp_lt_i32 {s.sSp}, 0'); s.A(f's_cbranch_scc1 {out}')
    def lds_wait(s, off, val, pre=True, sl=0, slowpre=None):
        A = s.A; Lr = s.lab('W'); Lb = s.lab('B')
        rdt = f'ds_read_b64 {s.vF}, {s.vCtl} offset:{off}' if off in (0, 40, 64) else f'ds_read_b32 {s.vF[0]}, {s.vCtl} offset:{off}'
        L0 = s.lab('W') if slowpre else Lr
        def cmp(L=Lr):
            if off in (0, 40, 64): A(f'v_min_u32 {s.vF[0]}, {s.vF[0]}, {s.vF[1]}')
            A(f'v_cmp_gt_u32 vcc, {val}, {s.vF[0]}'); A(f's_cbranch_vccnz {L}')
        if pre: A(rdt)
        cmp(L0); A(f'{Lb}:')
        def slow():
            if slowpre: A(f'{L0}:'); slowpre()
            A(f'{Lr}:'); A(rdt); s.tick_spin(Lb, sl); A('s_waitcnt lgkmcnt(0)'); cmp(); A(f's_branch {Lb}')
        s.outline(slow)
    def full(s, p, pre=True):
        if p.seq > s.known: s.lds_wait(0, p.seq, pre, sl=s.o['csl'], slowpre=s.slowpre); s.known = p.seq
    def release(s, ps):
        s.nrel += 1
        for p in ps:
            assert p.rel is None or p.rel == s.nrel, p.name
            p.rel = s.nrel
        s.A(f'v_mov_b32 {s.vP}, {s.nrel}'); s.A(f'ds_write_b32 {s.vPa}, {s.vP}')
    def dsaddr(s, base, wins=(0, 1, 2), regs=None):
        rr = {0: base}; k = 0
        for wv in wins:
            if wv:
                r = regs[k] if regs else s.V.get(); k += 1
                s.A(f'v_add_u32 {r}, {wv * 65536}, {base}'); rr[wv] = r
        def at(c): return f'{rr[c >> 16]} offset:{c & 0xffff}'
        at.regs = list(rr.values())
        return at
    def wrapadd(s, r, step, lim, base):
        s.A(f's_add_u32 {r}, {r}, {step}'); s.A(f's_cmp_ge_u32 {r}, {lim}'); s.A(f's_cmov_b32 {r}, {base}')
    def tagcmp(s, tags):
        A = s.A
        if len(tags) == 1: A(f'v_cmp_ne_u32 vcc, {s.sN}, {tags[0]}'); return
        t = s.V.get()
        A(f'v_xor_b32 {t}, {s.sN}, {tags[0]}')
        for x in tags[1:]: A(f'v_bitop3_b32 {t}, {t}, {s.vN}, {x} bitop3:0xf6')
        A(f'v_cmp_ne_u32 vcc, 0, {t}'); s.V.put(t)
    def poll(s, loads, tags, sl=0, mask=None, d0=0):
        A = s.A; L = s.lab('P'); D = s.lab('PD'); L0 = s.lab('P')
        if mask == '0xffffffff': A('s_mov_b32 exec_hi, 0')
        elif mask: A(f's_mov_b64 exec, {mask}')
        if d0: A(f's_sleep {d0}')
        if sl: A(f's_branch {L0}')
        A(f'{L}:')
        if sl: A(f's_sleep {sl}'); A(f'{L0}:')
        for ld in loads: A(ld)
        s.tick_spin(D); s.tagcmp(tags); A(f's_cbranch_vccnz {L}')
        A(f'{D}:'); A('s_waitcnt vmcnt(0)')
        if mask: A('s_mov_b64 exec, -1')
    def poll2(s, va, soff, mask=0xffff):
        A = s.A; L = s.lab('P'); D = s.lab('PD'); a = s.pF; b = s.V.get()
        if not s.o['pp']:
            s.poll([s.polltxt(a, va, soff)], [a], mask=mask); s.V.put(b); return
        A(f's_mov_b64 exec, {mask}')
        A(s.polltxt(a, va, soff)); A(f's_sleep {s.o["pp"]}')
        A(f'{L}:')
        A(s.polltxt(b, va, soff)); s.tick_spin(D)
        A('s_waitcnt vmcnt(1)'); A(f'v_cmp_ne_u32 vcc, {s.sN}, {a}'); A(f's_cbranch_vccz {D}')
        A(s.polltxt(a, va, soff))
        A('s_waitcnt vmcnt(1)'); A(f'v_cmp_ne_u32 vcc, {s.sN}, {b}'); A(f's_cbranch_vccnz {L}')
        A(f'{D}:'); A('s_mov_b64 exec, -1')
        A.ctl('pend', (a, b)); s.hold.append(b)
    def checked(s, loads, tags, pre=None, sl=0):
        A = s.A; Lr = s.lab('R'); Lb = s.lab('B'); L2 = s.lab('R')
        s.tagcmp(tags); A(f's_cbranch_vccnz {Lr}'); A(f'{Lb}:')
        def slow():
            A(f'{Lr}:')
            if callable(pre): pre()
            A('s_waitcnt vmcnt(0) lgkmcnt(0)')
            if pre and not callable(pre): A(pre)
            A(f'{L2}:')
            if sl: A(f's_sleep {sl}')
            for ld in loads: A(ld)
            A('s_waitcnt vmcnt(0)'); s.tick_spin(Lb); s.tagcmp(tags); A(f's_cbranch_vccnz {L2}'); A('s_nop 4'); A(f's_branch {Lb}')
        s.outline(slow)
    def flagtxt(s, soff, va=None): return f'buffer_atomic_swap {s.vN}, {va or s.vL0}, {sWS}, {soff} offen sc1'
    def polltxt(s, d, va, soff): return f'v_mov_b32 {d}, 0\nbuffer_atomic_add {d}, {va}, {sWS}, {soff} offen sc0 sc1'
    def setflag(s, last_store, soff):
        if last_store == 'prejoin': s.A.wait_prejoin()
        else: s.A.waitvm(last_store)
        s.A(s.flagtxt(soff))
    def nonce(s):
        A = s.A
        A(f's_mul_i32 {s.sN}, {s.sN}, 1664525'); A(f's_add_u32 {s.sN}, {s.sN}, 1013904223'); A(f'v_mov_b32 {s.vN}, {s.sN}')
    def srd(s, *lst):
        sz = {str(sX): 2621440, str(sWQKV): 2457600, str(sW1): 819200, str(sW3): 1966080, str(sWS): WS_USED, str(sW2): 819200, str(sWO): 819200, str(sW4): 1966080, str(sOUT): 2621440}
        for r in lst: s.A(f's_mov_b32 {r[2]}, {sz[str(r)]}'); s.A(f's_mov_b32 {r[3]}, 0x20000')
    def rbf(s, d, x):
        s.A(f'v_cvt_pk_bf16_f32 {d}, {x}, {x}'); s.A(f'v_and_b32 {d}, 0xffff0000, {d}')
    def rstd(s, d, var):
        A = s.A
        s.rbf(d, var); A(f'v_add_f32 {d}, {hexf(1e-5)}, {d}'); s.rbf(d, d); A(f'v_sqrt_f32 {d}, {d}'); s.rbf(d, d)
    def split_w(s, q, v):
        A = s.A
        A(f'v_cvt_pk_bf16_f32 {q[1]}, {v}, {v}'); A(f'v_and_b32 {q[2]}, 0xffff0000, {q[1]}'); A(f'v_sub_f32 {q[3]}, {v}, {q[2]}')
        A(f'v_cvt_pk_bf16_f32 {q[0]}, {q[2]}, {q[3]}'); A(f'v_and_b32 {q[1]}, 0xffff, {q[1]}'); A(f'v_mov_b32 {q[2]}, 0'); A(f'v_mov_b32 {q[3]}, 0')
    def split_x(s, q, m):
        A = s.A
        A(f'v_cvt_pk_bf16_f32 {q[0]}, -{m}, -{m}'); A(f'v_and_b32 {q[2]}, 0xffff0000, {q[0]}'); A(f'v_sub_f32 {q[2]}, -{m}, {q[2]}')
        A(f'v_cvt_pk_bf16_f32 {q[1]}, {q[2]}, 0'); A(f'v_mov_b32 {q[2]}, 0'); A(f'v_mov_b32 {q[3]}, 0')
    def mk_nt_read(s, NT, regs=None, wins=(0, 1, 2), add=0):
        A = s.A; b = regs[0] if regs else s.V.get(); t = s.V.get(); rs = 64 * NT
        A(f'v_lshrrev_b32 {b}, 5, {s.vLane}'); A(f'v_lshlrev_b32 {b}, 3, {b}')
        A(f'v_bfe_u32 {t}, {s.vLane}, 2, 2'); A(f'v_add_u32 {b}, {b}, {t}'); A(f'v_mul_u32_u24 {b}, {rs}, {b}')
        A(f'v_and_b32 {t}, 3, {s.vLane}'); A(f'v_lshl_add_u32 {b}, {t}, 3, {b}')
        A(f'v_and_b32 {t}, 16, {s.vLane}'); A(f'v_lshl_add_u32 {b}, {t}, 1, {b}')
        if NT == 3:
            f = s.dsaddr(b, wins, regs=regs[1:] if regs else None); s.V.put(t)
            return [(lambda c, J=J: f(c + 64 * J)) for J in range(3)], f.regs
        A(f'v_and_b32 {t}, 8, {s.vLane}'); A(f'v_lshlrev_b32 {t}, 3, {t}')
        A(f'v_xor_b32 {b}, {b}, {t}'); A(f'v_add_u32 {b}, {add}, {b}'); A(f'v_xor_b32 {t}, 64, {b}')
        f0 = s.dsaddr(b, wins); f1 = s.dsaddr(t, wins)
        return [f0, f1], f0.regs + f1.regs
    def f16_voff(s, d, tok, nkb):
        A = s.A; t = s.V.get()
        A(f'v_lshrrev_b32 {t}, 4, {tok}'); A(f'v_mul_u32_u24 {t}, {nkb * 1024}, {t}')
        A(f'v_and_b32 {d}, 15, {tok}'); A(f'v_lshl_add_u32 {d}, {d}, 4, {t}')
        A(f'v_and_b32 {t}, 32, {s.vLane}'); A(f'v_lshl_add_u32 {d}, {t}, 3, {d}')
        s.V.put(t)
    def snap(s): return (s.V.snapshot(), s.AG.snapshot(), s.S.snapshot())
    def rest(s, x): s.V.restore(x[0]); s.AG.restore(x[1]); s.S.restore(x[2])

    def entry(s):
        A = s.A; S = s.S; V = s.V
        if s.o['fix']: s.sE2 = S.get(2); s.sE3 = S.get(2); A(f's_memrealtime {s.sE2}')
        if s.stamps: s.sEnt = S.get(2); A(f's_mem{"" if "cyc" in s.dbg else "real"}time {s.sEnt}')
        A('s_cmp_ge_u32 s2, 256'); A('s_cbranch_scc1 L_end')
        s.sT0, s.sT1, s.sT2, s.sT3 = S.get(), S.get(), S.get(), S.get()
        s.sW, s.sN, s.sSp, s.sIdx, s.sXr, s.sXc, s.sRb, s.sCl, s.sRb2, s.sJ2, s.sC3, s.sG = [S.get() for _ in range(12)]
        s.vLane, s.vN, s.vCtl, s.vL16, s.vL0 = [V.get() for _ in range(5)]; s.vF = V.get(2)
        t = V.get(); pc = S.get(2); s.vJunk = R('a', s.AG.hi - 4, 4)
        A(f's_getpc_b64 {pc}'); A('L_pc:')
        A(f's_lshr_b32 {s.sIdx}, s2, 3'); A(f's_mul_i32 {s.sT2}, {s.sIdx}, 3072')
        A(f'v_min_u32 {t}, 191, v0'); A(f'v_lshl_add_u32 {t}, {t}, 4, {s.sT2}'); A(f'v_min_u32 {t}, L_codeend-L_pc-16, {t}')
        A(f'global_load_dwordx4 {s.vJunk}, {t}, {pc}')
        A(f'v_and_b32 {s.vLane}, 63, v0'); A(f'v_mov_b32 {s.vCtl}, {CTRL}'); A(f'v_mov_b32 {s.vN}, 0'); A(f'v_lshl_add_u32 {t}, {s.vLane}, 2, {s.vCtl}'); A(f'ds_write_b32 {t}, {s.vN}')
        A(f'v_lshrrev_b32 {t}, 6, v0'); A(f'v_lshlrev_b32 {s.vL16}, 4, {s.vLane}')
        A(f'v_readfirstlane_b32 {s.sW}, {t}')
        A('s_waitcnt lgkmcnt(0)')
        for srd, off in [(sX, 0), (sWQKV, 8), (sW1, 32), (sW3, 48), (sWS, 80), (sW2, 40), (sWO, 16), (sW4, 56), (sOUT, 64)]:
            A(f's_load_dwordx2 {srd[0:2]}, s[0:1], {off}')
        A('s_barrier'); S.put(pc)
        if s.stamps: s.sStamp = S.get(2); s.vStamp = V.get(); A(f'v_mov_b32 {s.vStamp}, 0')
        A(f's_and_b32 {s.sXr}, s2, 3'); A(f's_bfe_u32 {s.sXc}, s2, 0x10002')
        A(f's_and_b32 {s.sT2}, {s.sIdx}, 3'); A(f's_lshl2_add_u32 {s.sRb}, {s.sXr}, {s.sT2}'); A(f's_lshr_b32 {s.sCl}, {s.sIdx}, 2')
        A(f's_lshr_b32 {s.sG}, {s.sIdx}, 3'); A(f's_and_b32 {s.sJ2}, {s.sIdx}, 7'); A(f's_lshl3_add_u32 {s.sC3}, {s.sXc}, {s.sJ2}')
        if s.o['m4']: A(f's_lshl3_add_u32 {s.sRb2}, {s.sXr}, {s.sCl}'); A(f's_lshl2_add_u32 {s.sJ2}, {s.sXc}, {s.sT2}')
        else: A(f's_lshl1_add_u32 {s.sT0}, {s.sXr}, {s.sXc}'); A(f's_lshl2_add_u32 {s.sRb2}, {s.sT0}, {s.sG}')
        A(f's_mov_b32 {s.sSp}, {SPIN}')
        V.put(t)
        A(f's_cmp_eq_u32 {s.sW}, 4'); A('s_cbranch_scc1 L_load0')
        A(f's_cmp_lt_u32 {s.sW}, 4'); A('s_cbranch_scc1 L_comp')
        A(f's_cmp_ge_u32 {s.sW}, 6'); A('s_cbranch_scc1 L_job')
        A.ctl('save', 'entry')
    def rot4(s, d):
        A = s.A; rj = s.o['rj']
        if rj == 0: A(f's_and_b32 {d}, {s.sRb2}, 3'); return
        A(f's_lshl1_add_u32 {d}, {s.sJ2}, {s.sRb2}' if rj == 2 else f's_add_u32 {d}, {s.sJ2}, {s.sRb2}'); A(f's_and_b32 {d}, {d}, 3')
    def rot2(s, d):
        s.A(f's_mul_i32 {d}, {s.sG}, 5'); s.A(f's_lshr_b32 {d}, {d}, 1')
    def fixat(s, k):
        if s.o['fix'] and s.o['fixp'] == k:
            A = s.A; L = s.lab()
            A(f'{L}:'); A(f's_memrealtime {s.sE3}'); A('s_waitcnt lgkmcnt(0)'); A(f's_sub_u32 {s.sE3[0]}, {s.sE3[0]}, {s.sE2[0]}'); A(f's_cmp_lt_u32 {s.sE3[0]}, {s.o["fix"]}'); A(f's_cbranch_scc1 {L}')
    def mkL0(s):
        A = s.A; t = s.V.get()
        A(f'v_cmp_eq_u32 vcc, 0, {s.vLane}'); A(f'v_mov_b32 {t}, {OOB}'); A(f'v_cndmask_b32 {s.vL0}, {t}, {s.vLane}, vcc'); s.V.put(t)

    def voff10(s):
        A = s.A; V = s.V; x = [V.get() for _ in range(5)]; t = V.get()
        for k in range(5):
            A(f'v_add_u32 {t}, {64 * k}, {s.vLane}'); A(f'v_mul_u32_u24 {t}, 6554, {t}'); A(f'v_lshrrev_b32 {t}, 16, {t}')
            A(f'v_mul_u32_u24 {t}, 1120, {t}'); A(f'v_add_u32 {x[k]}, {t}, {s.vL16}')
        A(f'v_add_u32 {x[4]}, 4096, {x[4]}'); V.put(t)
        return x
    def prog_wait(s, q4, val, sl=0):
        A = s.A; L4 = s.lab(); L5 = s.lab()
        A(f'{L4}:'); A(f'ds_read_b128 {q4}, {s.vCtl} offset:16'); s.tick_spin(L5, sl)
        A(f'v_min3_u32 {q4[0]}, {q4[0]}, {q4[1]}, {q4[2]}'); A(f'v_min_u32 {q4[0]}, {q4[0]}, {q4[3]}'); A(f'v_cmp_gt_u32 vcc, {val}, {q4[0]}'); A(f's_cbranch_vccnz {L4}')
        A(f'{L5}:')
    def job(s):
        A = s.A; S = s.S; V = s.V; o = s.o
        A('L_job:'); A.ctl('restore', 'entry')
        t = V.get(); u = V.get(); vC0 = V.get(); ad = V.get(); wb = [V.get(4) for _ in range(3)]; vo = [V.get() for _ in range(4)]; sK = S.get()
        A(f's_and_b32 {sK}, {s.sW}, 1')
        A(f'v_lshrrev_b32 {t}, 3, {s.vLane}'); A(f'v_and_b32 {u}, 7, {s.vLane}')
        A(f's_cmp_eq_u32 {s.sW}, 7'); A('s_cbranch_scc1 L_job1')
        A.ctl('save', 'jfork'); sn = s.snap()
        def after_bar():
            A(f's_load_dword {s.sN}, {sWS[0:2]}, 0')
            s.srd(sWO); s.mkL0()
            if 'xw2' in s.dbg: A(f's_mov_b32 {sWO[2]}, 0')
            A(f'v_lshrrev_b32 {vC0}, 10, {s.vL0}'); A(f's_lshl_b32 {s.sT0}, {sK}, 2'); A(f's_add_u32 {s.sT0}, {s.sT0}, {CTRL}'); A(f'v_add_u32 {vC0}, {s.sT0}, {vC0}')
            A(f'v_lshrrev_b32 {ad}, 4, {s.vLane}'); A(f'v_lshlrev_b32 {ad}, 3, {ad}'); A(f'v_bfe_u32 {t}, {s.vLane}, 2, 2'); A(f'v_add_u32 {ad}, {ad}, {t}')
            A(f'v_and_b32 {t}, 3, {s.vLane}'); A(f'v_lshlrev_b32 {t}, 3, {t}')
            A(f'v_mul_u32_u24 {u}, 160, {ad}'); A(f'v_add_u32 {u}, {u}, {t}'); A(f'v_lshl_add_u32 {ad}, {ad}, 7, {t}')
        def wo_dma(addr):
            x = s.voff10()
            A(f's_mul_i32 {s.sT1}, {s.sRb2}, 25600'); A(f's_mul_i32 {s.sT2}, {s.sJ2}, 160'); A(f's_mov_b32 m0, {addr}'); A(f's_add_u32 {s.sT1}, {s.sT1}, {s.sT2}')
            for i in range(4): A(f'buffer_load_dwordx4 {x[i]}, {sWO}, {s.sT1} offen offset:{1024 * i} nt lds')
            A(f's_mov_b32 m0, {addr + 4096}'); last = A(f'buffer_load_dwordx4 {x[4]}, {sWO}, {s.sT1} offen nt lds')
            V.put(*x); return last
        def wo_read(addr, k):
            A(f'v_add_u32 {u}, {addr + 96 * k}, {u}')
            for i in range(3):
                for t2 in range(2): A(f'ds_read_b64_tr_b16 {wb[i].sub(2*t2, 2)}, {u} offset:{32 * i + 640 * t2}')
        sLc = S.get(); ml = s.sT2; idx = s.sIdx
        A(f's_movk_i32 {sLc}, 10'); A(f's_movk_i32 {ml}, 5')
        for th, a_, m_ in [(5, 15, None), (10, -10, 3), (13, 17, None), (16, -10, 2), (18, 18, None), (20, 20, 12)]:
            A(f's_cmp_ge_u32 {idx}, {th}'); A(f's_cmovk_i32 {sLc}, {a_}')
            if m_: A(f's_cmovk_i32 {ml}, {m_}')
        A(f's_mul_i32 {ml}, {ml}, {s.sXc}'); A(f's_add_u32 {sLc}, {sLc}, {idx}'); A(f's_add_u32 {sLc}, {sLc}, {ml}')
        s.srd(sWQKV, sW1, sW3, sWS)
        if 'xw3' in s.dbg: A(f's_mov_b32 {sW3[2]}, 0')
        if 'xcs' in s.dbg: A(f's_mov_b32 {sW3[2]}, 0'); A(f's_mov_b32 {sW1[2]}, 0'); A(f's_mov_b32 {sWQKV[2]}, 0')
        st = s.sT1; lc = s.sT0
        A(f's_cmp_lt_u32 {sLc}, 40'); A(f's_movk_i32 {st}, 3072'); A(f's_cmovk_i32 {st}, 1280'); A(f's_cselect_b32 {s.sT2}, 30, 40')
        A(f's_cmp_lt_u32 {sLc}, 30'); A(f's_cmovk_i32 {st}, 3840'); A(f's_cmovk_i32 {s.sT2}, 0')
        A(f's_sub_u32 {lc}, {sLc}, {s.sT2}'); A(f's_lshl_b32 {lc}, {lc}, 7')
        A(f's_mul_i32 {s.sT2}, {s.sXr}, 160'); A(f's_mul_i32 {s.sT2}, {s.sT2}, {st}'); A(f's_add_u32 {lc}, {lc}, {s.sT2}')
        A(f'v_mul_lo_u32 {vo[0]}, {t}, {st}'); A(f'v_lshl_add_u32 {vo[0]}, {u}, 4, {vo[0]}')
        A(f's_lshl_b32 {s.sT2}, {st}, 3'); A(f's_sub_u32 {s.sT2}, {s.sT2}, 1024')
        for i in range(1, 4): A(f'v_add_u32 {vo[i]}, {s.sT2}, {vo[i-1]}')
        A(f's_lshl_b32 {st}, {st}, 5')
        A(f's_cmp_lt_u32 {sLc}, 40')
        A(f's_cselect_b64 {sD0[0:2]}, {sW1[0:2]}, {sW3[0:2]}'); A(f's_cselect_b32 {sD0[2]}, {sW1[2]}, {sW3[2]}')
        A(f's_cmp_lt_u32 {sLc}, 30')
        A(f's_cselect_b64 {sD0[0:2]}, {sWQKV[0:2]}, {sD0[0:2]}'); A(f's_cselect_b32 {sD0[2]}, {sWQKV[2]}, {sD0[2]}')
        A(f's_mov_b32 {sD0[3]}, 0x20000')
        CSA = s.st[3].addr
        if o['iss']: s.lds_wait(64, 1)
        for g in range(5):
            A(f's_mov_b32 m0, {CSA + 4096 * g}')
            if g: A(f's_add_u32 {lc}, {lc}, {st}')
            for i in range(4): cs_last = A(f'buffer_load_dwordx4 {vo[i]}, {sD0}, {lc} offen offset:{1024 * i} lds')
        s.stamp(0); after_bar()
        s.nonce()
        ones = V.get(4); fr = V.get(80); D = [V.get(4) for _ in range(4)]
        for i in range(4): A(f'v_mov_b32 {ones[i]}, 0x3f803f80')
        A(f'v_mov_b32 {t}, 1')
        A.waitvm(cs_last)
        for w in range(4):
            for ks in range(5):
                for t2 in range(2): A(f'ds_read_b64_tr_b16 {fr.sub(20*w + 4*ks + 2*t2, 2)}, {ad} offset:{CSA + 32 * w + (32*ks + 4*t2) * 128}')
        A(f'ds_write_b32 {vC0}, {t} offset:8')
        for w in range(4):
            for ks in range(5): A(f'v_mfma_f32_16x16x32_bf16 {D[w]}, {ones}, {fr.sub(20*w + 4*ks, 4)}, {"0" if ks == 0 else D[w]}')
        A(f's_lshl_b32 {sLc}, {sLc}, 9'); A(f's_lshl_b32 {s.sT0}, {s.sXr}, 15'); A(f's_add_u32 {sLc}, {sLc}, {s.sT0}'); A(f's_add_u32 {sLc}, {sLc}, {CS}'); A(f'v_lshlrev_b32 {vo[0]}, 3, {s.vLane}')
        for w in range(1, 4):
            A(f'v_cmp_le_u32 vcc, {16 * w}, {s.vLane}'); A(f'v_cndmask_b32 {D[0][0]}, {D[0][0]}, {D[w][0]}, vcc')
        A(f'v_mov_b32 {D[0][1]}, {s.sN}')
        A(f'buffer_store_dwordx2 {D[0][0:2]}, {vo[0]}, {sWS}, {sLc} offen sc1')
        s.stamp(1)
        s.lds_wait(12, 1, sl=2); wo_read(RPB + 4 * KB, 0); A(f'v_mov_b32 {t}, 1'); A(f'ds_write_b32 {vC0}, {t} offset:40')
        V.put(ones, fr, *D)
        a0, b0, nA = S.get(), S.get(), S.get(); sl_ = [S.get() for _ in range(4)]
        A(f's_lshl1_add_u32 {s.sT0}, {s.sXc}, {s.sCl}'); A(f's_cmp_lt_u32 {s.sCl}, 6'); A(f's_cselect_b32 {s.sT1}, 4, 6'); A(f's_cselect_b32 {a0}, 1920, 0'); A(f's_cselect_b32 {b0}, 0, 1920')
        A(f's_sub_u32 {s.sT0}, {s.sT0}, {s.sT1}'); A(f's_mul_i32 {s.sT1}, {s.sT0}, 96'); A(f's_add_u32 {a0}, {a0}, {s.sT1}'); A(f's_lshl_b32 {s.sT1}, {s.sT0}, 6'); A(f's_add_u32 {b0}, {b0}, {s.sT1}'); A(f's_add_u32 {b0}, {b0}, {384 - 96}')
        A(f's_lshl2_add_u32 {s.sT0}, {s.sXc}, {s.sCl}'); A(f's_mul_i32 {s.sT0}, {s.sT0}, 80'); A(f's_add_u32 {s.sT1}, {s.sT0}, 640'); A(f's_add_u32 {s.sT0}, {s.sT0}, {1280 - 80}')
        A(f's_movk_i32 {nA}, 96'); A(f's_cmp_lt_u32 {s.sCl}, 4'); A(f's_cmov_b32 {a0}, {s.sT1}'); A(f's_cmov_b32 {b0}, {s.sT0}'); A(f's_cmovk_i32 {nA}, 80')
        A(f's_mul_i32 {s.sT2}, {s.sC3}, 96'); A(f's_add_u32 {s.sT2}, {s.sT2}, {2560 - 160}')
        for g in range(4):
            A(f'v_add_u32 {t}, {64 * g}, {s.vLane}')
            if g == 0: A(f'v_add_u32 {vo[g]}, {a0}, {t}')
            elif g == 3: A(f'v_add_u32 {vo[g]}, {s.sT2}, {t}')
            else:
                lo, hi, th = (a0, b0, nA) if g == 1 else (b0, s.sT2, 160)
                A(f'v_cmp_gt_u32 vcc, {th}, {t}'); A(f'v_add_u32 {vo[g]}, {lo}, {t}'); A(f'v_add_u32 {t}, {hi}, {t}'); A(f'v_cndmask_b32 {vo[g]}, {t}, {vo[g]}, vcc')
            A(f'v_lshlrev_b32 {vo[g]}, 3, {vo[g]}'); A(f's_mov_b32 {sl_[g]}, {CS + 32768 * g}')
        A(f's_lshl_b32 {a0}, {s.sRb}, 11'); A(f's_add_u32 {a0}, {a0}, {RS}'); A(f's_lshl_b32 {b0}, {s.sRb2}, 10'); A(f's_add_u32 {b0}, {b0}, {RS}')
        gr = [V.get(4) for _ in range(3)]; cg = [[V.get(2) for _ in range(4)] for _ in range(4)]; q4 = V.get(4); v8 = V.get()
        loads = [f'buffer_load_dwordx4 {gr[i]}, {s.vL16}, {sWS}, {a0} offen offset:{1024 * i} sc1' for i in range(2)] + [f'buffer_load_dwordx4 {gr[2]}, {s.vL16}, {sWS}, {b0} offen sc1']
        loads += [f'buffer_load_dwordx2 {cg[g][e]}, {vo[g]}, {sWS}, {sl_[e]} offen sc1' for g in range(4) for e in range(4)]
        A(f'v_lshlrev_b32 {v8}, 3, {s.vLane}'); A(f'v_add_u32 {v8}, {GW}, {v8}'); A(f'v_add_u32 {ad}, {GK}, {s.vL16}'); A(f'v_lshlrev_b32 {u}, 2, {s.vLane}'); A(f'v_add_u32 {u}, {G1}, {u}')
        s.lds_wait(0, o['gd'], sl=4)
        for ld in loads: A(ld)
        s.checked(loads, [g[3] for g in gr] + [c[1] for r_ in cg for c in r_], sl=8)
        for g in range(4):
            c = cg[g]
            A(f'v_add_f32 {c[0][0]}, {c[0][0]}, {c[1][0]}'); A(f'v_add_f32 {c[2][0]}, {c[2][0]}, {c[3][0]}'); A(f'v_add_f32 {c[0][0]}, {c[0][0]}, {c[2][0]}')
            A(f'v_cvt_pk_bf16_f32 {c[1][1]}, {c[0][0]}, {c[0][0]}'); A(f'v_and_b32 {c[2][0]}, 0xffff0000, {c[1][1]}'); A(f'v_sub_f32 {c[2][1]}, {c[0][0]}, {c[2][0]}')
            A(f'v_cvt_pk_bf16_f32 {c[1][0]}, {c[2][0]}, {c[2][1]}'); A(f'v_and_b32 {c[1][1]}, 0xffff, {c[1][1]}')
            A(f'ds_write_b64 {v8}, {c[1]} offset:{512 * g}')
        for i in range(2):
            g = gr[i]; c = cg[i][0]
            A(f'v_cvt_pk_bf16_f32 {c[0]}, -{g[1]}, -{g[1]}'); A(f'v_and_b32 {c[1]}, 0xffff0000, {c[0]}'); A(f'v_sub_f32 {c[1]}, -{g[1]}, {c[1]}'); A(f'v_cvt_pk_bf16_f32 {c[1]}, {c[1]}, 0')
            A(f'ds_write_b64 {v8}, {c} offset:{GX - GW + 512 * i}'); A(f'ds_write_b32 {u}, {g[0]} offset:{256 * i}')
            A(f'v_mul_f32 {t}, {g[0]}, {g[2]}'); A(f'v_mov_b32 {g[3]}, {g[0]}'); A(f'v_rcp_f32 {g[2]}, {t}')
            A(f'v_mul_f32 {g[0]}, {hexf(GC0)}, {t}'); A(f'v_mul_f32 {g[1]}, {t}, {t}'); A(f'v_mul_f32 {g[1]}, {g[1]}, {t}'); A(f'v_mul_f32 {g[1]}, {hexf(GC1)}, {g[1]}')
            A(f'ds_write_b128 {ad}, {g} offset:{1024 * i}')
        A(f'v_mul_f32 {gr[2][1]}, {gr[2][0]}, {gr[2][1]}'); A(f'ds_write_b64 {v8}, {gr[2][0:2]} offset:{G2 - GW}')
        A(f'v_mov_b32 {t}, 1'); A(f'ds_write_b32 {vC0}, {t} offset:36')
        A('s_waitcnt vmcnt(0) lgkmcnt(0)'); A('s_branch L_jobj')
        s.rest(sn); A('L_job1:'); A.ctl('restore', 'jfork')
        junk = V.get(2); q = V.get()
        A(f'v_mul_u32_u24 {vo[0]}, 1280, {t}'); A(f'v_lshl_add_u32 {vo[0]}, {u}, 4, {vo[0]}')
        for i in range(1, 4): A(f'v_add_u32 {vo[i]}, {8 * 1280 - 1024}, {vo[i-1]}')
        s.srd(sWS, sW4, sW2)
        if 'xw2' in s.dbg: A(f's_mov_b32 {sW2[2]}, 0')
        kb = [S.get() for _ in range(2)]; lcc = [S.get() for _ in range(2)]; nt = 'nt' if o['ntr'] else ''
        for r in range(2):
            A(f's_add_u32 {lcc[r]}, s2, {256 * r}'); A(f's_mul_i32 {kb[r]}, {lcc[r]}, 6554'); A(f's_lshr_b32 {kb[r]}, {kb[r]}, 16')
            A(f's_mul_i32 {s.sT2}, {kb[r]}, 10'); A(f's_sub_u32 {lcc[r]}, {lcc[r]}, {s.sT2}')
        fr = V.get(32)
        def rp_ld(srd, r):
            A(f's_mul_i32 {s.sT0}, {kb[r]}, 40960'); A(f's_lshl_b32 {s.sT2}, {lcc[r]}, 7'); A(f's_mov_b32 m0, {RPB}'); A(f's_add_u32 {s.sT0}, {s.sT0}, {s.sT2}')
            for i in range(4): x = A(f'buffer_load_dwordx4 {vo[i]}, {srd}, {s.sT0} offen offset:{1024 * i} {nt} lds')
            return x
        def rp_rd(r):
            for w in range(4):
                for t2 in range(2): A(f'ds_read_b64_tr_b16 {fr.sub(16*r + 4*w + 2*t2, 2)}, {ad} offset:{32 * w + 512 * t2}')
        def rp_st(r, nkb, base):
            A(f's_mul_i32 {s.sT1}, {kb[r]}, 5')
            for w in range(4):
                A(f's_lshl_b32 {s.sT0}, {lcc[r]}, 2'); A(f's_add_u32 {s.sT0}, {s.sT0}, {w}'); A(f's_mul_i32 {s.sT2}, {s.sT0}, 52'); A(f's_lshr_b32 {s.sT2}, {s.sT2}, 8')
                A(f's_mul_i32 {s.sT2}, {s.sT2}, {5 * nkb - 5}'); A(f's_add_u32 {s.sT0}, {s.sT0}, {s.sT2}'); A(f's_add_u32 {s.sT0}, {s.sT0}, {s.sT1}')
                A(f's_lshl_b32 {s.sT0}, {s.sT0}, 10'); A(f's_add_u32 {s.sT0}, {s.sT0}, {base}')
                A(f's_cmp_ge_u32 {kb[r]}, {nkb}'); A(f's_cmov_b32 {s.sT0}, {OOB}')
                x = A(f'buffer_store_dwordx4 {fr.sub(16*r + 4*w, 4)}, {s.vL16}, {sWS}, {s.sT0} offen sc1')
            return x
        def rp_fl(r, fb, sh): A(f's_lshl_b32 {s.sT0}, {lcc[r]}, {sh}'); A(f's_lshl2_add_u32 {s.sT0}, {kb[r]}, {s.sT0}'); A(f's_add_u32 {s.sT0}, {s.sT0}, {fb}'); A(s.flagtxt(s.sT0))
        xs = V.get(40); sRow0 = S.get()
        s.srd(sX)
        A(f's_lshl1_add_u32 {sRow0}, {s.sXr}, {s.sXc}'); A(f's_lshl_b32 {sRow0}, {sRow0}, 5'); A(f's_add_u32 {sRow0}, {sRow0}, {s.sIdx}'); A(f's_mul_i32 {s.sT3}, {sRow0}, 10240')
        if o['iss']: s.lds_wait(64, 1)
        for i in range(10): A(f'buffer_load_dwordx4 {xs.sub(4*i, 4)}, {vo[0]}, {sX}, {s.sT3} offen offset:{128 * i}')
        x = rp_ld(sW2, 0)
        s.stamp(0)
        after_bar()
        wl = wo_dma(RPB + 4 * KB)
        A(f'v_lshlrev_b32 {t}, 7, {s.vLane}')
        A(f's_lshl_b32 {s.sT0}, s2, 8'); A(f's_min_u32 {s.sT0}, {s.sT0}, {0xC300}'); A(f's_add_u32 {s.sT0}, {s.sT0}, {F1}'); A(f'v_mov_b32 {junk[1]}, 0'); A('s_mov_b64 exec, 3')
        A(f'buffer_atomic_add {junk[1]}, {t}, {sWS}, {s.sT0} offen sc1'); A('s_mov_b64 exec, -1')
        s.nonce()
        A(f'v_add_u32 {ad}, {RPB}, {ad}')
        g = V.get(4); sm = g[1]; sq = V.get(); one = V.get()
        A(f'v_mov_b32 {one}, 0x3f803f80'); A(f'v_mov_b32 {sm}, 0'); A(f'v_mov_b32 {sq}, 0')
        for i in range(40): A(f'v_dot2c_f32_bf16 {sm}, {xs[i]}, {one}'); A(f'v_dot2c_f32_bf16 {sq}, {xs[i]}, {xs[i]}')
        for m in ['quad_perm:[1,0,3,2]', 'quad_perm:[2,3,0,1]', 'row_half_mirror']:
            A(f'v_add_f32_dpp {sm}, {sm}, {sm} {m} row_mask:0xf bank_mask:0xf'); A(f'v_add_f32_dpp {sq}, {sq}, {sq} {m} row_mask:0xf bank_mask:0xf')
        A(f'v_mul_f32 {sm}, {hexf(1.0/640)}, {sm}'); A(f'v_mul_f32 {sq}, {hexf(1.0/640)}, {sq}')
        A(f'v_fma_f32 {sq}, -{sm}, {sm}, {sq}'); A(f'v_max_f32 {sq}, 0, {sq}')
        s.rstd(g[0], sq); A(f'v_rcp_f32 {g[0]}, {g[0]}')
        A(f'v_mov_b32 {g[3]}, {s.sN}')
        A(f'v_mul_f32 {sq}, {sq}, {g[0]}'); A(f'v_mul_f32 {sq}, {sq}, {g[0]}')
        s.rstd(g[2], sq); A(f'v_rcp_f32 {g[2]}, {g[2]}')
        A(f'v_lshlrev_b32 {t}, 5, {s.vLane}')
        for e in range(3): A(f'ds_bpermute_b32 {g[e]}, {t}, {g[e]}')
        A(f's_lshl_b32 {s.sT0}, {sRow0}, 7'); A(f's_add_u32 {s.sT0}, {s.sT0}, {RS}')
        A('s_mov_b64 exec, 0xff')
        A(f'buffer_store_dwordx4 {g}, {s.vL16}, {sWS}, {s.sT0} offen sc1'); A('s_mov_b64 exec, -1')
        A.waitvm(x); rp_rd(0); x = rp_st(0, 20, W2R)
        A(f'v_mov_b32 {t}, 1')
        A.waitvm(wl); wo_read(RPB + 4 * KB, 1); A(f'ds_write_b32 {vC0}, {t} offset:8')
        A.waitvm(x); rp_fl(0, FR2, 7)
        s.stamp(1)
        s.lds_wait(0, o['jd'], sl=8)
        x = rp_ld(sW4, 0)
        A(f'v_and_b32 {q}, 31, {s.vLane}'); A(f'v_mul_u32_u24 {q}, 1280, {q}'); A(f's_mul_i32 {s.sT0}, {kb[1]}, 40960'); A(f's_lshl_b32 {s.sT2}, {lcc[1]}, 7'); A(f's_add_u32 {s.sT0}, {s.sT0}, {s.sT2}')
        A('s_mov_b32 exec_hi, 0'); A(f'buffer_load_dword {junk[1]}, {q}, {sW4}, {s.sT0} offen {nt}'); A('s_mov_b32 exec_hi, -1')
        A(f'v_min_u32 {t}, 24, {s.vLane}'); A(f'v_lshlrev_b32 {t}, 7, {t}'); A(f's_mul_i32 {s.sT0}, s2, {25 * 128}'); A(f's_add_u32 {s.sT0}, {s.sT0}, {WOP}')
        if o['pt']: A(f'buffer_load_dword {junk[0]}, {t}, {sWS}, {s.sT0} offen sc1')
        A(f'v_mov_b32 {t}, 1')
        A.waitvm(x); rp_rd(0); A('s_waitcnt lgkmcnt(0)')
        x = rp_ld(sW4, 1); A.waitvm(x); rp_rd(1)
        A(f'ds_write_b32 {vC0}, {t} offset:40')
        if o['jd2']: s.prog_wait(g, o['jd2'], sl=4)
        rp_st(0, 48, W4R); x = rp_st(1, 48, W4R)
        A.waitvm(x); rp_fl(0, FR4, 8); rp_fl(1, FR4, 8)
        if o['fke'] == 3 and s.stop > 1:
            A(f'v_lshrrev_b32 {t}, 4, {s.vLane}'); A(f's_add_u32 {s.sT0}, {s.sRb2}, 31'); A(f'v_add_u32 {t}, {s.sT0}, {t}'); A(f'v_and_b32 {t}, 31, {t}'); A(f'v_lshlrev_b32 {t}, 7, {t}')
            A(f'v_and_b32 {q}, 15, {s.vLane}'); A(f'v_lshl_add_u32 {t}, {q}, 2, {t}'); A(f'v_add_u32 {t}, {F1}, {t}')
            s.prog_wait(g, o['f1p'], sl=2)
            if o['f1w']: A(f's_sleep {o["f1w"]}')
            A('s_mov_b32 exec_hi, 0xffff')
            s.poll([s.polltxt(q, t, 0)], [q], sl=o['f1s'])
            A('s_mov_b64 exec, -1'); A(f'v_mov_b32 {t}, 2'); A(f'ds_write_b32 {vC0}, {t} offset:8')
        A('s_waitcnt vmcnt(0) lgkmcnt(0)')
        s.rest(sn); A('L_jobj:')
        s.stamp(2)
        if s.stop > 2:
            vTok, pa, vk, vz, vp, vkw, vka, q, vfl = [V.get() for _ in range(9)]; wa = [V.get() for _ in range(2)]
            sHp = S.get()
            A(f'v_and_b32 {vTok}, 15, {s.vLane}'); A(f's_lshl1_add_u32 {sHp}, {s.sJ2}, {sK}')
            A(f's_lshl_b32 {s.sT0}, {s.sRb2}, 7'); A(f's_add_u32 {s.sT0}, {s.sT0}, {FQ}'); A(f'v_lshl_add_u32 {pa}, {vTok}, 2, {s.sT0}')
            A(f's_lshl_b32 {s.sT0}, {s.sJ2}, 8'); A(f's_add_u32 {s.sT0}, {s.sT0}, {FK}'); A(f'v_lshlrev_b32 {t}, 2, {vTok}')
            A(f'v_and_b32 {u}, 32, {s.vLane}'); A(f'v_lshl_add_u32 {u}, {u}, 2, {t}'); A(f'v_add_u32 {u}, {s.sT0}, {u}'); A(f'v_cmp_gt_u32 vcc, 16, {s.vLane}'); A(f'v_cndmask_b32 {pa}, {u}, {pa}, vcc')
            A(f's_lshr_b32 {s.sT0}, {s.sRb2}, 1'); A(f's_lshl_b32 {s.sT0}, {s.sT0}, 7'); A(f's_add_u32 {s.sT0}, {s.sT0}, {FK}')
            A(f'v_add_u32 {u}, {s.sT0}, {t}'); A(f'v_cmp_gt_u32 vcc, 48, {s.vLane}'); A(f'v_cndmask_b32 {pa}, {u}, {pa}, vcc')
            d40 = vk; E = vz
            A(f'v_min_u32 {q}, 49, {s.vLane}'); A(f's_mul_i32 {s.sT0}, {sK}, 50'); A(f'v_add_u32 {q}, {s.sT0}, {q}')
            A(f'v_mul_u32_u24 {u}, 3277, {q}'); A(f'v_lshrrev_b32 {u}, 16, {u}'); A(f'v_mul_u32_u24 {d40}, 20, {u}'); A(f'v_sub_u32 {d40}, {q}, {d40}')
            A(f'v_lshlrev_b32 {q}, 6, {d40}'); A(f'v_lshl_add_u32 {q}, {u}, 3, {q}'); A(f'v_add_u32 {vkw}, {KVB}, {q}')
            A(f's_and_b32 {s.sT0}, {s.sRb2}, 1'); A(f's_mul_i32 {s.sT0}, {s.sT0}, 20'); A(f'v_add_u32 {d40}, {s.sT0}, {d40}')
            A(f's_add_u32 {s.sT0}, {s.sT0}, 8'); A(f'v_lshl_add_u32 {E}, {u}, 2, {s.sT0}'); A(f'v_lshlrev_b32 {E}, 6, {E}')
            A(f'v_lshrrev_b32 {u}, 4, {d40}'); A(f'v_lshl_add_u32 {E}, {u}, 11, {E}'); A(f'v_and_b32 {d40}, 15, {d40}'); A(f'v_lshl_add_u32 {E}, {d40}, 4, {E}')
            A(f's_lshr_b32 {s.sT0}, {s.sRb2}, 1'); A(f's_mul_i32 {s.sT0}, {s.sT0}, {KVH}'); A(f'v_add_u32 {vk}, {s.sT0}, {E}')
            A(f'v_lshrrev_b32 {t}, 4, {s.vLane}'); A(f'v_lshlrev_b32 {u}, 4, {vTok}')
            A(f's_mul_i32 {s.sT0}, {sHp}, {KVH}'); A(f's_add_u32 {s.sT0}, {s.sT0}, 7168'); A(f'v_mul_u32_u24 {vz}, {KVP}, {t}'); A(f'v_add3_u32 {vz}, {vz}, {u}, {s.sT0}')
            A(f's_mul_i32 {s.sT0}, {s.sRb2}, 81920'); A(f's_mul_i32 {s.sT1}, {sHp}, 1280'); A(f's_add_u32 {s.sT0}, {s.sT0}, {s.sT1}'); A(f's_add_u32 {s.sT0}, {s.sT0}, {PQ}')
            A(f'v_mul_u32_u24 {vp}, 20480, {t}'); A(f'v_add3_u32 {vp}, {vp}, {u}, {s.sT0}')
            A(f'v_lshlrev_b32 {vka}, 6, {vTok}'); A(f'v_lshl_add_u32 {vka}, {t}, 4, {vka}'); A(f'v_add_u32 {vka}, {KVB}, {vka}')
            A(f's_mul_i32 {s.sT0}, {s.sRb2}, 5'); A(f's_mul_i32 {s.sT1}, {s.sJ2}, 102400'); A(f's_mul_i32 {s.sT2}, {sK}, 3072'); A(f's_add_u32 {s.sT1}, {s.sT1}, {s.sT2}'); A(f's_add_u32 {s.sT1}, {s.sT1}, {WOP}')
            for m in range(2):
                A(f'v_add3_u32 {q}, {t}, {s.sT0}, {4 * m}')
                A(f'v_lshrrev_b32 {ad}, 3, {q}'); A(f'v_mul_u32_u24 {wa[m]}, 5120, {ad}')
                A(f'v_bfe_u32 {ad}, {q}, 1, 2'); A(f'v_lshl_add_u32 {wa[m]}, {ad}, 8, {wa[m]}')
                A(f'v_and_b32 {ad}, 1, {q}'); A(f'v_lshl_add_u32 {wa[m]}, {ad}, 3, {wa[m]}'); A(f'v_add3_u32 {wa[m]}, {wa[m]}, {u}, {s.sT1}')
            A(f'v_cmp_gt_u32 vcc, 16, {s.vLane}'); A(f'v_mov_b32 {q}, {OOB}'); A(f'v_cndmask_b32 {wa[1]}, {q}, {wa[1]}, vcc')
            A(f's_lshl_b32 {s.sT0}, {s.sRb2}, 7'); A(f's_lshl2_add_u32 {s.sT0}, {s.sJ2}, {s.sT0}'); A(f's_add_u32 {s.sT0}, {s.sT0}, {FP}')
            A(f's_lshl_b32 {s.sT1}, {s.sJ2}, 7'); A(f's_lshl2_add_u32 {s.sT1}, {s.sRb2}, {s.sT1}'); A(f's_add_u32 {s.sT1}, {s.sT1}, {FW}')
            A(f'v_add_u32 {t}, {s.sT0}, {s.vL0}'); A(f'v_mov_b32 {u}, {s.sT1}'); A(f'v_cmp_eq_u32 vcc, 1, {s.vLane}'); A(f'v_cndmask_b32 {vfl}, {t}, {u}, vcc')
            A(f'v_min_u32 {t}, 59, {s.vLane}'); A(f'v_mul_u32_u24 {u}, 21846, {t}'); A(f'v_lshrrev_b32 {u}, 16, {u}'); A(f'v_mul_u32_u24 {u}, 40, {u}'); A(f'v_lshl_add_u32 {t}, {t}, 3, {u}'); A(f'v_add_u32 {ad}, {KVB + 40}, {t}')
            kq = [V.get(4) for _ in range(16)]; zq = [V.get(4) for _ in range(4)]; pq = [V.get(4) for _ in range(5)]; sKo = S.get(); z2 = V.get(2)
            A(f'v_mov_b32 {z2[0]}, 0'); A(f'v_mov_b32 {z2[1]}, 0')
            s.prog_wait(kq[0], o['jp'], sl=8)
            A(f'ds_write_b64 {ad}, {z2}')
            Lj = s.lab(); Lk = s.lab()
            A(f's_cmp_eq_u32 {sK}, 0'); A(f's_cbranch_scc0 {Lj}')
            s.poll([s.polltxt(q, pa, 0)], [q], sl=o['jsl'], d0=o['jw'])
            A(f'v_mov_b32 {t}, 2'); A(f'ds_write_b32 {vC0}, {t} offset:8'); A('s_waitcnt lgkmcnt(0)'); A(f's_branch {Lk}')
            A(f'{Lj}:'); s.lds_wait(8, 2, sl=2); A(f'{Lk}:')
            s.stamp(3)
            if o['jprio']: A(f's_setprio {o["jprio"]}')
            for i in range(0 if 'nokv' in s.dbg else 16):
                A(f's_mov_b32 {sKo}, {KV + KVP * i}'); A(f'buffer_load_dwordx4 {kq[i]}, {vk}, {sWS}, {sKo} offen sc1')
            for i in range(0 if 'noz' in s.dbg else 4):
                A(f's_mov_b32 {sKo}, {KV + 4 * KVP * i}'); A(f'buffer_load_dwordx4 {zq[i]}, {vz}, {sWS}, {sKo} offen sc1')
            for i in range(0 if 'nopq' in s.dbg else 5): A(f'buffer_load_dwordx4 {pq[i]}, {vp}, {sWS}, 0 offen offset:{256 * i} sc1')
            s.stamp(6)
            for i in range(1, 16):
                for e in range(4): A(f'v_add_f32 {kq[0][e]}, {kq[0][e]}, {kq[i][e]}')
            A(f'v_cvt_pk_bf16_f32 {z2[0]}, {kq[0][0]}, {kq[0][1]}'); A(f'v_cvt_pk_bf16_f32 {z2[1]}, {kq[0][2]}, {kq[0][3]}')
            A(f'v_mov_b32 {t}, 1')
            A(f'ds_write_b64 {vkw}, {z2}'); A(f'ds_write_b32 {vC0}, {t} offset:56')
            V.put(*kq); s.stamp(7)
            for i in range(1, 4):
                for e in range(3): A(f'v_add_f32 {zq[0][e]}, {zq[0][e]}, {zq[i][e]}')
            for swp in ('16', '32'):
                for e in range(3): A(f'v_mov_b32 {zq[1][e]}, {zq[0][e]}')
                for e in range(3): A(f'v_permlane{swp}_swap_b32 {zq[0][e]}, {zq[1][e]}')
                for e in range(3): A(f'v_add_f32 {zq[0][e]}, {zq[0][e]}, {zq[1][e]}')
            L4 = s.lab(); L5 = s.lab()
            A(f'{L4}:'); A(f'ds_read_b64 {s.vF}, {s.vCtl} offset:56'); s.tick_spin(L5); A(f'v_min_u32 {s.vF[0]}, {s.vF[0]}, {s.vF[1]}'); A(f'v_cmp_eq_u32 vcc, 0, {s.vF[0]}'); A(f's_cbranch_vccnz {L4}'); A(f'{L5}:')
            s.stamp(8)
            pf = V.get(40); ka = [V.get(4) for _ in range(2)]; D = [[V.get(4) for _ in range(2)] for _ in range(3)]; den = [V.get() for _ in range(2)]
            for m in range(2): A(f'ds_read_b128 {ka[m]}, {vka} offset:{1024 * m}')
            for i in range(20): A(f'v_lshlrev_b32 {pf[2*i]}, 16, {pq[i // 4][i % 4]}'); A(f'v_and_b32 {pf[2*i+1]}, 0xffff0000, {pq[i // 4][i % 4]}')
            for n in range(3):
                for m in range(2): A(f'v_mfma_f32_16x16x32_bf16 {D[n][m]}, {ka[m]}, {wb[n]}, 0')
            A(f's_lshl_b32 {sKo}, {sK}, 29'); s.stamp(9)
            for hh in range(2): A(f'v_mov_b32 {den[hh]}, {hexf(1e-6)}')
            for d in range(20):
                for hh in range(2):
                    f = 20 * hh + d
                    A(f'v_fmac_f32_dpp {den[hh]}, {zq[0][f >> 4]}, {pf[f]} row_newbcast:{f & 15} row_mask:0xf bank_mask:0xf')
                if d == 6:
                    for n in range(3):
                        for m in range(2):
                            dd = D[n][m]
                            A(f'v_cvt_pk_bf16_f32 {dd[0]}, {dd[0]}, {dd[1]}'); A(f'v_cvt_pk_bf16_f32 {dd[1]}, {dd[2]}, {dd[3]}')
                            A(f'buffer_store_dwordx2 {dd[0:2]}, {wa[m]}, {sWS}, {sKo if n == 2 else 0} offen offset:{1024 * n} sc1')
            s.stamp(10)
            for hh in range(2): A(f'v_rcp_f32 {den[hh]}, {den[hh]}')
            for i in range(20):
                for e in range(2): A(f'v_mul_f32 {pf[2*i+e]}, {den[i // 10]}, {pf[2*i+e]}')
                A(f'v_cvt_pk_bf16_f32 {pq[i // 4][i % 4]}, {pf[2*i]}, {pf[2*i+1]}')
                if i % 4 == 3: last = A(f'buffer_store_dwordx4 {pq[i // 4]}, {vp}, {sWS}, 0 offen offset:{256 * (i // 4)} sc1')
            s.stamp(4)
            A.waitvm(last); A(f'v_mov_b32 {t}, 2'); A(f'ds_write_b32 {vC0}, {t} offset:56')
            A(f's_cmp_eq_u32 {sK}, 0'); A('s_cbranch_scc0 L_fin')
            s.lds_wait(60, 2, sl=1)
            A(s.flagtxt(0, vfl))
            s.stamp(5)
            if s.stop > 4:
                A('s_setprio 0')
                A(f's_lshl_b32 {s.sT0}, {s.sJ2}, 7'); A(f's_add_u32 {s.sT0}, {s.sT0}, {FW}'); A(f's_lshl_b32 {s.sT1}, {s.sRb2}, 7'); A(f's_add_u32 {s.sT1}, {s.sT1}, {FP - 128}')
                A(f'v_lshlrev_b32 {t}, 2, {s.vLane}'); A(f'v_add_u32 {pa}, {s.sT0}, {t}'); A(f'v_add_u32 {u}, {s.sT1}, {t}'); A(f'v_cmp_gt_u32 vcc, 32, {s.vLane}'); A(f'v_cndmask_b32 {pa}, {u}, {pa}, vcc')
                A('s_mov_b32 exec_hi, 0xff')
                s.poll([s.polltxt(q, pa, 0)], [q], sl=o['wsl'])
                A('s_mov_b64 exec, -1'); A(f'v_mov_b32 {t}, 2'); A(f'ds_write_b32 {vC0}, {t} offset:36')
                s.stamp(11)
        A('s_branch L_fin')

    def ld_begin(s):
        s.L_n = 0; s.L_out = []; s.L_seen = 0
    def ld_pub(s, p): s.A(f'v_mov_b32 {s.vS}, {p.seq}'); s.A(f'ds_max_u32 {s.vC0}, {s.vS}')
    def ld_window(s, keep):
        A = s.A
        while s.L_out and s.L_out[0][1] <= max(s.L_low, s.L_n - keep):
            p, idx = s.L_out.pop(0)
            if idx > s.L_low: A(f's_waitcnt vmcnt({s.L_n - idx})'); s.L_low = idx
            if not (s.L_out and s.L_out[0][1] <= s.L_low): s.ld_pub(p)
        if s.L_n - s.L_low > keep:
            A(f's_waitcnt vmcnt({keep})'); s.L_low = s.L_n - keep
    def ld_drain_code(s):
        for p, idx in s.L_out:
            s.A(f's_waitcnt vmcnt({min(63, s.L_n - idx)})'); s.ld_pub(p)
    def ld_space(s, p):
        A = s.A
        need = max([p.minrel] + [q.rel for q in s.P[:p.seq - 1] if ovl(p, q)])
        if need <= s.L_seen: return
        s.L_seen = need
        Lr = s.lab('S'); Lb = s.lab('B'); L2 = s.lab('S'); q = s.vQ
        def rd(): A(f'ds_read_b128 {q}, {s.vCtl} offset:16'); A('s_waitcnt lgkmcnt(0)'); A(f'v_min3_u32 {q[0]}, {q[0]}, {q[1]}, {q[2]}'); A(f'v_min_u32 {q[0]}, {q[0]}, {q[3]}'); A(f'v_cmp_gt_u32 vcc, {need}, {q[0]}')
        rd(); A(f's_cbranch_vccnz {Lr}'); A(f'{Lb}:')
        def slow():
            A(f'{Lr}:')
            for pp, idx in s.L_out:
                A(f's_waitcnt vmcnt({min(63, s.L_n - idx)})'); s.ld_pub(pp); rd(); A(f's_cbranch_vccz {Lb}')
            A(f'{L2}:'); s.tick_spin(Lb, s.o['slp']); rd(); A(f's_cbranch_vccnz {L2}'); A(f's_branch {Lb}')
        s.outline(slow)
    def ld_panel(s, p, groups, W, sc=''):
        A = s.A
        if not groups:
            s.L_out.append((p, s.L_n)); return
        s.ld_space(p)
        for (lo, pre, srd, so, lst) in groups:
            s.ld_window(max(0, W - len(lst)))
            A(f's_mov_b32 m0, {p.addr + lo}')
            if pre: A(pre)
            for vo, imm in lst:
                A(f'buffer_load_dwordx4 {vo}, {srd}, {so} offen offset:{imm} {sc} lds'); s.L_n += 1
        s.L_out.append((p, s.L_n))
    def g5(s, lo, srd, base, add, regs):
        so = s.sT0 if add else base
        return [(lo, f's_add_u32 {so}, {base}, {add}' if add else None, srd, so, [(regs[i], 1024 * i) for i in range(4)]), (lo + 4096, None, srd, so, [(regs[4], 0)])]
    def div20(s, i, q, c20):
        A = s.A; t = s.V.get()
        A(f'v_add_u32 {t}, {64*i}, {s.vLane}')
        A(f'v_mul_u32_u24 {q}, 3277, {t}'); A(f'v_lshrrev_b32 {q}, 16, {q}')
        A(f'v_mul_u32_u24 {c20}, 20, {q}'); A(f'v_sub_u32 {c20}, {t}, {c20}')
        A(f'v_lshrrev_b32 {t}, 2, {q}'); A(f'v_and_b32 {t}, 2, {t}'); A(f'v_xor_b32 {c20}, {c20}, {t}')
        A(f'v_cmp_le_u32 vcc, 10, {c20}')
        s.V.put(t)
    def voff20(s, stride, hi, add):
        A = s.A; V = s.V; out = [V.get() for _ in range(5)]; q = V.get(); c = V.get(); t = V.get()
        for i in range(5):
            s.div20(i, q, c)
            A(f'v_mov_b32 {t}, {hi}'); A(f'v_mul_u32_u24 {q}, {stride}, {q}'); A(f'v_cndmask_b32 {t}, 0, {t}, vcc')
            A(f'v_lshlrev_b32 {c}, 4, {c}'); A(f'v_add3_u32 {out[i]}, {q}, {c}, {t}')
            k = (add - (1024 * i if i < 4 else 0)) & 0xffffffff
            if k: A(f'v_add_u32 {out[i]}, {k}, {out[i]}')
        V.put(q, c, t); return out
    def voff12(s, stride, swz=False):
        A = s.A; V = s.V; vo = [V.get() for _ in range(3)]; t = V.get(); c = V.get()
        for i in range(3):
            q = vo[i]
            A(f'v_add_u32 {t}, {64*i}, {s.vLane}'); A(f'v_mul_u32_u24 {q}, 5462, {t}'); A(f'v_lshrrev_b32 {q}, 16, {q}')
            A(f'v_mul_u32_u24 {c}, 12, {q}'); A(f'v_sub_u32 {c}, {t}, {c}')
            if swz: A(f'v_lshrrev_b32 {t}, 2, {q}'); A(f'v_and_b32 {t}, 2, {t}'); A(f'v_xor_b32 {c}, {c}, {t}')
            A(f'v_mul_u32_u24 {q}, {stride}, {q}'); A(f'v_lshl_add_u32 {q}, {c}, 4, {q}')
            if i: A(f'v_subrev_u32 {q}, {1024*i}, {q}')
        V.put(t, c); return vo
    def loader(s, me):
        A = s.A; S = s.S; V = s.V; o = s.o
        A(f'L_load{me}:'); A.ctl('restore', 'entry')
        if o['lprio']: A(f's_setprio {o["lprio"]}')
        s.vS = V.get(); s.vQ = V.get(4); s.vC0 = V.get()
        sRot, sOA, sOB, sBB, sOC, sBC = [S.get() for _ in range(6)]
        A(f's_lshl3_add_u32 {s.sT0}, {s.sXc}, {s.sCl}'); A(f's_add_u32 {s.sT0}, {s.sT0}, {s.sRb}')
        nph = o['nph']
        if nph == 10:
            A(f's_mul_i32 {s.sT1}, {s.sT0}, 26'); A(f's_lshr_b32 {s.sT1}, {s.sT1}, 8'); A(f's_mul_i32 {s.sT1}, {s.sT1}, 10'); A(f's_sub_u32 {sRot}, {s.sT0}, {s.sT1}')
        else:
            A(f's_and_b32 {s.sT0}, {s.sT0}, {nph - 1}'); A(f's_mul_i32 {s.sT0}, {s.sT0}, {20 // nph}'); A(f's_lshr_b32 {sRot}, {s.sT0}, 1')
        A(f's_lshl_b32 {sOA}, {sRot}, 7')
        t = V.get(); u = V.get()
        late = {}
        vR = V.get(4)
        def late_setup():
            s.srd(*([sWS, sW3] + ([sX] if me else [])))
            A(f's_load_dword {s.sN}, {sWS[0:2]}, 0')
            late['b3'] = s.voff12(3072); late['xt'] = s.voff10()
            if me == 0:
                A(f's_mul_i32 {s.sT3}, {s.sJ2}, 5'); A(f's_lshr_b32 {s.sT3}, {s.sT3}, 2'); A(f'v_lshrrev_b32 {t}, 5, {s.vLane}'); A(f'v_add_u32 {t}, {s.sT3}, {t}')
                A(f'v_and_b32 {u}, 31, {s.vLane}'); A(f'v_min_u32 {vR[2]}, 19, {u}'); A(f'v_lshlrev_b32 {vR[2]}, 2, {vR[2]}'); A(f'v_lshl_add_u32 {vR[2]}, {t}, 7, {vR[2]}'); A(f'v_add_u32 {vR[2]}, {FR2}, {vR[2]}')
                A(f'v_min_u32 {vR[3]}, 23, {u}'); A(f'v_lshlrev_b32 {vR[3]}, 3, {vR[3]}'); A(f'v_lshl_add_u32 {vR[3]}, {t}, 8, {vR[3]}'); A(f'v_add_u32 {vR[3]}, {FR4}, {vR[3]}')
            s.nonce()
        frtxt = f'v_mov_b32 {vR[0]}, {s.vN}\ns_mov_b32 exec_lo, 0xfffff\ns_mov_b32 exec_hi, 0xfffff\n' + s.polltxt(vR[0], vR[2], 0) + '\ns_mov_b64 exec, -1'
        fr4txt = f'v_mov_b32 {vR[0]}, {s.vN}\nv_mov_b32 {vR[1]}, {s.vN}\ns_mov_b32 exec_lo, 0xffffff\ns_mov_b32 exec_hi, 0xffffff\nv_mov_b32 {vR[0]}, 0\nv_mov_b32 {vR[1]}, 0\nbuffer_atomic_add_x2 {vR[0:2]}, {vR[3]}, {sWS}, 0 offen sc0 sc1\ns_mov_b64 exec, -1'
        def stages(gs, rot, W):
            s.ld_begin(); s.L_low = 0
            hold = V.get(4)
            s.defer(late_setup); chunks = s.q3; s.q3 = []
            for st in range(10):
                if st == 3: s.lds_wait(8, 1, sl=1, slowpre=s.ld_drain_code)
                if st == o['frs'] and me == 0: A(frtxt); s.L_n += 1
                if st == 0:
                    s.ld_panel(s.st[0], gs, 63, 'nt' if o['nt1'] else '')
                    s.mkL0(); A(f'v_lshrrev_b32 {s.vC0}, 10, {s.vL0}'); A(f'v_add_u32 {s.vC0}, {CTRL + 4 * me}, {s.vC0}')
                    A(f'v_mov_b32 {s.vS}, 1'); A(f'ds_write_b32 {s.vC0}, {s.vS} offset:64')
                    s.stamp(0)
                    if o['iss'] == 2: s.ld_window(0)
                else: s.ld_panel(s.st[st], gs, W, 'nt' if (o['nt1'] > st) else '')
                if st < 9: rot()
                if st >= 1:
                    k = 0
                    while chunks and (k < 20 or st == 5 or 'v_cmp' in A.ins[-1].text or 'v_cmp' in A.ins[-2].text or 'v_cmp' in A.ins[-3].text): chunks.pop(0)(); k += 1
                s.stamp(1 + st)
            assert not chunks
            if me: s.ld_window(min(o['W1w'], o['W1v'], o['W1']))
            return (s.L_n, s.L_low, [(p.name, i) for p, i in s.L_out], s.L_seen, str(late))
        if me == 0:
            vXA = [V.get() for _ in range(4)]
            A(f's_mul_i32 {s.sT0}, {s.sRb}, 163840')
            A(f'v_lshrrev_b32 {u}, 3, {s.vLane}'); A(f'v_mul_u32_u24 {u}, 1280, {u}'); A(f'v_add_u32 {t}, {s.sT0}, {u}')
            A(f'v_lshrrev_b32 {u}, 4, {s.vLane}'); A(f'v_xor_b32 {u}, {u}, {s.vLane}'); A(f'v_and_b32 {u}, 7, {u}'); A(f'v_lshlrev_b32 {u}, 4, {u}')
            A(f'v_add_u32 {vXA[0]}, {t}, {u}'); A(f'v_xor_b32 {u}, 64, {u}'); A(f'v_add_u32 {u}, 9216, {u}'); A(f'v_add_u32 {vXA[1]}, {t}, {u}')
            A(f'v_add_u32 {vXA[2]}, 18432, {vXA[0]}'); A(f'v_add_u32 {vXA[3]}, 18432, {vXA[1]}')
            s.srd(sX)
            gA = [(4096 * g, f's_add_u32 {s.sT0}, {sOA}, {40960 * g}', sX, s.sT0, [(vXA[i], 1024 * i) for i in range(4)]) for g in range(4)]
            def rot(): A(f's_add_u32 {sOA}, {sOA}, 128'); A(f's_cmpk_eq_u32 {sOA}, 1280'); A(f's_cmovk_i32 {sOA}, 0')
            stages(gA, rot, o['W1x'])
        else:
            s.srd(sWQKV, sW1)
            A(f's_cmp_lt_u32 {s.sCl}, 4'); A('s_cbranch_scc0 L_load23')
            A.ctl('save', 'ldfork'); sn = s.snap()
            for var in ('T1', 'T23'):
                s.rest(sn)
                pad = V.get(12)
                sub = Pool('v', pad.i, pad.i + 12); Vm = s.V; s.V = sub
                if var == 'T1':
                    A(f's_lshl2_add_u32 {sBB}, {s.sXc}, {s.sCl}'); A(f's_mul_i32 {sBB}, {sBB}, 160'); A(f's_mul_i32 {sOB}, {sRot}, {64 * 3840}'); A(f's_add_u32 {sOB}, {sOB}, {sBB}')
                    vB = s.voff20(3840, 1120, 1280)
                    gB = sum([s.g5(16 * KB + 5120 * g, sWQKV, sOB, 16 * 3840 * g, vB) for g in range(4)], [])
                    def rot(): A(f's_add_u32 {sOA}, {sOA}, 128'); A(f's_add_u32 {sOB}, {sOB}, {64 * 3840}'); A(f's_cmpk_eq_u32 {sOA}, 1280'); A(f's_cmov_b32 {sOB}, {sBB}'); A(f's_cmovk_i32 {sOA}, 0')
                else:
                    A('L_load23:'); A.ctl('restore', 'ldfork')
                    s96, s64, g96, g64 = [S.get() for _ in range(4)]
                    A(f's_lshl1_add_u32 {s.sT0}, {s.sXc}, {s.sCl}'); A(f's_cmp_lt_u32 {s.sCl}, 6'); A(f's_cselect_b32 {s.sT1}, 4, 6')
                    A(f's_movk_i32 {s96}, 3840'); A(f's_cmovk_i32 {s96}, 1280'); A(f's_movk_i32 {s64}, 1280'); A(f's_cmovk_i32 {s64}, 3840')
                    A(f's_sub_u32 {s.sT0}, {s.sT0}, {s.sT1}')
                    A(f's_mul_i32 {sBB}, {s.sT0}, 192'); A(f's_lshl_b32 {sBC}, {s.sT0}, 7'); A(f's_add_u32 {sBC}, {sBC}, 768')
                    vB = s.voff12(s96, True); vC = [sub.get() for _ in range(4)]
                    A(f'v_lshrrev_b32 {t}, 3, {s.vLane}'); A(f'v_mul_u32_u24 {t}, {s64}, {t}')
                    A(f'v_lshrrev_b32 {u}, 3, {s.vLane}'); A(f'v_and_b32 {u}, 2, {u}'); A(f'v_xor_b32 {u}, {u}, {s.vLane}'); A(f'v_and_b32 {u}, 7, {u}'); A(f'v_lshl_add_u32 {vC[0]}, {u}, 4, {t}')
                    A(f's_lshl_b32 {s.sT1}, {s64}, 3'); A(f's_sub_u32 {s.sT1}, {s.sT1}, 1024')
                    A(f'v_xor_b32 {vC[1]}, 64, {vC[0]}'); A(f'v_add_u32 {vC[1]}, {s.sT1}, {vC[1]}'); A(f's_lshl_b32 {s.sT1}, {s.sT1}, 1')
                    for i in range(2, 4): A(f'v_add_u32 {vC[i]}, {s.sT1}, {vC[i-2]}')
                    A(f's_lshl_b32 {g96}, {s96}, 4'); A(f's_lshl_b32 {g64}, {s64}, 5')
                    A(f's_mul_i32 {sOB}, {sRot}, {g96}'); A(f's_lshl2_add_u32 {sOB}, {sOB}, {sBB}'); A(f's_mul_i32 {sOC}, {sRot}, {g64}'); A(f's_lshl1_add_u32 {sOC}, {sOC}, {sBC}')
                    A(f's_cmp_lt_u32 {s.sCl}, 6')
                    A(f's_cselect_b64 {sD0[0:2]}, {sW1[0:2]}, {sWQKV[0:2]}'); A(f's_cselect_b32 {sD0[2]}, {sW1[2]}, {sWQKV[2]}'); A(f's_mov_b32 {sD0[3]}, 0x20000')
                    A(f's_cselect_b64 {sD1[0:2]}, {sWQKV[0:2]}, {sW1[0:2]}'); A(f's_cselect_b32 {sD1[2]}, {sWQKV[2]}, {sW1[2]}'); A(f's_mov_b32 {sD1[3]}, 0x20000')
                    gB = [(16 * KB + 3072 * g, f's_add_u32 {sOB}, {sOB}, {g96}' if g else None, sD0, sOB, [(vB[i], 1024 * i) for i in range(3)]) for g in range(4)]
                    gB += [(28 * KB + 4096 * g, f's_add_u32 {sOC}, {sOC}, {g64}' if g else None, sD1, sOC, [(vC[i], 1024 * i) for i in range(4)]) for g in range(2)]
                    def rot():
                        A(f's_add_u32 {sOA}, {sOA}, 128'); A(f's_add_u32 {sOB}, {sOB}, {g96}'); A(f's_add_u32 {sOC}, {sOC}, {g64}')
                        A(f's_cmpk_eq_u32 {sOA}, 1280'); A(f's_cmov_b32 {sOB}, {sBB}'); A(f's_cmov_b32 {sOC}, {sBC}'); A(f's_cmovk_i32 {sOA}, 0')
                s.V = Vm
                state = stages(gB, rot, o['W1w'] if var == 'T1' else o['W1v'])
                if var == 'T1': st1 = state; A('s_branch L_loadj')
                else: assert state == st1, (state, st1)
            A('L_loadj:')
        sQ, sB = S.get(), S.get()
        A(f's_mul_i32 {s.sT1}, {s.sJ2}, 160'); A(f's_mul_i32 {sB}, {s.sRb2}, 81920'); A(f's_add_u32 {sB}, {sB}, {s.sT1}')
        LIN = ((WOP, 102400, 20480, 20480), (W4R, 245760, 61440, 20480), (W2R, 102400, 25600, 25600))
        sL = [S.get() for _ in LIN]; vL = [V.get(), V.get()]; vL.append(vL[0])
        s.rot4(s.sT1)
        for k, (base, span, mul, sz) in enumerate(LIN):
            if k < 2: A(f's_mul_i32 {s.sT2}, {s.sJ2}, {span}'); A(f'v_add_u32 {vL[k]}, {s.sT2}, {s.vL16}')
            A(f's_mul_i32 {sL[k]}, {s.sT1}, {mul}'); A(f's_add_u32 {sL[k]}, {sL[k]}, {base}')
        def lin(p, k, W):
            base, span, _, sz = LIN[k]; n = sz // 1024; lo, hi = (0, (n + 1) // 2) if me == 0 else ((n + 1) // 2, n)
            gs = [(1024 * a, f's_add_u32 {s.sT0}, {sL[k]}, {1024 * a}', sWS, s.sT0, [(vL[k], 1024 * i) for i in range(min(4, hi - a))]) for a in range(lo, hi, 4)]
            s.ld_panel(p, gs, W, 'sc1')
            s.wrapadd(sL[k], sz, base + span, base)
        def frcheck(txt, tags, word):
            if me == 0:
                s.checked([txt], tags, pre=s.ld_drain_code, sl=8)
                A(f'v_mov_b32 {s.vS}, {word}'); A(f'ds_write_b32 {s.vC0}, {s.vS} offset:32')
            else: s.lds_wait(32, word, sl=1, slowpre=s.ld_drain_code)
        if o['frs'] > 9 and me == 0: A(frtxt); s.L_n += 1; s.ld_window(1)
        frcheck(frtxt, [vR[0]], 1)
        for p in s.b2: lin(p, 2, o['W1'])
        s.ld_panel(s.pxt, s.g5(5120 * me, sX, sB, 40960 * me, late['xt']), o['W1'])
        s.stamp(11)
        nt2 = 'nt' if o['nt2'] else ''
        if s.stop > 1:
            A(f's_mul_i32 {sB}, {s.sC3}, 192'); s.rot2(s.sT0); A(f's_mul_i32 {sQ}, {s.sT0}, {64 * 3072}'); A(f's_add_u32 {sQ}, {sQ}, {sB}')
            for i, p in enumerate(s.b3):
                if i == 3: s.lds_wait(40, 1, sl=1, slowpre=s.ld_drain_code)
                if i == 8 and me == 0 and s.stop > 4: s.ld_space(p); A(fr4txt); s.L_n += 1
                s.ld_panel(p, [(3072 * g, f's_add_u32 {s.sT0}, {sQ}, {16 * 3072 * g}', sW3, s.sT0, [(late['b3'][k], 1024 * k) for k in range(3)]) for g in (2 * me, 2 * me + 1)], o['W2'], nt2)
                s.wrapadd(sQ, 64 * 3072, 640 * 3072, sB)
            s.stamp(12)
        if s.stop > 4:
            frcheck(fr4txt, [vR[0], vR[1]], 2)
            def warm(first, n):
                A(f's_mul_i32 {s.sT2}, {s.sJ2}, 245760'); A(f'v_lshlrev_b32 {t}, 7, {s.vLane}'); A(f'v_add_u32 {t}, {s.sT2}, {t}')
                for i in range(first + me, n, 2):
                    s.ld_window(o['Ww']); A(f's_add_u32 {s.sT0}, {sL[1]}, {8192 * i}'); A(f'buffer_load_dword {vR[i & 1]}, {t}, {sWS}, {s.sT0} offen sc1'); s.L_n += 1
            if o['wm'] == 2: warm(0, 8)
            lin(s.b4b[0], 1, o['W2'])
            if o['wm'] == 1: warm(0, 5)
            lin(s.b4b[1], 1, o['W3'])
            s.stamp(13)
            def fwcheck(): s.lds_wait(36, 2, sl=1, slowpre=s.ld_drain_code)
            if not o['stg']:
                s.ld_space(s.b4a[0]); fwcheck(); s.stamp(17)
                for i, p in enumerate(s.b4a):
                    s.ld_space(p)
                    if 'stl' in s.dbg: s.stamp(18 + i)
                    lin(p, 0, o['Wa'])
                s.stamp(14)
                for i, p in enumerate(s.b4b[2:]):
                    s.ld_space(p)
                    if 'stl' in s.dbg and i % 2 == 0: s.stamp([23, 24, 25, 26, 28][i // 2])
                    lin(p, 1, o['W4'] if i < 5 else o['W5'])
            else:
                V.put(*late['b3'], *late['xt'])
                buf = [s.AG.get(40), s.AG.get(40), V.get(40), V.get(40), V.get(40)]
                wa = V.get(); A(f'v_add_u32 {wa}, {10240 * me}, {s.vL16}'); fwa = s.dsaddr(wa)
                def stage(i, W):
                    b = buf[(i - 2) % 5]
                    for a, n in ((0, 4), (4, 4), (8, 2)):
                        s.ld_window(max(0, W - n))
                        A(f's_add_u32 {s.sT0}, {sL[1]}, {10240 * me + 1024 * a}')
                        for k in range(n): A(f'buffer_load_dwordx4 {b.sub(4 * (a + k), 4)}, {vL[1]}, {sWS}, {s.sT0} offen offset:{1024 * k} sc1'); s.L_n += 1
                    s.wrapadd(sL[1], 20480, W4R + 245760, W4R)
                def put(i):
                    p = s.b4b[i]; b = buf[(i - 2) % 5]
                    s.ld_space(p)
                    for k in range(10):
                        r_, im = fwa(p.addr + 1024 * k).split(' ')
                        A(f'ds_write_b128 {r_}, {b.sub(4 * k, 4)} {im}')
                    s.ld_pub(p)
                stage(2, o['W3']); stage(3, o['W3'])
                s.ld_space(s.b4a[0]); fwcheck()
                lin(s.b4a[0], 0, o['W3']); stage(4, o['W3']); lin(s.b4a[1], 0, o['W3']); stage(5, o['W3']); lin(s.b4a[2], 0, o['W3']); lin(s.b4a[3], 0, o['W4']); lin(s.b4a[4], 0, o['W4']); stage(6, o['W4'])
                s.stamp(14)
                s.ld_drain_code(); s.L_out = []
                for i in range(2, 12):
                    put(i)
                    if i + 5 < 12: A('s_waitcnt lgkmcnt(0)'); stage(i + 5, o['W4'])
        s.ld_drain_code()
        s.stamp(15)
        A('s_waitcnt vmcnt(0) lgkmcnt(0)')
        A('s_branch L_fin')

    def cpro(s):
        A = s.A; S = s.S; V = s.V
        s.vP, s.vPa, s.vTok, s.vTok4 = [V.get() for _ in range(4)]
        s.sFlag, s.sJ160, s.sCb3, s.sTw, s.sTw3, s.sTT = [S.get() for _ in range(6)]
        s.vA2 = [V.get() for _ in range(4)]; s.rW3 = [V.get() for _ in range(3)]
        s.vL1, s.paF1, s.pF = [V.get() for _ in range(3)]
        s.gr2 = V.get(2); s.cg3 = [V.get(2) for _ in range(3)]
        t = V.get(); u = V.get(); q = V.get()
        if s.o['prio']: A(f's_setprio {s.o["prio"]}')
        s.srd(sWS, sOUT)
        s.mkL0()
        A(f'v_and_b32 {s.vTok}, 15, {s.vLane}'); A(f'v_lshlrev_b32 {s.vTok4}, 2, {s.vTok}')
        A(f's_lshl_b32 {s.sT0}, {s.sW}, 2'); A(f's_add_u32 {s.sT0}, {s.sT0}, {CTRL + 16}'); A(f'v_lshrrev_b32 {s.vPa}, 10, {s.vL0}'); A(f'v_add_u32 {s.vPa}, {s.sT0}, {s.vPa}')
        A(f's_mul_i32 {s.sJ160}, {s.sJ2}, 160'); A(f's_mov_b32 {s.sCb3}, {s.sC3}')
        A(f's_lshr_b32 {s.sT0}, {s.sW}, 1'); A(f's_lshl1_add_u32 {s.sTw}, {s.sRb2}, {s.sT0}'); A(f's_lshl2_add_u32 {s.sTT}, {s.sRb2}, {s.sW}')
        A(f's_lshl2_add_u32 {s.sTw3}, {s.sXr}, {s.sG}'); A(f's_lshl2_add_u32 {s.sTw3}, {s.sTw3}, {s.sW}')
        A(f'v_add_u32 {s.vL1}, 65536, {s.vL16}')
        A(f's_lshl_b32 {s.sT2}, {s.sTT}, 4'); A(f'v_and_b32 {q}, 48, {s.vLane}'); A(f'v_lshlrev_b32 {q}, 4, {q}')
        for i in range(4):
            if i == 0: s.rot4(s.sT3)
            A(f's_add_u32 {s.sT0}, {s.sT3}, {i}'); A(f's_and_b32 {s.sT0}, {s.sT0}, 3')
            A(f's_lshl_b32 {s.sT1}, {s.sT0}, 2'); A(f's_lshr_b32 {s.sT1}, 0x4031, {s.sT1}'); A(f's_and_b32 {s.sT1}, {s.sT1}, 15'); A(f's_add_u32 {s.sT1}, {s.sT1}, {s.sT2}'); A(f's_sub_u32 {s.sT1}, {s.sT1}, 2')
            A(f's_mul_i32 {s.sT0}, {s.sT0}, 5120')
            A(f'v_add_u32 {t}, {s.sT1}, {s.vTok}'); A(f'v_cmp_gt_u32 vcc, 0x800, {t}'); A(f'v_lshrrev_b32 {u}, 4, {t}'); A(f'v_mul_u32_u24 {u}, 20480, {u}')
            A(f'v_and_b32 {t}, 15, {t}'); A(f'v_lshl_add_u32 {u}, {t}, 4, {u}'); A(f'v_add3_u32 {u}, {u}, {q}, {s.sT0}'); A(f'v_mov_b32 {t}, {OOB}'); A(f'v_cndmask_b32 {s.vA2[i]}, {t}, {u}, vcc')
        s.fw3, _ = s.mk_nt_read(3, s.rW3)
        A(f's_and_b32 {s.sT0}, {s.sW}, 2'); A(f's_add_u32 {s.sT0}, {s.sT0}, {s.sRb2}'); A(f's_add_u32 {s.sT0}, {s.sT0}, 31'); A(f's_and_b32 {s.sT0}, {s.sT0}, 31')
        A(f'v_cmp_gt_u32 vcc, 16, {s.vLane}'); A(f'v_mov_b32 {t}, {s.sT0}'); A(f'v_mov_b32 {u}, {s.sRb2}'); A(f'v_cndmask_b32 {q}, {t}, {u}, vcc')
        A(f'v_lshl_add_u32 {q}, {q}, 7, {s.vTok4}'); A(f'v_add_u32 {s.paF1}, {F1}, {q}')
        s.sM1 = S.get(2)
        A(f's_add_u32 {s.sT0}, {s.sW}, 1'); A(f's_bitcmp0_b32 {s.sT0}, 1'); A(f's_cselect_b32 {s.sM1[0]}, -1, 0xffff'); A(f's_mov_b32 {s.sM1[1]}, 0')
        A(f's_load_dword {s.sN}, {sWS[0:2]}, 0')
        if s.o['tlb']:
            sh = s.o['tlb']
            A(f'v_lshlrev_b32 {t}, {sh}, v0'); A(f's_mov_b32 {s.sT0}, 0x100000')
            A(f'buffer_load_dword {s.pF}, {t}, {sWS}, 0 offen sc1')
            s.srd(sW3, sW4)
            A(f'buffer_load_dword {q}, {t}, {sOUT}, 0 offen nt'); A(f'buffer_load_dword {u}, {t}, {sW3}, 0 offen'); A(f'buffer_load_dword {t}, {t}, {sW4}, 0 offen')
        s.stamp(0)
        V.put(t, u, q)
        A(f's_cmp_lt_u32 {s.sCl}, 4'); A('s_cbranch_scc1 L_T1')
        A(f's_cmp_lt_u32 {s.sCl}, 6'); A('s_cbranch_scc1 L_TA')
        A.ctl('save', 'fork')
    def gr_common(s, t):
        A = s.A
        A(f's_lshl_b32 {s.sT0}, {s.sW}, 7'); A(f's_add_u32 {s.sT0}, {s.sT0}, {G2}'); A(f'v_lshl_add_u32 {t}, {s.vTok}, 3, {s.sT0}'); A(f'ds_read_b64 {s.gr2}, {t}')
        A(f'v_and_b32 {t}, 31, {s.vLane}'); A(f'v_lshlrev_b32 {t}, 3, {t}'); A(f'v_add_u32 {t}, {GW}, {t}')
        for J in range(3): A(f'ds_read_b64 {s.cg3[J]}, {t} offset:{(160 + 32 * J) * 8}')

    def flat(s, mf, rd, lag, cap, group=None, relmap=None, hooks=None, n3=1, coarse=None, after_first=None, per=None):
        first = {}; lastu = {}
        for i, (_, ids) in enumerate(mf):
            for x in ids: first.setdefault(x, i); lastu[x] = i
        Rd = []; prev = {}
        for x in sorted(rd, key=lambda x: first[x]):
            dest, p, fns = rd[x]; key = str(dest)
            free = lastu[prev[key]] if key in prev else -1
            assert free < first[x]
            prev[key] = x
            for f in fns: Rd.append([first[x], free, p, f, None])
        known = s.known; lastidx = {}
        for k, r in enumerate(Rd):
            lastidx[r[2]] = k
            g = group(r[2]) if group else r[2]
            if r[2].seq > known:
                known = g.seq; r[4] = g
                if k >= 5: Rd[k - 5].append('pre')
        for p, k in lastidx.items():
            rl = relmap.get(p) if relmap is not None else [p]
            if rl: Rd[k].append(rl)
        cnt = [0]
        def emit(i, cap):
            k = 0
            while Rd and Rd[0][1] <= i and (Rd[0][0] <= i + 1 or (Rd[0][0] <= i + lag and k < cap)):
                r = Rd.pop(0)
                if r[4]: s.full(r[4], pre=cnt[0] < 5)
                assert r[2].seq <= s.known and (r[2].rel is None or r[2].rel > s.nrel), r[2].name
                r[3](); k += 1; cnt[0] += 1
                for e in r[5:]:
                    if e == 'pre': s.A(f'ds_read_b64 {s.vF}, {s.vCtl}')
                    else: s.release(e)
            return k
        emit(-1, 999)
        if after_first: after_first()
        for i, (m, _) in enumerate(mf):
            if hooks and i in hooks: hooks[i]()
            if coarse and i in coarse: s.A.touch(coarse[i])
            m()
            if s.stbase is not None and per and i % per == per - 1: s.stamp(s.stbase + i // per)
            k = emit(i, cap); j = 0
            while s.q3 and (j + k < n3 or s.A.clk + 4 <= s.A.mf_free): s.q3.pop(0)(); j += 1
        assert not Rd

    def begin_variant(s):
        s.A.ctl('restore', 'fork'); s.q3 = []; s.known = 0; s.nrel = 0
    def end_variant(s):
        A = s.A
        s.fixat(1)
        s.release([]); assert s.nrel == 11
        A('s_waitcnt lgkmcnt(0)'); A.ctl('endvar'); A('s_branch L_join')

    def t1(s):
        A = s.A; V = s.V; S = s.S; AG = s.AG; stages = s.st
        A('L_T1:'); s.begin_variant()
        sCb = S.get(); sWr = S.get(); sWc = S.get()
        A(f's_lshl2_add_u32 {sCb}, {s.sXc}, {s.sCl}'); A(f's_lshr_b32 {sWr}, {s.sW}, 1'); A(f's_and_b32 {sWc}, {s.sW}, 1')
        q = V.get(); t = V.get(); a0 = V.get(); a1 = V.get()
        A(f'v_lshrrev_b32 {t}, 1, {s.vTok}'); A(f'v_lshrrev_b32 {q}, 4, {s.vLane}'); A(f'v_xor_b32 {t}, {t}, {q}')
        A(f's_lshl_b32 {s.sT0}, {sWr}, 6'); A(f'v_add_u32 {a0}, {s.sT0}, {s.vTok}'); A(f'v_lshlrev_b32 {a0}, 7, {a0}'); A(f'v_lshl_add_u32 {a0}, {t}, 4, {a0}')
        A(f'v_xor_b32 {a1}, 64, {a0}')
        fa = [s.dsaddr(a0, (0, 1)), s.dsaddr(a1, (0, 1))]
        fb = []
        rowp = V.get(); hi = V.get(); x2 = V.get()
        A(f'v_lshlrev_b32 {rowp}, 3, {q}'); A(f'v_bfe_u32 {t}, {s.vLane}, 2, 2'); A(f'v_add_u32 {rowp}, {rowp}, {t}'); A(f'v_mul_u32_u24 {rowp}, 320, {rowp}')
        A(f'v_and_b32 {t}, 1, {s.vLane}'); A(f'v_lshl_add_u32 {rowp}, {t}, 3, {rowp}'); A(f'v_add_u32 {rowp}, {16 * KB}, {rowp}')
        A(f'v_bfe_u32 {hi}, {s.vLane}, 1, 1'); A(f'v_and_b32 {x2}, 1, {q}'); A(f'v_lshlrev_b32 {x2}, 1, {x2}')
        A(f's_mul_i32 {s.sT0}, {sWc}, 5')
        for tt, ba in enumerate([0, 2, 4, 11, 13]):
            b = V.get()
            A(f'v_mul_u32_u24 {b}, {6 if tt == 2 else 1}, {hi}'); A(f'v_add3_u32 {b}, {b}, {ba}, {s.sT0}')
            A(f'v_xor_b32 {b}, {b}, {x2}'); A(f'v_lshl_add_u32 {b}, {b}, 4, {rowp}')
            fb.append(s.dsaddr(b, (0, 1)))
        V.put(rowp, hi, x2, q)
        sKV = [S.get(), S.get()]
        A(f's_lshl1_add_u32 {s.sT0}, {sCb}, {sWc}')
        A(f's_mul_i32 {sKV[0]}, {s.sT0}, {KVH}'); A(f's_mul_i32 {sKV[1]}, {s.sRb}, {KVP}'); A(f's_add_u32 {sKV[0]}, {sKV[0]}, {sKV[1]}'); A(f's_add_u32 {sKV[0]}, {sKV[0]}, {KV}'); A(f's_add_u32 {sKV[1]}, {sKV[0]}, 4096')
        A(f's_lshl_b32 {s.sT2}, {sWr}, 29')
        A(f's_lshl_b32 {s.sT0}, {s.sT0}, 7'); A(f's_add_u32 {s.sT0}, {s.sT0}, {s.sT2}'); A(f's_lshl2_add_u32 {s.sT0}, {s.sRb}, {s.sT0}'); A(f's_add_u32 {s.sFlag}, {s.sT0}, {FK}')
        s.nonce()
        s.stamp(1)
        acc = [[V.get(4) for _ in range(5)] for _ in range(4)]
        XA = [[AG.get(4) for _ in range(4)] for _ in range(2)]; WB = [[AG.get(4) for _ in range(5)] for _ in range(2)]
        gr = [V.get(4) for _ in range(4)]; csg = [V.get(4) for _ in range(5)]
        mf = []; rd = {}; at = {}
        for st in range(10):
            p = stages[st]
            for h in range(2):
                at[(st, h)] = len(mf)
                for mt in range(4): rd[('x', st, h, mt)] = (XA[h][mt], p, [lambda mt=mt, h=h, p=p: A(f'ds_read_b128 {XA[h][mt]}, {fa[h](p.addr + 2048 * mt)}')])
                for tt in range(5): rd[('w', st, h, tt)] = (WB[h][tt], p, [(lambda tt=tt, h=h, p=p, t2=t2: A(f'ds_read_b64_tr_b16 {WB[h][tt].sub(2*t2, 2)}, {fb[tt](p.addr + (32 * h + 4 * t2) * 320)}')) for t2 in range(2)])
                for tt in range(5):
                    for mt in range(4):
                        mf.append((lambda mt=mt, tt=tt, h=h, c0=(st == 0 and h == 0): A(f'v_mfma_f32_16x16x32_bf16 {acc[mt][tt]}, {XA[h][mt]}, {WB[h][tt]}, {"0" if c0 else acc[mt][tt]}'), [('x', st, h, mt), ('w', st, h, tt)]))
                if st == 8 and h == 0:
                    at['corr'] = len(mf)
                    mf += [(lambda mt=mt, tt=tt: A(f'v_mfma_f32_16x16x32_bf16 {acc[mt][tt]}, {gr[mt]}, {csg[tt]}, {acc[mt][tt]}'), []) for tt in range(5) for mt in range(4)]
        ga = [V.get() for _ in range(4)]
        A(f's_lshl_b32 {s.sT0}, {sWr}, 9'); A(f's_add_u32 {s.sT0}, {s.sT0}, {GX}'); A(f'v_lshl_add_u32 {ga[0]}, {s.vTok}, 3, {s.sT0}')
        A(f's_mul_i32 {s.sT0}, {sWc}, 320'); A(f's_add_u32 {s.sT0}, {s.sT0}, {GW}'); A(f'v_lshl_add_u32 {ga[1]}, {s.vTok}, 3, {s.sT0}')
        A(f'v_lshrrev_b32 {t}, 3, {s.vTok}'); A(f'v_mul_u32_u24 {t}, 320, {t}'); A(f'v_add_u32 {ga[2]}, {t}, {ga[1]}')
        A(f's_lshl_b32 {s.sT0}, {sWr}, 8'); A(f's_add_u32 {s.sT0}, {s.sT0}, {G1}'); A(f'v_and_b32 {ga[3]}, 48, {s.vLane}'); A(f'v_add_u32 {ga[3]}, {s.sT0}, {ga[3]}')
        for g in gr: A(f'v_mov_b32 {g[2]}, 0'); A(f'v_mov_b32 {g[3]}, 0')
        for c_ in csg:
            for e in range(4): A(f'v_mov_b32 {c_[e]}, 0')
        def h_get():
            s.lds_wait(36, 1)
            A('s_mov_b64 exec, 0xffff')
            for tt in range(5): A(f'ds_read_b64 {csg[tt][0:2]}, {ga[2] if tt == 2 else ga[1]} offset:{128 * tt + (320 if tt > 2 else 0)}')
            A('s_mov_b64 exec, -1')
            def f():
                for mt in range(4): A(f'ds_read_b64 {gr[mt][0:2]}, {ga[0]} offset:{128 * mt}')
                s.gr_common(t)
            s.defer(f)
        def h_r1():
            for mt in range(4): A(f'ds_read_b128 {gr[mt]}, {ga[3]} offset:{64 * mt}')
        hooks = {at[(7, 0)] + 10: h_get, at['corr']: s.flush3, at[(9, 1)]: h_r1}
        if 'st1' in s.dbg: s.stbase = 17
        s.flat(mf, rd, s.o['lag16'], 1, hooks=hooks, per=40, n3=2)
        s.stbase = None
        s.stamp(2)
        r1 = gr
        for f in fa + fb: V.put(*f.regs)
        V.put(*csg, *ga)
        eps = V.get(2); epm = V.get(2); l2e = V.get(2); sK = S.get(2)
        A(f'v_mov_b32 {eps[0]}, {hexf(1e-6)}'); A(f'v_mov_b32 {l2e[0]}, {hexf(LOG2E)}')
        A(f'v_and_b32 {t}, 8, {s.vLane}'); A(f'v_cmp_eq_u32 {sK}, 0, {t}'); A(f'v_cndmask_b32 {epm[0]}, 0, {eps[0]}, {sK}')
        pk = [[acc[2 * u][tt] for tt in range(5)] for u in range(2)]
        U = [V.get(2) for _ in range(4)]
        for tt in range(5):
            for u in range(2):
                prs = [(2 * u + m, h) for m in range(2) for h in range(2)]
                y = [acc[mt][tt].sub(2 * h, 2) for mt, h in prs]
                for k, (mt, h) in enumerate(prs):
                    if tt < 3: A(f'v_pk_fma_f32 {y[k]}, {y[k]}, {r1[mt].sub(2*h, 2)}, {eps if tt < 2 else epm} op_sel_hi:[1,1,0]')
                    else: A(f'v_pk_mul_f32 {y[k]}, {y[k]}, {r1[mt].sub(2*h, 2)}')
                if tt < 3:
                    for k in range(4): A(f'v_pk_mul_f32 {U[k]}, {y[k]}, {l2e} op_sel_hi:[1,0]')
                    for k in range(4): A(f'v_exp_f32_e64 {U[k][0]}, {U[k][0]} clamp'); A(f'v_exp_f32_e64 {U[k][1]}, {U[k][1]} clamp')
                    if tt < 2:
                        for k in range(4): A(f'v_max_f32 {y[k][0]}, {eps[0]}, {y[k][0]}'); A(f'v_max_f32 {y[k][1]}, {eps[0]}, {y[k][1]}')
                        for k in range(4): A(f'v_pk_add_f32 {y[k]}, {y[k]}, {U[k]}')
                    else:
                        for k in range(4):
                            for e in range(2):
                                A(f'v_max_f32 {t}, {eps[0]}, {y[k][e]}'); A(f'v_add_f32 {t}, {t}, {U[k][e]}'); A(f'v_cndmask_b32 {y[k][e]}, {y[k][e]}, {t}, {sK}')
                for k in range(4): A(f'v_cvt_pk_bf16_f32 {pk[u][tt][k]}, {y[k][0]}, {y[k][1]}')
        V.put(*U, eps, epm, l2e, *r1, *acc[1], *acc[3])
        ones = V.get(4); ad = V.get(); tw = V.get()
        for i in range(4): A(f'v_mov_b32 {ones[i]}, 0x3f803f80')
        pairs = [(0, 2), (0, 3), (1, 2), (1, 3), (1, 4), (2, 3), (2, 4)]
        kv = [V.get(4) for _ in pairs]; zz = [V.get(4) for _ in range(3)]
        RED = 108 * KB
        for u in range(2):
            for dt in range(3): A(f'v_mfma_f32_16x16x32_bf16 {zz[dt]}, {ones}, {pk[u][dt]}, {"0" if u == 0 else zz[dt]}')
            for k, (dt, et) in enumerate(pairs): A(f'v_mfma_f32_16x16x32_bf16 {kv[k]}, {pk[u][et]}, {pk[u][dt]}, {"0" if u == 0 else kv[k]}')
            if u == 0:
                A(f's_lshl_b32 {s.sT0}, {sWc}, 13'); A(f's_add_u32 {s.sT0}, {s.sT0}, {RED}'); A(f'v_add_u32 {ad}, {s.sT0}, {s.vL16}')
                A(f's_lshl_b32 {s.sT0}, {sWc}, 2'); A(f'v_add_u32 {t}, {s.sT0}, {s.vCtl}'); A(f'v_lshrrev_b32 {tw}, 10, {s.vL0}'); A(f'v_add_u32 {tw}, {tw}, {t}')
        V.put(*acc[0], *acc[2])
        A(f'v_mov_b32 {zz[0][1]}, {zz[1][0]}'); A(f'v_mov_b32 {zz[0][2]}, {zz[2][0]}')
        red = [zz[0]] + kv
        L1 = s.lab(); L2 = s.lab(); L3 = s.lab(); L4 = s.lab(); L5 = s.lab()
        q4 = V.get(4)
        A('s_nop 7')
        A(f's_cmp_eq_u32 {sWr}, 0'); A(f's_cbranch_scc1 {L1}')
        s.prog_wait(q4, 10)
        for k, r in enumerate(red): A(f'ds_write_b128 {ad}, {r} offset:{1024 * k}')
        A(f'ds_write_b32 {tw}, {ones[0]} offset:48')
        A('s_waitcnt lgkmcnt(0)')
        A(f's_branch {L2}')
        A(f'{L1}:'); A(f'ds_read_b32 {q4[0]}, {t} offset:48'); s.tick_spin(L3); A(f'v_cmp_eq_u32 vcc, 0, {q4[0]}'); A(f's_cbranch_vccnz {L1}')
        A(f'{L3}:')
        tmp = [V.get(4) for _ in red]
        for k, r in enumerate(red): A(f'ds_read_b128 {tmp[k]}, {ad} offset:{1024 * k}')
        for k, r in enumerate(red):
            for h in range(2): A(f'v_pk_add_f32 {r.sub(2*h, 2)}, {r.sub(2*h, 2)}, {tmp[k].sub(2*h, 2)}')
            kk = (k + 7) % 8
            A(f'buffer_store_dwordx4 {r}, {s.vL16}, {sWS}, {sKV[kk // 4]} offen offset:{1024 * (kk % 4)} sc1')
        A(f'{L2}:')
        s.stamp(3)
        s.end_variant()

    def cs_loads(s, NT, so):
        cg = [s.V.get(4) for _ in range(NT)]
        return [f'buffer_load_dwordx2 {cg[J].sub(2*e, 2)}, {s.vCsA}, {sWS}, {so[e]} offen offset:{256 * J} sc1' for J in range(NT) for e in range(2)], cg
    def cs_build(s, cg):
        for c in cg: s.A(f'v_add_f32 {c[0]}, {c[0]}, {c[2]}'); s.split_w(c, c[0])
    def epi32(s, kind, acc, k0, k1, k2, addr, mid=None, hold=None):
        A = s.A; V = s.V
        T = [V.get(2) for _ in range(4)]; P = [V.get(4) for _ in range(2)]
        for J in range(len(acc)):
            vo, so, imm = addr[J]
            for hf in range(2):
                y = [acc[J].sub(8 * hf + 2 * k, 2) for k in range(4)]
                if kind == 'gelu':
                    for k in range(4): A(f'v_pk_mul_f32 {T[k]}, {y[k]}, {y[k]}')
                    for k in range(4): A(f'v_pk_fma_f32 {T[k]}, {T[k]}, {k1}, {k0} op_sel_hi:[1,0,0]')
                    for k in range(4): A(f'v_pk_mul_f32 {T[k]}, {T[k]}, {y[k]}')
                    for k in range(4): A(f'v_exp_f32 {T[k][0]}, {T[k][0]}'); A(f'v_exp_f32 {T[k][1]}, {T[k][1]}')
                    for k in range(4): A(f'v_pk_fma_f32 {T[k]}, {T[k]}, {k2[J]}, {k2[J]} op_sel_hi:[1,0,0]')
                    for k in range(4): A(f'v_rcp_f32 {T[k][0]}, {T[k][0]}'); A(f'v_rcp_f32 {T[k][1]}, {T[k][1]}')
                    for k in range(4): A(f'v_pk_mul_f32 {y[k]}, {y[k]}, {T[k]}')
                else:
                    for k in range(4): A(f'v_pk_mul_f32 {T[k]}, {y[k]}, {k1} op_sel_hi:[1,0]')
                    for k in range(4): A(f'v_pk_fma_f32 {y[k]}, {y[k]}, {k0}, {k2} op_sel_hi:[1,0,0]')
                    for k in range(4): A(f'v_exp_f32_e64 {T[k][0]}, {T[k][0]} clamp'); A(f'v_exp_f32_e64 {T[k][1]}, {T[k][1]} clamp')
                    for k in range(4): A(f'v_max_f32 {y[k][0]}, {k2[0]}, {y[k][0]}'); A(f'v_max_f32 {y[k][1]}, {k2[0]}, {y[k][1]}')
                    for k in range(4): A(f'v_pk_add_f32 {y[k]}, {y[k]}, {T[k]}')
                p = P[hf] if hold is None else acc[J].sub(8 * hf, 4)
                for k in ((0, 2, 1, 3) if hold is None else (0, 1, 2, 3)): A(f'v_cvt_pk_bf16_f32 {p[k]}, {y[k][0]}, {y[k][1]}')
                if mid: mid(2 * J + hf)
                A(f'v_permlane32_swap_b32 {p[0]}, {p[2]}'); A(f'v_permlane32_swap_b32 {p[1]}, {p[3]}')
                txt = f'buffer_store_dwordx4 {p}, {vo}, {sWS}, {so} offen offset:{imm + 512 * hf} sc1'
                if hold is None: last = A(txt)
                else: hold.append(txt); last = None
        V.put(*T, *P)
        return last
    def gelu_k(s, k0, k1, a):
        A = s.A
        A(f'v_mul_f32 {k0[0]}, {hexf(GC0)}, {a}'); A(f'v_mul_f32 {k1[0]}, {a}, {a}'); A(f'v_mul_f32 {k1[0]}, {k1[0]}, {a}'); A(f'v_mul_f32 {k1[0]}, {hexf(GC1)}, {k1[0]}')

    def t23(s, typ):
        A = s.A; V = s.V; S = s.S; AG = s.AG; stages = s.st
        G1, G2 = ([0, 1, 2], [3, 4]) if typ == 'A' else ([3, 4], [0, 1, 2])
        if typ == 'A': A('L_TA:')
        s.begin_variant()
        sA = S.get(); sWr = S.get(); sWc = S.get()
        A(f's_lshl1_add_u32 {sA}, {s.sXc}, {s.sCl}'); A(f's_sub_u32 {sA}, {sA}, {4 if typ == "A" else 6}')
        A(f's_lshr_b32 {sWr}, {s.sW}, 1'); A(f's_and_b32 {sWc}, {s.sW}, 1')
        q = V.get(); t = V.get(); a0 = V.get(); a1 = V.get()
        A(f'v_lshrrev_b32 {t}, 1, {s.vTok}'); A(f'v_lshrrev_b32 {q}, 4, {s.vLane}'); A(f'v_xor_b32 {t}, {t}, {q}')
        A(f's_lshl_b32 {s.sT0}, {sWr}, 6'); A(f'v_add_u32 {a0}, {s.sT0}, {s.vTok}'); A(f'v_lshlrev_b32 {a0}, 7, {a0}'); A(f'v_lshl_add_u32 {a0}, {t}, 4, {a0}')
        A(f'v_xor_b32 {a1}, 64, {a0}')
        fa = [s.dsaddr(a0, (0, 1)), s.dsaddr(a1, (0, 1))]
        fb = []; row = V.get(); r96 = V.get(); r64 = V.get(); x96 = V.get(); x64 = V.get()
        A(f'v_lshlrev_b32 {row}, 3, {q}'); A(f'v_bfe_u32 {t}, {s.vLane}, 2, 2'); A(f'v_add_u32 {row}, {row}, {t}')
        A(f'v_and_b32 {t}, 3, {s.vLane}'); A(f'v_lshlrev_b32 {t}, 3, {t}')
        A(f'v_mul_u32_u24 {r96}, 192, {row}'); A(f'v_add_u32 {r96}, {r96}, {t}'); A(f'v_add_u32 {r96}, {16 * KB}, {r96}')
        A(f'v_lshl_add_u32 {r64}, {row}, 7, {t}'); A(f'v_add_u32 {r64}, {28 * KB}, {r64}')
        A(f'v_and_b32 {x96}, 1, {q}'); A(f'v_bfe_u32 {x64}, {s.vLane}, 3, 2')
        for tt in range(5):
            b = V.get()
            if tt < 3: A(f's_mul_i32 {s.sT0}, {sWc}, 3'); A(f's_add_u32 {s.sT0}, {s.sT0}, {tt}')
            else: A(f's_lshl_b32 {s.sT0}, {sWc}, 1'); A(f's_add_u32 {s.sT0}, {s.sT0}, {tt - 3}')
            A(f'v_xor_b32 {b}, {s.sT0}, {x96 if tt < 3 else x64}'); A(f'v_lshl_add_u32 {b}, {b}, 5, {r96 if tt < 3 else r64}')
            fb.append(s.dsaddr(b, (0, 1)))
        V.put(row, r96, r64, x96, x64)
        vo = V.get(); so = [[S.get(), S.get()], [S.get(), S.get()]]
        A(f's_lshl1_add_u32 {s.sT0}, {s.sRb}, {sWr}'); A(f's_lshl_b32 {s.sFlag}, {s.sT0}, 7'); A(f's_mul_i32 {s.sT0}, {s.sT0}, 81920')
        A(f'v_and_b32 {t}, 1, {q}'); A(f'v_mul_u32_u24 {vo}, 20480, {t}'); A(f'v_lshrrev_b32 {t}, 1, {q}'); A(f'v_lshl_add_u32 {vo}, {t}, 8, {vo}'); A(f'v_lshl_add_u32 {vo}, {s.vTok}, 4, {vo}'); A(f'v_add_u32 {vo}, {s.sT0}, {vo}')
        A(f's_lshl1_add_u32 {s.sT0}, {sA}, {sWc}')
        A(f's_lshl2_add_u32 {s.sFlag}, {s.sT0}, {s.sFlag}'); A(f's_add_u32 {s.sFlag}, {s.sFlag}, {F1 + (0 if typ == "A" else 32)}')
        A(f's_mul_i32 {so[0][0]}, {s.sT0}, {48 * 32}'); A(f's_add_u32 {so[0][0]}, {so[0][0]}, {HS if typ == "A" else PQ}')
        A(f's_lshl_b32 {so[1][0]}, {s.sT0}, 10'); A(f's_add_u32 {so[1][0]}, {so[1][0]}, {(PQ if typ == "A" else HS) + 384 * 32}')
        for k in range(2): A(f's_add_u32 {so[k][1]}, {so[k][0]}, 40960')
        V.put(q)
        s.nonce()
        s.stamp(1)
        acc = [[V.get(4) for _ in range(5)] for _ in range(4)]
        XA = [[AG.get(4) for _ in range(4)] for _ in range(2)]; WB = [[AG.get(4) for _ in range(5)] for _ in range(2)]
        gr = [V.get(4) for _ in range(4)]; csg = [V.get(4) for _ in range(5)]
        mf = []; rd = {}; at = {}; late = []
        def mk(st, h, tt, mt): return (lambda: A(f'v_mfma_f32_16x16x32_bf16 {acc[mt][tt]}, {WB[h][tt]}, {XA[h][mt]}, {"0" if st == 0 and h == 0 else acc[mt][tt]}'))
        for st in range(10):
            p = stages[st]
            for h in range(2):
                at[(st, h)] = len(mf)
                for mt in range(4): rd[('x', st, h, mt)] = (XA[h][mt], p, [lambda mt=mt, h=h, p=p: A(f'ds_read_b128 {XA[h][mt]}, {fa[h](p.addr + 2048 * mt)}')])
                for tt in range(5): rd[('w', st, h, tt)] = (WB[h][tt], p, [(lambda tt=tt, h=h, p=p, t2=t2: A(f'ds_read_b64_tr_b16 {WB[h][tt].sub(2*t2, 2)}, {fb[tt](p.addr + (32 * h + 4 * t2) * (192 if tt < 3 else 128))}')) for t2 in range(2)])
                for tt in (G1 + G2 if st < 9 else G1):
                    for mt in range(4): mf.append((mk(st, h, tt, mt), [('x', st, h, mt), ('w', st, h, tt)]))
                if st == 8 and h == 0:
                    at['corr'] = len(mf)
                    mf += [(lambda mt=mt, tt=tt: A(f'v_mfma_f32_16x16x32_bf16 {acc[mt][tt]}, {csg[tt]}, {gr[mt]}, {acc[mt][tt]}'), []) for tt in range(5) for mt in range(4)]
        for h in range(2):
            for tt in G2:
                mf.append((lambda: None, [('w', 9, h, tt)])); late += [mk(9, h, tt, mt) for mt in range(4)]
        ga = [V.get() for _ in range(4)]
        A(f's_lshl_b32 {s.sT0}, {sWr}, 9'); A(f's_add_u32 {s.sT0}, {s.sT0}, {GX}'); A(f'v_lshl_add_u32 {ga[0]}, {s.vTok}, 3, {s.sT0}')
        A(f's_mul_i32 {s.sT0}, {sWc}, 384'); A(f's_add_u32 {s.sT0}, {s.sT0}, {GW}'); A(f'v_lshl_add_u32 {ga[1]}, {s.vTok}, 3, {s.sT0}')
        A(f's_lshl_b32 {s.sT0}, {sWc}, 8'); A(f's_add_u32 {s.sT0}, {s.sT0}, {GW + 768}'); A(f'v_lshl_add_u32 {ga[2]}, {s.vTok}, 3, {s.sT0}')
        A(f's_lshl_b32 {s.sT0}, {sWr}, 10'); A(f's_add_u32 {s.sT0}, {s.sT0}, {GK}'); A(f'v_lshl_add_u32 {ga[3]}, {s.vTok}, 4, {s.sT0}')
        for g in gr: A(f'v_mov_b32 {g[2]}, 0'); A(f'v_mov_b32 {g[3]}, 0')
        for c_ in csg:
            for e in range(4): A(f'v_mov_b32 {c_[e]}, 0')
        def h_get():
            s.lds_wait(36, 1)
            A('s_mov_b64 exec, 0xffff')
            for tt in range(5): A(f'ds_read_b64 {csg[tt][0:2]}, {ga[1] if tt < 3 else ga[2]} offset:{128 * (tt % 3)}')
            A('s_mov_b64 exec, -1')
            def f():
                for mt in range(4): A(f'ds_read_b64 {gr[mt][0:2]}, {ga[0]} offset:{128 * mt}')
                s.gr_common(t)
            s.defer(f)
        def h_k():
            for mt in range(4): A(f'ds_read_b128 {gr[mt]}, {ga[3]} offset:{256 * mt}')
        if 'st1' in s.dbg: s.stbase = 17
        s.flat(mf, rd, s.o['lag16'], 1, hooks={at[(7, 0)] + 10: h_get, at['corr']: s.flush3, at[(9, 0)]: h_k}, per=40, n3=2)
        s.stbase = None
        s.stamp(2)
        for f in fa + fb: V.put(*f.regs)
        V.put(*csg, *ga)
        K = gr; T = [V.get(2) for _ in range(4)]; eps = V.get(2)
        def tile(kind, tt, u):
            prs = [(2 * u + m, h) for m in range(2) for h in range(2)]
            y = [acc[mt][tt].sub(2 * h, 2) for mt, h in prs]; k_ = [K[mt] for mt, h in prs]
            if kind == 'gelu':
                for k in range(4): A(f'v_pk_mul_f32 {T[k]}, {y[k]}, {y[k]}')
                for k in range(4): A(f'v_pk_fma_f32 {T[k]}, {T[k]}, {k_[k][0:2]}, {k_[k][0:2]} op_sel:[0,1,0] op_sel_hi:[1,1,0]')
                for k in range(4): A(f'v_pk_mul_f32 {T[k]}, {T[k]}, {y[k]}')
                for k in range(4): A(f'v_exp_f32 {T[k][0]}, {T[k][0]}'); A(f'v_exp_f32 {T[k][1]}, {T[k][1]}')
                for k in range(4): A(f'v_pk_fma_f32 {T[k]}, {T[k]}, {k_[k][2:4]}, {k_[k][2:4]} op_sel_hi:[1,0,0]')
                for k in range(4): A(f'v_rcp_f32 {T[k][0]}, {T[k][0]}'); A(f'v_rcp_f32 {T[k][1]}, {T[k][1]}')
                for k in range(4): A(f'v_pk_mul_f32 {y[k]}, {y[k]}, {T[k]}')
            else:
                for k in range(4): A(f'v_pk_mul_f32 {T[k]}, {y[k]}, {k_[k][0:2]} op_sel_hi:[1,0]')
                for k in range(4): A(f'v_pk_fma_f32 {y[k]}, {y[k]}, {k_[k][2:4]}, {eps} op_sel:[0,1,0] op_sel_hi:[1,1,0]')
                for k in range(4): A(f'v_exp_f32_e64 {T[k][0]}, {T[k][0]} clamp'); A(f'v_exp_f32_e64 {T[k][1]}, {T[k][1]} clamp')
                for k in range(4): A(f'v_max_f32 {y[k][0]}, {eps[0]}, {y[k][0]}'); A(f'v_max_f32 {y[k][1]}, {eps[0]}, {y[k][1]}')
                for k in range(4): A(f'v_pk_add_f32 {y[k]}, {y[k]}, {T[k]}')
            p = acc[2 * u][tt]
            for k in range(4): A(f'v_cvt_pk_bf16_f32 {p[k]}, {y[k][0]}, {y[k][1]}')
            A(f'v_permlane16_swap_b32 {p[0]}, {p[2]}'); A(f'v_permlane16_swap_b32 {p[1]}, {p[3]}')
            return f'buffer_store_dwordx4 {p}, {vo}, {sWS}, {so[tt // 3][u]} offen offset:{512 * (tt % 3)} sc1'
        for tt in G1:
            for u in range(2): last1 = A(tile('gelu', tt, u))
        s.stamp(3)
        for f in late: f()
        A(f'v_mov_b32 {eps[0]}, {hexf(1e-6)}')
        for mt in range(4): A(f'v_mul_f32 {K[mt][0]}, {hexf(LOG2E)}, {K[mt][3]}')
        hold = []
        for i, (tt, u) in enumerate([(tt, u) for tt in G2 for u in range(2)]):
            hold.append(tile('phi', tt, u))
            if i == s.o['f1i']: s.setflag(last1, s.sFlag); A(f's_add_u32 {s.sFlag}, {s.sFlag}, {FQ - F1}'); s.stamp(4)
        for x in hold: A(x)
        s.stamp(5)
        s.end_variant()

    def common(s):
        A = s.A; V = s.V; S = s.S; AG = s.AG; o = s.o
        A('L_join:'); A.ctl('join'); s.q3 = []; s.known = 10; s.nrel = 11
        b2, b3, b4a, b4b = s.b2, s.b3, s.b4a, s.b4b
        for p in b3[:4]: p.minrel = 11
        s.pxt.minrel = 10
        if s.stop <= 1:
            s.setflag('prejoin', s.sFlag); return
        NF = o['NF']; XA = [AG.get(4) for _ in range(20)]
        WF = [V.get(4) for _ in range(NF)]
        t = V.get(); u = V.get()
        def rd2(n):
            p = b2[n // 25]; c = p.addr + (n % 25) * 1024
            s.full(p if p is not b2[1] else b2[3])
            A(f'ds_read_b128 {WF[n % NF]}, {s.vL1 if c >> 16 else s.vL16} offset:{c & 0xffff}')
            if n == o['r2a']: s.release([b2[0], b2[1], s.pxt])
            if n == o['r2b']: s.release([b2[2]])
            if n == 99: s.release([b2[3]])
        acc = [V.get(4) for _ in range(5)]; resid = [V.get(4) for _ in range(5)]; gr = s.gr2
        A(f'v_mul_u32_u24 {t}, 160, {s.vTok}'); A(f'v_lshrrev_b32 {u}, 4, {s.vLane}'); A(f'v_lshl_add_u32 {t}, {u}, 3, {t}')
        A(f's_mul_i32 {s.sT0}, {s.sW}, 2560'); A(f's_add_u32 {s.sT0}, {s.sT0}, {XT}'); A(f'v_add_u32 {t}, {s.sT0}, {t}')
        sH = [S.get(), S.get()]
        A(f's_mov_b32 {sH[0]}, {HS}'); A(f's_mov_b32 {sH[1]}, {HS + 4096}')
        def lda2(i): A(f'buffer_load_dwordx4 {XA[i]}, {s.vA2[i // 5]}, {sWS}, {sH[i % 5 // 4]} offen offset:{1024 * (i % 5 % 4)} sc1')
        if o['fke'] == 2:
            f1txt = s.polltxt(s.pF, s.paF1, 0)
            A(f's_mov_b64 exec, {s.sM1}'); A(f1txt); A('s_mov_b64 exec, -1')
            s.setflag('prejoin', s.sFlag)
            A(f's_mov_b64 exec, {s.sM1}'); s.checked([f1txt], [s.pF]); A('s_mov_b64 exec, -1')
            s.stamp(6)
            for i in range(o['LA2']): lda2(i)
        if o['fke'] == 3:
            s.setflag('prejoin', s.sFlag)
            s.lds_wait(12, 2, sl=1)
            s.stamp(6)
            for i in range(o['LA2']): lda2(i)
        if o['fke'] == 1: s.setflag('prejoin', s.sFlag)
        s.full(s.pxt)
        for nt in range(5): A(f'ds_read_b64 {acc[nt][2:4]}, {t} offset:{32 * nt}')
        vSt = [V.get() for _ in range(3)]; va, va2, vs = vSt; sF2 = S.get()
        def xn():
            A(f's_mul_i32 {s.sT0}, {s.sTw}, 40960'); A(f's_mul_i32 {s.sT1}, {s.sJ2}, 5120'); A(f's_add_u32 {s.sT0}, {s.sT0}, {s.sT1}')
            A(f's_and_b32 {s.sT1}, {s.sW}, 1'); A(f's_lshl_b32 {s.sT1}, {s.sT1}, 8'); A(f's_add_u32 {s.sT0}, {s.sT0}, {s.sT1}'); A(f's_add_u32 {s.sT0}, {s.sT0}, {X1}')
            A(f'v_lshl_add_u32 {va}, {s.vTok}, 4, {s.sT0}'); A(f'v_and_b32 {u}, 32, {s.vLane}'); A(f'v_lshl_add_u32 {va}, {u}, 4, {va}')
            A(f'v_and_b32 {u}, 16, {s.vLane}'); A(f'v_lshl_add_u32 {va2}, {u}, 26, {va}'); A(f'v_add_u32 {va2}, 4096, {va2}'); A(f'v_lshl_add_u32 {va}, {u}, 6, {va}')
            A(f's_lshl3_add_u32 {s.sT0}, {s.sTw}, {s.sJ2}'); A(f's_lshl_b32 {s.sT0}, {s.sT0}, 9'); A(f's_add_u32 {s.sT0}, {s.sT0}, {s.sT1}'); A(f's_add_u32 {s.sT0}, {s.sT0}, {S2}')
            A(f'v_lshl_add_u32 {vs}, {s.vTok}, 4, {s.sT0}'); A(f'v_and_b32 {u}, 48, {s.vLane}'); A(f'v_lshl_add_u32 {vs}, {u}, 25, {vs}')
            for nt in range(5):
                for h in range(2):
                    x = resid[nt].sub(2 * h, 2); y = acc[nt].sub(2 * h, 2); src = acc[nt][2 + h]
                    A(f'v_lshlrev_b32 {x[0]}, 16, {src}'); A(f'v_and_b32 {x[1]}, 0xffff0000, {src}')
                    A(f'v_pk_fma_f32 {y}, {x}, {gr[0:2]}, {gr[0:2]} op_sel:[0,0,1] op_sel_hi:[1,0,1] neg_lo:[0,0,1] neg_hi:[0,0,1]')
                    A(f'v_cvt_pk_bf16_f32 {y[1]}, {y[0]}, {y[1]}')
                    A(f'v_lshlrev_b32 {y[0]}, 16, {y[1]}'); A(f'v_and_b32 {y[1]}, 0xffff0000, {y[1]}')
        s.defer(xn)
        for n in range(NF):
            rd2(n)
            for k in range(3):
                if s.q3: s.q3.pop(0)()
        s.flush3()
        A(f's_and_b32 {s.sT1}, {s.sW}, 1'); A(f's_lshl3_add_u32 {s.sT1}, {s.sT1}, {s.sJ2}'); A(f's_lshl_b32 {s.sT0}, {s.sTw}, 7'); A(f's_lshl2_add_u32 {s.sT0}, {s.sT1}, {s.sT0}'); A(f's_add_u32 {sF2}, {s.sT0}, {F2}')
        if o['fke'] < 2:
            s.stamp(6)
            if not o['fke']: s.setflag('prejoin', s.sFlag)
            s.poll2(s.paF1, 0, mask=s.sM1)
            for i in range(o['LA2']): lda2(i)
        s.stamp(7)
        nr = NF; nl = o['LA2']
        for n in range(100):
            u_, nt = divmod(n, 5)
            A(f'v_mfma_f32_16x16x32_bf16 {acc[nt]}, {WF[n % NF]}, {XA[u_]}, {acc[nt]}')
            if nr < 100: rd2(nr); nr += 1
            if nt % 3 == 1 and nl < 20: lda2(nl); nl += 1
        s.stamp(8)
        V.put(*WF, *s.vA2, s.paF1); AG.put(*XA); S.put(*sH)
        pk = [V.get(4) for _ in range(3)]; sm4 = V.get(4); sm = sm4[0:2]; T = V.get(2); one = V.get()
        A(f'v_mov_b32 {pk[2][2]}, 0'); A(f'v_mov_b32 {pk[2][3]}, 0'); A(f'v_mov_b32 {sm[0]}, 0'); A(f'v_mov_b32 {sm[1]}, 0'); A(f'v_mov_b32 {one}, 0x3f803f80')
        for nt in range(5):
            for h in range(2): A(f'v_cvt_pk_bf16_f32 {pk[nt // 2][2 * (nt & 1) + h]}, {acc[nt][2*h]}, {acc[nt][2*h+1]}')
        for k in range(3):
            A(f'v_permlane16_swap_b32 {pk[k][0]}, {pk[k][2]}'); A(f'v_permlane16_swap_b32 {pk[k][1]}, {pk[k][3]}')
            last = A(f'buffer_store_dwordx4 {pk[k]}, {va if k < 2 else va2}, {sWS}, 0 offen offset:{2048 * (k & 1)} sc1')
        for k in range(3):
            for i in range(4): A(f'v_dot2c_f32_bf16 {sm[0]}, {pk[k][i]}, {one}'); A(f'v_dot2c_f32_bf16 {sm[1]}, {pk[k][i]}, {pk[k][i]}')
        for swp in ('16', '32'):
            A(f'v_mov_b32 {T[0]}, {sm[0]}'); A(f'v_mov_b32 {T[1]}, {sm[1]}')
            A(f'v_permlane{swp}_swap_b32 {sm[0]}, {T[0]}'); A(f'v_permlane{swp}_swap_b32 {sm[1]}, {T[1]}')
            A(f'v_pk_add_f32 {sm}, {sm}, {T}')
        A(f'v_mov_b32 {sm4[2]}, {s.sN}'); A(f'v_mov_b32 {sm4[3]}, {s.sN}')
        A(f'buffer_store_dwordx4 {sm4}, {vs}, {sWS}, 0 offen sc1')
        if s.stop <= 3:
            s.setflag(last, sF2); return
        cg = [V.get(4) for _ in range(3)]
        A(f'v_cmp_gt_u32 vcc, 32, {s.vLane}')
        for J in range(3):
            A(f'v_mov_b32 {cg[J][2]}, 0'); A(f'v_mov_b32 {cg[J][3]}, 0')
            for e in range(2): A(f'v_cndmask_b32 {cg[J][e]}, 0, {s.cg3[J][e]}, vcc')
        V.put(*s.cg3)
        for nt in range(5):
            for h in range(2): A(f'v_pk_add_f32 {resid[nt].sub(2*h, 2)}, {resid[nt].sub(2*h, 2)}, {acc[nt].sub(2*h, 2)}')
        vst = V.get(); vo = V.get(); vA3 = V.get(); so = S.get(); sA3 = S.get()
        A(f'v_and_b32 {t}, 31, {s.vLane}'); s.f16_voff(vo, t, 48)
        A(f's_lshl_b32 {s.sT0}, {s.sTw3}, 12'); A(f's_add_u32 {s.sT0}, {s.sT0}, {S2}')
        A(f'v_lshl_add_u32 {t}, {t}, 4, {s.sT0}'); A(f'v_and_b32 {u}, 32, {s.vLane}'); A(f'v_lshl_add_u32 {vst}, {u}, 6, {t}')
        A(f's_mul_i32 {so}, {s.sTw3}, {2 * 48 * 1024}'); A(f's_mul_i32 {s.sT0}, {s.sCb3}, 3072'); A(f's_add_u32 {so}, {so}, {s.sT0}'); A(f's_add_u32 {so}, {so}, {H3}')
        A(f's_mul_i32 {s.sT0}, {s.sTw3}, 40960'); A(f'v_add_u32 {vA3}, {s.sT0}, {s.vL16}')
        s.rot2(s.sT0); A(f's_mul_i32 {sA3}, {s.sT0}, 4096'); A(f's_add_u32 {sA3}, {sA3}, {X1}')
        s.setflag(last, sF2)
        s.stamp(9)
        V.put(*acc, *pk, sm4, T, *vSt, s.gr2, one, *s.hold); s.hold = []; S.put(sF2)
        s.stamp(10)
        LA3 = o['LA3']; NX = LA3 + 1; NB = 20 - NX
        XF = [AG.get(4) for _ in range(NX)]; WB = [AG.get(4) for _ in range(NB)]; st2 = [V.get(4) for _ in range(4)]
        def ldx3(i):
            if i >= 40: return
            A(f'buffer_load_dwordx4 {XF[i % NX]}, {vA3}, {sWS}, {sA3} offen offset:{1024 * (i % 4)} sc1')
            if i % 4 == 3: s.wrapadd(sA3, 4096, X1 + 40960, X1)
        def start3():
            A(f's_lshl_b32 {s.sT1}, {s.sTw3}, 7'); A(f's_add_u32 {s.sT1}, {s.sT1}, {F2}')
            s.poll2(s.vTok4, s.sT1)
            s.fixat(2)
            s.stamp(11)
            for i in range(LA3): ldx3(i)
        s2txt = [f'buffer_load_dwordx4 {st2[k]}, {vst}, {sWS}, 0 offen offset:{512 * k} sc1' for k in range(4)]
        def lds2():
            for x in s2txt: A(x)
        sA4 = S.get(); vA4 = [[V.get() for _ in range(2)] for _ in range(2)];
        acc = [V.get(16) for _ in range(3)]; xq = V.get(4); k0 = V.get(2); k1 = V.get(2); ia = V.get(2)
        rL4 = [V.get() for _ in range(3)]; H = {}
        def su():
            A(f's_and_b32 {s.sT1}, {s.sW}, 1'); A(f's_mul_i32 {s.sT2}, {s.sT1}, 10240'); A(f'v_add_u32 {rL4[0]}, {s.sT2}, {s.vL16}')
            H['fl'] = s.dsaddr(rL4[0], regs=rL4[1:])
            A(f's_lshl_b32 {s.sT1}, {s.sT1}, 11')
            for k, nkb in enumerate((20, 48)):
                for m in range(2):
                    A(f's_xor_b32 {s.sT2}, {s.sTT}, {m}'); A(f's_mul_i32 {s.sT2}, {s.sT2}, {nkb * 1024}'); A(f's_add_u32 {s.sT2}, {s.sT2}, {s.sT1}'); A(f'v_add_u32 {vA4[k][m]}, {s.sT2}, {s.vL16}')
            s.rot4(s.sT1); A(f's_lshl_b32 {sA4}, {s.sT1}, 12'); A(f's_add_u32 {sA4}, {sA4}, {PP}')
            A(f's_lshl_b32 {s.sT2}, {s.sTw3}, 7'); A(f's_lshl2_add_u32 {s.sT2}, {s.sCb3}, {s.sT2}'); A(f's_add_u32 {s.sFlag}, {s.sT2}, {F3}'); A('v_nop')
        def ln():
            a = st2[0]
            for k in range(1, 4):
                for e in range(2): A(f'v_add_f32 {a[e]}, {a[e]}, {st2[k][e]}')
            for e in range(2): A(f'v_mov_b32 {a[e+2]}, {a[e]}')
            for e in range(2): A(f'v_permlane32_swap_b32 {a[e]}, {a[e+2]}')
            for e in range(2): A(f'v_add_f32 {a[e]}, {a[e]}, {a[e+2]}')
            for e in range(2): A(f'v_mul_f32 {a[e]}, {hexf(1.0/640)}, {a[e]}')
            A(f'v_fma_f32 {a[1]}, -{a[0]}, {a[0]}, {a[1]}'); A(f'v_max_f32 {a[1]}, 0, {a[1]}')
            s.rstd(ia[0], a[1]); A(f'v_rcp_f32 {a[2]}, {ia[0]}')
            s.split_x(xq, a[0]); s.gelu_k(k0, k1, a[2])
        NA = 10
        order = [XF[(40 + i) % NX] for i in range(NX)] + WB
        XA = [[order[2 * n], order[2 * n + 1]] for n in range(NA)]
        def lda4(n, k):
            lim, base, span = ((10, PP, 20480), (24, H3, 49152))[k]
            if n >= lim: return []
            ops = [(lambda m=m: A(f'buffer_load_dwordx4 {XA[n % NA][m]}, {vA4[k][m]}, {sWS}, {sA4} offen offset:{1024 * (n % 2)} sc1')) for m in range(2)]
            if n % 2 == 1: ops.append(lambda: s.wrapadd(sA4, 4096, base + span, base))
            return ops
        A4e = LA3 // 2
        mf = []; rd = {}
        for n in range(40):
            st, ks = divmod(n, 4); p = b3[st]
            for J in range(3):
                w = WB[(n * 3 + J) % NB]
                rd[('w', n, J)] = (w, p, [(lambda ks=ks, J=J, t2=t2, w=w, p=p: A(f'ds_read_b64_tr_b16 {w.sub(2*t2, 2)}, {s.fw3[J](p.addr + (16 * ks + 4 * t2) * 192)}')) for t2 in range(2)])
                def m(J=J, n=n, w=w):
                    A(f'v_mfma_f32_32x32x16_bf16 {acc[J]}, {w}, {XF[n % NX]}, {"0" if n == 0 else acc[J]}')
                    if J == 0:
                        ldx3(n + LA3)
                        i = n + LA3 - 40
                        if 0 <= i < 2 * A4e and s.stop > 4:
                            ops = lda4(i // 2, 0)
                            for f in (ops[:1] if i % 2 == 0 else ops[1:]): f()
                mf.append((m, [('w', n, J)]))
            if n == 36: ic = len(mf); mf += [(lambda J=J: A(f'v_mfma_f32_32x32x16_bf16 {acc[J]}, {cg[J]}, {xq}, {acc[J]}'), []) for J in range(3)]
        g3 = {b3[0]: b3[3], b3[4]: b3[6], b3[7]: b3[9]}
        if 'st3' in s.dbg: s.stbase = 17
        su()
        def chk_s2(): s.checked(s2txt, [x[2] for x in st2], sl=4); s.defer(ln)
        def chk_p():
            if s.stop > 4: s.lds_wait(36, 2)
        fp = 3 * (40 - LA3)
        s.flat(mf, rd, o['lag32'], 3, group=lambda p: g3.get(p, p), relmap={b3[1]: b3[0:2], b3[3]: b3[2:4], b3[5]: b3[4:6], b3[7]: b3[6:8], b3[8]: [b3[8]], b3[9]: [b3[9]]},
               after_first=start3, hooks={24: lambda: s.defer(lds2), 66: chk_s2, fp: chk_p, ic: s.flush3}, n3=4, per=12)
        s.stbase = None
        s.stamp(12)
        V.put(*s.rW3, vA3, vst, *st2, *cg, xq, *s.hold); S.put(sA3); s.hold = []
        last = s.epi32('gelu', acc, k0, k1, [ia] * 3, [(vo, so, 1024 * J) for J in range(3)])
        s.stamp(13)
        sF3 = s.sFlag
        V.put(*acc, k0, k1, ia)
        if s.stop <= 4:
            s.setflag(last, sF3); return
        fl = H['fl']
        acc = [resid, [V.get(4) for _ in range(5)]]
        WB = [[V.get(4) for _ in range(5)] for _ in range(3)]
        va = V.get(); va2 = V.get(); vr = [V.get(), V.get()]
        RED = 40 * KB
        def gemm4(k, panels, LA, hooks, group, relmap, af=None):
            mf = []; rd = {}; coarse = {}; N = 2 * len(panels)
            def mk(n, nt, m):
                W = WB[n % 3]; X = XA[n % NA]
                def f():
                    A(f'v_mfma_f32_16x16x32_bf16 {acc[m][nt]}, {W[nt]}, {X[m]}, {"0" if k == 0 and n == 0 and m == 1 else acc[m][nt]}')
                    if LA and m == 0 and nt % 2 == 0:
                        ops = lda4(n + LA, k)
                        if nt // 2 < len(ops): ops[nt // 2]()
                    if k == 1 and m == 0 and n >= N - 2:
                        i = 5 * (n - N + 2) + nt
                        if i % 2 == 1: A(f'ds_write_b128 {vr[0]}, {acc[1][i // 2]} offset:{1024 * (i // 2)}')
                return (f, [(n, nt)])
            for n in range(N):
                p = panels[n // 2]; h = n % 2; W = WB[n % 3]
                for nt in range(5): rd[(n, nt)] = (W[nt], p, [lambda nt=nt, W=W, p=p, h=h: A(f'ds_read_b128 {W[nt]}, {fl(p.addr + (5 * h + nt) * 1024)}')])
                if k == 1 and n >= N - 2: continue
                coarse[len(mf)] = W + XA[n % NA]
                mf += [mk(n, nt, m) for nt in range(5) for m in range(2)]
            if k == 1: mf += [mk(n, nt, m) for m in (1, 0) for n in (N - 2, N - 1) for nt in range(5)]
            s.flat(mf, rd, 19, 1, group=group, relmap=relmap, hooks=hooks, coarse=coarse, per=20, after_first=af)
        def flag3(): s.setflag(last, sF3); s.slowpre = None; s.stamp(28)
        def addr4():
            A(f's_mul_i32 {s.sT0}, {s.sW}, 5120'); A(f's_add_u32 {s.sT0}, {s.sT0}, {RED}'); A(f'v_add_u32 {vr[0]}, {s.sT0}, {s.vL16}')
            A(f's_xor_b32 {s.sT0}, {s.sW}, 1'); A(f's_mul_i32 {s.sT0}, {s.sT0}, 5120'); A(f's_add_u32 {s.sT0}, {s.sT0}, {RED}'); A(f'v_add_u32 {vr[1]}, {s.sT0}, {s.vL16}')
            A(f's_mul_i32 {s.sT0}, {s.sTT}, 20480'); A(f's_add_u32 {s.sT0}, {s.sT0}, {s.sJ160}')
            A(f'v_mul_u32_u24 {va}, 1280, {s.vTok}'); A(f'v_lshrrev_b32 {t}, 1, {s.vLane}'); A(f'v_and_b32 {t}, 16, {t}'); A(f'v_add3_u32 {va}, {va}, {t}, {s.sT0}')
            A(f'v_and_b32 {t}, 16, {s.vLane}'); A(f'v_lshl_add_u32 {va2}, {t}, 26, {va}'); A(f'v_lshl_add_u32 {va}, {t}, 1, {va}')
        s.slowpre = lambda: (A('s_waitcnt vmcnt(0)'), A(s.flagtxt(sF3)))
        gemm4(0, b4a, A4e, {min(o['f3d'], 10 * A4e): flag3}, None, None)
        addr4()
        s.rot4(s.sT1); A(f's_mul_i32 {sA4}, {s.sT1}, 12288'); A(f's_add_u32 {sA4}, {sA4}, {H3}')
        s.stamp(14)
        LA4 = o['LA4']
        def start4():
            A(f's_lshl_b32 {s.sT1}, {s.sTw}, 7'); A(f's_add_u32 {s.sT1}, {s.sT1}, {F3}')
            s.poll2(s.vTok4, s.sT1)
            s.stamp(15)
            for n in range(LA4):
                for f in lda4(n, 1): f()
        if 'st4' in s.dbg: s.stbase = 17
        g4 = {b4b[2]: b4b[3], b4b[4]: b4b[6]}
        rm = {p: [p] for p in b4b[:6]}
        gemm4(1, b4b, LA4, None, lambda p: g4.get(p, p), rm, start4)
        redrel = b4b[5].rel
        s.stbase = None
        if 'st4' in s.dbg: s.stamp(29)
        b4b[11].minrel = redrel
        A('s_waitcnt lgkmcnt(0)'); A('s_barrier')
        for nt in range(5): A(f'ds_read_b128 {WB[0][nt]}, {vr[1]} offset:{1024 * nt}')
        pk = [V.get(4) for _ in range(3)]
        for nt in range(5):
            for h in range(2):
                y = acc[0][nt].sub(2 * h, 2)
                A(f'v_pk_add_f32 {y}, {y}, {WB[0][nt].sub(2*h, 2)}')
                A(f'v_cvt_pk_bf16_f32 {pk[nt // 2][2 * (nt & 1) + h]}, {y[0]}, {y[1]}')
            if nt % 2 == 1 or nt == 4:
                k = nt // 2
                A(f'v_permlane16_swap_b32 {pk[k][0]}, {pk[k][2]}'); A(f'v_permlane16_swap_b32 {pk[k][1]}, {pk[k][3]}')
                A(f'buffer_store_dwordx4 {pk[k]}, {va if k < 2 else va2}, {sOUT}, 0 offen offset:{64 * k} ' + ['', 'nt', 'sc1', 'sc0 sc1 nt'][o['ost']])
        A(f'v_or_b32 {t}, s2, v0'); A(f'v_cmp_eq_u32 vcc, 0, {t}'); A(f'v_mov_b32 {u}, {OOB}'); A(f'v_cndmask_b32 {t}, {u}, {t}, vcc')
        A(f'buffer_store_dword {s.vN}, {t}, {sWS}, 0 offen')
        s.fixat(0)

    def finish(s):
        A = s.A
        A('L_fin:')
        if s.stamps:
            t = s.vF[0]; u = s.vCtl
            A('s_waitcnt vmcnt(0) lgkmcnt(0)')
            s.stamp(16); A(f'v_writelane_b32 {s.vStamp}, {s.sEnt[0]}, 27')
            A(f's_getreg_b32 {s.sT0}, hwreg(HW_REG_HW_ID)'); A(f'v_writelane_b32 {s.vStamp}, {s.sT0}, 31')
            A(f's_lshl_b32 {s.sT0}, s2, 3'); A(f's_add_u32 {s.sT0}, {s.sT0}, {s.sW}'); A(f's_lshl_b32 {s.sT0}, {s.sT0}, 7'); A(f's_add_u32 {s.sT0}, {s.sT0}, {STAMP}')
            A(f'v_and_b32 {t}, 31, {s.vLane}'); A(f'v_lshlrev_b32 {t}, 2, {t}'); A(f'v_and_b32 {u}, 32, {s.vLane}'); A(f'v_lshl_add_u32 {t}, {u}, 25, {t}')
            A(f'buffer_store_dword {s.vStamp}, {t}, {sWS}, {s.sT0} offen')
        A('L_end:'); A('s_endpgm')

    def build(s):
        A = s.A
        s.entry(); e = s.snap(); head = A.ins; A.ins = []
        A('L_comp:'); A.ctl('restore', 'entry')
        s.cpro(); c = s.snap()
        for var in ('B', 'A', 'T1'):
            s.rest(c)
            if var == 'T1': s.t1()
            else: s.t23(var)
        s.rest(c)
        s.common()
        s.finish()
        comp = A.ins; A.ins = []
        for p in s.P:
            if p.rel is None: p.rel = 0
        s.rest(e); s.loader(1)
        s.rest(e); s.loader(0)
        s.rest(e); s.job()
        A.ins = head + A.ins + comp
        A('s_waitcnt vmcnt(0) lgkmcnt(0)')
        A.ins += s.cold
        A('s_endpgm'); A('.p2align 8'); A('L_codeend:')
        hdr = open('cdna_kernels/' + NAME + '.s.ref').read().split('; Override launch')[0]
        txt = hdr + '; @launch grid=(256,1,1) block=(512,1,1) lds=163840\n'
        txt += f'.amdgcn_target "amdgcn-amd-amdhsa--gfx950"\n.text\n.globl {NAME}_kernel\n.p2align 8\n.type {NAME}_kernel,@function\n{NAME}_kernel:\n'
        if 'nomfma' in s.dbg: A.ins = [i for i in A.ins if i.cls != 'mfma']
        if 'nob3' in s.dbg: A.ins = [i for i in A.ins if not (i.note == 'dma' and str(sW3) in i.text)]
        if 'nos2' in s.dbg: A.ins = [i for i in A.ins if not (i.op == 'buffer_store_dwordx2')]
        if 'noa' in s.dbg: A.ins = [i for i in A.ins if not (i.op == 'buffer_load_dwordx4' and i.ops[0].startswith('a['))]
        if 'notr' in s.dbg: A.ins = [i for i in A.ins if not (i.op == 'ds_read_b64_tr_b16' and i.ops[0].startswith('a[') and (int(i.ops[0][2:].split(':')[0]) & 2))]
        if 'nords' in s.dbg: A.ins = [i for i in A.ins if not (i.cls == 'ds' and i.ops[0].startswith('a['))]
        if 'nodma' in s.dbg: A.ins = [i for i in A.ins if i.note != 'dma']
        if 'nopf' in s.dbg: A.ins = [i for i in A.ins if not (i.op == 'buffer_load_dword' and i.ops[0] == i.ops[1])]
        txt += A.text()
        txt += f'''.section .rodata,"a"
.p2align 6
.amdhsa_kernel {NAME}_kernel
  .amdhsa_next_free_vgpr 256
  .amdhsa_next_free_sgpr 102
  .amdhsa_accum_offset {NV}
  .amdhsa_group_segment_fixed_size 0
  .amdhsa_kernarg_size 88
  .amdhsa_user_sgpr_count 2
  .amdhsa_user_sgpr_kernarg_segment_ptr 1
  .amdhsa_system_sgpr_workgroup_id_x 1
.end_amdhsa_kernel
'''
        return txt

if __name__ == '__main__':
    import argparse
    ap = argparse.ArgumentParser()
    ap.add_argument('-o', default='cdna_kernels/' + NAME + '.s')
    ap.add_argument('--stop', type=int, default=99)
    ap.add_argument('--stamps', action='store_true')
    ap.add_argument('--dbg', default='')
    a = ap.parse_args()
    opt = {k.split('=')[0]: int(k.split('=')[1]) for k in a.dbg.split(',') if '=' in k}
    g = G(stop=a.stop, stamps=a.stamps, dbg=a.dbg, **opt)
    txt = g.build()
    open(a.o, 'w').write(txt)
    print('written', a.o, 'vgpr top', g.V.top, 'agpr top', g.AG.top, 'sgpr top', g.S.top)
```

```python
import sys, struct, math, os
from asmgen import *

NAME = 'parallel_sum__linear_attn_block__mixer_s_mlp__prompt'
KB = 1024
F1, FQ, FK, F2, FP, FW, F3 = 0x2000, 0x4000, 0x6000, 0x7000, 0x9000, 0xA000, 0xB000
FR2, FR4 = 0xD000, 0xD800
RS, CS, S2, STAMP = 0x10000, 0x18000, 0x40000, 0x180000
HS, PQ, W2R, X1, H3, WOP = 0x200000, 0x480000, 0x700000, 0x980000, 0xC00000, 0x1200000
PP = PQ
KV, W4R = 0x1300000, 0x1580000
KVP = 8192 + 384
KVH = 16 * KVP + 128
WS_USED = 0x1780000
OOB = 0x40000000
XT = 148 * KB
KVB = 158 * KB
CTRL = KVB + 1536
RPB = 144 * KB
GW, GX, GK, G1, G2 = 152 * KB, 154 * KB, 155 * KB, 157 * KB, 157 * KB + 512
SPIN = 2000000
NV = 176

def f2u(x): return struct.unpack('<I', struct.pack('<f', x))[0]
def hexf(x): return '0x%08x' % f2u(x)
LOG2E = 1.4426950408889634
GC0 = -2.0 * LOG2E * math.sqrt(2.0 / math.pi)
GC1 = GC0 * 0.044715

sX, sWQKV, sWO, sW1, sW2, sW3, sW4, sOUT, sWS, sD0, sD1 = [R('s', 4 + 4 * i, 4) for i in range(11)]

class Panel:
    def __init__(s, name, addr, size, seq): s.name, s.addr, s.size, s.seq = name, addr, size, seq; s.rel = None; s.minrel = 0
def ovl(p, q): return q.addr < p.addr + p.size and p.addr < q.addr + q.size

class G:
    def __init__(s, stop=99, stamps=False, dbg='', **opt):
        s.A = Asm(); s.stop = stop; s.stamps = stamps; s.dbg = dbg; s.stbase = None
        s.V = Pool('v', 1, NV); s.AG = Pool('a', 0, 256 - NV); s.S = Pool('s', 48, 88)
        s.cold = []; s.nlab = 0; s.q3 = []; s.hold = []; s.slowpre = None
        s.o = dict(NF=24, LA2=8, LA3=10, LA4=5, lag16=12, lag32=6, nph=2, W1x=16, W1w=20, W1v=20, W1=14, W2=7, W3=10, W4=12, W5=16, jd=8, jd2=0, frs=9, gd=4, iss=0, stg=0, rj=0, m4=1, f1i=1, csl=0, Wa=10, ost=0, pp=0, f3d=24, fke=3, rt1=0, hp3=1, j1p=0, f1p=10, f1w=16, f1s=0, jw=0, ke=0, cr=1, sg3=0, sg3a=2, Ws=7, sgr=14, wm=0, Ww=1, r2a=49, r2b=74, tlb=0, fix=0, fixp=0, jprio=2, wsl=4, lprio=3, ntr=1, A4e=4, jp=11, jsl=4, psl=0, pt=2, pm=1, pd2=0, nt0=0, nt1=0, nt2=0, prio=0, slp=1); s.o.update(opt)
        P = []
        def add(n, a, sz): p = Panel(n, a, sz, len(P) + 1); P.append(p); return p
        s.st = [add(f's{i}', ((i + 2) % 4) * 36 * KB, 36 * KB) for i in range(10)]
        s.b2 = [add(f'b2_{i}', 25 * KB * i, 25 * KB) for i in range(4)]
        s.pxt = add('xt', XT, 10 * KB)
        s.b3 = [add(f'b3_{i}', (100 + 12 * i) * KB, 12 * KB) for i in range(4)]
        s.b3 += [add(f'b3_{i}', 12 * (i - 4) * KB, 12 * KB) for i in range(4, 10)]
        sl = [4, 5, 6, 0, 1, 2, 3, 4, 5, 6, 0, 1]
        s.b4b = [add(f'b4b_{i}', 20 * KB * sl[i], 20 * KB) for i in range(2)]
        s.b4a = [add(f'b4a_{i}', 20 * KB * [6, 0, 1, 2, 3][i], 20 * KB) for i in range(5)]
        s.b4b += [add(f'b4b_{i}', 20 * KB * sl[i], 20 * KB) for i in range(2, 12)]
        s.P = P
        s.known = 0; s.nrel = 0

    def lab(s, p='L'): s.nlab += 1; return f'{p}{s.nlab}'
    def stamp(s, n):
        if s.stamps: s.A(f's_mem{"" if "cyc" in s.dbg else "real"}time {s.sStamp}'); s.A(f'v_writelane_b32 {s.vStamp}, {s.sStamp[0]}, {n}')
    def flush3(s):
        while s.q3: s.q3.pop(0)()
    def defer(s, fn):
        A = s.A; main = A.ins; A.ins = []; clk = (A.clk, A.mf_free, A.lds_free)
        fn(); cap = A.ins; A.ins = main; A.clk, A.mf_free, A.lds_free = clk
        grp = []
        for i in cap:
            grp.append(i)
            if i.cls != 'salu': s.q3.append(lambda g=grp: s.replay(g)); grp = []
        if grp: s.q3.append(lambda g=grp: s.replay(g))
    def replay(s, g):
        for i in g: s.A.ins.append(i); s.A.tick(i)
    def outline(s, fn):
        A = s.A; main = A.ins; A.ins = []; clk = (A.clk, A.mf_free, A.lds_free)
        fn(); s.cold += A.ins; A.ins = main; A.clk, A.mf_free, A.lds_free = clk
    def tick_spin(s, out, sl=0):
        if sl: s.A(f's_sleep {sl}')
        s.A(f's_sub_u32 {s.sSp}, {s.sSp}, 1'); s.A(f's_cmp_lt_i32 {s.sSp}, 0'); s.A(f's_cbranch_scc1 {out}')
    def lds_wait(s, off, val, pre=True, sl=0, slowpre=None):
        A = s.A; Lr = s.lab('W'); Lb = s.lab('B')
        rdt = f'ds_read_b64 {s.vF}, {s.vCtl} offset:{off}' if off in (0, 40, 64) else f'ds_read_b32 {s.vF[0]}, {s.vCtl} offset:{off}'
        L0 = s.lab('W') if slowpre else Lr
        def cmp(L=Lr):
            if off in (0, 40, 64): A(f'v_min_u32 {s.vF[0]}, {s.vF[0]}, {s.vF[1]}')
            A(f'v_cmp_gt_u32 vcc, {val}, {s.vF[0]}'); A(f's_cbranch_vccnz {L}')
        if pre: A(rdt)
        cmp(L0); A(f'{Lb}:')
        def slow():
            if slowpre: A(f'{L0}:'); slowpre()
            A(f'{Lr}:'); A(rdt); s.tick_spin(Lb, sl); A('s_waitcnt lgkmcnt(0)'); cmp(); A(f's_branch {Lb}')
        s.outline(slow)
    def full(s, p, pre=True):
        if p.seq > s.known: s.lds_wait(0, p.seq, pre, sl=s.o['csl'], slowpre=s.slowpre); s.known = p.seq
    def release(s, ps):
        s.nrel += 1
        for p in ps:
            assert p.rel is None or p.rel == s.nrel, p.name
            p.rel = s.nrel
        s.A(f'v_mov_b32 {s.vP}, {s.nrel}'); s.A(f'ds_write_b32 {s.vPa}, {s.vP}')
    def dsaddr(s, base, wins=(0, 1, 2), regs=None):
        rr = {0: base}; k = 0
        for wv in wins:
            if wv:
                r = regs[k] if regs else s.V.get(); k += 1
                s.A(f'v_add_u32 {r}, {wv * 65536}, {base}'); rr[wv] = r
        def at(c): return f'{rr[c >> 16]} offset:{c & 0xffff}'
        at.regs = list(rr.values())
        return at
    def wrapadd(s, r, step, lim, base):
        s.A(f's_add_u32 {r}, {r}, {step}'); s.A(f's_cmp_ge_u32 {r}, {lim}'); s.A(f's_cmov_b32 {r}, {base}')
    def tagcmp(s, tags):
        A = s.A
        if len(tags) == 1: A(f'v_cmp_ne_u32 vcc, {s.sN}, {tags[0]}'); return
        t = s.V.get()
        A(f'v_xor_b32 {t}, {s.sN}, {tags[0]}')
        for x in tags[1:]: A(f'v_bitop3_b32 {t}, {t}, {s.vN}, {x} bitop3:0xf6')
        A(f'v_cmp_ne_u32 vcc, 0, {t}'); s.V.put(t)
    def poll(s, loads, tags, sl=0, mask=None, d0=0):
        A = s.A; L = s.lab('P'); D = s.lab('PD'); L0 = s.lab('P')
        if mask == '0xffffffff': A('s_mov_b32 exec_hi, 0')
        elif mask: A(f's_mov_b64 exec, {mask}')
        if d0: A(f's_sleep {d0}')
        if sl: A(f's_branch {L0}')
        A(f'{L}:')
        if sl: A(f's_sleep {sl}'); A(f'{L0}:')
        for ld in loads: A(ld)
        s.tick_spin(D); s.tagcmp(tags); A(f's_cbranch_vccnz {L}')
        A(f'{D}:'); A('s_waitcnt vmcnt(0)')
        if mask: A('s_mov_b64 exec, -1')
    def spoll(s, items, sl=0, d0=0):
        A = s.A; S = s.S; L = s.lab('P'); D = s.lab('PD'); L0 = s.lab('P'); r = [S.get(2) for _ in items]
        if d0: A(f's_sleep {d0}')
        if sl: A(f's_branch {L0}')
        A(f'{L}:')
        if sl: A(f's_sleep {sl}'); A(f'{L0}:')
        for x, (off, m) in zip(r, items): A(f's_mov_b64 {x}, 0'); A(f's_atomic_add_x2 {x}, {sWS[0:2]}, {off} glc')
        s.tick_spin(D)
        A('s_waitcnt lgkmcnt(0)')
        for x, (off, m) in zip(r, items):
            A(f's_cmp_lg_u32 {x[0]}, {m}'); A(f's_cbranch_scc1 {L}'); A(f's_cmp_lg_u32 {x[1]}, {s.sN}'); A(f's_cbranch_scc1 {L}')
        A(f'{D}:'); A('s_waitcnt lgkmcnt(0)')
        S.put(*r)
    def mkbit(s, idx): s.A(f's_lshl_b32 {s.sT3}, 1, {idx}'); s.A(f'v_mov_b32 {s.vBit}, {s.sT3}')
    def checked(s, loads, tags, pre=None, sl=0):
        A = s.A; Lr = s.lab('R'); Lb = s.lab('B'); L2 = s.lab('R')
        s.tagcmp(tags); A(f's_cbranch_vccnz {Lr}'); A(f'{Lb}:')
        def slow():
            A(f'{Lr}:')
            if callable(pre): pre()
            A('s_waitcnt vmcnt(0) lgkmcnt(0)')
            if pre and not callable(pre): A(pre)
            A(f'{L2}:')
            if sl: A(f's_sleep {sl}')
            for ld in loads: A(ld)
            A('s_waitcnt vmcnt(0)'); s.tick_spin(Lb); s.tagcmp(tags); A(f's_cbranch_vccnz {L2}'); A('s_nop 4'); A(f's_branch {Lb}')
        s.outline(slow)
    def flagtxt(s, soff, va=None): return f'buffer_atomic_or {s.vBit}, {va or s.vL0}, {sWS}, {soff} offen sc1'
    def swaptxt(s, soff): return f'buffer_atomic_swap {s.vN}, {s.vL0}, {sWS}, {soff} offen sc1'
    def polltxt(s, d, va, soff): return f'v_mov_b32 {d}, 0\nbuffer_atomic_add {d}, {va}, {sWS}, {soff} offen sc0 sc1'
    def setflag(s, last_store, soff):
        if last_store == 'prejoin': s.A.wait_prejoin()
        else: s.A.waitvm(last_store)
        s.A(s.flagtxt(soff))
    def nonce(s):
        A = s.A
        A(f's_mul_i32 {s.sN}, {s.sN}, 1664525'); A(f's_add_u32 {s.sN}, {s.sN}, 1013904223'); A(f'v_mov_b32 {s.vN}, {s.sN}')
    def srd(s, *lst):
        sz = {str(sX): 2621440, str(sWQKV): 2457600, str(sW1): 819200, str(sW3): 1966080, str(sWS): WS_USED, str(sW2): 819200, str(sWO): 819200, str(sW4): 1966080, str(sOUT): 2621440}
        for r in lst: s.A(f's_mov_b32 {r[2]}, {sz[str(r)]}'); s.A(f's_mov_b32 {r[3]}, 0x20000')
    def base(s, *lst):
        src = {str(sX): 88, str(sWQKV): 90, str(sW1): 92, str(sW2): 94, str(sW3): 96, str(sW4): 98}
        for r in lst: s.A(f's_mov_b64 {r[0:2]}, s[{src[str(r)]}:{src[str(r)] + 1}]')
    def bar0(s):
        if s.o['ke']: s.A('s_waitcnt lgkmcnt(0)'); s.A('s_barrier')
    def rbf(s, d, x):
        s.A(f'v_cvt_pk_bf16_f32 {d}, {x}, {x}'); s.A(f'v_and_b32 {d}, 0xffff0000, {d}')
    def rstd(s, d, var):
        A = s.A
        s.rbf(d, var); A(f'v_add_f32 {d}, {hexf(1e-5)}, {d}'); s.rbf(d, d); A(f'v_sqrt_f32 {d}, {d}'); s.rbf(d, d)
    def split_w(s, q, v):
        A = s.A
        A(f'v_cvt_pk_bf16_f32 {q[1]}, {v}, {v}'); A(f'v_and_b32 {q[2]}, 0xffff0000, {q[1]}'); A(f'v_sub_f32 {q[3]}, {v}, {q[2]}')
        A(f'v_cvt_pk_bf16_f32 {q[0]}, {q[2]}, {q[3]}'); A(f'v_and_b32 {q[1]}, 0xffff, {q[1]}'); A(f'v_mov_b32 {q[2]}, 0'); A(f'v_mov_b32 {q[3]}, 0')
    def split_x(s, q, m):
        A = s.A
        A(f'v_cvt_pk_bf16_f32 {q[0]}, -{m}, -{m}'); A(f'v_and_b32 {q[2]}, 0xffff0000, {q[0]}'); A(f'v_sub_f32 {q[2]}, -{m}, {q[2]}')
        A(f'v_cvt_pk_bf16_f32 {q[1]}, {q[2]}, 0'); A(f'v_mov_b32 {q[2]}, 0'); A(f'v_mov_b32 {q[3]}, 0')
    def mk_nt_read(s, NT, regs=None, wins=(0, 1, 2), add=0):
        A = s.A; b = regs[0] if regs else s.V.get(); t = s.V.get(); rs = 64 * NT
        A(f'v_lshrrev_b32 {b}, 5, {s.vLane}'); A(f'v_lshlrev_b32 {b}, 3, {b}')
        A(f'v_bfe_u32 {t}, {s.vLane}, 2, 2'); A(f'v_add_u32 {b}, {b}, {t}'); A(f'v_mul_u32_u24 {b}, {rs}, {b}')
        A(f'v_and_b32 {t}, 3, {s.vLane}'); A(f'v_lshl_add_u32 {b}, {t}, 3, {b}')
        A(f'v_and_b32 {t}, 16, {s.vLane}'); A(f'v_lshl_add_u32 {b}, {t}, 1, {b}')
        if NT == 3:
            f = s.dsaddr(b, wins, regs=regs[1:] if regs else None); s.V.put(t)
            return [(lambda c, J=J: f(c + 64 * J)) for J in range(3)], f.regs
        A(f'v_and_b32 {t}, 8, {s.vLane}'); A(f'v_lshlrev_b32 {t}, 3, {t}')
        A(f'v_xor_b32 {b}, {b}, {t}'); A(f'v_add_u32 {b}, {add}, {b}'); A(f'v_xor_b32 {t}, 64, {b}')
        f0 = s.dsaddr(b, wins); f1 = s.dsaddr(t, wins)
        return [f0, f1], f0.regs + f1.regs
    def f16_voff(s, d, tok, nkb):
        A = s.A; t = s.V.get()
        A(f'v_lshrrev_b32 {t}, 4, {tok}'); A(f'v_mul_u32_u24 {t}, {nkb * 1024}, {t}')
        A(f'v_and_b32 {d}, 15, {tok}'); A(f'v_lshl_add_u32 {d}, {d}, 4, {t}')
        A(f'v_and_b32 {t}, 32, {s.vLane}'); A(f'v_lshl_add_u32 {d}, {t}, 3, {d}')
        s.V.put(t)
    def snap(s): return (s.V.snapshot(), s.AG.snapshot(), s.S.snapshot())
    def rest(s, x): s.V.restore(x[0]); s.AG.restore(x[1]); s.S.restore(x[2])

    def entry(s):
        A = s.A; S = s.S; V = s.V
        if s.o['fix']: s.sE2 = S.get(2); s.sE3 = S.get(2); A(f's_memrealtime {s.sE2}')
        if s.stamps: s.sEnt = S.get(2); A(f's_mem{"" if "cyc" in s.dbg else "real"}time {s.sEnt}')
        A('s_cmp_ge_u32 s2, 256'); A('s_cbranch_scc1 L_end')
        s.sT0, s.sT1, s.sT2, s.sT3 = S.get(), S.get(), S.get(), S.get()
        s.sW, s.sN, s.sSp, s.sIdx, s.sXr, s.sXc, s.sRb, s.sCl, s.sRb2, s.sJ2, s.sC3, s.sG = [S.get() for _ in range(12)]
        s.vLane, s.vN, s.vCtl, s.vL16, s.vL0 = [V.get() for _ in range(5)]; s.vF = V.get(2); s.vBit = V.get()
        t = V.get(); pc = S.get(2); s.vJunk = R('a', s.AG.hi - 4, 4)
        def kargs():
            A(f's_load_dwordx4 s[88:91], s[0:1], 0'); A(f's_load_dwordx8 s[92:99], s[0:1], 32')
            for srd, off in [(sWS, 80), (sWO, 16), (sOUT, 64)]: A(f's_load_dwordx2 {srd[0:2]}, s[0:1], {off}')
        if s.o['ke']: kargs()
        A(f's_getpc_b64 {pc}'); A('L_pc:')
        A(f's_lshr_b32 {s.sIdx}, s2, 3'); A(f's_mul_i32 {s.sT2}, {s.sIdx}, 3072')
        A(f'v_min_u32 {t}, 191, v0'); A(f'v_lshl_add_u32 {t}, {t}, 4, {s.sT2}'); A(f'v_min_u32 {t}, L_codeend-L_pc-16, {t}')
        A(f'global_load_dwordx4 {s.vJunk}, {t}, {pc}')
        A(f'v_and_b32 {s.vLane}, 63, v0'); A(f'v_mov_b32 {s.vCtl}, {CTRL}'); A(f'v_mov_b32 {s.vN}, 0'); A(f'v_lshl_add_u32 {t}, {s.vLane}, 2, {s.vCtl}'); A(f'ds_write_b32 {t}, {s.vN}')
        A(f'v_lshrrev_b32 {t}, 6, v0'); A(f'v_lshlrev_b32 {s.vL16}, 4, {s.vLane}')
        A(f'v_readfirstlane_b32 {s.sW}, {t}')
        if not s.o['ke']: A('s_waitcnt lgkmcnt(0)'); kargs(); A('s_barrier')
        S.put(pc)
        if s.stamps: s.sStamp = S.get(2); s.vStamp = V.get(); A(f'v_mov_b32 {s.vStamp}, 0')
        A(f's_and_b32 {s.sXr}, s2, 3'); A(f's_bfe_u32 {s.sXc}, s2, 0x10002')
        A(f's_and_b32 {s.sT2}, {s.sIdx}, 3'); A(f's_lshl2_add_u32 {s.sRb}, {s.sXr}, {s.sT2}'); A(f's_lshr_b32 {s.sCl}, {s.sIdx}, 2')
        A(f's_lshr_b32 {s.sG}, {s.sIdx}, 3'); A(f's_and_b32 {s.sJ2}, {s.sIdx}, 7'); A(f's_lshl3_add_u32 {s.sC3}, {s.sXc}, {s.sJ2}')
        if s.o['m4']: A(f's_lshl3_add_u32 {s.sRb2}, {s.sXr}, {s.sCl}'); A(f's_lshl2_add_u32 {s.sJ2}, {s.sXc}, {s.sT2}')
        else: A(f's_lshl1_add_u32 {s.sT0}, {s.sXr}, {s.sXc}'); A(f's_lshl2_add_u32 {s.sRb2}, {s.sT0}, {s.sG}')
        A(f's_mov_b32 {s.sSp}, {SPIN}')
        V.put(t)
        A(f's_cmp_eq_u32 {s.sW}, 4'); A('s_cbranch_scc1 L_load0')
        A(f's_cmp_lt_u32 {s.sW}, 4'); A('s_cbranch_scc1 L_comp')
        A(f's_cmp_ge_u32 {s.sW}, 6'); A('s_cbranch_scc1 L_job')
        A.ctl('save', 'entry')
    def rot4(s, d):
        A = s.A; rj = s.o['rj']
        if rj == 0: A(f's_and_b32 {d}, {s.sRb2}, 3'); return
        A(f's_lshl1_add_u32 {d}, {s.sJ2}, {s.sRb2}' if rj == 2 else f's_add_u32 {d}, {s.sJ2}, {s.sRb2}'); A(f's_and_b32 {d}, {d}, 3')
    def rot2(s, d):
        s.A(f's_mul_i32 {d}, {s.sG}, 5'); s.A(f's_lshr_b32 {d}, {d}, 1')
    def fixat(s, k):
        if s.o['fix'] and s.o['fixp'] == k:
            A = s.A; L = s.lab()
            A(f'{L}:'); A(f's_memrealtime {s.sE3}'); A('s_waitcnt lgkmcnt(0)'); A(f's_sub_u32 {s.sE3[0]}, {s.sE3[0]}, {s.sE2[0]}'); A(f's_cmp_lt_u32 {s.sE3[0]}, {s.o["fix"]}'); A(f's_cbranch_scc1 {L}')
    def mkL0(s):
        A = s.A; t = s.V.get()
        A(f'v_cmp_eq_u32 vcc, 0, {s.vLane}'); A(f'v_mov_b32 {t}, {OOB}'); A(f'v_cndmask_b32 {s.vL0}, {t}, {s.vLane}, vcc'); s.V.put(t)

    def voff10(s):
        A = s.A; V = s.V; x = [V.get() for _ in range(5)]; t = V.get()
        for k in range(5):
            A(f'v_add_u32 {t}, {64 * k}, {s.vLane}'); A(f'v_mul_u32_u24 {t}, 6554, {t}'); A(f'v_lshrrev_b32 {t}, 16, {t}')
            A(f'v_mul_u32_u24 {t}, 1120, {t}'); A(f'v_add_u32 {x[k]}, {t}, {s.vL16}')
        A(f'v_add_u32 {x[4]}, 4096, {x[4]}'); V.put(t)
        return x
    def prog_wait(s, q4, val, sl=0):
        A = s.A; L4 = s.lab(); L5 = s.lab()
        A(f'{L4}:'); A(f'ds_read_b128 {q4}, {s.vCtl} offset:16'); s.tick_spin(L5, sl)
        A(f'v_min3_u32 {q4[0]}, {q4[0]}, {q4[1]}, {q4[2]}'); A(f'v_min_u32 {q4[0]}, {q4[0]}, {q4[3]}'); A(f'v_cmp_gt_u32 vcc, {val}, {q4[0]}'); A(f's_cbranch_vccnz {L4}')
        A(f'{L5}:')
    def job(s):
        A = s.A; S = s.S; V = s.V; o = s.o
        A('L_job:'); A.ctl('restore', 'entry')
        t = V.get(); u = V.get(); vC0 = V.get(); ad = V.get(); wb = [V.get(4) for _ in range(3)]; vo = [V.get() for _ in range(4)]; sK = S.get()
        A(f's_and_b32 {sK}, {s.sW}, 1')
        A(f'v_lshrrev_b32 {t}, 3, {s.vLane}'); A(f'v_and_b32 {u}, 7, {s.vLane}')
        A(f's_cmp_eq_u32 {s.sW}, 7'); A('s_cbranch_scc1 L_job1')
        A.ctl('save', 'jfork'); sn = s.snap()
        def after_bar():
            s.bar0()
            A(f's_load_dword {s.sN}, {sWS[0:2]}, 0')
            s.srd(sWO); s.mkL0()
            if 'xw2' in s.dbg: A(f's_mov_b32 {sWO[2]}, 0')
            A(f'v_lshrrev_b32 {vC0}, 10, {s.vL0}'); A(f's_lshl_b32 {s.sT0}, {sK}, 2'); A(f's_add_u32 {s.sT0}, {s.sT0}, {CTRL}'); A(f'v_add_u32 {vC0}, {s.sT0}, {vC0}')
            A(f'v_lshrrev_b32 {ad}, 4, {s.vLane}'); A(f'v_lshlrev_b32 {ad}, 3, {ad}'); A(f'v_bfe_u32 {t}, {s.vLane}, 2, 2'); A(f'v_add_u32 {ad}, {ad}, {t}')
            A(f'v_and_b32 {t}, 3, {s.vLane}'); A(f'v_lshlrev_b32 {t}, 3, {t}')
            A(f'v_mul_u32_u24 {u}, 160, {ad}'); A(f'v_add_u32 {u}, {u}, {t}'); A(f'v_lshl_add_u32 {ad}, {ad}, 7, {t}')
        def wo_dma(addr):
            x = s.voff10()
            A(f's_mul_i32 {s.sT1}, {s.sRb2}, 25600'); A(f's_mul_i32 {s.sT2}, {s.sJ2}, 160'); A(f's_mov_b32 m0, {addr}'); A(f's_add_u32 {s.sT1}, {s.sT1}, {s.sT2}')
            for i in range(4): A(f'buffer_load_dwordx4 {x[i]}, {sWO}, {s.sT1} offen offset:{1024 * i} nt lds')
            A(f's_mov_b32 m0, {addr + 4096}'); last = A(f'buffer_load_dwordx4 {x[4]}, {sWO}, {s.sT1} offen nt lds')
            V.put(*x); return last
        def wo_read(addr, k):
            A(f'v_add_u32 {u}, {addr + 96 * k}, {u}')
            for i in range(3):
                for t2 in range(2): A(f'ds_read_b64_tr_b16 {wb[i].sub(2*t2, 2)}, {u} offset:{32 * i + 640 * t2}')
        sLc = S.get(); ml = s.sT2; idx = s.sIdx
        if o['cr']: idx = s.sT3; A(f's_sub_u32 {idx}, 31, {s.sIdx}')
        A(f's_movk_i32 {sLc}, 10'); A(f's_movk_i32 {ml}, 5')
        for th, a_, m_ in [(5, 15, None), (10, -10, 3), (13, 17, None), (16, -10, 2), (18, 18, None), (20, 20, 12)]:
            A(f's_cmp_ge_u32 {idx}, {th}'); A(f's_cmovk_i32 {sLc}, {a_}')
            if m_: A(f's_cmovk_i32 {ml}, {m_}')
        A(f's_mul_i32 {ml}, {ml}, {s.sXc}'); A(f's_add_u32 {sLc}, {sLc}, {idx}'); A(f's_add_u32 {sLc}, {sLc}, {ml}')
        s.srd(sWQKV, sW1, sW3, sWS)
        if 'xw3' in s.dbg: A(f's_mov_b32 {sW3[2]}, 0')
        if 'xcs' in s.dbg: A(f's_mov_b32 {sW3[2]}, 0'); A(f's_mov_b32 {sW1[2]}, 0'); A(f's_mov_b32 {sWQKV[2]}, 0')
        st = s.sT1; lc = s.sT0
        A(f's_cmp_lt_u32 {sLc}, 40'); A(f's_movk_i32 {st}, 3072'); A(f's_cmovk_i32 {st}, 1280'); A(f's_cselect_b32 {s.sT2}, 30, 40')
        A(f's_cmp_lt_u32 {sLc}, 30'); A(f's_cmovk_i32 {st}, 3840'); A(f's_cmovk_i32 {s.sT2}, 0')
        A(f's_sub_u32 {lc}, {sLc}, {s.sT2}'); A(f's_lshl_b32 {lc}, {lc}, 7')
        A(f's_mul_i32 {s.sT2}, {s.sXr}, 160'); A(f's_mul_i32 {s.sT2}, {s.sT2}, {st}'); A(f's_add_u32 {lc}, {lc}, {s.sT2}')
        A(f'v_mul_lo_u32 {vo[0]}, {t}, {st}'); A(f'v_lshl_add_u32 {vo[0]}, {u}, 4, {vo[0]}')
        A(f's_lshl_b32 {s.sT2}, {st}, 3'); A(f's_sub_u32 {s.sT2}, {s.sT2}, 1024')
        for i in range(1, 4): A(f'v_add_u32 {vo[i]}, {s.sT2}, {vo[i-1]}')
        A(f's_lshl_b32 {st}, {st}, 5')
        s.base(sW1, sW3, sWQKV)
        A(f's_cmp_lt_u32 {sLc}, 40')
        A(f's_cselect_b64 {sD0[0:2]}, {sW1[0:2]}, {sW3[0:2]}'); A(f's_cselect_b32 {sD0[2]}, {sW1[2]}, {sW3[2]}')
        A(f's_cmp_lt_u32 {sLc}, 30')
        A(f's_cselect_b64 {sD0[0:2]}, {sWQKV[0:2]}, {sD0[0:2]}'); A(f's_cselect_b32 {sD0[2]}, {sWQKV[2]}, {sD0[2]}')
        A(f's_mov_b32 {sD0[3]}, 0x20000')
        CSA = s.st[3].addr
        if o['iss']: s.lds_wait(64, 1)
        for g in range(5):
            A(f's_mov_b32 m0, {CSA + 4096 * g}')
            if g: A(f's_add_u32 {lc}, {lc}, {st}')
            for i in range(4): cs_last = A(f'buffer_load_dwordx4 {vo[i]}, {sD0}, {lc} offen offset:{1024 * i} lds')
            if g == 1 and o['ke']: A('s_barrier')
        s.stamp(0); ke = o['ke']; o['ke'] = 0; after_bar(); o['ke'] = ke
        s.nonce()
        ones = V.get(4); fr = V.get(80); D = [V.get(4) for _ in range(4)]
        A(f's_sub_u32 {s.sT0}, {sLc}, 10'); A(f's_cmp_gt_u32 {s.sT0}, 4'); A(f's_subb_u32 {s.sT1}, {s.sT0}, 0'); A(f's_lshl_b32 {s.sT1}, {s.sT1}, 8'); A(f's_add_u32 {s.sT1}, {s.sT1}, {FK}')
        L = s.lab(); ini = [S.get(2) for _ in range(2)]
        A(f's_cmp_eq_u32 {s.sT0}, 4'); A(f's_cbranch_scc1 {L}'); A(f's_cmp_ge_u32 {s.sT0}, 9'); A(f's_cbranch_scc1 {L}'); A(f's_cmp_lg_u32 {s.sXr}, 0'); A(f's_cbranch_scc1 {L}')
        for k, x_ in enumerate(ini):
            A(f's_mov_b32 {x_[0]}, 0'); A(f's_mov_b32 {x_[1]}, {s.sN}'); A(f's_atomic_swap_x2 {x_}, {sWS[0:2]}, {s.sT1} glc'); A(f's_add_u32 {s.sT1}, {s.sT1}, 128')
        A(f'{L}:')
        for i in range(4): A(f'v_mov_b32 {ones[i]}, 0x3f803f80')
        A(f'v_mov_b32 {t}, 1')
        A.waitvm(cs_last)
        for w in range(4):
            for ks in range(5):
                for t2 in range(2): A(f'ds_read_b64_tr_b16 {fr.sub(20*w + 4*ks + 2*t2, 2)}, {ad} offset:{CSA + 32 * w + (32*ks + 4*t2) * 128}')
        A(f'ds_write_b32 {vC0}, {t} offset:8')
        for w in range(4):
            for ks in range(5): A(f'v_mfma_f32_16x16x32_bf16 {D[w]}, {ones}, {fr.sub(20*w + 4*ks, 4)}, {"0" if ks == 0 else D[w]}')
        A(f's_lshl_b32 {sLc}, {sLc}, 9'); A(f's_lshl_b32 {s.sT0}, {s.sXr}, 15'); A(f's_add_u32 {sLc}, {sLc}, {s.sT0}'); A(f's_add_u32 {sLc}, {sLc}, {CS}'); A(f'v_lshlrev_b32 {vo[0]}, 3, {s.vLane}')
        for w in range(1, 4):
            A(f'v_cmp_le_u32 vcc, {16 * w}, {s.vLane}'); A(f'v_cndmask_b32 {D[0][0]}, {D[0][0]}, {D[w][0]}, vcc')
        A(f'v_mov_b32 {D[0][1]}, {s.sN}'); A('s_waitcnt lgkmcnt(0)'); S.put(*ini)
        A(f'buffer_store_dwordx2 {D[0][0:2]}, {vo[0]}, {sWS}, {sLc} offen sc1')
        s.stamp(1)
        s.lds_wait(12, 1, sl=2); wo_read(RPB + 4 * KB, 0); A(f'v_mov_b32 {t}, 1'); A(f'ds_write_b32 {vC0}, {t} offset:40')
        V.put(ones, fr, *D)
        a0, b0, nA = S.get(), S.get(), S.get(); sl_ = [S.get() for _ in range(4)]
        A(f's_lshl1_add_u32 {s.sT0}, {s.sXc}, {s.sCl}'); A(f's_cmp_lt_u32 {s.sCl}, 6'); A(f's_cselect_b32 {s.sT1}, 4, 6'); A(f's_cselect_b32 {a0}, 1920, 0'); A(f's_cselect_b32 {b0}, 0, 1920')
        A(f's_sub_u32 {s.sT0}, {s.sT0}, {s.sT1}'); A(f's_mul_i32 {s.sT1}, {s.sT0}, 96'); A(f's_add_u32 {a0}, {a0}, {s.sT1}'); A(f's_lshl_b32 {s.sT1}, {s.sT0}, 6'); A(f's_add_u32 {b0}, {b0}, {s.sT1}'); A(f's_add_u32 {b0}, {b0}, {384 - 96}')
        A(f's_lshl2_add_u32 {s.sT0}, {s.sXc}, {s.sCl}'); A(f's_mul_i32 {s.sT0}, {s.sT0}, 80'); A(f's_add_u32 {s.sT1}, {s.sT0}, 640'); A(f's_add_u32 {s.sT0}, {s.sT0}, {1280 - 80}')
        A(f's_movk_i32 {nA}, 96'); A(f's_cmp_lt_u32 {s.sCl}, 4'); A(f's_cmov_b32 {a0}, {s.sT1}'); A(f's_cmov_b32 {b0}, {s.sT0}'); A(f's_cmovk_i32 {nA}, 80')
        A(f's_mul_i32 {s.sT2}, {s.sC3}, 96'); A(f's_add_u32 {s.sT2}, {s.sT2}, {2560 - 160}')
        for g in range(4):
            A(f'v_add_u32 {t}, {64 * g}, {s.vLane}')
            if g == 0: A(f'v_add_u32 {vo[g]}, {a0}, {t}')
            elif g == 3: A(f'v_add_u32 {vo[g]}, {s.sT2}, {t}')
            else:
                lo, hi, th = (a0, b0, nA) if g == 1 else (b0, s.sT2, 160)
                A(f'v_cmp_gt_u32 vcc, {th}, {t}'); A(f'v_add_u32 {vo[g]}, {lo}, {t}'); A(f'v_add_u32 {t}, {hi}, {t}'); A(f'v_cndmask_b32 {vo[g]}, {t}, {vo[g]}, vcc')
            A(f'v_lshlrev_b32 {vo[g]}, 3, {vo[g]}'); A(f's_mov_b32 {sl_[g]}, {CS + 32768 * g}')
        A(f's_lshl_b32 {a0}, {s.sRb}, 11'); A(f's_add_u32 {a0}, {a0}, {RS}'); A(f's_lshl_b32 {b0}, {s.sRb2}, 10'); A(f's_add_u32 {b0}, {b0}, {RS}')
        gr = [V.get(4) for _ in range(3)]; cg = [[V.get(2) for _ in range(4)] for _ in range(4)]; q4 = V.get(4); v8 = V.get()
        loads = [f'buffer_load_dwordx4 {gr[i]}, {s.vL16}, {sWS}, {a0} offen offset:{1024 * i} sc1' for i in range(2)] + [f'buffer_load_dwordx4 {gr[2]}, {s.vL16}, {sWS}, {b0} offen sc1']
        loads += [f'buffer_load_dwordx2 {cg[g][e]}, {vo[g]}, {sWS}, {sl_[e]} offen sc1' for g in range(4) for e in range(4)]
        A(f'v_lshlrev_b32 {v8}, 3, {s.vLane}'); A(f'v_add_u32 {v8}, {GW}, {v8}'); A(f'v_add_u32 {ad}, {GK}, {s.vL16}'); A(f'v_lshlrev_b32 {u}, 2, {s.vLane}'); A(f'v_add_u32 {u}, {G1}, {u}')
        s.lds_wait(0, o['gd'], sl=4)
        for ld in loads: A(ld)
        s.checked(loads, [g[3] for g in gr] + [c[1] for r_ in cg for c in r_], sl=8)
        for g in range(4):
            c = cg[g]
            A(f'v_add_f32 {c[0][0]}, {c[0][0]}, {c[1][0]}'); A(f'v_add_f32 {c[2][0]}, {c[2][0]}, {c[3][0]}'); A(f'v_add_f32 {c[0][0]}, {c[0][0]}, {c[2][0]}')
            A(f'v_cvt_pk_bf16_f32 {c[1][1]}, {c[0][0]}, {c[0][0]}'); A(f'v_and_b32 {c[2][0]}, 0xffff0000, {c[1][1]}'); A(f'v_sub_f32 {c[2][1]}, {c[0][0]}, {c[2][0]}')
            A(f'v_cvt_pk_bf16_f32 {c[1][0]}, {c[2][0]}, {c[2][1]}'); A(f'v_and_b32 {c[1][1]}, 0xffff, {c[1][1]}')
            A(f'ds_write_b64 {v8}, {c[1]} offset:{512 * g}')
        for i in range(2):
            g = gr[i]; c = cg[i][0]
            A(f'v_cvt_pk_bf16_f32 {c[0]}, -{g[1]}, -{g[1]}'); A(f'v_and_b32 {c[1]}, 0xffff0000, {c[0]}'); A(f'v_sub_f32 {c[1]}, -{g[1]}, {c[1]}'); A(f'v_cvt_pk_bf16_f32 {c[1]}, {c[1]}, 0')
            A(f'ds_write_b64 {v8}, {c} offset:{GX - GW + 512 * i}'); A(f'ds_write_b32 {u}, {g[0]} offset:{256 * i}')
            A(f'v_mul_f32 {t}, {g[0]}, {g[2]}'); A(f'v_mov_b32 {g[3]}, {g[0]}'); A(f'v_rcp_f32 {g[2]}, {t}')
            A(f'v_mul_f32 {g[0]}, {hexf(GC0)}, {t}'); A(f'v_mul_f32 {g[1]}, {t}, {t}'); A(f'v_mul_f32 {g[1]}, {g[1]}, {t}'); A(f'v_mul_f32 {g[1]}, {hexf(GC1)}, {g[1]}')
            A(f'ds_write_b128 {ad}, {g} offset:{1024 * i}')
        A(f'v_mul_f32 {gr[2][1]}, {gr[2][0]}, {gr[2][1]}'); A(f'ds_write_b64 {v8}, {gr[2][0:2]} offset:{G2 - GW}')
        A(f'v_mov_b32 {t}, 1'); A(f'ds_write_b32 {vC0}, {t} offset:36')
        A('s_waitcnt vmcnt(0) lgkmcnt(0)'); A('s_branch L_jobj')
        s.rest(sn); A('L_job1:'); A.ctl('restore', 'jfork')
        junk = V.get(2); q = V.get()
        A(f'v_mul_u32_u24 {vo[0]}, 1280, {t}'); A(f'v_lshl_add_u32 {vo[0]}, {u}, 4, {vo[0]}')
        for i in range(1, 4): A(f'v_add_u32 {vo[i]}, {8 * 1280 - 1024}, {vo[i-1]}')
        s.srd(sWS, sW4, sW2)
        if 'xw2' in s.dbg: A(f's_mov_b32 {sW2[2]}, 0')
        kb = [S.get() for _ in range(2)]; lcc = [S.get() for _ in range(2)]; nt = 'nt' if o['ntr'] else ''
        for r in range(2):
            A(f's_add_u32 {lcc[r]}, s2, {256 * r}'); A(f's_mul_i32 {kb[r]}, {lcc[r]}, 6554'); A(f's_lshr_b32 {kb[r]}, {kb[r]}, 16')
            A(f's_mul_i32 {s.sT2}, {kb[r]}, 10'); A(f's_sub_u32 {lcc[r]}, {lcc[r]}, {s.sT2}')
        fr = V.get(64)
        def rp_ld(srd, r):
            A(f's_mul_i32 {s.sT0}, {kb[r]}, 40960'); A(f's_lshl_b32 {s.sT2}, {lcc[r]}, 7'); A(f's_mov_b32 m0, {RPB}'); A(f's_add_u32 {s.sT0}, {s.sT0}, {s.sT2}')
            for i in range(4): x = A(f'buffer_load_dwordx4 {vo[i]}, {srd}, {s.sT0} offen offset:{1024 * i} {nt} lds')
            return x
        def rp_rd(r):
            for w in range(4):
                for t2 in range(2): A(f'ds_read_b64_tr_b16 {fr.sub(16*r + 4*w + 2*t2, 2)}, {ad} offset:{32 * w + 512 * t2}')
        def rp_st(r, nkb, base):
            A(f's_mul_i32 {s.sT1}, {kb[r]}, 5')
            for w in range(4):
                A(f's_lshl_b32 {s.sT0}, {lcc[r]}, 2'); A(f's_add_u32 {s.sT0}, {s.sT0}, {w}'); A(f's_mul_i32 {s.sT2}, {s.sT0}, 52'); A(f's_lshr_b32 {s.sT2}, {s.sT2}, 8')
                A(f's_mul_i32 {s.sT2}, {s.sT2}, {5 * nkb - 5}'); A(f's_add_u32 {s.sT0}, {s.sT0}, {s.sT2}'); A(f's_add_u32 {s.sT0}, {s.sT0}, {s.sT1}')
                A(f's_lshl_b32 {s.sT0}, {s.sT0}, 10'); A(f's_add_u32 {s.sT0}, {s.sT0}, {base}')
                A(f's_cmp_ge_u32 {kb[r]}, {nkb}'); A(f's_cmov_b32 {s.sT0}, {OOB}')
                x = A(f'buffer_store_dwordx4 {fr.sub(16*r + 4*w, 4)}, {s.vL16}, {sWS}, {s.sT0} offen sc1')
            return x
        def rp_fl(r, fb, sh): A(f's_lshl_b32 {s.sT0}, {lcc[r]}, {sh}'); A(f's_lshl2_add_u32 {s.sT0}, {kb[r]}, {s.sT0}'); A(f's_add_u32 {s.sT0}, {s.sT0}, {fb}'); A(s.swaptxt(s.sT0))
        xs = V.get(40); sRow0 = S.get()
        s.srd(sX)
        A(f's_lshl1_add_u32 {sRow0}, {s.sXr}, {s.sXc}'); A(f's_lshl_b32 {sRow0}, {sRow0}, 5'); A(f's_add_u32 {sRow0}, {sRow0}, {s.sIdx}'); A(f's_mul_i32 {s.sT3}, {sRow0}, 10240')
        s.base(sX, sW2, sW4)
        if o['iss']: s.lds_wait(64, 1)
        for i in range(10): A(f'buffer_load_dwordx4 {xs.sub(4*i, 4)}, {vo[0]}, {sX}, {s.sT3} offen offset:{128 * i}')
        x = rp_ld(sW2, 0)
        s.stamp(0)
        after_bar()
        wl = wo_dma(RPB + 4 * KB)
        L = s.lab()
        A('s_cmp_lt_u32 s2, 220'); A(f's_cbranch_scc1 {L}')
        A(f's_lshl_b32 {s.sT0}, s2, 7'); A(f's_add_u32 {s.sT0}, {s.sT0}, {FR2 - 220 * 128}'); A(f's_mov_b32 {s.sT1}, 0'); A(f's_atomic_add {s.sT1}, {sWS[0:2]}, {s.sT0} glc')
        A(f'{L}:')
        s.nonce()
        ini = [S.get(2) for _ in range(6)]; ini0 = list(ini)
        for grp, msk in (([(F1, 4), (FQ, 4), (FP, 4)], 7), ([(F2, 5), (F3, 5)], 3), ([(FW, 7)], -8)):
            L = s.lab()
            A(f's_and_b32 {s.sT1}, {sRow0}, {msk}'); A(f's_cbranch_scc1 {L}')
            for base, sh in grp:
                x_ = ini.pop(); A(f's_lshl_b32 {s.sT0}, {sRow0}, {sh}'); A(f's_add_u32 {s.sT0}, {s.sT0}, {base}'); A(f's_mov_b32 {x_[0]}, 0'); A(f's_mov_b32 {x_[1]}, {s.sN}')
                A(f's_atomic_swap_x2 {x_}, {sWS[0:2]}, {s.sT0} glc')
            A(f'{L}:')
        A(f'v_add_u32 {ad}, {RPB}, {ad}')
        g = V.get(4); sm = g[1]; sq = V.get(); one = V.get()
        A(f'v_mov_b32 {one}, 0x3f803f80'); A(f'v_mov_b32 {sm}, 0'); A(f'v_mov_b32 {sq}, 0')
        for i in range(40): A(f'v_dot2c_f32_bf16 {sm}, {xs[i]}, {one}'); A(f'v_dot2c_f32_bf16 {sq}, {xs[i]}, {xs[i]}')
        for m in ['quad_perm:[1,0,3,2]', 'quad_perm:[2,3,0,1]', 'row_half_mirror']:
            A(f'v_add_f32_dpp {sm}, {sm}, {sm} {m} row_mask:0xf bank_mask:0xf'); A(f'v_add_f32_dpp {sq}, {sq}, {sq} {m} row_mask:0xf bank_mask:0xf')
        A(f'v_mul_f32 {sm}, {hexf(1.0/640)}, {sm}'); A(f'v_mul_f32 {sq}, {hexf(1.0/640)}, {sq}')
        A(f'v_fma_f32 {sq}, -{sm}, {sm}, {sq}'); A(f'v_max_f32 {sq}, 0, {sq}')
        s.rstd(g[0], sq); A(f'v_rcp_f32 {g[0]}, {g[0]}')
        A(f'v_mov_b32 {g[3]}, {s.sN}')
        A(f'v_mul_f32 {sq}, {sq}, {g[0]}'); A(f'v_mul_f32 {sq}, {sq}, {g[0]}')
        s.rstd(g[2], sq); A(f'v_rcp_f32 {g[2]}, {g[2]}')
        A(f'v_lshlrev_b32 {t}, 5, {s.vLane}')
        for e in range(3): A(f'ds_bpermute_b32 {g[e]}, {t}, {g[e]}')
        A(f's_lshl_b32 {s.sT0}, {sRow0}, 7'); A(f's_add_u32 {s.sT0}, {s.sT0}, {RS}')
        A('s_waitcnt lgkmcnt(0)'); S.put(*ini0)
        A('s_mov_b64 exec, 0xff')
        A(f'buffer_store_dwordx4 {g}, {s.vL16}, {sWS}, {s.sT0} offen sc1'); A('s_mov_b64 exec, -1')
        A.waitvm(x); rp_rd(0); x = rp_st(0, 20, W2R)
        A(f'v_mov_b32 {t}, 1')
        A.waitvm(wl); wo_read(RPB + 4 * KB, 1); A(f'ds_write_b32 {vC0}, {t} offset:8')
        A.waitvm(x); rp_fl(0, FR2, 7)
        s.stamp(1)
        NR, ST = (4, 128) if o['rt1'] else (2, 256)
        Ls = s.lab()
        A(f'v_mov_b32 {t}, 1')
        if o['rt1']: A('s_cmp_ge_u32 s2, 128'); A(f's_cbranch_scc1 {Ls}')
        kb += [S.get() for _ in range(2)]; lcc += [S.get() for _ in range(2)]
        for r in range(NR):
            A(f's_add_u32 {lcc[r]}, s2, {ST * r}'); A(f's_mul_i32 {kb[r]}, {lcc[r]}, 6554'); A(f's_lshr_b32 {kb[r]}, {kb[r]}, 16')
            A(f's_mul_i32 {s.sT2}, {kb[r]}, 10'); A(f's_sub_u32 {lcc[r]}, {lcc[r]}, {s.sT2}')
        A(f'v_add_u32 {q}, {RPB}, {s.vL16}'); A(f'v_lshlrev_b32 {sq}, 7, {s.vLane}'); A(f'v_mov_b32 {junk[0]}, 0')
        s.lds_wait(0, o['jd'], sl=8)
        for r in range(NR):
            A(f's_mul_i32 {s.sT0}, {kb[r]}, 40960'); A(f's_lshl_b32 {s.sT2}, {lcc[r]}, 7'); A(f's_add_u32 {s.sT0}, {s.sT0}, {s.sT2}')
            for i in range(4): A(f'buffer_load_dwordx4 {fr.sub(16*r + 4*i, 4)}, {vo[i]}, {sW4}, {s.sT0} offen offset:{1024 * i} {nt}')
        nl = 6400 // ST
        A(f's_mul_i32 {s.sT0}, s2, {nl * 128}'); A(f's_add_u32 {s.sT0}, {s.sT0}, {WOP}')
        if o['pt']:
            A(f's_mov_b32 exec_lo, {hex(((1 << nl) - 1) & 0xffffffff)}'); A(f's_mov_b32 exec_hi, {hex(((1 << nl) - 1) >> 32)}')
            A(f'buffer_load_dword {junk[0]}, {sq}, {sWS}, {s.sT0} offen sc1' if o['pt'] == 1 else f'buffer_atomic_add {junk[0]}, {sq}, {sWS}, {s.sT0} offen sc1'); A('s_mov_b64 exec, -1')
        for r in range(NR):
            for i in range(4): A(f'ds_write_b128 {q}, {fr.sub(16*r + 4*i, 4)} offset:{1024 * i}')
            A('s_waitcnt lgkmcnt(0)'); rp_rd(r)
        A(f'ds_write_b32 {vC0}, {t} offset:40')
        if o['jd2']: s.prog_wait(g, o['jd2'], sl=4)
        for r in range(NR): x = rp_st(r, 48, W4R)
        A.waitvm(x)
        for r in range(NR): rp_fl(r, FR4, 8)
        A(f'{Ls}:')
        A(f'ds_write_b32 {vC0}, {t} offset:40')
        A('s_waitcnt vmcnt(0) lgkmcnt(0)')
        s.rest(sn); A('L_jobj:')
        s.stamp(2)
        if s.stop > 2:
            vTok, pa, vk, vz, vp, vkw, vka, q, vfl = [V.get() for _ in range(9)]; wa = [V.get() for _ in range(2)]
            sHp = S.get()
            A(f'v_and_b32 {vTok}, 15, {s.vLane}'); A(f's_lshl1_add_u32 {sHp}, {s.sJ2}, {sK}')
            sP = [S.get() for _ in range(3)]
            A(f's_lshl_b32 {sP[0]}, {s.sRb2}, 7'); A(f's_add_u32 {sP[0]}, {sP[0]}, {FQ}'); A(f's_lshl_b32 {sP[1]}, {sHp}, 7'); A(f's_add_u32 {sP[1]}, {sP[1]}, {FK}')
            A(f's_lshr_b32 {sP[2]}, {s.sRb2}, 1'); A(f's_lshl_b32 {sP[2]}, {sP[2]}, 7'); A(f's_add_u32 {sP[2]}, {sP[2]}, {FK}')
            d40 = vk; E = vz
            A(f'v_min_u32 {q}, 49, {s.vLane}'); A(f's_mul_i32 {s.sT0}, {sK}, 50'); A(f'v_add_u32 {q}, {s.sT0}, {q}')
            A(f'v_mul_u32_u24 {u}, 3277, {q}'); A(f'v_lshrrev_b32 {u}, 16, {u}'); A(f'v_mul_u32_u24 {d40}, 20, {u}'); A(f'v_sub_u32 {d40}, {q}, {d40}')
            A(f'v_lshlrev_b32 {q}, 6, {d40}'); A(f'v_lshl_add_u32 {q}, {u}, 3, {q}'); A(f'v_add_u32 {vkw}, {KVB}, {q}')
            A(f's_and_b32 {s.sT0}, {s.sRb2}, 1'); A(f's_mul_i32 {s.sT0}, {s.sT0}, 20'); A(f'v_add_u32 {d40}, {s.sT0}, {d40}')
            A(f's_add_u32 {s.sT0}, {s.sT0}, 8'); A(f'v_lshl_add_u32 {E}, {u}, 2, {s.sT0}'); A(f'v_lshlrev_b32 {E}, 6, {E}')
            A(f'v_lshrrev_b32 {u}, 4, {d40}'); A(f'v_lshl_add_u32 {E}, {u}, 11, {E}'); A(f'v_and_b32 {d40}, 15, {d40}'); A(f'v_lshl_add_u32 {E}, {d40}, 4, {E}')
            A(f's_lshr_b32 {s.sT0}, {s.sRb2}, 1'); A(f's_mul_i32 {s.sT0}, {s.sT0}, {KVH}'); A(f'v_add_u32 {vk}, {s.sT0}, {E}')
            A(f'v_lshrrev_b32 {t}, 4, {s.vLane}'); A(f'v_lshlrev_b32 {u}, 4, {vTok}')
            A(f's_mul_i32 {s.sT0}, {sHp}, {KVH}'); A(f's_add_u32 {s.sT0}, {s.sT0}, 7168'); A(f'v_mul_u32_u24 {vz}, {KVP}, {t}'); A(f'v_add3_u32 {vz}, {vz}, {u}, {s.sT0}')
            A(f's_mul_i32 {s.sT0}, {s.sRb2}, 81920'); A(f's_mul_i32 {s.sT1}, {sHp}, 1280'); A(f's_add_u32 {s.sT0}, {s.sT0}, {s.sT1}'); A(f's_add_u32 {s.sT0}, {s.sT0}, {PQ}')
            A(f'v_mul_u32_u24 {vp}, 20480, {t}'); A(f'v_add3_u32 {vp}, {vp}, {u}, {s.sT0}')
            A(f'v_lshlrev_b32 {vka}, 6, {vTok}'); A(f'v_lshl_add_u32 {vka}, {t}, 4, {vka}'); A(f'v_add_u32 {vka}, {KVB}, {vka}')
            A(f's_mul_i32 {s.sT0}, {s.sRb2}, 5'); A(f's_mul_i32 {s.sT1}, {s.sJ2}, 102400'); A(f's_mul_i32 {s.sT2}, {sK}, 3072'); A(f's_add_u32 {s.sT1}, {s.sT1}, {s.sT2}'); A(f's_add_u32 {s.sT1}, {s.sT1}, {WOP}')
            for m in range(2):
                A(f'v_add3_u32 {q}, {t}, {s.sT0}, {4 * m}')
                A(f'v_lshrrev_b32 {ad}, 3, {q}'); A(f'v_mul_u32_u24 {wa[m]}, 5120, {ad}')
                A(f'v_bfe_u32 {ad}, {q}, 1, 2'); A(f'v_lshl_add_u32 {wa[m]}, {ad}, 8, {wa[m]}')
                A(f'v_and_b32 {ad}, 1, {q}'); A(f'v_lshl_add_u32 {wa[m]}, {ad}, 3, {wa[m]}'); A(f'v_add3_u32 {wa[m]}, {wa[m]}, {u}, {s.sT1}')
            A(f'v_cmp_gt_u32 vcc, 16, {s.vLane}'); A(f'v_mov_b32 {q}, {OOB}'); A(f'v_cndmask_b32 {wa[1]}, {q}, {wa[1]}, vcc')
            sQ_ = [S.get() for _ in range(2)]
            A(f's_lshl_b32 {sQ_[0]}, {s.sRb2}, 7'); A(f's_add_u32 {sQ_[0]}, {sQ_[0]}, {FP}'); A(f's_lshl_b32 {sQ_[1]}, {s.sJ2}, 7'); A(f's_add_u32 {sQ_[1]}, {sQ_[1]}, {FW}')
            A(f'v_add_u32 {vfl}, {sQ_[0]}, {s.vL0}'); A(f'v_writelane_b32 {vfl}, {sQ_[1]}, 1')
            s.mkbit(s.sJ2); A(f's_lshl_b32 {s.sT3}, 1, {s.sRb2}'); A(f'v_writelane_b32 {s.vBit}, {s.sT3}, 1')
            A(f'v_min_u32 {t}, 59, {s.vLane}'); A(f'v_mul_u32_u24 {u}, 21846, {t}'); A(f'v_lshrrev_b32 {u}, 16, {u}'); A(f'v_mul_u32_u24 {u}, 40, {u}'); A(f'v_lshl_add_u32 {t}, {t}, 3, {u}'); A(f'v_add_u32 {ad}, {KVB + 40}, {t}')
            kq = [V.get(4) for _ in range(16)]; zq = [V.get(4) for _ in range(4)]; pq = [V.get(4) for _ in range(5)]; sKo = S.get(); z2 = V.get(2)
            A(f'v_mov_b32 {z2[0]}, 0'); A(f'v_mov_b32 {z2[1]}, 0')
            if o['fke'] == 3:
                Lw = s.lab(); w3_ = [s.sT0, s.sT1, s.sT2]
                A(f's_cmp_eq_u32 {sK}, 0'); A(f's_cbranch_scc0 {Lw}')
                for k, x_ in enumerate(w3_): A(f's_add_u32 {x_}, {s.sRb2}, {[0, 31, 1][k]}'); A(f's_and_b32 {x_}, {x_}, 31'); A(f's_lshl_b32 {x_}, {x_}, 7'); A(f's_add_u32 {x_}, {x_}, {F1}')
                s.prog_wait(kq[0], o['f1p'], sl=2)
                s.spoll([(x_, 0xffff) for x_ in w3_], sl=o['f1s'], d0=o['f1w'])
                A(f'v_mov_b32 {t}, 1'); A(f'ds_write_b32 {vC0}, {t} offset:72'); A('s_waitcnt lgkmcnt(0)')
                A(f'{Lw}:')
            s.prog_wait(kq[0], o['jp'], sl=4)
            A(f'ds_write_b64 {ad}, {z2}')
            if o['j1p']: s.spoll([(x, 0xffff) for x in sP], sl=o['jsl'], d0=o['jw'])
            else:
                Lj = s.lab(); Lk = s.lab()
                A(f's_cmp_eq_u32 {sK}, 0'); A(f's_cbranch_scc0 {Lj}')
                A(f's_add_u32 {s.sT2}, {sP[1]}, 128')
                s.spoll([(x, 0xffff) for x in sP + [s.sT2]], sl=o['jsl'], d0=o['jw'])
                A(f'v_mov_b32 {t}, 2'); A(f'ds_write_b32 {vC0}, {t} offset:8'); A('s_waitcnt lgkmcnt(0)'); A(f's_branch {Lk}')
                A(f'{Lj}:'); s.lds_wait(8, 2, sl=2); A(f'{Lk}:')
            s.stamp(3)
            if o['jprio']: A(f's_setprio {o["jprio"]}')
            for i in range(0 if 'nokv' in s.dbg else 16):
                A(f's_mov_b32 {sKo}, {KV + KVP * i}'); A(f'buffer_load_dwordx4 {kq[i]}, {vk}, {sWS}, {sKo} offen sc1')
            for i in range(0 if 'noz' in s.dbg else 4):
                A(f's_mov_b32 {sKo}, {KV + 4 * KVP * i}'); A(f'buffer_load_dwordx4 {zq[i]}, {vz}, {sWS}, {sKo} offen sc1')
            for i in range(0 if 'nopq' in s.dbg else 5): A(f'buffer_load_dwordx4 {pq[i]}, {vp}, {sWS}, 0 offen offset:{256 * i} sc1')
            s.stamp(6)
            for i in range(1, 16):
                for e in range(4): A(f'v_add_f32 {kq[0][e]}, {kq[0][e]}, {kq[i][e]}')
            A(f'v_cvt_pk_bf16_f32 {z2[0]}, {kq[0][0]}, {kq[0][1]}'); A(f'v_cvt_pk_bf16_f32 {z2[1]}, {kq[0][2]}, {kq[0][3]}')
            A(f'v_mov_b32 {t}, 1')
            A(f'ds_write_b64 {vkw}, {z2}'); A(f'ds_write_b32 {vC0}, {t} offset:56')
            V.put(*kq); s.stamp(7)
            for i in range(1, 4):
                for e in range(3): A(f'v_add_f32 {zq[0][e]}, {zq[0][e]}, {zq[i][e]}')
            for swp in ('16', '32'):
                for e in range(3): A(f'v_mov_b32 {zq[1][e]}, {zq[0][e]}')
                for e in range(3): A(f'v_permlane{swp}_swap_b32 {zq[0][e]}, {zq[1][e]}')
                for e in range(3): A(f'v_add_f32 {zq[0][e]}, {zq[0][e]}, {zq[1][e]}')
            L4 = s.lab(); L5 = s.lab()
            A(f'{L4}:'); A(f'ds_read_b64 {s.vF}, {s.vCtl} offset:56'); s.tick_spin(L5); A(f'v_min_u32 {s.vF[0]}, {s.vF[0]}, {s.vF[1]}'); A(f'v_cmp_eq_u32 vcc, 0, {s.vF[0]}'); A(f's_cbranch_vccnz {L4}'); A(f'{L5}:')
            s.stamp(8)
            pf = V.get(40); ka = [V.get(4) for _ in range(2)]; D = [[V.get(4) for _ in range(2)] for _ in range(3)]; den = [V.get() for _ in range(2)]
            for m in range(2): A(f'ds_read_b128 {ka[m]}, {vka} offset:{1024 * m}')
            for i in range(20): A(f'v_lshlrev_b32 {pf[2*i]}, 16, {pq[i // 4][i % 4]}'); A(f'v_and_b32 {pf[2*i+1]}, 0xffff0000, {pq[i // 4][i % 4]}')
            for n in range(3):
                for m in range(2): A(f'v_mfma_f32_16x16x32_bf16 {D[n][m]}, {ka[m]}, {wb[n]}, 0')
            A(f's_lshl_b32 {sKo}, {sK}, 29'); s.stamp(9)
            for hh in range(2): A(f'v_mov_b32 {den[hh]}, {hexf(1e-6)}')
            for d in range(20):
                for hh in range(2):
                    f = 20 * hh + d
                    A(f'v_fmac_f32_dpp {den[hh]}, {zq[0][f >> 4]}, {pf[f]} row_newbcast:{f & 15} row_mask:0xf bank_mask:0xf')
                if d == 6:
                    for n in range(3):
                        for m in range(2):
                            dd = D[n][m]
                            A(f'v_cvt_pk_bf16_f32 {dd[0]}, {dd[0]}, {dd[1]}'); A(f'v_cvt_pk_bf16_f32 {dd[1]}, {dd[2]}, {dd[3]}')
                            A(f'buffer_store_dwordx2 {dd[0:2]}, {wa[m]}, {sWS}, {sKo if n == 2 else 0} offen offset:{1024 * n} sc1')
            s.stamp(10)
            for hh in range(2): A(f'v_rcp_f32 {den[hh]}, {den[hh]}')
            for i in range(20):
                for e in range(2): A(f'v_mul_f32 {pf[2*i+e]}, {den[i // 10]}, {pf[2*i+e]}')
                A(f'v_cvt_pk_bf16_f32 {pq[i // 4][i % 4]}, {pf[2*i]}, {pf[2*i+1]}')
                if i % 4 == 3: last = A(f'buffer_store_dwordx4 {pq[i // 4]}, {vp}, {sWS}, 0 offen offset:{256 * (i // 4)} sc1')
            s.stamp(4)
            A.waitvm(last); A(f'v_mov_b32 {t}, 2'); A(f'ds_write_b32 {vC0}, {t} offset:56')
            A(f's_cmp_eq_u32 {sK}, 0'); A('s_cbranch_scc0 L_fin')
            s.lds_wait(60, 2, sl=1)
            A(s.flagtxt(0, vfl))
            s.stamp(5)
            if s.stop > 4:
                A('s_setprio 0')
                s.spoll([(sQ_[0], 0xff), (sQ_[1], -1)], sl=o['wsl'])
                A(f'v_mov_b32 {t}, 2'); A(f'ds_write_b32 {vC0}, {t} offset:36')
                s.stamp(11)
                if o['hp3']:
                    A(f's_lshl_b32 {sP[0]}, {s.sRb2}, 8'); A(f's_add_u32 {sP[0]}, {sP[0]}, {F3}'); A(f's_add_u32 {sP[1]}, {sP[0]}, 128')
                    s.prog_wait(zq[0], s.f3rel, sl=4)
                    s.spoll([(sP[0], 0xffff), (sP[1], 0xffff)])
                    A(f'v_mov_b32 {t}, 3'); A(f'ds_write_b32 {vC0}, {t} offset:36')
        A('s_branch L_fin')

    def ld_begin(s):
        s.L_n = 0; s.L_out = []; s.L_seen = 0
    def ld_pub(s, p): s.A(f'v_mov_b32 {s.vS}, {p.seq}'); s.A(f'ds_max_u32 {s.vC0}, {s.vS}')
    def ld_window(s, keep):
        A = s.A
        while s.L_out and s.L_out[0][1] <= max(s.L_low, s.L_n - keep):
            p, idx = s.L_out.pop(0)
            if idx > s.L_low: A(f's_waitcnt vmcnt({s.L_n - idx})'); s.L_low = idx
            if not (s.L_out and s.L_out[0][1] <= s.L_low): s.ld_pub(p)
        if s.L_n - s.L_low > keep:
            A(f's_waitcnt vmcnt({keep})'); s.L_low = s.L_n - keep
    def ld_drain_code(s):
        for p, idx in s.L_out:
            s.A(f's_waitcnt vmcnt({min(63, s.L_n - idx)})'); s.ld_pub(p)
    def ld_space(s, p):
        A = s.A
        need = max([p.minrel] + [q.rel for q in s.P[:p.seq - 1] if ovl(p, q)])
        if need <= s.L_seen: return
        s.L_seen = need
        Lr = s.lab('S'); Lb = s.lab('B'); L2 = s.lab('S'); q = s.vQ
        def rd(): A(f'ds_read_b128 {q}, {s.vCtl} offset:16'); A('s_waitcnt lgkmcnt(0)'); A(f'v_min3_u32 {q[0]}, {q[0]}, {q[1]}, {q[2]}'); A(f'v_min_u32 {q[0]}, {q[0]}, {q[3]}'); A(f'v_cmp_gt_u32 vcc, {need}, {q[0]}')
        rd(); A(f's_cbranch_vccnz {Lr}'); A(f'{Lb}:')
        def slow():
            A(f'{Lr}:')
            for pp, idx in s.L_out:
                A(f's_waitcnt vmcnt({min(63, s.L_n - idx)})'); s.ld_pub(pp); rd(); A(f's_cbranch_vccz {Lb}')
            A(f'{L2}:'); s.tick_spin(Lb, s.o['slp']); rd(); A(f's_cbranch_vccnz {L2}'); A(f's_branch {Lb}')
        s.outline(slow)
    def ld_panel(s, p, groups, W, sc=''):
        A = s.A
        if not groups:
            s.L_out.append((p, s.L_n)); return
        s.ld_space(p)
        for (lo, pre, srd, so, lst) in groups:
            s.ld_window(max(0, W - len(lst)))
            A(f's_mov_b32 m0, {p.addr + lo}')
            if pre: A(pre)
            for vo, imm in lst:
                A(f'buffer_load_dwordx4 {vo}, {srd}, {so} offen offset:{imm} {sc} lds'); s.L_n += 1
        s.L_out.append((p, s.L_n))
    def g5(s, lo, srd, base, add, regs):
        so = s.sT0 if add else base
        return [(lo, f's_add_u32 {so}, {base}, {add}' if add else None, srd, so, [(regs[i], 1024 * i) for i in range(4)]), (lo + 4096, None, srd, so, [(regs[4], 0)])]
    def div20(s, i, q, c20):
        A = s.A; t = s.V.get()
        A(f'v_add_u32 {t}, {64*i}, {s.vLane}')
        A(f'v_mul_u32_u24 {q}, 3277, {t}'); A(f'v_lshrrev_b32 {q}, 16, {q}')
        A(f'v_mul_u32_u24 {c20}, 20, {q}'); A(f'v_sub_u32 {c20}, {t}, {c20}')
        A(f'v_lshrrev_b32 {t}, 2, {q}'); A(f'v_and_b32 {t}, 2, {t}'); A(f'v_xor_b32 {c20}, {c20}, {t}')
        A(f'v_cmp_le_u32 vcc, 10, {c20}')
        s.V.put(t)
    def voff20(s, stride, hi, add):
        A = s.A; V = s.V; out = [V.get() for _ in range(5)]; q = V.get(); c = V.get(); t = V.get()
        for i in range(5):
            s.div20(i, q, c)
            A(f'v_mov_b32 {t}, {hi}'); A(f'v_mul_u32_u24 {q}, {stride}, {q}'); A(f'v_cndmask_b32 {t}, 0, {t}, vcc')
            A(f'v_lshlrev_b32 {c}, 4, {c}'); A(f'v_add3_u32 {out[i]}, {q}, {c}, {t}')
            k = (add - (1024 * i if i < 4 else 0)) & 0xffffffff
            if k: A(f'v_add_u32 {out[i]}, {k}, {out[i]}')
        V.put(q, c, t); return out
    def voff12(s, stride, swz=False):
        A = s.A; V = s.V; vo = [V.get() for _ in range(3)]; t = V.get(); c = V.get()
        for i in range(3):
            q = vo[i]
            A(f'v_add_u32 {t}, {64*i}, {s.vLane}'); A(f'v_mul_u32_u24 {q}, 5462, {t}'); A(f'v_lshrrev_b32 {q}, 16, {q}')
            A(f'v_mul_u32_u24 {c}, 12, {q}'); A(f'v_sub_u32 {c}, {t}, {c}')
            if swz: A(f'v_lshrrev_b32 {t}, 2, {q}'); A(f'v_and_b32 {t}, 2, {t}'); A(f'v_xor_b32 {c}, {c}, {t}')
            A(f'v_mul_u32_u24 {q}, {stride}, {q}'); A(f'v_lshl_add_u32 {q}, {c}, 4, {q}')
            if i: A(f'v_subrev_u32 {q}, {1024*i}, {q}')
        V.put(t, c); return vo
    def loader(s, me):
        A = s.A; S = s.S; V = s.V; o = s.o
        A(f'L_load{me}:'); A.ctl('restore', 'entry')
        if o['lprio']: A(f's_setprio {o["lprio"]}')
        s.vS = V.get(); s.vQ = V.get(4); s.vC0 = V.get()
        sRot, sOA, sOB, sBB, sOC, sBC = [S.get() for _ in range(6)]
        A(f's_lshl3_add_u32 {s.sT0}, {s.sXc}, {s.sCl}'); A(f's_add_u32 {s.sT0}, {s.sT0}, {s.sRb}')
        nph = o['nph']
        if nph == 10:
            A(f's_mul_i32 {s.sT1}, {s.sT0}, 26'); A(f's_lshr_b32 {s.sT1}, {s.sT1}, 8'); A(f's_mul_i32 {s.sT1}, {s.sT1}, 10'); A(f's_sub_u32 {sRot}, {s.sT0}, {s.sT1}')
        else:
            A(f's_and_b32 {s.sT0}, {s.sT0}, {nph - 1}'); A(f's_mul_i32 {s.sT0}, {s.sT0}, {20 // nph}'); A(f's_lshr_b32 {sRot}, {s.sT0}, 1')
        A(f's_lshl_b32 {sOA}, {sRot}, 7')
        t = V.get(); u = V.get()
        late = {}
        vR = V.get(4)
        def late_setup():
            s.srd(*([sWS, sW3] + ([sX] if me else []))); s.base(*([sW3] + ([sX] if me else [])))
            A(f's_load_dword {s.sN}, {sWS[0:2]}, 0')
            late['b3'] = s.voff12(3072); late['xt'] = s.voff10()
            if me == 0:
                A(f's_mul_i32 {s.sT3}, {s.sJ2}, 5'); A(f's_lshr_b32 {s.sT3}, {s.sT3}, 2'); A(f'v_lshrrev_b32 {t}, 5, {s.vLane}'); A(f'v_add_u32 {t}, {s.sT3}, {t}')
                A(f'v_and_b32 {u}, 31, {s.vLane}'); A(f'v_min_u32 {vR[2]}, 19, {u}'); A(f'v_lshlrev_b32 {vR[2]}, 2, {vR[2]}'); A(f'v_lshl_add_u32 {vR[2]}, {t}, 7, {vR[2]}'); A(f'v_add_u32 {vR[2]}, {FR2}, {vR[2]}')
                A(f'v_min_u32 {vR[3]}, 23, {u}'); A(f'v_lshlrev_b32 {vR[3]}, 3, {vR[3]}'); A(f'v_lshl_add_u32 {vR[3]}, {t}, 8, {vR[3]}'); A(f'v_add_u32 {vR[3]}, {FR4}, {vR[3]}')
            s.nonce()
        frtxt = f'v_mov_b32 {vR[0]}, {s.vN}\ns_mov_b32 exec_lo, 0xfffff\ns_mov_b32 exec_hi, 0xfffff\n' + s.polltxt(vR[0], vR[2], 0) + '\ns_mov_b64 exec, -1'
        fr4txt = f'v_mov_b32 {vR[0]}, {s.vN}\nv_mov_b32 {vR[1]}, {s.vN}\ns_mov_b32 exec_lo, 0xffffff\ns_mov_b32 exec_hi, 0xffffff\nv_mov_b32 {vR[0]}, 0\nv_mov_b32 {vR[1]}, 0\nbuffer_atomic_add_x2 {vR[0:2]}, {vR[3]}, {sWS}, 0 offen sc0 sc1\ns_mov_b64 exec, -1'
        def stages(gs, rot, W):
            s.ld_begin(); s.L_low = 0
            hold = V.get(4)
            s.defer(late_setup); chunks = s.q3; s.q3 = []
            for st in range(10):
                if st == 3: s.lds_wait(8, 1, sl=1, slowpre=s.ld_drain_code)
                if st == o['frs'] and me == 0: A(frtxt); s.L_n += 1
                if st == 0:
                    s.ld_panel(s.st[0], gs[:2], 63, 'nt' if o['nt1'] else ''); s.L_out.pop(); s.bar0()
                    s.ld_panel(s.st[0], gs[2:], 63, 'nt' if o['nt1'] else '')
                    s.mkL0(); A(f'v_lshrrev_b32 {s.vC0}, 10, {s.vL0}'); A(f'v_add_u32 {s.vC0}, {CTRL + 4 * me}, {s.vC0}')
                    A(f'v_mov_b32 {s.vS}, 1'); A(f'ds_write_b32 {s.vC0}, {s.vS} offset:64')
                    s.stamp(0)
                    if o['iss'] == 2: s.ld_window(0)
                else: s.ld_panel(s.st[st], gs, W, 'nt' if (o['nt1'] > st) else '')
                if st < 9: rot()
                if st >= 1:
                    k = 0
                    while chunks and (k < 20 or st == 5 or 'v_cmp' in A.ins[-1].text or 'v_cmp' in A.ins[-2].text or 'v_cmp' in A.ins[-3].text): chunks.pop(0)(); k += 1
                s.stamp(1 + st)
            assert not chunks
            if me: s.ld_window(min(o['W1w'], o['W1v'], o['W1']))
            return (s.L_n, s.L_low, [(p.name, i) for p, i in s.L_out], s.L_seen, str(late))
        if me == 0:
            vXA = [V.get() for _ in range(4)]
            A(f's_mul_i32 {s.sT0}, {s.sRb}, 163840')
            A(f'v_lshrrev_b32 {u}, 3, {s.vLane}'); A(f'v_mul_u32_u24 {u}, 1280, {u}'); A(f'v_add_u32 {t}, {s.sT0}, {u}')
            A(f'v_lshrrev_b32 {u}, 4, {s.vLane}'); A(f'v_xor_b32 {u}, {u}, {s.vLane}'); A(f'v_and_b32 {u}, 7, {u}'); A(f'v_lshlrev_b32 {u}, 4, {u}')
            A(f'v_add_u32 {vXA[0]}, {t}, {u}'); A(f'v_xor_b32 {u}, 64, {u}'); A(f'v_add_u32 {u}, 9216, {u}'); A(f'v_add_u32 {vXA[1]}, {t}, {u}')
            A(f'v_add_u32 {vXA[2]}, 18432, {vXA[0]}'); A(f'v_add_u32 {vXA[3]}, 18432, {vXA[1]}')
            s.srd(sX); s.base(sX)
            gA = [(4096 * g, f's_add_u32 {s.sT0}, {sOA}, {40960 * g}', sX, s.sT0, [(vXA[i], 1024 * i) for i in range(4)]) for g in range(4)]
            def rot(): A(f's_add_u32 {sOA}, {sOA}, 128'); A(f's_cmpk_eq_u32 {sOA}, 1280'); A(f's_cmovk_i32 {sOA}, 0')
            stages(gA, rot, o['W1x'])
        else:
            s.srd(sWQKV, sW1)
            A(f's_cmp_lt_u32 {s.sCl}, 4'); A('s_cbranch_scc0 L_load23')
            A.ctl('save', 'ldfork'); sn = s.snap()
            for var in ('T1', 'T23'):
                s.rest(sn)
                pad = V.get(12)
                sub = Pool('v', pad.i, pad.i + 12); Vm = s.V; s.V = sub
                if var == 'T1':
                    A(f's_lshl2_add_u32 {sBB}, {s.sXc}, {s.sCl}'); A(f's_mul_i32 {sBB}, {sBB}, 160'); A(f's_mul_i32 {sOB}, {sRot}, {64 * 3840}'); A(f's_add_u32 {sOB}, {sOB}, {sBB}')
                    vB = s.voff20(3840, 1120, 1280); s.base(sWQKV)
                    gB = sum([s.g5(16 * KB + 5120 * g, sWQKV, sOB, 16 * 3840 * g, vB) for g in range(4)], [])
                    def rot(): A(f's_add_u32 {sOA}, {sOA}, 128'); A(f's_add_u32 {sOB}, {sOB}, {64 * 3840}'); A(f's_cmpk_eq_u32 {sOA}, 1280'); A(f's_cmov_b32 {sOB}, {sBB}'); A(f's_cmovk_i32 {sOA}, 0')
                else:
                    A('L_load23:'); A.ctl('restore', 'ldfork')
                    s96, s64, g96, g64 = [S.get() for _ in range(4)]
                    A(f's_lshl1_add_u32 {s.sT0}, {s.sXc}, {s.sCl}'); A(f's_cmp_lt_u32 {s.sCl}, 6'); A(f's_cselect_b32 {s.sT1}, 4, 6')
                    A(f's_movk_i32 {s96}, 3840'); A(f's_cmovk_i32 {s96}, 1280'); A(f's_movk_i32 {s64}, 1280'); A(f's_cmovk_i32 {s64}, 3840')
                    A(f's_sub_u32 {s.sT0}, {s.sT0}, {s.sT1}')
                    A(f's_mul_i32 {sBB}, {s.sT0}, 192'); A(f's_lshl_b32 {sBC}, {s.sT0}, 7'); A(f's_add_u32 {sBC}, {sBC}, 768')
                    vB = s.voff12(s96, True); vC = [sub.get() for _ in range(4)]
                    A(f'v_lshrrev_b32 {t}, 3, {s.vLane}'); A(f'v_mul_u32_u24 {t}, {s64}, {t}')
                    A(f'v_lshrrev_b32 {u}, 3, {s.vLane}'); A(f'v_and_b32 {u}, 2, {u}'); A(f'v_xor_b32 {u}, {u}, {s.vLane}'); A(f'v_and_b32 {u}, 7, {u}'); A(f'v_lshl_add_u32 {vC[0]}, {u}, 4, {t}')
                    A(f's_lshl_b32 {s.sT1}, {s64}, 3'); A(f's_sub_u32 {s.sT1}, {s.sT1}, 1024')
                    A(f'v_xor_b32 {vC[1]}, 64, {vC[0]}'); A(f'v_add_u32 {vC[1]}, {s.sT1}, {vC[1]}'); A(f's_lshl_b32 {s.sT1}, {s.sT1}, 1')
                    for i in range(2, 4): A(f'v_add_u32 {vC[i]}, {s.sT1}, {vC[i-2]}')
                    A(f's_lshl_b32 {g96}, {s96}, 4'); A(f's_lshl_b32 {g64}, {s64}, 5')
                    A(f's_mul_i32 {sOB}, {sRot}, {g96}'); A(f's_lshl2_add_u32 {sOB}, {sOB}, {sBB}'); A(f's_mul_i32 {sOC}, {sRot}, {g64}'); A(f's_lshl1_add_u32 {sOC}, {sOC}, {sBC}')
                    s.base(sW1, sWQKV)
                    A(f's_cmp_lt_u32 {s.sCl}, 6')
                    A(f's_cselect_b64 {sD0[0:2]}, {sW1[0:2]}, {sWQKV[0:2]}'); A(f's_cselect_b32 {sD0[2]}, {sW1[2]}, {sWQKV[2]}'); A(f's_mov_b32 {sD0[3]}, 0x20000')
                    A(f's_cselect_b64 {sD1[0:2]}, {sWQKV[0:2]}, {sW1[0:2]}'); A(f's_cselect_b32 {sD1[2]}, {sWQKV[2]}, {sW1[2]}'); A(f's_mov_b32 {sD1[3]}, 0x20000')
                    gB = [(16 * KB + 3072 * g, f's_add_u32 {sOB}, {sOB}, {g96}' if g else None, sD0, sOB, [(vB[i], 1024 * i) for i in range(3)]) for g in range(4)]
                    gB += [(28 * KB + 4096 * g, f's_add_u32 {sOC}, {sOC}, {g64}' if g else None, sD1, sOC, [(vC[i], 1024 * i) for i in range(4)]) for g in range(2)]
                    def rot():
                        A(f's_add_u32 {sOA}, {sOA}, 128'); A(f's_add_u32 {sOB}, {sOB}, {g96}'); A(f's_add_u32 {sOC}, {sOC}, {g64}')
                        A(f's_cmpk_eq_u32 {sOA}, 1280'); A(f's_cmov_b32 {sOB}, {sBB}'); A(f's_cmov_b32 {sOC}, {sBC}'); A(f's_cmovk_i32 {sOA}, 0')
                s.V = Vm
                state = stages(gB, rot, o['W1w'] if var == 'T1' else o['W1v'])
                if var == 'T1': st1 = state; A('s_branch L_loadj')
                else: assert state == st1, (state, st1)
            A('L_loadj:')
        sQ, sB = S.get(), S.get()
        A(f's_mul_i32 {s.sT1}, {s.sJ2}, 160'); A(f's_mul_i32 {sB}, {s.sRb2}, 81920'); A(f's_add_u32 {sB}, {sB}, {s.sT1}')
        LIN = ((WOP, 102400, 20480, 20480), (W4R, 245760, 61440, 20480), (W2R, 102400, 25600, 25600))
        sL = [S.get() for _ in LIN]; vL = [V.get(), V.get()]; vL.append(vL[0])
        s.rot4(s.sT1)
        for k, (base, span, mul, sz) in enumerate(LIN):
            if k < 2: A(f's_mul_i32 {s.sT2}, {s.sJ2}, {span}'); A(f'v_add_u32 {vL[k]}, {s.sT2}, {s.vL16}')
            A(f's_mul_i32 {sL[k]}, {s.sT1}, {mul}'); A(f's_add_u32 {sL[k]}, {sL[k]}, {base}')
        def lin(p, k, W):
            base, span, _, sz = LIN[k]; n = sz // 1024; lo, hi = (0, (n + 1) // 2) if me == 0 else ((n + 1) // 2, n)
            gs = [(1024 * a, f's_add_u32 {s.sT0}, {sL[k]}, {1024 * a}', sWS, s.sT0, [(vL[k], 1024 * i) for i in range(min(4, hi - a))]) for a in range(lo, hi, 4)]
            s.ld_panel(p, gs, W, 'sc1')
            s.wrapadd(sL[k], sz, base + span, base)
        def frcheck(txt, tags, word):
            if me == 0:
                s.checked([txt], tags, pre=s.ld_drain_code, sl=8)
                A(f'v_mov_b32 {s.vS}, {word}'); A(f'ds_write_b32 {s.vC0}, {s.vS} offset:32')
            else: s.lds_wait(32, word, sl=1, slowpre=s.ld_drain_code)
        if o['frs'] > 9 and me == 0: A(frtxt); s.L_n += 1; s.ld_window(1)
        frcheck(frtxt, [vR[0]], 1)
        for p in s.b2: lin(p, 2, o['W1'])
        s.ld_panel(s.pxt, s.g5(5120 * me, sX, sB, 40960 * me, late['xt']), o['W1'])
        s.stamp(11)
        nt2 = 'nt' if o['nt2'] else ''
        if s.stop > 1:
            A(f's_mul_i32 {sB}, {s.sC3}, 192'); s.rot2(s.sT0); A(f's_mul_i32 {sQ}, {s.sT0}, {64 * 3072}'); A(f's_add_u32 {sQ}, {sQ}, {sB}')
            def b3dma(i):
                p = s.b3[i]
                if i == 3: s.lds_wait(40, 1, sl=1, slowpre=s.ld_drain_code)
                s.ld_panel(p, [(3072 * g, f's_add_u32 {s.sT0}, {sQ}, {16 * 3072 * g}', sW3, s.sT0, [(late['b3'][k], 1024 * k) for k in range(3)]) for g in (2 * me, 2 * me + 1)], o['W2'], nt2)
                s.wrapadd(sQ, 64 * 3072, 640 * 3072, sB)
            ns = o['sg3']
            if not ns:
                for i in range(10):
                    if i == 8 and me == 0 and s.stop > 4: s.ld_space(s.b3[i]); A(fr4txt); s.L_n += 1
                    b3dma(i)
            else:
                sQ2 = S.get(); buf = [s.AG.get(24) if k < 3 else V.get(24) for k in range(ns)]; wa = V.get()
                A(f's_add_u32 {sQ2}, {sQ}, {(10 - ns) * 64 * 3072}'); A(f's_cmp_ge_u32 {sQ2}, {640 * 3072}'); A(f's_cselect_b32 {s.sT0}, {640 * 3072}, 0'); A(f's_sub_u32 {sQ2}, {sQ2}, {s.sT0}')
                A(f'v_add_u32 {wa}, {6144 * me}, {s.vL16}'); fwa = s.dsaddr(wa, (0, 1))
                def stg(k):
                    for gi, g in enumerate((2 * me, 2 * me + 1)):
                        s.ld_window(max(0, o['Ws'] - 3)); A(f's_add_u32 {s.sT0}, {sQ2}, {16 * 3072 * g}')
                        for j in range(3): A(f'buffer_load_dwordx4 {buf[k].sub(12 * gi + 4 * j, 4)}, {late["b3"][j]}, {sW3}, {s.sT0} offen offset:{1024 * j}'); s.L_n += 1
                    s.wrapadd(sQ2, 64 * 3072, 640 * 3072, sB)
                b3dma(0); b3dma(1)
                for k in range(o['sg3a']): stg(k)
                b3dma(2); b3dma(3)
                for k in range(o['sg3a'], ns): stg(k)
                if me == 0 and s.stop > 4: A(fr4txt); s.L_n += 1
                for i in range(4, 10 - ns): b3dma(i)
                s.ld_drain_code(); s.L_out = []
                for k in range(ns):
                    p = s.b3[10 - ns + k]; p.minrel = max(p.minrel, o['sgr'])
                    s.ld_space(p)
                    for j in range(6):
                        r_, im = fwa(p.addr + 1024 * j).split(' ')
                        A(f'ds_write_b128 {r_}, {buf[k].sub(4 * j, 4)} {im}')
                    s.ld_pub(p)
            s.stamp(12)
        if s.stop > 4:
            frcheck(fr4txt, [vR[0], vR[1]], 2)
            def warm(first, n):
                A(f's_mul_i32 {s.sT2}, {s.sJ2}, 245760'); A(f'v_lshlrev_b32 {t}, 7, {s.vLane}'); A(f'v_add_u32 {t}, {s.sT2}, {t}')
                for i in range(first + me, n, 2):
                    s.ld_window(o['Ww']); A(f's_add_u32 {s.sT0}, {sL[1]}, {8192 * i}'); A(f'buffer_load_dword {vR[i & 1]}, {t}, {sWS}, {s.sT0} offen sc1'); s.L_n += 1
            if o['wm'] == 2: warm(0, 8)
            lin(s.b4b[0], 1, o['W2'])
            if o['wm'] == 1: warm(0, 5)
            lin(s.b4b[1], 1, o['W3'])
            s.stamp(13)
            def fwcheck(): s.lds_wait(36, 2, sl=1, slowpre=s.ld_drain_code)
            if not o['stg']:
                s.ld_space(s.b4a[0]); fwcheck(); s.stamp(17)
                for i, p in enumerate(s.b4a):
                    s.ld_space(p)
                    if 'stl' in s.dbg: s.stamp(18 + i)
                    lin(p, 0, o['Wa'])
                s.stamp(14)
                for i, p in enumerate(s.b4b[2:]):
                    s.ld_space(p)
                    if 'stl' in s.dbg and i % 2 == 0: s.stamp([23, 24, 25, 26, 28][i // 2])
                    lin(p, 1, o['W4'] if i < 5 else o['W5'])
            else:
                V.put(*late['b3'], *late['xt'])
                buf = [s.AG.get(40), s.AG.get(40), V.get(40), V.get(40), V.get(40)]
                wa = V.get(); A(f'v_add_u32 {wa}, {10240 * me}, {s.vL16}'); fwa = s.dsaddr(wa)
                def stage(i, W):
                    b = buf[(i - 2) % 5]
                    for a, n in ((0, 4), (4, 4), (8, 2)):
                        s.ld_window(max(0, W - n))
                        A(f's_add_u32 {s.sT0}, {sL[1]}, {10240 * me + 1024 * a}')
                        for k in range(n): A(f'buffer_load_dwordx4 {b.sub(4 * (a + k), 4)}, {vL[1]}, {sWS}, {s.sT0} offen offset:{1024 * k} sc1'); s.L_n += 1
                    s.wrapadd(sL[1], 20480, W4R + 245760, W4R)
                def put(i):
                    p = s.b4b[i]; b = buf[(i - 2) % 5]
                    s.ld_space(p)
                    for k in range(10):
                        r_, im = fwa(p.addr + 1024 * k).split(' ')
                        A(f'ds_write_b128 {r_}, {b.sub(4 * k, 4)} {im}')
                    s.ld_pub(p)
                stage(2, o['W3']); stage(3, o['W3'])
                s.ld_space(s.b4a[0]); fwcheck()
                lin(s.b4a[0], 0, o['W3']); stage(4, o['W3']); lin(s.b4a[1], 0, o['W3']); stage(5, o['W3']); lin(s.b4a[2], 0, o['W3']); lin(s.b4a[3], 0, o['W4']); lin(s.b4a[4], 0, o['W4']); stage(6, o['W4'])
                s.stamp(14)
                s.ld_drain_code(); s.L_out = []
                for i in range(2, 12):
                    put(i)
                    if i + 5 < 12: A('s_waitcnt lgkmcnt(0)'); stage(i + 5, o['W4'])
        s.ld_drain_code()
        s.stamp(15)
        A('s_waitcnt vmcnt(0) lgkmcnt(0)')
        A('s_branch L_fin')

    def cpro(s):
        A = s.A; S = s.S; V = s.V
        s.vP, s.vPa, s.vTok, s.vTok4 = [V.get() for _ in range(4)]
        s.sFlag, s.sJ160, s.sCb3, s.sTw, s.sTw3, s.sTT = [S.get() for _ in range(6)]
        s.vA2 = [V.get() for _ in range(4)]; s.rW3 = [V.get() for _ in range(3)]
        s.vL1 = V.get(); s.sP1 = [S.get(), S.get()]
        s.gr2 = V.get(2); s.cg3 = [V.get(2) for _ in range(3)]
        t = V.get(); u = V.get(); q = V.get()
        if s.o['prio']: A(f's_setprio {s.o["prio"]}')
        s.srd(sWS, sOUT); s.bar0()
        s.mkL0()
        A(f'v_and_b32 {s.vTok}, 15, {s.vLane}'); A(f'v_lshlrev_b32 {s.vTok4}, 2, {s.vTok}')
        A(f's_lshl_b32 {s.sT0}, {s.sW}, 2'); A(f's_add_u32 {s.sT0}, {s.sT0}, {CTRL + 16}'); A(f'v_lshrrev_b32 {s.vPa}, 10, {s.vL0}'); A(f'v_add_u32 {s.vPa}, {s.sT0}, {s.vPa}')
        A(f's_mul_i32 {s.sJ160}, {s.sJ2}, 160'); A(f's_mov_b32 {s.sCb3}, {s.sC3}')
        A(f's_lshr_b32 {s.sT0}, {s.sW}, 1'); A(f's_lshl1_add_u32 {s.sTw}, {s.sRb2}, {s.sT0}'); A(f's_lshl2_add_u32 {s.sTT}, {s.sRb2}, {s.sW}')
        A(f's_lshl2_add_u32 {s.sTw3}, {s.sXr}, {s.sG}'); A(f's_lshl2_add_u32 {s.sTw3}, {s.sTw3}, {s.sW}')
        A(f'v_add_u32 {s.vL1}, 65536, {s.vL16}')
        A(f's_lshl_b32 {s.sT2}, {s.sTT}, 4'); A(f'v_and_b32 {q}, 48, {s.vLane}'); A(f'v_lshlrev_b32 {q}, 4, {q}')
        for i in range(4):
            if i == 0: s.rot4(s.sT3)
            A(f's_add_u32 {s.sT0}, {s.sT3}, {i}'); A(f's_and_b32 {s.sT0}, {s.sT0}, 3')
            A(f's_lshl_b32 {s.sT1}, {s.sT0}, 2'); A(f's_lshr_b32 {s.sT1}, 0x4031, {s.sT1}'); A(f's_and_b32 {s.sT1}, {s.sT1}, 15'); A(f's_add_u32 {s.sT1}, {s.sT1}, {s.sT2}'); A(f's_sub_u32 {s.sT1}, {s.sT1}, 2')
            A(f's_mul_i32 {s.sT0}, {s.sT0}, 5120')
            A(f'v_add_u32 {t}, {s.sT1}, {s.vTok}'); A(f'v_cmp_gt_u32 vcc, 0x800, {t}'); A(f'v_lshrrev_b32 {u}, 4, {t}'); A(f'v_mul_u32_u24 {u}, 20480, {u}')
            A(f'v_and_b32 {t}, 15, {t}'); A(f'v_lshl_add_u32 {u}, {t}, 4, {u}'); A(f'v_add3_u32 {u}, {u}, {q}, {s.sT0}'); A(f'v_mov_b32 {t}, {OOB}'); A(f'v_cndmask_b32 {s.vA2[i]}, {t}, {u}, vcc')
        s.fw3, _ = s.mk_nt_read(3, s.rW3)
        A(f's_and_b32 {s.sT0}, {s.sW}, 2'); A(f's_add_u32 {s.sT0}, {s.sT0}, {s.sRb2}'); A(f's_add_u32 {s.sT0}, {s.sT0}, 31'); A(f's_and_b32 {s.sT0}, {s.sT0}, 31')
        A(f's_add_u32 {s.sT1}, {s.sW}, 1'); A(f's_bitcmp1_b32 {s.sT1}, 1'); A(f's_cmov_b32 {s.sT0}, {s.sRb2}')
        A(f's_lshl_b32 {s.sP1[0]}, {s.sRb2}, 7'); A(f's_add_u32 {s.sP1[0]}, {s.sP1[0]}, {F1}'); A(f's_lshl_b32 {s.sP1[1]}, {s.sT0}, 7'); A(f's_add_u32 {s.sP1[1]}, {s.sP1[1]}, {F1}')
        A(f's_load_dword {s.sN}, {sWS[0:2]}, 0')
        s.stamp(0)
        V.put(t, u, q)
        A(f's_cmp_lt_u32 {s.sCl}, 4'); A('s_cbranch_scc1 L_T1')
        A(f's_cmp_lt_u32 {s.sCl}, 6'); A('s_cbranch_scc1 L_TA')
        A.ctl('save', 'fork')
    def gr_common(s, t):
        A = s.A
        A(f's_lshl_b32 {s.sT0}, {s.sW}, 7'); A(f's_add_u32 {s.sT0}, {s.sT0}, {G2}'); A(f'v_lshl_add_u32 {t}, {s.vTok}, 3, {s.sT0}'); A(f'ds_read_b64 {s.gr2}, {t}')
        A(f'v_and_b32 {t}, 31, {s.vLane}'); A(f'v_lshlrev_b32 {t}, 3, {t}'); A(f'v_add_u32 {t}, {GW}, {t}')
        for J in range(3): A(f'ds_read_b64 {s.cg3[J]}, {t} offset:{(160 + 32 * J) * 8}')

    def flat(s, mf, rd, lag, cap, group=None, relmap=None, hooks=None, n3=1, coarse=None, after_first=None, per=None):
        first = {}; lastu = {}
        for i, (_, ids) in enumerate(mf):
            for x in ids: first.setdefault(x, i); lastu[x] = i
        Rd = []; prev = {}
        for x in sorted(rd, key=lambda x: first[x]):
            dest, p, fns = rd[x]; key = str(dest)
            free = lastu[prev[key]] if key in prev else -1
            assert free < first[x]
            prev[key] = x
            for f in fns: Rd.append([first[x], free, p, f, None])
        known = s.known; lastidx = {}
        for k, r in enumerate(Rd):
            lastidx[r[2]] = k
            g = group(r[2]) if group else r[2]
            if r[2].seq > known:
                known = g.seq; r[4] = g
                if k >= 5: Rd[k - 5].append('pre')
        for p, k in lastidx.items():
            rl = relmap.get(p) if relmap is not None else [p]
            if rl: Rd[k].append(rl)
        cnt = [0]
        def emit(i, cap):
            k = 0
            while Rd and Rd[0][1] <= i and (Rd[0][0] <= i + 1 or (Rd[0][0] <= i + lag and k < cap)):
                r = Rd.pop(0)
                if r[4]: s.full(r[4], pre=cnt[0] < 5)
                assert r[2].seq <= s.known and (r[2].rel is None or r[2].rel > s.nrel), r[2].name
                r[3](); k += 1; cnt[0] += 1
                for e in r[5:]:
                    if e == 'pre': s.A(f'ds_read_b64 {s.vF}, {s.vCtl}')
                    else: s.release(e)
            return k
        emit(-1, 999)
        if after_first: after_first()
        for i, (m, _) in enumerate(mf):
            if hooks and i in hooks: hooks[i]()
            if coarse and i in coarse: s.A.touch(coarse[i])
            m()
            if s.stbase is not None and per and i % per == per - 1: s.stamp(s.stbase + i // per)
            k = emit(i, cap); j = 0
            while s.q3 and (j + k < n3 or s.A.clk + 4 <= s.A.mf_free): s.q3.pop(0)(); j += 1
        assert not Rd

    def begin_variant(s):
        s.A.ctl('restore', 'fork'); s.q3 = []; s.known = 0; s.nrel = 0
    def end_variant(s):
        A = s.A
        s.fixat(1)
        s.release([]); assert s.nrel == 11
        A('s_waitcnt lgkmcnt(0)'); A.ctl('endvar'); A('s_branch L_join')

    def t1(s):
        A = s.A; V = s.V; S = s.S; AG = s.AG; stages = s.st
        A('L_T1:'); s.begin_variant()
        sCb = S.get(); sWr = S.get(); sWc = S.get()
        A(f's_lshl2_add_u32 {sCb}, {s.sXc}, {s.sCl}'); A(f's_lshr_b32 {sWr}, {s.sW}, 1'); A(f's_and_b32 {sWc}, {s.sW}, 1')
        q = V.get(); t = V.get(); a0 = V.get(); a1 = V.get()
        A(f'v_lshrrev_b32 {t}, 1, {s.vTok}'); A(f'v_lshrrev_b32 {q}, 4, {s.vLane}'); A(f'v_xor_b32 {t}, {t}, {q}')
        A(f's_lshl_b32 {s.sT0}, {sWr}, 6'); A(f'v_add_u32 {a0}, {s.sT0}, {s.vTok}'); A(f'v_lshlrev_b32 {a0}, 7, {a0}'); A(f'v_lshl_add_u32 {a0}, {t}, 4, {a0}')
        A(f'v_xor_b32 {a1}, 64, {a0}')
        fa = [s.dsaddr(a0, (0, 1)), s.dsaddr(a1, (0, 1))]
        fb = []
        rowp = V.get(); hi = V.get(); x2 = V.get()
        A(f'v_lshlrev_b32 {rowp}, 3, {q}'); A(f'v_bfe_u32 {t}, {s.vLane}, 2, 2'); A(f'v_add_u32 {rowp}, {rowp}, {t}'); A(f'v_mul_u32_u24 {rowp}, 320, {rowp}')
        A(f'v_and_b32 {t}, 1, {s.vLane}'); A(f'v_lshl_add_u32 {rowp}, {t}, 3, {rowp}'); A(f'v_add_u32 {rowp}, {16 * KB}, {rowp}')
        A(f'v_bfe_u32 {hi}, {s.vLane}, 1, 1'); A(f'v_and_b32 {x2}, 1, {q}'); A(f'v_lshlrev_b32 {x2}, 1, {x2}')
        A(f's_mul_i32 {s.sT0}, {sWc}, 5')
        for tt, ba in enumerate([0, 2, 4, 11, 13]):
            b = V.get()
            A(f'v_mul_u32_u24 {b}, {6 if tt == 2 else 1}, {hi}'); A(f'v_add3_u32 {b}, {b}, {ba}, {s.sT0}')
            A(f'v_xor_b32 {b}, {b}, {x2}'); A(f'v_lshl_add_u32 {b}, {b}, 4, {rowp}')
            fb.append(s.dsaddr(b, (0, 1)))
        V.put(rowp, hi, x2, q)
        sKV = [S.get(), S.get()]
        A(f's_lshl1_add_u32 {s.sT0}, {sCb}, {sWc}')
        A(f's_mul_i32 {sKV[0]}, {s.sT0}, {KVH}'); A(f's_mul_i32 {sKV[1]}, {s.sRb}, {KVP}'); A(f's_add_u32 {sKV[0]}, {sKV[0]}, {sKV[1]}'); A(f's_add_u32 {sKV[0]}, {sKV[0]}, {KV}'); A(f's_add_u32 {sKV[1]}, {sKV[0]}, 4096')
        A(f's_lshl_b32 {s.sT2}, {sWr}, 29')
        A(f's_lshl_b32 {s.sT0}, {s.sT0}, 7'); A(f's_add_u32 {s.sT0}, {s.sT0}, {s.sT2}'); A(f's_add_u32 {s.sFlag}, {s.sT0}, {FK}'); s.mkbit(s.sRb)
        s.nonce()
        s.stamp(1)
        acc = [[V.get(4) for _ in range(5)] for _ in range(4)]
        XA = [[AG.get(4) for _ in range(4)] for _ in range(2)]; WB = [[AG.get(4) for _ in range(5)] for _ in range(2)]
        gr = [V.get(4) for _ in range(4)]; csg = [V.get(4) for _ in range(5)]
        mf = []; rd = {}; at = {}
        for st in range(10):
            p = stages[st]
            for h in range(2):
                at[(st, h)] = len(mf)
                for mt in range(4): rd[('x', st, h, mt)] = (XA[h][mt], p, [lambda mt=mt, h=h, p=p: A(f'ds_read_b128 {XA[h][mt]}, {fa[h](p.addr + 2048 * mt)}')])
                for tt in range(5): rd[('w', st, h, tt)] = (WB[h][tt], p, [(lambda tt=tt, h=h, p=p, t2=t2: A(f'ds_read_b64_tr_b16 {WB[h][tt].sub(2*t2, 2)}, {fb[tt](p.addr + (32 * h + 4 * t2) * 320)}')) for t2 in range(2)])
                for tt in range(5):
                    for mt in range(4):
                        mf.append((lambda mt=mt, tt=tt, h=h, c0=(st == 0 and h == 0): A(f'v_mfma_f32_16x16x32_bf16 {acc[mt][tt]}, {XA[h][mt]}, {WB[h][tt]}, {"0" if c0 else acc[mt][tt]}'), [('x', st, h, mt), ('w', st, h, tt)]))
                if st == 8 and h == 0:
                    at['corr'] = len(mf)
                    mf += [(lambda mt=mt, tt=tt: A(f'v_mfma_f32_16x16x32_bf16 {acc[mt][tt]}, {gr[mt]}, {csg[tt]}, {acc[mt][tt]}'), []) for tt in range(5) for mt in range(4)]
        ga = [V.get() for _ in range(4)]
        A(f's_lshl_b32 {s.sT0}, {sWr}, 9'); A(f's_add_u32 {s.sT0}, {s.sT0}, {GX}'); A(f'v_lshl_add_u32 {ga[0]}, {s.vTok}, 3, {s.sT0}')
        A(f's_mul_i32 {s.sT0}, {sWc}, 320'); A(f's_add_u32 {s.sT0}, {s.sT0}, {GW}'); A(f'v_lshl_add_u32 {ga[1]}, {s.vTok}, 3, {s.sT0}')
        A(f'v_lshrrev_b32 {t}, 3, {s.vTok}'); A(f'v_mul_u32_u24 {t}, 320, {t}'); A(f'v_add_u32 {ga[2]}, {t}, {ga[1]}')
        A(f's_lshl_b32 {s.sT0}, {sWr}, 8'); A(f's_add_u32 {s.sT0}, {s.sT0}, {G1}'); A(f'v_and_b32 {ga[3]}, 48, {s.vLane}'); A(f'v_add_u32 {ga[3]}, {s.sT0}, {ga[3]}')
        for g in gr: A(f'v_mov_b32 {g[2]}, 0'); A(f'v_mov_b32 {g[3]}, 0')
        for c_ in csg:
            for e in range(4): A(f'v_mov_b32 {c_[e]}, 0')
        def h_get():
            s.lds_wait(36, 1)
            A('s_mov_b64 exec, 0xffff')
            for tt in range(5): A(f'ds_read_b64 {csg[tt][0:2]}, {ga[2] if tt == 2 else ga[1]} offset:{128 * tt + (320 if tt > 2 else 0)}')
            A('s_mov_b64 exec, -1')
            def f():
                for mt in range(4): A(f'ds_read_b64 {gr[mt][0:2]}, {ga[0]} offset:{128 * mt}')
                s.gr_common(t)
            s.defer(f)
        def h_r1():
            for mt in range(4): A(f'ds_read_b128 {gr[mt]}, {ga[3]} offset:{64 * mt}')
        hooks = {at[(7, 0)] + 10: h_get, at['corr']: s.flush3, at[(9, 1)]: h_r1}
        if 'st1' in s.dbg: s.stbase = 17
        s.flat(mf, rd, s.o['lag16'], 1, hooks=hooks, per=40, n3=2)
        s.stbase = None
        s.stamp(2)
        r1 = gr
        for f in fa + fb: V.put(*f.regs)
        V.put(*csg, *ga)
        eps = V.get(2); epm = V.get(2); l2e = V.get(2); sK = S.get(2)
        A(f'v_mov_b32 {eps[0]}, {hexf(1e-6)}'); A(f'v_mov_b32 {l2e[0]}, {hexf(LOG2E)}')
        A(f'v_and_b32 {t}, 8, {s.vLane}'); A(f'v_cmp_eq_u32 {sK}, 0, {t}'); A(f'v_cndmask_b32 {epm[0]}, 0, {eps[0]}, {sK}')
        pk = [[acc[2 * u][tt] for tt in range(5)] for u in range(2)]
        U = [V.get(2) for _ in range(4)]
        for tt in range(5):
            for u in range(2):
                prs = [(2 * u + m, h) for m in range(2) for h in range(2)]
                y = [acc[mt][tt].sub(2 * h, 2) for mt, h in prs]
                for k, (mt, h) in enumerate(prs):
                    if tt < 3: A(f'v_pk_fma_f32 {y[k]}, {y[k]}, {r1[mt].sub(2*h, 2)}, {eps if tt < 2 else epm} op_sel_hi:[1,1,0]')
                    else: A(f'v_pk_mul_f32 {y[k]}, {y[k]}, {r1[mt].sub(2*h, 2)}')
                if tt < 3:
                    for k in range(4): A(f'v_pk_mul_f32 {U[k]}, {y[k]}, {l2e} op_sel_hi:[1,0]')
                    for k in range(4): A(f'v_exp_f32_e64 {U[k][0]}, {U[k][0]} clamp'); A(f'v_exp_f32_e64 {U[k][1]}, {U[k][1]} clamp')
                    if tt < 2:
                        for k in range(4): A(f'v_max_f32 {y[k][0]}, {eps[0]}, {y[k][0]}'); A(f'v_max_f32 {y[k][1]}, {eps[0]}, {y[k][1]}')
                        for k in range(4): A(f'v_pk_add_f32 {y[k]}, {y[k]}, {U[k]}')
                    else:
                        for k in range(4):
                            for e in range(2):
                                A(f'v_max_f32 {t}, {eps[0]}, {y[k][e]}'); A(f'v_add_f32 {t}, {t}, {U[k][e]}'); A(f'v_cndmask_b32 {y[k][e]}, {y[k][e]}, {t}, {sK}')
                for k in range(4): A(f'v_cvt_pk_bf16_f32 {pk[u][tt][k]}, {y[k][0]}, {y[k][1]}')
        V.put(*U, eps, epm, l2e, *r1, *acc[1], *acc[3])
        ones = V.get(4); ad = V.get(); tw = V.get()
        for i in range(4): A(f'v_mov_b32 {ones[i]}, 0x3f803f80')
        pairs = [(0, 2), (0, 3), (1, 2), (1, 3), (1, 4), (2, 3), (2, 4)]
        kv = [V.get(4) for _ in pairs]; zz = [V.get(4) for _ in range(3)]
        RED = 124 * KB
        for u in range(2):
            for dt in range(3): A(f'v_mfma_f32_16x16x32_bf16 {zz[dt]}, {ones}, {pk[u][dt]}, {"0" if u == 0 else zz[dt]}')
            for k, (dt, et) in enumerate(pairs): A(f'v_mfma_f32_16x16x32_bf16 {kv[k]}, {pk[u][et]}, {pk[u][dt]}, {"0" if u == 0 else kv[k]}')
            if u == 0:
                A(f's_lshl_b32 {s.sT0}, {sWc}, 13'); A(f's_add_u32 {s.sT0}, {s.sT0}, {RED}'); A(f'v_add_u32 {ad}, {s.sT0}, {s.vL16}')
                A(f's_lshl_b32 {s.sT0}, {sWc}, 2'); A(f'v_add_u32 {t}, {s.sT0}, {s.vCtl}'); A(f'v_lshrrev_b32 {tw}, 10, {s.vL0}'); A(f'v_add_u32 {tw}, {tw}, {t}')
        V.put(*acc[0], *acc[2])
        A(f'v_mov_b32 {zz[0][1]}, {zz[1][0]}'); A(f'v_mov_b32 {zz[0][2]}, {zz[2][0]}')
        red = [zz[0]] + kv
        L1 = s.lab(); L2 = s.lab(); L3 = s.lab(); L4 = s.lab(); L5 = s.lab()
        q4 = V.get(4)
        A('s_nop 7')
        A(f's_cmp_eq_u32 {sWr}, 0'); A(f's_cbranch_scc1 {L1}')
        s.prog_wait(q4, 10)
        for k, r in enumerate(red): A(f'ds_write_b128 {ad}, {r} offset:{1024 * k}')
        A(f'ds_write_b32 {tw}, {ones[0]} offset:48')
        A('s_waitcnt lgkmcnt(0)')
        A(f's_branch {L2}')
        A(f'{L1}:'); A(f'ds_read_b32 {q4[0]}, {t} offset:48'); s.tick_spin(L3); A(f'v_cmp_eq_u32 vcc, 0, {q4[0]}'); A(f's_cbranch_vccnz {L1}')
        A(f'{L3}:')
        tmp = [V.get(4) for _ in red]
        for k, r in enumerate(red): A(f'ds_read_b128 {tmp[k]}, {ad} offset:{1024 * k}')
        for k, r in enumerate(red):
            for h in range(2): A(f'v_pk_add_f32 {r.sub(2*h, 2)}, {r.sub(2*h, 2)}, {tmp[k].sub(2*h, 2)}')
            kk = (k + 7) % 8
            A(f'buffer_store_dwordx4 {r}, {s.vL16}, {sWS}, {sKV[kk // 4]} offen offset:{1024 * (kk % 4)} sc1')
        A(f'{L2}:')
        s.stamp(3)
        s.end_variant()

    def cs_loads(s, NT, so):
        cg = [s.V.get(4) for _ in range(NT)]
        return [f'buffer_load_dwordx2 {cg[J].sub(2*e, 2)}, {s.vCsA}, {sWS}, {so[e]} offen offset:{256 * J} sc1' for J in range(NT) for e in range(2)], cg
    def cs_build(s, cg):
        for c in cg: s.A(f'v_add_f32 {c[0]}, {c[0]}, {c[2]}'); s.split_w(c, c[0])
    def epi32(s, kind, acc, k0, k1, k2, addr, mid=None, hold=None):
        A = s.A; V = s.V
        T = [V.get(2) for _ in range(4)]; P = [V.get(4) for _ in range(2)]
        for J in range(len(acc)):
            vo, so, imm = addr[J]
            for hf in range(2):
                y = [acc[J].sub(8 * hf + 2 * k, 2) for k in range(4)]
                if kind == 'gelu':
                    for k in range(4): A(f'v_pk_mul_f32 {T[k]}, {y[k]}, {y[k]}')
                    for k in range(4): A(f'v_pk_fma_f32 {T[k]}, {T[k]}, {k1}, {k0} op_sel_hi:[1,0,0]')
                    for k in range(4): A(f'v_pk_mul_f32 {T[k]}, {T[k]}, {y[k]}')
                    for k in range(4): A(f'v_exp_f32 {T[k][0]}, {T[k][0]}'); A(f'v_exp_f32 {T[k][1]}, {T[k][1]}')
                    for k in range(4): A(f'v_pk_fma_f32 {T[k]}, {T[k]}, {k2[J]}, {k2[J]} op_sel_hi:[1,0,0]')
                    for k in range(4): A(f'v_rcp_f32 {T[k][0]}, {T[k][0]}'); A(f'v_rcp_f32 {T[k][1]}, {T[k][1]}')
                    for k in range(4): A(f'v_pk_mul_f32 {y[k]}, {y[k]}, {T[k]}')
                else:
                    for k in range(4): A(f'v_pk_mul_f32 {T[k]}, {y[k]}, {k1} op_sel_hi:[1,0]')
                    for k in range(4): A(f'v_pk_fma_f32 {y[k]}, {y[k]}, {k0}, {k2} op_sel_hi:[1,0,0]')
                    for k in range(4): A(f'v_exp_f32_e64 {T[k][0]}, {T[k][0]} clamp'); A(f'v_exp_f32_e64 {T[k][1]}, {T[k][1]} clamp')
                    for k in range(4): A(f'v_max_f32 {y[k][0]}, {k2[0]}, {y[k][0]}'); A(f'v_max_f32 {y[k][1]}, {k2[0]}, {y[k][1]}')
                    for k in range(4): A(f'v_pk_add_f32 {y[k]}, {y[k]}, {T[k]}')
                p = P[hf] if hold is None else acc[J].sub(8 * hf, 4)
                for k in ((0, 2, 1, 3) if hold is None else (0, 1, 2, 3)): A(f'v_cvt_pk_bf16_f32 {p[k]}, {y[k][0]}, {y[k][1]}')
                if mid: mid(2 * J + hf)
                A(f'v_permlane32_swap_b32 {p[0]}, {p[2]}'); A(f'v_permlane32_swap_b32 {p[1]}, {p[3]}')
                txt = f'buffer_store_dwordx4 {p}, {vo}, {sWS}, {so} offen offset:{imm + 512 * hf} sc1'
                if hold is None: last = A(txt)
                else: hold.append(txt); last = None
        V.put(*T, *P)
        return last
    def gelu_k(s, k0, k1, a):
        A = s.A
        A(f'v_mul_f32 {k0[0]}, {hexf(GC0)}, {a}'); A(f'v_mul_f32 {k1[0]}, {a}, {a}'); A(f'v_mul_f32 {k1[0]}, {k1[0]}, {a}'); A(f'v_mul_f32 {k1[0]}, {hexf(GC1)}, {k1[0]}')

    def t23(s, typ):
        A = s.A; V = s.V; S = s.S; AG = s.AG; stages = s.st
        G1, G2 = ([0, 1, 2], [3, 4]) if typ == 'A' else ([3, 4], [0, 1, 2])
        if typ == 'A': A('L_TA:')
        s.begin_variant()
        sA = S.get(); sWr = S.get(); sWc = S.get()
        A(f's_lshl1_add_u32 {sA}, {s.sXc}, {s.sCl}'); A(f's_sub_u32 {sA}, {sA}, {4 if typ == "A" else 6}')
        A(f's_lshr_b32 {sWr}, {s.sW}, 1'); A(f's_and_b32 {sWc}, {s.sW}, 1')
        q = V.get(); t = V.get(); a0 = V.get(); a1 = V.get()
        A(f'v_lshrrev_b32 {t}, 1, {s.vTok}'); A(f'v_lshrrev_b32 {q}, 4, {s.vLane}'); A(f'v_xor_b32 {t}, {t}, {q}')
        A(f's_lshl_b32 {s.sT0}, {sWr}, 6'); A(f'v_add_u32 {a0}, {s.sT0}, {s.vTok}'); A(f'v_lshlrev_b32 {a0}, 7, {a0}'); A(f'v_lshl_add_u32 {a0}, {t}, 4, {a0}')
        A(f'v_xor_b32 {a1}, 64, {a0}')
        fa = [s.dsaddr(a0, (0, 1)), s.dsaddr(a1, (0, 1))]
        fb = []; row = V.get(); r96 = V.get(); r64 = V.get(); x96 = V.get(); x64 = V.get()
        A(f'v_lshlrev_b32 {row}, 3, {q}'); A(f'v_bfe_u32 {t}, {s.vLane}, 2, 2'); A(f'v_add_u32 {row}, {row}, {t}')
        A(f'v_and_b32 {t}, 3, {s.vLane}'); A(f'v_lshlrev_b32 {t}, 3, {t}')
        A(f'v_mul_u32_u24 {r96}, 192, {row}'); A(f'v_add_u32 {r96}, {r96}, {t}'); A(f'v_add_u32 {r96}, {16 * KB}, {r96}')
        A(f'v_lshl_add_u32 {r64}, {row}, 7, {t}'); A(f'v_add_u32 {r64}, {28 * KB}, {r64}')
        A(f'v_and_b32 {x96}, 1, {q}'); A(f'v_bfe_u32 {x64}, {s.vLane}, 3, 2')
        for tt in range(5):
            b = V.get()
            if tt < 3: A(f's_mul_i32 {s.sT0}, {sWc}, 3'); A(f's_add_u32 {s.sT0}, {s.sT0}, {tt}')
            else: A(f's_lshl_b32 {s.sT0}, {sWc}, 1'); A(f's_add_u32 {s.sT0}, {s.sT0}, {tt - 3}')
            A(f'v_xor_b32 {b}, {s.sT0}, {x96 if tt < 3 else x64}'); A(f'v_lshl_add_u32 {b}, {b}, 5, {r96 if tt < 3 else r64}')
            fb.append(s.dsaddr(b, (0, 1)))
        V.put(row, r96, r64, x96, x64)
        vo = V.get(); so = [[S.get(), S.get()], [S.get(), S.get()]]
        A(f's_lshl1_add_u32 {s.sT0}, {s.sRb}, {sWr}'); A(f's_lshl_b32 {s.sFlag}, {s.sT0}, 7'); A(f's_mul_i32 {s.sT0}, {s.sT0}, 81920')
        A(f'v_and_b32 {t}, 1, {q}'); A(f'v_mul_u32_u24 {vo}, 20480, {t}'); A(f'v_lshrrev_b32 {t}, 1, {q}'); A(f'v_lshl_add_u32 {vo}, {t}, 8, {vo}'); A(f'v_lshl_add_u32 {vo}, {s.vTok}, 4, {vo}'); A(f'v_add_u32 {vo}, {s.sT0}, {vo}')
        A(f's_lshl1_add_u32 {s.sT0}, {sA}, {sWc}')
        A(f's_add_u32 {s.sFlag}, {s.sFlag}, {F1}'); A(f's_add_u32 {s.sT1}, {s.sT0}, {0 if typ == "A" else 8}'); s.mkbit(s.sT1)
        A(f's_mul_i32 {so[0][0]}, {s.sT0}, {48 * 32}'); A(f's_add_u32 {so[0][0]}, {so[0][0]}, {HS if typ == "A" else PQ}')
        A(f's_lshl_b32 {so[1][0]}, {s.sT0}, 10'); A(f's_add_u32 {so[1][0]}, {so[1][0]}, {(PQ if typ == "A" else HS) + 384 * 32}')
        for k in range(2): A(f's_add_u32 {so[k][1]}, {so[k][0]}, 40960')
        V.put(q)
        s.nonce()
        s.stamp(1)
        acc = [[V.get(4) for _ in range(5)] for _ in range(4)]
        XA = [[AG.get(4) for _ in range(4)] for _ in range(2)]; WB = [[AG.get(4) for _ in range(5)] for _ in range(2)]
        gr = [V.get(4) for _ in range(4)]; csg = [V.get(4) for _ in range(5)]
        mf = []; rd = {}; at = {}; late = []
        def mk(st, h, tt, mt): return (lambda: A(f'v_mfma_f32_16x16x32_bf16 {acc[mt][tt]}, {WB[h][tt]}, {XA[h][mt]}, {"0" if st == 0 and h == 0 else acc[mt][tt]}'))
        for st in range(10):
            p = stages[st]
            for h in range(2):
                at[(st, h)] = len(mf)
                for mt in range(4): rd[('x', st, h, mt)] = (XA[h][mt], p, [lambda mt=mt, h=h, p=p: A(f'ds_read_b128 {XA[h][mt]}, {fa[h](p.addr + 2048 * mt)}')])
                for tt in range(5): rd[('w', st, h, tt)] = (WB[h][tt], p, [(lambda tt=tt, h=h, p=p, t2=t2: A(f'ds_read_b64_tr_b16 {WB[h][tt].sub(2*t2, 2)}, {fb[tt](p.addr + (32 * h + 4 * t2) * (192 if tt < 3 else 128))}')) for t2 in range(2)])
                for tt in (G1 + G2 if st < 9 else G1):
                    for mt in range(4): mf.append((mk(st, h, tt, mt), [('x', st, h, mt), ('w', st, h, tt)]))
                if st == 8 and h == 0:
                    at['corr'] = len(mf)
                    mf += [(lambda mt=mt, tt=tt: A(f'v_mfma_f32_16x16x32_bf16 {acc[mt][tt]}, {csg[tt]}, {gr[mt]}, {acc[mt][tt]}'), []) for tt in range(5) for mt in range(4)]
        for h in range(2):
            for tt in G2:
                mf.append((lambda: None, [('w', 9, h, tt)])); late += [mk(9, h, tt, mt) for mt in range(4)]
        ga = [V.get() for _ in range(4)]
        A(f's_lshl_b32 {s.sT0}, {sWr}, 9'); A(f's_add_u32 {s.sT0}, {s.sT0}, {GX}'); A(f'v_lshl_add_u32 {ga[0]}, {s.vTok}, 3, {s.sT0}')
        A(f's_mul_i32 {s.sT0}, {sWc}, 384'); A(f's_add_u32 {s.sT0}, {s.sT0}, {GW}'); A(f'v_lshl_add_u32 {ga[1]}, {s.vTok}, 3, {s.sT0}')
        A(f's_lshl_b32 {s.sT0}, {sWc}, 8'); A(f's_add_u32 {s.sT0}, {s.sT0}, {GW + 768}'); A(f'v_lshl_add_u32 {ga[2]}, {s.vTok}, 3, {s.sT0}')
        A(f's_lshl_b32 {s.sT0}, {sWr}, 10'); A(f's_add_u32 {s.sT0}, {s.sT0}, {GK}'); A(f'v_lshl_add_u32 {ga[3]}, {s.vTok}, 4, {s.sT0}')
        for g in gr: A(f'v_mov_b32 {g[2]}, 0'); A(f'v_mov_b32 {g[3]}, 0')
        for c_ in csg:
            for e in range(4): A(f'v_mov_b32 {c_[e]}, 0')
        def h_get():
            s.lds_wait(36, 1)
            A('s_mov_b64 exec, 0xffff')
            for tt in range(5): A(f'ds_read_b64 {csg[tt][0:2]}, {ga[1] if tt < 3 else ga[2]} offset:{128 * (tt % 3)}')
            A('s_mov_b64 exec, -1')
            def f():
                for mt in range(4): A(f'ds_read_b64 {gr[mt][0:2]}, {ga[0]} offset:{128 * mt}')
                s.gr_common(t)
            s.defer(f)
        def h_k():
            for mt in range(4): A(f'ds_read_b128 {gr[mt]}, {ga[3]} offset:{256 * mt}')
        if 'st1' in s.dbg: s.stbase = 17
        s.flat(mf, rd, s.o['lag16'], 1, hooks={at[(7, 0)] + 10: h_get, at['corr']: s.flush3, at[(9, 0)]: h_k}, per=40, n3=2)
        s.stbase = None
        s.stamp(2)
        for f in fa + fb: V.put(*f.regs)
        V.put(*csg, *ga)
        K = gr; T = [V.get(2) for _ in range(4)]; eps = V.get(2)
        def tile(kind, tt, u):
            prs = [(2 * u + m, h) for m in range(2) for h in range(2)]
            y = [acc[mt][tt].sub(2 * h, 2) for mt, h in prs]; k_ = [K[mt] for mt, h in prs]
            if kind == 'gelu':
                for k in range(4): A(f'v_pk_mul_f32 {T[k]}, {y[k]}, {y[k]}')
                for k in range(4): A(f'v_pk_fma_f32 {T[k]}, {T[k]}, {k_[k][0:2]}, {k_[k][0:2]} op_sel:[0,1,0] op_sel_hi:[1,1,0]')
                for k in range(4): A(f'v_pk_mul_f32 {T[k]}, {T[k]}, {y[k]}')
                for k in range(4): A(f'v_exp_f32 {T[k][0]}, {T[k][0]}'); A(f'v_exp_f32 {T[k][1]}, {T[k][1]}')
                for k in range(4): A(f'v_pk_fma_f32 {T[k]}, {T[k]}, {k_[k][2:4]}, {k_[k][2:4]} op_sel_hi:[1,0,0]')
                for k in range(4): A(f'v_rcp_f32 {T[k][0]}, {T[k][0]}'); A(f'v_rcp_f32 {T[k][1]}, {T[k][1]}')
                for k in range(4): A(f'v_pk_mul_f32 {y[k]}, {y[k]}, {T[k]}')
            else:
                for k in range(4): A(f'v_pk_mul_f32 {T[k]}, {y[k]}, {k_[k][0:2]} op_sel_hi:[1,0]')
                for k in range(4): A(f'v_pk_fma_f32 {y[k]}, {y[k]}, {k_[k][2:4]}, {eps} op_sel:[0,1,0] op_sel_hi:[1,1,0]')
                for k in range(4): A(f'v_exp_f32_e64 {T[k][0]}, {T[k][0]} clamp'); A(f'v_exp_f32_e64 {T[k][1]}, {T[k][1]} clamp')
                for k in range(4): A(f'v_max_f32 {y[k][0]}, {eps[0]}, {y[k][0]}'); A(f'v_max_f32 {y[k][1]}, {eps[0]}, {y[k][1]}')
                for k in range(4): A(f'v_pk_add_f32 {y[k]}, {y[k]}, {T[k]}')
            p = acc[2 * u][tt]
            for k in range(4): A(f'v_cvt_pk_bf16_f32 {p[k]}, {y[k][0]}, {y[k][1]}')
            A(f'v_permlane16_swap_b32 {p[0]}, {p[2]}'); A(f'v_permlane16_swap_b32 {p[1]}, {p[3]}')
            return f'buffer_store_dwordx4 {p}, {vo}, {sWS}, {so[tt // 3][u]} offen offset:{512 * (tt % 3)} sc1'
        for tt in G1:
            for u in range(2): last1 = A(tile('gelu', tt, u))
        s.stamp(3)
        for f in late: f()
        A(f'v_mov_b32 {eps[0]}, {hexf(1e-6)}')
        for mt in range(4): A(f'v_mul_f32 {K[mt][0]}, {hexf(LOG2E)}, {K[mt][3]}')
        hold = []
        for i, (tt, u) in enumerate([(tt, u) for tt in G2 for u in range(2)]):
            hold.append(tile('phi', tt, u))
            if i == s.o['f1i']: s.setflag(last1, s.sFlag); A(f's_add_u32 {s.sFlag}, {s.sFlag}, {FQ - F1}'); s.stamp(4)
        for x in hold: A(x)
        s.stamp(5)
        s.end_variant()

    def common(s):
        A = s.A; V = s.V; S = s.S; AG = s.AG; o = s.o
        A('L_join:'); A.ctl('join'); s.q3 = []; s.known = 10; s.nrel = 11
        b2, b3, b4a, b4b = s.b2, s.b3, s.b4a, s.b4b
        for p in b3[2:4]: p.minrel = 11
        s.pxt.minrel = 10
        if s.stop <= 1:
            s.setflag('prejoin', s.sFlag); return
        NF = o['NF']; XA = [AG.get(4) for _ in range(20)]
        WF = [V.get(4) for _ in range(NF)]
        t = V.get(); u = V.get()
        def rd2(n):
            p = b2[n // 25]; c = p.addr + (n % 25) * 1024
            s.full(p if p is not b2[1] else b2[3])
            A(f'ds_read_b128 {WF[n % NF]}, {s.vL1 if c >> 16 else s.vL16} offset:{c & 0xffff}')
            if n == o['r2a']: s.release([b2[0], b2[1], s.pxt])
            if n == o['r2b']: s.release([b2[2]])
            if n == 99: s.release([b2[3]])
        acc = [V.get(4) for _ in range(5)]; resid = [V.get(4) for _ in range(5)]; gr = s.gr2
        A(f'v_mul_u32_u24 {t}, 160, {s.vTok}'); A(f'v_lshrrev_b32 {u}, 4, {s.vLane}'); A(f'v_lshl_add_u32 {t}, {u}, 3, {t}')
        A(f's_mul_i32 {s.sT0}, {s.sW}, 2560'); A(f's_add_u32 {s.sT0}, {s.sT0}, {XT}'); A(f'v_add_u32 {t}, {s.sT0}, {t}')
        sH = [S.get(), S.get()]
        A(f's_mov_b32 {sH[0]}, {HS}'); A(f's_mov_b32 {sH[1]}, {HS + 4096}')
        def lda2(i): A(f'buffer_load_dwordx4 {XA[i]}, {s.vA2[i // 5]}, {sWS}, {sH[i % 5 // 4]} offen offset:{1024 * (i % 5 % 4)} sc1')
        s.setflag('prejoin', s.sFlag)
        if o['fke']:
            if o['fke'] == 3:
                s.lds_wait(72, 1, sl=1)
            else: s.spoll([(x, 0xffff) for x in s.sP1], sl=o['f1s'])
            s.stamp(6)
            for i in range(o['LA2']): lda2(i)
        s.full(s.pxt)
        for nt in range(5): A(f'ds_read_b64 {acc[nt][2:4]}, {t} offset:{32 * nt}')
        vSt = [V.get() for _ in range(3)]; va, va2, vs = vSt; sF2 = S.get()
        def xn():
            A(f's_mul_i32 {s.sT0}, {s.sTw}, 40960'); A(f's_mul_i32 {s.sT1}, {s.sJ2}, 5120'); A(f's_add_u32 {s.sT0}, {s.sT0}, {s.sT1}')
            A(f's_and_b32 {s.sT1}, {s.sW}, 1'); A(f's_lshl_b32 {s.sT1}, {s.sT1}, 8'); A(f's_add_u32 {s.sT0}, {s.sT0}, {s.sT1}'); A(f's_add_u32 {s.sT0}, {s.sT0}, {X1}')
            A(f'v_lshl_add_u32 {va}, {s.vTok}, 4, {s.sT0}'); A(f'v_and_b32 {u}, 32, {s.vLane}'); A(f'v_lshl_add_u32 {va}, {u}, 4, {va}')
            A(f'v_and_b32 {u}, 16, {s.vLane}'); A(f'v_lshl_add_u32 {va2}, {u}, 26, {va}'); A(f'v_add_u32 {va2}, 4096, {va2}'); A(f'v_lshl_add_u32 {va}, {u}, 6, {va}')
            A(f's_lshl3_add_u32 {s.sT0}, {s.sTw}, {s.sJ2}'); A(f's_lshl_b32 {s.sT0}, {s.sT0}, 9'); A(f's_add_u32 {s.sT0}, {s.sT0}, {s.sT1}'); A(f's_add_u32 {s.sT0}, {s.sT0}, {S2}')
            A(f'v_lshl_add_u32 {vs}, {s.vTok}, 4, {s.sT0}'); A(f'v_and_b32 {u}, 48, {s.vLane}'); A(f'v_lshl_add_u32 {vs}, {u}, 25, {vs}')
            for nt in range(5):
                for h in range(2):
                    x = resid[nt].sub(2 * h, 2); y = acc[nt].sub(2 * h, 2); src = acc[nt][2 + h]
                    A(f'v_lshlrev_b32 {x[0]}, 16, {src}'); A(f'v_and_b32 {x[1]}, 0xffff0000, {src}')
                    A(f'v_pk_fma_f32 {y}, {x}, {gr[0:2]}, {gr[0:2]} op_sel:[0,0,1] op_sel_hi:[1,0,1] neg_lo:[0,0,1] neg_hi:[0,0,1]')
                    A(f'v_cvt_pk_bf16_f32 {y[1]}, {y[0]}, {y[1]}')
                    A(f'v_lshlrev_b32 {y[0]}, 16, {y[1]}'); A(f'v_and_b32 {y[1]}, 0xffff0000, {y[1]}')
        s.defer(xn)
        for n in range(NF):
            rd2(n)
            for k in range(3):
                if s.q3: s.q3.pop(0)()
        s.flush3()
        A(f's_and_b32 {s.sT1}, {s.sW}, 1'); A(f's_lshl3_add_u32 {s.sT1}, {s.sT1}, {s.sJ2}'); A(f's_lshl_b32 {s.sT0}, {s.sTw}, 7'); A(f's_add_u32 {sF2}, {s.sT0}, {F2}'); s.mkbit(s.sT1)
        if not o['fke']:
            s.stamp(6)
            s.spoll([(x, 0xffff) for x in s.sP1], sl=o['f1s'])
            for i in range(o['LA2']): lda2(i)
        s.stamp(7)
        nr = NF; nl = o['LA2']
        for n in range(100):
            u_, nt = divmod(n, 5)
            A(f'v_mfma_f32_16x16x32_bf16 {acc[nt]}, {WF[n % NF]}, {XA[u_]}, {acc[nt]}')
            if nr < 100: rd2(nr); nr += 1
            if nt % 3 == 1 and nl < 20: lda2(nl); nl += 1
        s.stamp(8)
        V.put(*WF, *s.vA2); AG.put(*XA); S.put(*sH, *s.sP1)
        pk = [V.get(4) for _ in range(3)]; sm4 = V.get(4); sm = sm4[0:2]; T = V.get(2); one = V.get()
        A(f'v_mov_b32 {pk[2][2]}, 0'); A(f'v_mov_b32 {pk[2][3]}, 0'); A(f'v_mov_b32 {sm[0]}, 0'); A(f'v_mov_b32 {sm[1]}, 0'); A(f'v_mov_b32 {one}, 0x3f803f80')
        for nt in range(5):
            for h in range(2): A(f'v_cvt_pk_bf16_f32 {pk[nt // 2][2 * (nt & 1) + h]}, {acc[nt][2*h]}, {acc[nt][2*h+1]}')
        for k in range(3):
            A(f'v_permlane16_swap_b32 {pk[k][0]}, {pk[k][2]}'); A(f'v_permlane16_swap_b32 {pk[k][1]}, {pk[k][3]}')
            last = A(f'buffer_store_dwordx4 {pk[k]}, {va if k < 2 else va2}, {sWS}, 0 offen offset:{2048 * (k & 1)} sc1')
        for k in range(3):
            for i in range(4): A(f'v_dot2c_f32_bf16 {sm[0]}, {pk[k][i]}, {one}'); A(f'v_dot2c_f32_bf16 {sm[1]}, {pk[k][i]}, {pk[k][i]}')
        for swp in ('16', '32'):
            A(f'v_mov_b32 {T[0]}, {sm[0]}'); A(f'v_mov_b32 {T[1]}, {sm[1]}')
            A(f'v_permlane{swp}_swap_b32 {sm[0]}, {T[0]}'); A(f'v_permlane{swp}_swap_b32 {sm[1]}, {T[1]}')
            A(f'v_pk_add_f32 {sm}, {sm}, {T}')
        A(f'v_mov_b32 {sm4[2]}, {s.sN}'); A(f'v_mov_b32 {sm4[3]}, {s.sN}')
        A(f'buffer_store_dwordx4 {sm4}, {vs}, {sWS}, 0 offen sc1')
        if s.stop <= 3:
            s.setflag(last, sF2); return
        cg = [V.get(4) for _ in range(3)]
        A(f'v_cmp_gt_u32 vcc, 32, {s.vLane}')
        for J in range(3):
            A(f'v_mov_b32 {cg[J][2]}, 0'); A(f'v_mov_b32 {cg[J][3]}, 0')
            for e in range(2): A(f'v_cndmask_b32 {cg[J][e]}, 0, {s.cg3[J][e]}, vcc')
        V.put(*s.cg3)
        for nt in range(5):
            for h in range(2): A(f'v_pk_add_f32 {resid[nt].sub(2*h, 2)}, {resid[nt].sub(2*h, 2)}, {acc[nt].sub(2*h, 2)}')
        vst = V.get(); vo = V.get(); vA3 = V.get(); so = S.get(); sA3 = S.get()
        A(f'v_and_b32 {t}, 31, {s.vLane}'); s.f16_voff(vo, t, 48)
        A(f's_lshl_b32 {s.sT0}, {s.sTw3}, 12'); A(f's_add_u32 {s.sT0}, {s.sT0}, {S2}')
        A(f'v_lshl_add_u32 {t}, {t}, 4, {s.sT0}'); A(f'v_and_b32 {u}, 32, {s.vLane}'); A(f'v_lshl_add_u32 {vst}, {u}, 6, {t}')
        A(f's_mul_i32 {so}, {s.sTw3}, {2 * 48 * 1024}'); A(f's_mul_i32 {s.sT0}, {s.sCb3}, 3072'); A(f's_add_u32 {so}, {so}, {s.sT0}'); A(f's_add_u32 {so}, {so}, {H3}')
        A(f's_mul_i32 {s.sT0}, {s.sTw3}, 40960'); A(f'v_add_u32 {vA3}, {s.sT0}, {s.vL16}')
        s.rot2(s.sT0); A(f's_mul_i32 {sA3}, {s.sT0}, 4096'); A(f's_add_u32 {sA3}, {sA3}, {X1}')
        s.setflag(last, sF2)
        s.stamp(9)
        V.put(*acc, *pk, sm4, T, *vSt, s.gr2, one, *s.hold); s.hold = []; S.put(sF2)
        s.stamp(10)
        LA3 = o['LA3']; NX = LA3 + 1; NB = 20 - NX
        XF = [AG.get(4) for _ in range(NX)]; WB = [AG.get(4) for _ in range(NB)]; st2 = [V.get(4) for _ in range(4)]
        def ldx3(i):
            if i >= 40: return
            A(f'buffer_load_dwordx4 {XF[i % NX]}, {vA3}, {sWS}, {sA3} offen offset:{1024 * (i % 4)} sc1')
            if i % 4 == 3: s.wrapadd(sA3, 4096, X1 + 40960, X1)
        def start3():
            A(f's_lshl_b32 {s.sT1}, {s.sTw3}, 7'); A(f's_add_u32 {s.sT1}, {s.sT1}, {F2}')
            s.spoll([(s.sT1, 0xffff)], sl=o['psl'])
            s.fixat(2)
            s.stamp(11)
            for i in range(LA3): ldx3(i)
        s2txt = [f'buffer_load_dwordx4 {st2[k]}, {vst}, {sWS}, 0 offen offset:{512 * k} sc1' for k in range(4)]
        def lds2():
            for x in s2txt: A(x)
        sA4 = S.get(); vA4 = [[V.get() for _ in range(2)] for _ in range(2)];
        acc = [V.get(16) for _ in range(3)]; xq = V.get(4); k0 = V.get(2); k1 = V.get(2); ia = V.get(2)
        rL4 = [V.get() for _ in range(3)]; H = {}
        def su():
            A(f's_and_b32 {s.sT1}, {s.sW}, 1'); A(f's_mul_i32 {s.sT2}, {s.sT1}, 10240'); A(f'v_add_u32 {rL4[0]}, {s.sT2}, {s.vL16}')
            H['fl'] = s.dsaddr(rL4[0], regs=rL4[1:])
            A(f's_lshl_b32 {s.sT1}, {s.sT1}, 11')
            for k, nkb in enumerate((20, 48)):
                for m in range(2):
                    A(f's_xor_b32 {s.sT2}, {s.sTT}, {m}'); A(f's_mul_i32 {s.sT2}, {s.sT2}, {nkb * 1024}'); A(f's_add_u32 {s.sT2}, {s.sT2}, {s.sT1}'); A(f'v_add_u32 {vA4[k][m]}, {s.sT2}, {s.vL16}')
            s.rot4(s.sT1); A(f's_lshl_b32 {sA4}, {s.sT1}, 12'); A(f's_add_u32 {sA4}, {sA4}, {PP}')
            A(f's_lshl_b32 {s.sT2}, {s.sTw3}, 7'); A(f's_add_u32 {s.sFlag}, {s.sT2}, {F3}'); s.mkbit(s.sCb3)
        def ln():
            a = st2[0]
            for k in range(1, 4):
                for e in range(2): A(f'v_add_f32 {a[e]}, {a[e]}, {st2[k][e]}')
            for e in range(2): A(f'v_mov_b32 {a[e+2]}, {a[e]}')
            for e in range(2): A(f'v_permlane32_swap_b32 {a[e]}, {a[e+2]}')
            for e in range(2): A(f'v_add_f32 {a[e]}, {a[e]}, {a[e+2]}')
            for e in range(2): A(f'v_mul_f32 {a[e]}, {hexf(1.0/640)}, {a[e]}')
            A(f'v_fma_f32 {a[1]}, -{a[0]}, {a[0]}, {a[1]}'); A(f'v_max_f32 {a[1]}, 0, {a[1]}')
            s.rstd(ia[0], a[1]); A(f'v_rcp_f32 {a[2]}, {ia[0]}')
            s.split_x(xq, a[0]); s.gelu_k(k0, k1, a[2])
        NA = 10
        order = [XF[(40 + i) % NX] for i in range(NX)] + WB
        XA = [[order[2 * n], order[2 * n + 1]] for n in range(NA)]
        def lda4(n, k):
            lim, base, span = ((10, PP, 20480), (24, H3, 49152))[k]
            if n >= lim: return []
            ops = [(lambda m=m: A(f'buffer_load_dwordx4 {XA[n % NA][m]}, {vA4[k][m]}, {sWS}, {sA4} offen offset:{1024 * (n % 2)} sc1')) for m in range(2)]
            if n % 2 == 1: ops.append(lambda: s.wrapadd(sA4, 4096, base + span, base))
            return ops
        A4e = LA3 // 2
        mf = []; rd = {}
        for n in range(40):
            st, ks = divmod(n, 4); p = b3[st]
            for J in range(3):
                w = WB[(n * 3 + J) % NB]
                rd[('w', n, J)] = (w, p, [(lambda ks=ks, J=J, t2=t2, w=w, p=p: A(f'ds_read_b64_tr_b16 {w.sub(2*t2, 2)}, {s.fw3[J](p.addr + (16 * ks + 4 * t2) * 192)}')) for t2 in range(2)])
                def m(J=J, n=n, w=w):
                    A(f'v_mfma_f32_32x32x16_bf16 {acc[J]}, {w}, {XF[n % NX]}, {"0" if n == 0 else acc[J]}')
                    if J == 0:
                        ldx3(n + LA3)
                        i = n + LA3 - 40
                        if 0 <= i < 2 * A4e and s.stop > 4:
                            ops = lda4(i // 2, 0)
                            for f in (ops[:1] if i % 2 == 0 else ops[1:]): f()
                mf.append((m, [('w', n, J)]))
            if n == 36: ic = len(mf); mf += [(lambda J=J: A(f'v_mfma_f32_32x32x16_bf16 {acc[J]}, {cg[J]}, {xq}, {acc[J]}'), []) for J in range(3)]
        g3 = {b3[0]: b3[3], b3[4]: b3[6], b3[7]: b3[9]}
        if 'st3' in s.dbg: s.stbase = 17
        su()
        def chk_s2(): s.checked(s2txt, [x[2] for x in st2], sl=4); s.defer(ln)
        def chk_p():
            if s.stop > 4: s.lds_wait(36, 2)
        fp = 3 * (40 - LA3)
        s.flat(mf, rd, o['lag32'], 3, group=lambda p: g3.get(p, p), relmap={b3[1]: b3[0:2], b3[3]: b3[2:4], b3[5]: b3[4:6], b3[7]: b3[6:8], b3[8]: [b3[8]], b3[9]: [b3[9]]},
               after_first=start3, hooks={24: lambda: s.defer(lds2), 66: chk_s2, fp: chk_p, ic: s.flush3}, n3=4, per=12)
        s.stbase = None
        s.stamp(12)
        V.put(*s.rW3, vA3, vst, *st2, *cg, xq, *s.hold); S.put(sA3); s.hold = []
        last = s.epi32('gelu', acc, k0, k1, [ia] * 3, [(vo, so, 1024 * J) for J in range(3)])
        s.release([]); s.f3rel = s.nrel
        s.stamp(13)
        sF3 = s.sFlag
        V.put(*acc, k0, k1, ia)
        if s.stop <= 4:
            s.setflag(last, sF3); return
        fl = H['fl']
        acc = [resid, [V.get(4) for _ in range(5)]]
        WB = [[V.get(4) for _ in range(5)] for _ in range(3)]
        va = V.get(); va2 = V.get(); vr = [V.get(), V.get()]
        RED = 40 * KB
        def gemm4(k, panels, LA, hooks, group, relmap, af=None):
            mf = []; rd = {}; coarse = {}; N = 2 * len(panels)
            def mk(n, nt, m):
                W = WB[n % 3]; X = XA[n % NA]
                def f():
                    A(f'v_mfma_f32_16x16x32_bf16 {acc[m][nt]}, {W[nt]}, {X[m]}, {"0" if k == 0 and n == 0 and m == 1 else acc[m][nt]}')
                    if LA and m == 0 and nt % 2 == 0:
                        ops = lda4(n + LA, k)
                        if nt // 2 < len(ops): ops[nt // 2]()
                    if k == 1 and m == 0 and n >= N - 2:
                        i = 5 * (n - N + 2) + nt
                        if i % 2 == 1: A(f'ds_write_b128 {vr[0]}, {acc[1][i // 2]} offset:{1024 * (i // 2)}')
                return (f, [(n, nt)])
            for n in range(N):
                p = panels[n // 2]; h = n % 2; W = WB[n % 3]
                for nt in range(5): rd[(n, nt)] = (W[nt], p, [lambda nt=nt, W=W, p=p, h=h: A(f'ds_read_b128 {W[nt]}, {fl(p.addr + (5 * h + nt) * 1024)}')])
                if k == 1 and n >= N - 2: continue
                coarse[len(mf)] = W + XA[n % NA]
                mf += [mk(n, nt, m) for nt in range(5) for m in range(2)]
            if k == 1: mf += [mk(n, nt, m) for m in (1, 0) for n in (N - 2, N - 1) for nt in range(5)]
            s.flat(mf, rd, 19, 1, group=group, relmap=relmap, hooks=hooks, coarse=coarse, per=20, after_first=af)
        def flag3(): s.setflag(last, sF3); s.slowpre = None; s.stamp(28)
        def addr4():
            A(f's_mul_i32 {s.sT0}, {s.sW}, 5120'); A(f's_add_u32 {s.sT0}, {s.sT0}, {RED}'); A(f'v_add_u32 {vr[0]}, {s.sT0}, {s.vL16}')
            A(f's_xor_b32 {s.sT0}, {s.sW}, 1'); A(f's_mul_i32 {s.sT0}, {s.sT0}, 5120'); A(f's_add_u32 {s.sT0}, {s.sT0}, {RED}'); A(f'v_add_u32 {vr[1]}, {s.sT0}, {s.vL16}')
            A(f's_mul_i32 {s.sT0}, {s.sTT}, 20480'); A(f's_add_u32 {s.sT0}, {s.sT0}, {s.sJ160}')
            A(f'v_mul_u32_u24 {va}, 1280, {s.vTok}'); A(f'v_lshrrev_b32 {t}, 1, {s.vLane}'); A(f'v_and_b32 {t}, 16, {t}'); A(f'v_add3_u32 {va}, {va}, {t}, {s.sT0}')
            A(f'v_and_b32 {t}, 16, {s.vLane}'); A(f'v_lshl_add_u32 {va2}, {t}, 26, {va}'); A(f'v_lshl_add_u32 {va}, {t}, 1, {va}')
        s.slowpre = lambda: (A('s_waitcnt vmcnt(0)'), A(s.flagtxt(sF3)))
        gemm4(0, b4a, A4e, {min(o['f3d'], 10 * A4e): flag3}, None, None)
        addr4()
        s.rot4(s.sT1); A(f's_mul_i32 {sA4}, {s.sT1}, 12288'); A(f's_add_u32 {sA4}, {sA4}, {H3}')
        s.stamp(14)
        LA4 = o['LA4']
        def start4():
            A(f's_lshl_b32 {s.sT1}, {s.sTw}, 7'); A(f's_add_u32 {s.sT1}, {s.sT1}, {F3}')
            if o['hp3']: s.lds_wait(36, 3)
            else: s.spoll([(s.sT1, 0xffff)], sl=o['psl'])
            s.stamp(15)
            for n in range(LA4):
                for f in lda4(n, 1): f()
        if 'st4' in s.dbg: s.stbase = 17
        g4 = {b4b[2]: b4b[3], b4b[4]: b4b[6]}
        rm = {p: [p] for p in b4b[:6]}
        gemm4(1, b4b, LA4, None, lambda p: g4.get(p, p), rm, start4)
        redrel = b4b[5].rel
        s.stbase = None
        if 'st4' in s.dbg: s.stamp(29)
        b4b[11].minrel = redrel
        A('s_waitcnt lgkmcnt(0)'); A('s_barrier')
        for nt in range(5): A(f'ds_read_b128 {WB[0][nt]}, {vr[1]} offset:{1024 * nt}')
        pk = [V.get(4) for _ in range(3)]
        for nt in range(5):
            for h in range(2):
                y = acc[0][nt].sub(2 * h, 2)
                A(f'v_pk_add_f32 {y}, {y}, {WB[0][nt].sub(2*h, 2)}')
                A(f'v_cvt_pk_bf16_f32 {pk[nt // 2][2 * (nt & 1) + h]}, {y[0]}, {y[1]}')
            if nt % 2 == 1 or nt == 4:
                k = nt // 2
                A(f'v_permlane16_swap_b32 {pk[k][0]}, {pk[k][2]}'); A(f'v_permlane16_swap_b32 {pk[k][1]}, {pk[k][3]}')
                A(f'buffer_store_dwordx4 {pk[k]}, {va if k < 2 else va2}, {sOUT}, 0 offen offset:{64 * k} ' + ['', 'nt', 'sc1', 'sc0 sc1 nt'][o['ost']])
        A(f'v_or_b32 {t}, s2, v0'); A(f'v_cmp_eq_u32 vcc, 0, {t}'); A(f'v_mov_b32 {u}, {OOB}'); A(f'v_cndmask_b32 {t}, {u}, {t}, vcc')
        A(f'buffer_store_dword {s.vN}, {t}, {sWS}, 0 offen')
        s.fixat(0)

    def finish(s):
        A = s.A
        A('L_fin:')
        if s.stamps:
            t = s.vF[0]; u = s.vCtl
            A('s_waitcnt vmcnt(0) lgkmcnt(0)')
            s.stamp(16); A(f'v_writelane_b32 {s.vStamp}, {s.sEnt[0]}, 27')
            A(f's_getreg_b32 {s.sT0}, hwreg(HW_REG_HW_ID)'); A(f'v_writelane_b32 {s.vStamp}, {s.sT0}, 31')
            A(f's_lshl_b32 {s.sT0}, s2, 3'); A(f's_add_u32 {s.sT0}, {s.sT0}, {s.sW}'); A(f's_lshl_b32 {s.sT0}, {s.sT0}, 7'); A(f's_add_u32 {s.sT0}, {s.sT0}, {STAMP}')
            A(f'v_and_b32 {t}, 31, {s.vLane}'); A(f'v_lshlrev_b32 {t}, 2, {t}'); A(f'v_and_b32 {u}, 32, {s.vLane}'); A(f'v_lshl_add_u32 {t}, {u}, 25, {t}')
            A(f'buffer_store_dword {s.vStamp}, {t}, {sWS}, {s.sT0} offen')
        A('L_end:'); A('s_endpgm')

    def build(s):
        A = s.A
        s.entry(); e = s.snap(); head = A.ins; A.ins = []
        A('L_comp:'); A.ctl('restore', 'entry')
        s.cpro(); c = s.snap()
        for var in ('B', 'A', 'T1'):
            s.rest(c)
            if var == 'T1': s.t1()
            else: s.t23(var)
        s.rest(c)
        s.common()
        s.finish()
        comp = A.ins; A.ins = []
        for p in s.P:
            if p.rel is None: p.rel = 0
        s.rest(e); s.loader(1)
        s.rest(e); s.loader(0)
        s.rest(e); s.job()
        A.ins = head + A.ins + comp
        A('s_waitcnt vmcnt(0) lgkmcnt(0)')
        A.ins += s.cold
        A('s_endpgm'); A('.p2align 8'); A('L_codeend:')
        hdr = open('cdna_kernels/' + NAME + '.s.ref').read().split('; Override launch')[0]
        txt = hdr + '; @launch grid=(256,1,1) block=(512,1,1) lds=163840\n'
        txt += f'.amdgcn_target "amdgcn-amd-amdhsa--gfx950"\n.text\n.globl {NAME}_kernel\n.p2align 8\n.type {NAME}_kernel,@function\n{NAME}_kernel:\n'
        if 'nomfma' in s.dbg: A.ins = [i for i in A.ins if i.cls != 'mfma']
        if 'nob3' in s.dbg: A.ins = [i for i in A.ins if not (i.note == 'dma' and str(sW3) in i.text)]
        if 'nos2' in s.dbg: A.ins = [i for i in A.ins if not (i.op == 'buffer_store_dwordx2')]
        if 'noa' in s.dbg: A.ins = [i for i in A.ins if not (i.op == 'buffer_load_dwordx4' and i.ops[0].startswith('a['))]
        if 'notr' in s.dbg: A.ins = [i for i in A.ins if not (i.op == 'ds_read_b64_tr_b16' and i.ops[0].startswith('a[') and (int(i.ops[0][2:].split(':')[0]) & 2))]
        if 'nords' in s.dbg: A.ins = [i for i in A.ins if not (i.cls == 'ds' and i.ops[0].startswith('a['))]
        if 'nodma' in s.dbg: A.ins = [i for i in A.ins if i.note != 'dma']
        if 'nopf' in s.dbg: A.ins = [i for i in A.ins if not (i.op == 'buffer_load_dword' and i.ops[0] == i.ops[1])]
        txt += A.text()
        txt += f'''.section .rodata,"a"
.p2align 6
.amdhsa_kernel {NAME}_kernel
  .amdhsa_next_free_vgpr 256
  .amdhsa_next_free_sgpr 102
  .amdhsa_accum_offset {NV}
  .amdhsa_group_segment_fixed_size 0
  .amdhsa_kernarg_size 88
  .amdhsa_user_sgpr_count 2
  .amdhsa_user_sgpr_kernarg_segment_ptr 1
  .amdhsa_system_sgpr_workgroup_id_x 1
.end_amdhsa_kernel
'''
        return txt

if __name__ == '__main__':
    import argparse
    ap = argparse.ArgumentParser()
    ap.add_argument('-o', default='cdna_kernels/' + NAME + '.s')
    ap.add_argument('--stop', type=int, default=99)
    ap.add_argument('--stamps', action='store_true')
    ap.add_argument('--dbg', default='')
    a = ap.parse_args()
    opt = {k.split('=')[0]: int(k.split('=')[1]) for k in a.dbg.split(',') if '=' in k}
    g = G(stop=a.stop, stamps=a.stamps, dbg=a.dbg, **opt)
    txt = g.build()
    open(a.o, 'w').write(txt)
    print('written', a.o, 'vgpr top', g.V.top, 'agpr top', g.AG.top, 'sgpr top', g.S.top)
```

```python
import sys, struct, math, os
from asmgen import *

NAME = 'parallel_sum__linear_attn_block__mixer_s_mlp__prompt'
KB = 1024
F1, FQ, FK, F2, FP, FW, F3 = 0x2000, 0x4000, 0x6000, 0x7000, 0x9000, 0xA000, 0xB000
FR2, FR4 = 0xD000, 0xD800
RS, CS, S2, STAMP = 0x10000, 0x18000, 0x40000, 0x180000
HS, PQ, W2R, X1, H3, WOP = 0x200000, 0x480000, 0x700000, 0x980000, 0xC00000, 0x1200000
PP = PQ
KV, W4R = 0x1300000, 0x1580000
KVP = 8192 + 384
KVH = 16 * KVP + 128
WS_USED = 0x1780000
OOB = 0x40000000
XT = 148 * KB
KVB = 158 * KB
CTRL = KVB + 1536
RPB = 144 * KB
GW, GX, GK, G1, G2 = 152 * KB, 154 * KB, 155 * KB, 157 * KB, 157 * KB + 512
SPIN = 2000000
NV = 176

def f2u(x): return struct.unpack('<I', struct.pack('<f', x))[0]
def hexf(x): return '0x%08x' % f2u(x)
LOG2E = 1.4426950408889634
GC0 = -2.0 * LOG2E * math.sqrt(2.0 / math.pi)
GC1 = GC0 * 0.044715

sX, sWQKV, sWO, sW1, sW2, sW3, sW4, sOUT, sWS, sD0, sD1 = [R('s', 4 + 4 * i, 4) for i in range(11)]

class Panel:
    def __init__(s, name, addr, size, seq): s.name, s.addr, s.size, s.seq = name, addr, size, seq; s.rel = None; s.minrel = 0
def ovl(p, q): return q.addr < p.addr + p.size and p.addr < q.addr + q.size

class G:
    def __init__(s, stop=99, stamps=False, dbg='', **opt):
        s.A = Asm(); s.stop = stop; s.stamps = stamps; s.dbg = dbg; s.stbase = None
        s.V = Pool('v', 1, NV); s.AG = Pool('a', 0, 256 - NV); s.S = Pool('s', 48, 88)
        s.cold = []; s.nlab = 0; s.q3 = []; s.hold = []; s.slowpre = None
        s.o = dict(NF=24, LA2=8, LA3=10, LA4=5, lag16=12, lag32=6, nph=2, W1x=16, W1w=20, W1v=20, W1=14, W2=7, W3=10, W4=12, W5=16, jd=8, jd2=0, frs=9, gd=4, iss=0, stg=0, rj=0, m4=1, f1i=1, csl=0, Wa=10, ost=0, pp=0, f3d=24, fke=3, rt1=0, hp3=1, j1p=0, f1p=10, f1w=16, f1s=0, jw=0, ke=0, cr=1, sg3=0, sg3a=2, Ws=7, sgr=14, wm=0, Ww=1, r2a=49, r2b=74, tlb=0, fix=0, fixp=0, jprio=2, wsl=4, lprio=3, ntr=1, A4e=4, jp=11, jsl=4, psl=0, pt=0, oc=1, pm=1, pd2=0, nt0=0, nt1=0, nt2=0, prio=0, slp=1); s.o.update(opt)
        P = []
        def add(n, a, sz): p = Panel(n, a, sz, len(P) + 1); P.append(p); return p
        s.st = [add(f's{i}', ((i + 2) % 4) * 36 * KB, 36 * KB) for i in range(10)]
        s.b2 = [add(f'b2_{i}', 25 * KB * i, 25 * KB) for i in range(4)]
        s.pxt = add('xt', XT, 10 * KB)
        s.b3 = [add(f'b3_{i}', (100 + 12 * i) * KB, 12 * KB) for i in range(4)]
        s.b3 += [add(f'b3_{i}', 12 * (i - 4) * KB, 12 * KB) for i in range(4, 10)]
        sl = [4, 5, 6, 0, 1, 2, 3, 4, 5, 6, 0, 1]
        s.b4b = [add(f'b4b_{i}', 20 * KB * sl[i], 20 * KB) for i in range(2)]
        s.b4a = [add(f'b4a_{i}', 20 * KB * [6, 0, 1, 2, 3][i], 20 * KB) for i in range(5)]
        s.b4b += [add(f'b4b_{i}', 20 * KB * sl[i], 20 * KB) for i in range(2, 12)]
        s.P = P
        s.known = 0; s.nrel = 0

    def lab(s, p='L'): s.nlab += 1; return f'{p}{s.nlab}'
    def stamp(s, n):
        if s.stamps: s.A(f's_mem{"" if "cyc" in s.dbg else "real"}time {s.sStamp}'); s.A(f'v_writelane_b32 {s.vStamp}, {s.sStamp[0]}, {n}')
    def flush3(s):
        while s.q3: s.q3.pop(0)()
    def defer(s, fn):
        A = s.A; main = A.ins; A.ins = []; clk = (A.clk, A.mf_free, A.lds_free)
        fn(); cap = A.ins; A.ins = main; A.clk, A.mf_free, A.lds_free = clk
        grp = []
        for i in cap:
            grp.append(i)
            if i.cls != 'salu': s.q3.append(lambda g=grp: s.replay(g)); grp = []
        if grp: s.q3.append(lambda g=grp: s.replay(g))
    def replay(s, g):
        for i in g: s.A.ins.append(i); s.A.tick(i)
    def outline(s, fn):
        A = s.A; main = A.ins; A.ins = []; clk = (A.clk, A.mf_free, A.lds_free)
        fn(); s.cold += A.ins; A.ins = main; A.clk, A.mf_free, A.lds_free = clk
    def tick_spin(s, out, sl=0):
        if sl: s.A(f's_sleep {sl}')
        s.A(f's_sub_u32 {s.sSp}, {s.sSp}, 1'); s.A(f's_cmp_lt_i32 {s.sSp}, 0'); s.A(f's_cbranch_scc1 {out}')
    def lds_wait(s, off, val, pre=True, sl=0, slowpre=None):
        A = s.A; Lr = s.lab('W'); Lb = s.lab('B')
        rdt = f'ds_read_b64 {s.vF}, {s.vCtl} offset:{off}' if off in (0, 40, 64) else f'ds_read_b32 {s.vF[0]}, {s.vCtl} offset:{off}'
        L0 = s.lab('W') if slowpre else Lr
        def cmp(L=Lr):
            if off in (0, 40, 64): A(f'v_min_u32 {s.vF[0]}, {s.vF[0]}, {s.vF[1]}')
            A(f'v_cmp_gt_u32 vcc, {val}, {s.vF[0]}'); A(f's_cbranch_vccnz {L}')
        if pre: A(rdt)
        cmp(L0); A(f'{Lb}:')
        def slow():
            if slowpre: A(f'{L0}:'); slowpre()
            A(f'{Lr}:'); A(rdt); s.tick_spin(Lb, sl); A('s_waitcnt lgkmcnt(0)'); cmp(); A(f's_branch {Lb}')
        s.outline(slow)
    def full(s, p, pre=True):
        if p.seq > s.known: s.lds_wait(0, p.seq, pre, sl=s.o['csl'], slowpre=s.slowpre); s.known = p.seq
    def release(s, ps):
        s.nrel += 1
        for p in ps:
            assert p.rel is None or p.rel == s.nrel, p.name
            p.rel = s.nrel
        s.A(f'v_mov_b32 {s.vP}, {s.nrel}'); s.A(f'ds_write_b32 {s.vPa}, {s.vP}')
    def dsaddr(s, base, wins=(0, 1, 2), regs=None):
        rr = {0: base}; k = 0
        for wv in wins:
            if wv:
                r = regs[k] if regs else s.V.get(); k += 1
                s.A(f'v_add_u32 {r}, {wv * 65536}, {base}'); rr[wv] = r
        def at(c): return f'{rr[c >> 16]} offset:{c & 0xffff}'
        at.regs = list(rr.values())
        return at
    def wrapadd(s, r, step, lim, base):
        s.A(f's_add_u32 {r}, {r}, {step}'); s.A(f's_cmp_ge_u32 {r}, {lim}'); s.A(f's_cmov_b32 {r}, {base}')
    def tagcmp(s, tags):
        A = s.A
        if len(tags) == 1: A(f'v_cmp_ne_u32 vcc, {s.sN}, {tags[0]}'); return
        t = s.V.get()
        A(f'v_xor_b32 {t}, {s.sN}, {tags[0]}')
        for x in tags[1:]: A(f'v_bitop3_b32 {t}, {t}, {s.vN}, {x} bitop3:0xf6')
        A(f'v_cmp_ne_u32 vcc, 0, {t}'); s.V.put(t)
    def poll(s, loads, tags, sl=0, mask=None, d0=0):
        A = s.A; L = s.lab('P'); D = s.lab('PD'); L0 = s.lab('P')
        if mask == '0xffffffff': A('s_mov_b32 exec_hi, 0')
        elif mask: A(f's_mov_b64 exec, {mask}')
        if d0: A(f's_sleep {d0}')
        if sl: A(f's_branch {L0}')
        A(f'{L}:')
        if sl: A(f's_sleep {sl}'); A(f'{L0}:')
        for ld in loads: A(ld)
        s.tick_spin(D); s.tagcmp(tags); A(f's_cbranch_vccnz {L}')
        A(f'{D}:'); A('s_waitcnt vmcnt(0)')
        if mask: A('s_mov_b64 exec, -1')
    def spoll(s, items, sl=0, d0=0):
        A = s.A; S = s.S; L = s.lab('P'); D = s.lab('PD'); L0 = s.lab('P'); r = [S.get(2) for _ in items]
        if d0: A(f's_sleep {d0}')
        if sl: A(f's_branch {L0}')
        A(f'{L}:')
        if sl: A(f's_sleep {sl}'); A(f'{L0}:')
        for x, (off, m) in zip(r, items): A(f's_mov_b64 {x}, 0'); A(f's_atomic_add_x2 {x}, {sWS[0:2]}, {off} glc')
        s.tick_spin(D)
        A('s_waitcnt lgkmcnt(0)')
        for x, (off, m) in zip(r, items):
            A(f's_cmp_lg_u32 {x[0]}, {m}'); A(f's_cbranch_scc1 {L}'); A(f's_cmp_lg_u32 {x[1]}, {s.sN}'); A(f's_cbranch_scc1 {L}')
        A(f'{D}:'); A('s_waitcnt lgkmcnt(0)')
        S.put(*r)
    def mkbit(s, idx): s.A(f's_lshl_b32 {s.sT3}, 1, {idx}'); s.A(f'v_mov_b32 {s.vBit}, {s.sT3}')
    def checked(s, loads, tags, pre=None, sl=0):
        A = s.A; Lr = s.lab('R'); Lb = s.lab('B'); L2 = s.lab('R')
        s.tagcmp(tags); A(f's_cbranch_vccnz {Lr}'); A(f'{Lb}:')
        def slow():
            A(f'{Lr}:')
            if callable(pre): pre()
            A('s_waitcnt vmcnt(0) lgkmcnt(0)')
            if pre and not callable(pre): A(pre)
            A(f'{L2}:')
            if sl: A(f's_sleep {sl}')
            for ld in loads: A(ld)
            A('s_waitcnt vmcnt(0)'); s.tick_spin(Lb); s.tagcmp(tags); A(f's_cbranch_vccnz {L2}'); A('s_nop 4'); A(f's_branch {Lb}')
        s.outline(slow)
    def flagtxt(s, soff, va=None): return f'buffer_atomic_or {s.vBit}, {va or s.vL0}, {sWS}, {soff} offen sc1'
    def swaptxt(s, soff): return f'buffer_atomic_swap {s.vN}, {s.vL0}, {sWS}, {soff} offen sc1'
    def polltxt(s, d, va, soff): return f'v_mov_b32 {d}, 0\nbuffer_atomic_add {d}, {va}, {sWS}, {soff} offen sc0 sc1'
    def setflag(s, last_store, soff):
        if last_store == 'prejoin': s.A.wait_prejoin()
        else: s.A.waitvm(last_store)
        s.A(s.flagtxt(soff))
    def nonce(s):
        A = s.A
        A(f's_mul_i32 {s.sN}, {s.sN}, 1664525'); A(f's_add_u32 {s.sN}, {s.sN}, 1013904223'); A(f'v_mov_b32 {s.vN}, {s.sN}')
    def srd(s, *lst):
        sz = {str(sX): 2621440, str(sWQKV): 2457600, str(sW1): 819200, str(sW3): 1966080, str(sWS): WS_USED, str(sW2): 819200, str(sWO): 819200, str(sW4): 1966080, str(sOUT): 2621440}
        for r in lst: s.A(f's_mov_b32 {r[2]}, {sz[str(r)]}'); s.A(f's_mov_b32 {r[3]}, 0x20000')
    def base(s, *lst):
        src = {str(sX): 88, str(sWQKV): 90, str(sW1): 92, str(sW2): 94, str(sW3): 96, str(sW4): 98}
        for r in lst: s.A(f's_mov_b64 {r[0:2]}, s[{src[str(r)]}:{src[str(r)] + 1}]')
    def bar0(s):
        if s.o['ke']: s.A('s_waitcnt lgkmcnt(0)'); s.A('s_barrier')
    def rbf(s, d, x):
        s.A(f'v_cvt_pk_bf16_f32 {d}, {x}, {x}'); s.A(f'v_and_b32 {d}, 0xffff0000, {d}')
    def rstd(s, d, var):
        A = s.A
        s.rbf(d, var); A(f'v_add_f32 {d}, {hexf(1e-5)}, {d}'); s.rbf(d, d); A(f'v_sqrt_f32 {d}, {d}'); s.rbf(d, d)
    def split_w(s, q, v):
        A = s.A
        A(f'v_cvt_pk_bf16_f32 {q[1]}, {v}, {v}'); A(f'v_and_b32 {q[2]}, 0xffff0000, {q[1]}'); A(f'v_sub_f32 {q[3]}, {v}, {q[2]}')
        A(f'v_cvt_pk_bf16_f32 {q[0]}, {q[2]}, {q[3]}'); A(f'v_and_b32 {q[1]}, 0xffff, {q[1]}'); A(f'v_mov_b32 {q[2]}, 0'); A(f'v_mov_b32 {q[3]}, 0')
    def split_x(s, q, m):
        A = s.A
        A(f'v_cvt_pk_bf16_f32 {q[0]}, -{m}, -{m}'); A(f'v_and_b32 {q[2]}, 0xffff0000, {q[0]}'); A(f'v_sub_f32 {q[2]}, -{m}, {q[2]}')
        A(f'v_cvt_pk_bf16_f32 {q[1]}, {q[2]}, 0'); A(f'v_mov_b32 {q[2]}, 0'); A(f'v_mov_b32 {q[3]}, 0')
    def mk_nt_read(s, NT, regs=None, wins=(0, 1, 2), add=0):
        A = s.A; b = regs[0] if regs else s.V.get(); t = s.V.get(); rs = 64 * NT
        A(f'v_lshrrev_b32 {b}, 5, {s.vLane}'); A(f'v_lshlrev_b32 {b}, 3, {b}')
        A(f'v_bfe_u32 {t}, {s.vLane}, 2, 2'); A(f'v_add_u32 {b}, {b}, {t}'); A(f'v_mul_u32_u24 {b}, {rs}, {b}')
        A(f'v_and_b32 {t}, 3, {s.vLane}'); A(f'v_lshl_add_u32 {b}, {t}, 3, {b}')
        A(f'v_and_b32 {t}, 16, {s.vLane}'); A(f'v_lshl_add_u32 {b}, {t}, 1, {b}')
        if NT == 3:
            f = s.dsaddr(b, wins, regs=regs[1:] if regs else None); s.V.put(t)
            return [(lambda c, J=J: f(c + 64 * J)) for J in range(3)], f.regs
        A(f'v_and_b32 {t}, 8, {s.vLane}'); A(f'v_lshlrev_b32 {t}, 3, {t}')
        A(f'v_xor_b32 {b}, {b}, {t}'); A(f'v_add_u32 {b}, {add}, {b}'); A(f'v_xor_b32 {t}, 64, {b}')
        f0 = s.dsaddr(b, wins); f1 = s.dsaddr(t, wins)
        return [f0, f1], f0.regs + f1.regs
    def f16_voff(s, d, tok, nkb):
        A = s.A; t = s.V.get()
        A(f'v_lshrrev_b32 {t}, 4, {tok}'); A(f'v_mul_u32_u24 {t}, {nkb * 1024}, {t}')
        A(f'v_and_b32 {d}, 15, {tok}'); A(f'v_lshl_add_u32 {d}, {d}, 4, {t}')
        A(f'v_and_b32 {t}, 32, {s.vLane}'); A(f'v_lshl_add_u32 {d}, {t}, 3, {d}')
        s.V.put(t)
    def snap(s): return (s.V.snapshot(), s.AG.snapshot(), s.S.snapshot())
    def rest(s, x): s.V.restore(x[0]); s.AG.restore(x[1]); s.S.restore(x[2])

    def entry(s):
        A = s.A; S = s.S; V = s.V
        if s.o['fix']: s.sE2 = S.get(2); s.sE3 = S.get(2); A(f's_memrealtime {s.sE2}')
        if s.stamps: s.sEnt = S.get(2); A(f's_mem{"" if "cyc" in s.dbg else "real"}time {s.sEnt}')
        A('s_cmp_ge_u32 s2, 256'); A('s_cbranch_scc1 L_end')
        s.sT0, s.sT1, s.sT2, s.sT3 = S.get(), S.get(), S.get(), S.get()
        s.sW, s.sN, s.sSp, s.sIdx, s.sXr, s.sXc, s.sRb, s.sCl, s.sRb2, s.sJ2, s.sC3, s.sG = [S.get() for _ in range(12)]
        s.vLane, s.vN, s.vCtl, s.vL16, s.vL0 = [V.get() for _ in range(5)]; s.vF = V.get(2); s.vBit = V.get()
        t = V.get(); pc = S.get(2); s.vJunk = R('a', s.AG.hi - 4, 4)
        def kargs():
            A(f's_load_dwordx4 s[88:91], s[0:1], 0'); A(f's_load_dwordx8 s[92:99], s[0:1], 32')
            for srd, off in [(sWS, 80), (sWO, 16), (sOUT, 64)]: A(f's_load_dwordx2 {srd[0:2]}, s[0:1], {off}')
        if s.o['ke']: kargs()
        A(f's_getpc_b64 {pc}'); A('L_pc:')
        A(f's_lshr_b32 {s.sIdx}, s2, 3'); A(f's_mul_i32 {s.sT2}, {s.sIdx}, 3072')
        A(f'v_min_u32 {t}, 191, v0'); A(f'v_lshl_add_u32 {t}, {t}, 4, {s.sT2}'); A(f'v_min_u32 {t}, L_codeend-L_pc-16, {t}')
        A(f'global_load_dwordx4 {s.vJunk}, {t}, {pc}')
        A(f'v_and_b32 {s.vLane}, 63, v0'); A(f'v_mov_b32 {s.vCtl}, {CTRL}'); A(f'v_mov_b32 {s.vN}, 0'); A(f'v_lshl_add_u32 {t}, {s.vLane}, 2, {s.vCtl}'); A(f'ds_write_b32 {t}, {s.vN}')
        A(f'v_lshrrev_b32 {t}, 6, v0'); A(f'v_lshlrev_b32 {s.vL16}, 4, {s.vLane}')
        A(f'v_readfirstlane_b32 {s.sW}, {t}')
        if not s.o['ke']: A('s_waitcnt lgkmcnt(0)'); kargs(); A('s_barrier')
        S.put(pc)
        if s.stamps: s.sStamp = S.get(2); s.vStamp = V.get(); A(f'v_mov_b32 {s.vStamp}, 0')
        A(f's_and_b32 {s.sXr}, s2, 3'); A(f's_bfe_u32 {s.sXc}, s2, 0x10002')
        A(f's_and_b32 {s.sT2}, {s.sIdx}, 3'); A(f's_lshl2_add_u32 {s.sRb}, {s.sXr}, {s.sT2}'); A(f's_lshr_b32 {s.sCl}, {s.sIdx}, 2')
        A(f's_lshr_b32 {s.sG}, {s.sIdx}, 3'); A(f's_and_b32 {s.sJ2}, {s.sIdx}, 7'); A(f's_lshl3_add_u32 {s.sC3}, {s.sXc}, {s.sJ2}')
        if s.o['m4']: A(f's_lshl3_add_u32 {s.sRb2}, {s.sXr}, {s.sCl}'); A(f's_lshl2_add_u32 {s.sJ2}, {s.sXc}, {s.sT2}')
        else: A(f's_lshl1_add_u32 {s.sT0}, {s.sXr}, {s.sXc}'); A(f's_lshl2_add_u32 {s.sRb2}, {s.sT0}, {s.sG}')
        A(f's_mov_b32 {s.sSp}, {SPIN}')
        V.put(t)
        A(f's_cmp_eq_u32 {s.sW}, 4'); A('s_cbranch_scc1 L_load0')
        A(f's_cmp_lt_u32 {s.sW}, 4'); A('s_cbranch_scc1 L_comp')
        A(f's_cmp_ge_u32 {s.sW}, 6'); A('s_cbranch_scc1 L_job')
        A.ctl('save', 'entry')
    def rot4(s, d):
        A = s.A; rj = s.o['rj']
        if rj == 0: A(f's_and_b32 {d}, {s.sRb2}, 3'); return
        A(f's_lshl1_add_u32 {d}, {s.sJ2}, {s.sRb2}' if rj == 2 else f's_add_u32 {d}, {s.sJ2}, {s.sRb2}'); A(f's_and_b32 {d}, {d}, 3')
    def rot2(s, d):
        s.A(f's_mul_i32 {d}, {s.sG}, 5'); s.A(f's_lshr_b32 {d}, {d}, 1')
    def fixat(s, k):
        if s.o['fix'] and s.o['fixp'] == k:
            A = s.A; L = s.lab()
            A(f'{L}:'); A(f's_memrealtime {s.sE3}'); A('s_waitcnt lgkmcnt(0)'); A(f's_sub_u32 {s.sE3[0]}, {s.sE3[0]}, {s.sE2[0]}'); A(f's_cmp_lt_u32 {s.sE3[0]}, {s.o["fix"]}'); A(f's_cbranch_scc1 {L}')
    def mkL0(s):
        A = s.A; t = s.V.get()
        A(f'v_cmp_eq_u32 vcc, 0, {s.vLane}'); A(f'v_mov_b32 {t}, {OOB}'); A(f'v_cndmask_b32 {s.vL0}, {t}, {s.vLane}, vcc'); s.V.put(t)

    def voff10(s):
        A = s.A; V = s.V; x = [V.get() for _ in range(5)]; t = V.get()
        for k in range(5):
            A(f'v_add_u32 {t}, {64 * k}, {s.vLane}'); A(f'v_mul_u32_u24 {t}, 6554, {t}'); A(f'v_lshrrev_b32 {t}, 16, {t}')
            A(f'v_mul_u32_u24 {t}, 1120, {t}'); A(f'v_add_u32 {x[k]}, {t}, {s.vL16}')
        A(f'v_add_u32 {x[4]}, 4096, {x[4]}'); V.put(t)
        return x
    def prog_wait(s, q4, val, sl=0):
        A = s.A; L4 = s.lab(); L5 = s.lab()
        A(f'{L4}:'); A(f'ds_read_b128 {q4}, {s.vCtl} offset:16'); s.tick_spin(L5, sl)
        A(f'v_min3_u32 {q4[0]}, {q4[0]}, {q4[1]}, {q4[2]}'); A(f'v_min_u32 {q4[0]}, {q4[0]}, {q4[3]}'); A(f'v_cmp_gt_u32 vcc, {val}, {q4[0]}'); A(f's_cbranch_vccnz {L4}')
        A(f'{L5}:')
    def job(s):
        A = s.A; S = s.S; V = s.V; o = s.o
        A('L_job:'); A.ctl('restore', 'entry')
        t = V.get(); u = V.get(); vC0 = V.get(); ad = V.get(); wb = [V.get(4) for _ in range(3)]; vo = [V.get() for _ in range(4)]; sK = S.get()
        A(f's_and_b32 {sK}, {s.sW}, 1')
        A(f'v_lshrrev_b32 {t}, 3, {s.vLane}'); A(f'v_and_b32 {u}, 7, {s.vLane}')
        A(f's_cmp_eq_u32 {s.sW}, 7'); A('s_cbranch_scc1 L_job1')
        A.ctl('save', 'jfork'); sn = s.snap()
        def after_bar():
            s.bar0()
            A(f's_load_dword {s.sN}, {sWS[0:2]}, 0')
            s.srd(sWO); s.mkL0()
            if 'xw2' in s.dbg: A(f's_mov_b32 {sWO[2]}, 0')
            A(f'v_lshrrev_b32 {vC0}, 10, {s.vL0}'); A(f's_lshl_b32 {s.sT0}, {sK}, 2'); A(f's_add_u32 {s.sT0}, {s.sT0}, {CTRL}'); A(f'v_add_u32 {vC0}, {s.sT0}, {vC0}')
            A(f'v_lshrrev_b32 {ad}, 4, {s.vLane}'); A(f'v_lshlrev_b32 {ad}, 3, {ad}'); A(f'v_bfe_u32 {t}, {s.vLane}, 2, 2'); A(f'v_add_u32 {ad}, {ad}, {t}')
            A(f'v_and_b32 {t}, 3, {s.vLane}'); A(f'v_lshlrev_b32 {t}, 3, {t}')
            A(f'v_mul_u32_u24 {u}, 160, {ad}'); A(f'v_add_u32 {u}, {u}, {t}'); A(f'v_lshl_add_u32 {ad}, {ad}, 7, {t}')
        def wo_dma(addr):
            x = s.voff10()
            A(f's_mul_i32 {s.sT1}, {s.sRb2}, 25600'); A(f's_mul_i32 {s.sT2}, {s.sJ2}, 160'); A(f's_mov_b32 m0, {addr}'); A(f's_add_u32 {s.sT1}, {s.sT1}, {s.sT2}')
            for i in range(4): A(f'buffer_load_dwordx4 {x[i]}, {sWO}, {s.sT1} offen offset:{1024 * i} nt lds')
            A(f's_mov_b32 m0, {addr + 4096}'); last = A(f'buffer_load_dwordx4 {x[4]}, {sWO}, {s.sT1} offen nt lds')
            V.put(*x); return last
        def wo_read(addr, k):
            A(f'v_add_u32 {u}, {addr + 96 * k}, {u}')
            for i in range(3):
                for t2 in range(2): A(f'ds_read_b64_tr_b16 {wb[i].sub(2*t2, 2)}, {u} offset:{32 * i + 640 * t2}')
        sLc = S.get(); ml = s.sT2; idx = s.sIdx
        if o['cr']: idx = s.sT3; A(f's_sub_u32 {idx}, 31, {s.sIdx}')
        A(f's_movk_i32 {sLc}, 10'); A(f's_movk_i32 {ml}, 5')
        for th, a_, m_ in [(5, 15, None), (10, -10, 3), (13, 17, None), (16, -10, 2), (18, 18, None), (20, 20, 12)]:
            A(f's_cmp_ge_u32 {idx}, {th}'); A(f's_cmovk_i32 {sLc}, {a_}')
            if m_: A(f's_cmovk_i32 {ml}, {m_}')
        A(f's_mul_i32 {ml}, {ml}, {s.sXc}'); A(f's_add_u32 {sLc}, {sLc}, {idx}'); A(f's_add_u32 {sLc}, {sLc}, {ml}')
        s.srd(sWQKV, sW1, sW3, sWS)
        if 'xw3' in s.dbg: A(f's_mov_b32 {sW3[2]}, 0')
        if 'xcs' in s.dbg: A(f's_mov_b32 {sW3[2]}, 0'); A(f's_mov_b32 {sW1[2]}, 0'); A(f's_mov_b32 {sWQKV[2]}, 0')
        st = s.sT1; lc = s.sT0
        A(f's_cmp_lt_u32 {sLc}, 40'); A(f's_movk_i32 {st}, 3072'); A(f's_cmovk_i32 {st}, 1280'); A(f's_cselect_b32 {s.sT2}, 30, 40')
        A(f's_cmp_lt_u32 {sLc}, 30'); A(f's_cmovk_i32 {st}, 3840'); A(f's_cmovk_i32 {s.sT2}, 0')
        A(f's_sub_u32 {lc}, {sLc}, {s.sT2}'); A(f's_lshl_b32 {lc}, {lc}, 7')
        A(f's_mul_i32 {s.sT2}, {s.sXr}, 160'); A(f's_mul_i32 {s.sT2}, {s.sT2}, {st}'); A(f's_add_u32 {lc}, {lc}, {s.sT2}')
        A(f'v_mul_lo_u32 {vo[0]}, {t}, {st}'); A(f'v_lshl_add_u32 {vo[0]}, {u}, 4, {vo[0]}')
        A(f's_lshl_b32 {s.sT2}, {st}, 3'); A(f's_sub_u32 {s.sT2}, {s.sT2}, 1024')
        for i in range(1, 4): A(f'v_add_u32 {vo[i]}, {s.sT2}, {vo[i-1]}')
        A(f's_lshl_b32 {st}, {st}, 5')
        s.base(sW1, sW3, sWQKV)
        A(f's_cmp_lt_u32 {sLc}, 40')
        A(f's_cselect_b64 {sD0[0:2]}, {sW1[0:2]}, {sW3[0:2]}'); A(f's_cselect_b32 {sD0[2]}, {sW1[2]}, {sW3[2]}')
        A(f's_cmp_lt_u32 {sLc}, 30')
        A(f's_cselect_b64 {sD0[0:2]}, {sWQKV[0:2]}, {sD0[0:2]}'); A(f's_cselect_b32 {sD0[2]}, {sWQKV[2]}, {sD0[2]}')
        A(f's_mov_b32 {sD0[3]}, 0x20000')
        CSA = s.st[3].addr
        if o['iss']: s.lds_wait(64, 1)
        for g in range(5):
            A(f's_mov_b32 m0, {CSA + 4096 * g}')
            if g: A(f's_add_u32 {lc}, {lc}, {st}')
            for i in range(4): cs_last = A(f'buffer_load_dwordx4 {vo[i]}, {sD0}, {lc} offen offset:{1024 * i} lds')
            if g == 1 and o['ke']: A('s_barrier')
        s.stamp(0); ke = o['ke']; o['ke'] = 0; after_bar(); o['ke'] = ke
        s.nonce()
        ones = V.get(4); fr = V.get(80); D = [V.get(4) for _ in range(4)]
        A(f's_sub_u32 {s.sT0}, {sLc}, 10'); A(f's_cmp_gt_u32 {s.sT0}, 4'); A(f's_subb_u32 {s.sT1}, {s.sT0}, 0'); A(f's_lshl_b32 {s.sT1}, {s.sT1}, 8'); A(f's_add_u32 {s.sT1}, {s.sT1}, {FK}')
        L = s.lab(); ini = [S.get(2) for _ in range(2)]
        A(f's_cmp_eq_u32 {s.sT0}, 4'); A(f's_cbranch_scc1 {L}'); A(f's_cmp_ge_u32 {s.sT0}, 9'); A(f's_cbranch_scc1 {L}'); A(f's_cmp_lg_u32 {s.sXr}, 0'); A(f's_cbranch_scc1 {L}')
        for k, x_ in enumerate(ini):
            A(f's_mov_b32 {x_[0]}, 0'); A(f's_mov_b32 {x_[1]}, {s.sN}'); A(f's_atomic_swap_x2 {x_}, {sWS[0:2]}, {s.sT1} glc'); A(f's_add_u32 {s.sT1}, {s.sT1}, 128')
        A(f'{L}:')
        for i in range(4): A(f'v_mov_b32 {ones[i]}, 0x3f803f80')
        A(f'v_mov_b32 {t}, 1')
        A.waitvm(cs_last)
        for w in range(4):
            for ks in range(5):
                for t2 in range(2): A(f'ds_read_b64_tr_b16 {fr.sub(20*w + 4*ks + 2*t2, 2)}, {ad} offset:{CSA + 32 * w + (32*ks + 4*t2) * 128}')
        A(f'ds_write_b32 {vC0}, {t} offset:8')
        for w in range(4):
            for ks in range(5): A(f'v_mfma_f32_16x16x32_bf16 {D[w]}, {ones}, {fr.sub(20*w + 4*ks, 4)}, {"0" if ks == 0 else D[w]}')
        A(f's_lshl_b32 {sLc}, {sLc}, 9'); A(f's_lshl_b32 {s.sT0}, {s.sXr}, 15'); A(f's_add_u32 {sLc}, {sLc}, {s.sT0}'); A(f's_add_u32 {sLc}, {sLc}, {CS}'); A(f'v_lshlrev_b32 {vo[0]}, 3, {s.vLane}')
        for w in range(1, 4):
            A(f'v_cmp_le_u32 vcc, {16 * w}, {s.vLane}'); A(f'v_cndmask_b32 {D[0][0]}, {D[0][0]}, {D[w][0]}, vcc')
        A(f'v_mov_b32 {D[0][1]}, {s.sN}'); A('s_waitcnt lgkmcnt(0)'); S.put(*ini)
        A(f'buffer_store_dwordx2 {D[0][0:2]}, {vo[0]}, {sWS}, {sLc} offen sc1')
        s.stamp(1)
        s.lds_wait(12, 1, sl=2); wo_read(RPB + 4 * KB, 0); A(f'v_mov_b32 {t}, 1'); A(f'ds_write_b32 {vC0}, {t} offset:40')
        V.put(ones, fr, *D)
        a0, b0, nA = S.get(), S.get(), S.get(); sl_ = [S.get() for _ in range(4)]
        A(f's_lshl1_add_u32 {s.sT0}, {s.sXc}, {s.sCl}'); A(f's_cmp_lt_u32 {s.sCl}, 6'); A(f's_cselect_b32 {s.sT1}, 4, 6'); A(f's_cselect_b32 {a0}, 1920, 0'); A(f's_cselect_b32 {b0}, 0, 1920')
        A(f's_sub_u32 {s.sT0}, {s.sT0}, {s.sT1}'); A(f's_mul_i32 {s.sT1}, {s.sT0}, 96'); A(f's_add_u32 {a0}, {a0}, {s.sT1}'); A(f's_lshl_b32 {s.sT1}, {s.sT0}, 6'); A(f's_add_u32 {b0}, {b0}, {s.sT1}'); A(f's_add_u32 {b0}, {b0}, {384 - 96}')
        A(f's_lshl2_add_u32 {s.sT0}, {s.sXc}, {s.sCl}'); A(f's_mul_i32 {s.sT0}, {s.sT0}, 80'); A(f's_add_u32 {s.sT1}, {s.sT0}, 640'); A(f's_add_u32 {s.sT0}, {s.sT0}, {1280 - 80}')
        A(f's_movk_i32 {nA}, 96'); A(f's_cmp_lt_u32 {s.sCl}, 4'); A(f's_cmov_b32 {a0}, {s.sT1}'); A(f's_cmov_b32 {b0}, {s.sT0}'); A(f's_cmovk_i32 {nA}, 80')
        A(f's_mul_i32 {s.sT2}, {s.sC3}, 96'); A(f's_add_u32 {s.sT2}, {s.sT2}, {2560 - 160}')
        for g in range(4):
            A(f'v_add_u32 {t}, {64 * g}, {s.vLane}')
            if g == 0: A(f'v_add_u32 {vo[g]}, {a0}, {t}')
            elif g == 3: A(f'v_add_u32 {vo[g]}, {s.sT2}, {t}')
            else:
                lo, hi, th = (a0, b0, nA) if g == 1 else (b0, s.sT2, 160)
                A(f'v_cmp_gt_u32 vcc, {th}, {t}'); A(f'v_add_u32 {vo[g]}, {lo}, {t}'); A(f'v_add_u32 {t}, {hi}, {t}'); A(f'v_cndmask_b32 {vo[g]}, {t}, {vo[g]}, vcc')
            A(f'v_lshlrev_b32 {vo[g]}, 3, {vo[g]}'); A(f's_mov_b32 {sl_[g]}, {CS + 32768 * g}')
        A(f's_lshl_b32 {a0}, {s.sRb}, 11'); A(f's_add_u32 {a0}, {a0}, {RS}'); A(f's_lshl_b32 {b0}, {s.sRb2}, 10'); A(f's_add_u32 {b0}, {b0}, {RS}')
        gr = [V.get(4) for _ in range(3)]; cg = [[V.get(2) for _ in range(4)] for _ in range(4)]; q4 = V.get(4); v8 = V.get()
        loads = [f'buffer_load_dwordx4 {gr[i]}, {s.vL16}, {sWS}, {a0} offen offset:{1024 * i} sc1' for i in range(2)] + [f'buffer_load_dwordx4 {gr[2]}, {s.vL16}, {sWS}, {b0} offen sc1']
        loads += [f'buffer_load_dwordx2 {cg[g][e]}, {vo[g]}, {sWS}, {sl_[e]} offen sc1' for g in range(4) for e in range(4)]
        A(f'v_lshlrev_b32 {v8}, 3, {s.vLane}'); A(f'v_add_u32 {v8}, {GW}, {v8}'); A(f'v_add_u32 {ad}, {GK}, {s.vL16}'); A(f'v_lshlrev_b32 {u}, 2, {s.vLane}'); A(f'v_add_u32 {u}, {G1}, {u}')
        s.lds_wait(0, o['gd'], sl=4)
        for ld in loads: A(ld)
        s.checked(loads, [g[3] for g in gr] + [c[1] for r_ in cg for c in r_], sl=8)
        for g in range(4):
            c = cg[g]
            A(f'v_add_f32 {c[0][0]}, {c[0][0]}, {c[1][0]}'); A(f'v_add_f32 {c[2][0]}, {c[2][0]}, {c[3][0]}'); A(f'v_add_f32 {c[0][0]}, {c[0][0]}, {c[2][0]}')
            A(f'v_cvt_pk_bf16_f32 {c[1][1]}, {c[0][0]}, {c[0][0]}'); A(f'v_and_b32 {c[2][0]}, 0xffff0000, {c[1][1]}'); A(f'v_sub_f32 {c[2][1]}, {c[0][0]}, {c[2][0]}')
            A(f'v_cvt_pk_bf16_f32 {c[1][0]}, {c[2][0]}, {c[2][1]}'); A(f'v_and_b32 {c[1][1]}, 0xffff, {c[1][1]}')
            A(f'ds_write_b64 {v8}, {c[1]} offset:{512 * g}')
        for i in range(2):
            g = gr[i]; c = cg[i][0]
            A(f'v_cvt_pk_bf16_f32 {c[0]}, -{g[1]}, -{g[1]}'); A(f'v_and_b32 {c[1]}, 0xffff0000, {c[0]}'); A(f'v_sub_f32 {c[1]}, -{g[1]}, {c[1]}'); A(f'v_cvt_pk_bf16_f32 {c[1]}, {c[1]}, 0')
            A(f'ds_write_b64 {v8}, {c} offset:{GX - GW + 512 * i}'); A(f'ds_write_b32 {u}, {g[0]} offset:{256 * i}')
            A(f'v_mul_f32 {t}, {g[0]}, {g[2]}'); A(f'v_mov_b32 {g[3]}, {g[0]}'); A(f'v_rcp_f32 {g[2]}, {t}')
            A(f'v_mul_f32 {g[0]}, {hexf(GC0)}, {t}'); A(f'v_mul_f32 {g[1]}, {t}, {t}'); A(f'v_mul_f32 {g[1]}, {g[1]}, {t}'); A(f'v_mul_f32 {g[1]}, {hexf(GC1)}, {g[1]}')
            A(f'ds_write_b128 {ad}, {g} offset:{1024 * i}')
        A(f'v_mul_f32 {gr[2][1]}, {gr[2][0]}, {gr[2][1]}'); A(f'ds_write_b64 {v8}, {gr[2][0:2]} offset:{G2 - GW}')
        A(f'v_mov_b32 {t}, 1'); A(f'ds_write_b32 {vC0}, {t} offset:36')
        A('s_waitcnt vmcnt(0) lgkmcnt(0)'); A('s_branch L_jobj')
        s.rest(sn); A('L_job1:'); A.ctl('restore', 'jfork')
        junk = V.get(2); q = V.get()
        A(f'v_mul_u32_u24 {vo[0]}, 1280, {t}'); A(f'v_lshl_add_u32 {vo[0]}, {u}, 4, {vo[0]}')
        for i in range(1, 4): A(f'v_add_u32 {vo[i]}, {8 * 1280 - 1024}, {vo[i-1]}')
        s.srd(sWS, sW4, sW2)
        if 'xw2' in s.dbg: A(f's_mov_b32 {sW2[2]}, 0')
        kb = [S.get() for _ in range(2)]; lcc = [S.get() for _ in range(2)]; nt = 'nt' if o['ntr'] else ''
        for r in range(2):
            A(f's_add_u32 {lcc[r]}, s2, {256 * r}'); A(f's_mul_i32 {kb[r]}, {lcc[r]}, 6554'); A(f's_lshr_b32 {kb[r]}, {kb[r]}, 16')
            A(f's_mul_i32 {s.sT2}, {kb[r]}, 10'); A(f's_sub_u32 {lcc[r]}, {lcc[r]}, {s.sT2}')
        fr = V.get(64)
        def rp_ld(srd, r):
            A(f's_mul_i32 {s.sT0}, {kb[r]}, 40960'); A(f's_lshl_b32 {s.sT2}, {lcc[r]}, 7'); A(f's_mov_b32 m0, {RPB}'); A(f's_add_u32 {s.sT0}, {s.sT0}, {s.sT2}')
            for i in range(4): x = A(f'buffer_load_dwordx4 {vo[i]}, {srd}, {s.sT0} offen offset:{1024 * i} {nt} lds')
            return x
        def rp_rd(r):
            for w in range(4):
                for t2 in range(2): A(f'ds_read_b64_tr_b16 {fr.sub(16*r + 4*w + 2*t2, 2)}, {ad} offset:{32 * w + 512 * t2}')
        def rp_st(r, nkb, base):
            A(f's_mul_i32 {s.sT1}, {kb[r]}, 5')
            for w in range(4):
                A(f's_lshl_b32 {s.sT0}, {lcc[r]}, 2'); A(f's_add_u32 {s.sT0}, {s.sT0}, {w}'); A(f's_mul_i32 {s.sT2}, {s.sT0}, 52'); A(f's_lshr_b32 {s.sT2}, {s.sT2}, 8')
                A(f's_mul_i32 {s.sT2}, {s.sT2}, {5 * nkb - 5}'); A(f's_add_u32 {s.sT0}, {s.sT0}, {s.sT2}'); A(f's_add_u32 {s.sT0}, {s.sT0}, {s.sT1}')
                A(f's_lshl_b32 {s.sT0}, {s.sT0}, 10'); A(f's_add_u32 {s.sT0}, {s.sT0}, {base}')
                A(f's_cmp_ge_u32 {kb[r]}, {nkb}'); A(f's_cmov_b32 {s.sT0}, {OOB}')
                x = A(f'buffer_store_dwordx4 {fr.sub(16*r + 4*w, 4)}, {s.vL16}, {sWS}, {s.sT0} offen sc1')
            return x
        def rp_fl(r, fb, sh): A(f's_lshl_b32 {s.sT0}, {lcc[r]}, {sh}'); A(f's_lshl2_add_u32 {s.sT0}, {kb[r]}, {s.sT0}'); A(f's_add_u32 {s.sT0}, {s.sT0}, {fb}'); A(s.swaptxt(s.sT0))
        xs = V.get(40); sRow0 = S.get()
        s.srd(sX)
        A(f's_lshl1_add_u32 {sRow0}, {s.sXr}, {s.sXc}'); A(f's_lshl_b32 {sRow0}, {sRow0}, 5'); A(f's_add_u32 {sRow0}, {sRow0}, {s.sIdx}'); A(f's_mul_i32 {s.sT3}, {sRow0}, 10240')
        s.base(sX, sW2, sW4)
        if o['iss']: s.lds_wait(64, 1)
        for i in range(10): A(f'buffer_load_dwordx4 {xs.sub(4*i, 4)}, {vo[0]}, {sX}, {s.sT3} offen offset:{128 * i}')
        x = rp_ld(sW2, 0)
        s.stamp(0)
        after_bar()
        wl = wo_dma(RPB + 4 * KB)
        L = s.lab()
        A('s_cmp_lt_u32 s2, 220'); A(f's_cbranch_scc1 {L}')
        A(f's_lshl_b32 {s.sT0}, s2, 7'); A(f's_add_u32 {s.sT0}, {s.sT0}, {FR2 - 220 * 128}'); A(f's_mov_b32 {s.sT1}, 0'); A(f's_atomic_add {s.sT1}, {sWS[0:2]}, {s.sT0} glc')
        A(f'{L}:')
        s.nonce()
        ini = [S.get(2) for _ in range(6)]; ini0 = list(ini)
        for grp, msk in (([(F1, 4), (FQ, 4), (FP, 4)], 7), ([(F2, 5), (F3, 5)], 3), ([(FW, 7)], -8)):
            L = s.lab()
            A(f's_and_b32 {s.sT1}, {sRow0}, {msk}'); A(f's_cbranch_scc1 {L}')
            for base, sh in grp:
                x_ = ini.pop(); A(f's_lshl_b32 {s.sT0}, {sRow0}, {sh}'); A(f's_add_u32 {s.sT0}, {s.sT0}, {base}'); A(f's_mov_b32 {x_[0]}, 0'); A(f's_mov_b32 {x_[1]}, {s.sN}')
                A(f's_atomic_swap_x2 {x_}, {sWS[0:2]}, {s.sT0} glc')
            A(f'{L}:')
        A(f'v_add_u32 {ad}, {RPB}, {ad}')
        g = V.get(4); sm = g[1]; sq = V.get(); one = V.get()
        A(f'v_mov_b32 {one}, 0x3f803f80'); A(f'v_mov_b32 {sm}, 0'); A(f'v_mov_b32 {sq}, 0')
        for i in range(40): A(f'v_dot2c_f32_bf16 {sm}, {xs[i]}, {one}'); A(f'v_dot2c_f32_bf16 {sq}, {xs[i]}, {xs[i]}')
        for m in ['quad_perm:[1,0,3,2]', 'quad_perm:[2,3,0,1]', 'row_half_mirror']:
            A(f'v_add_f32_dpp {sm}, {sm}, {sm} {m} row_mask:0xf bank_mask:0xf'); A(f'v_add_f32_dpp {sq}, {sq}, {sq} {m} row_mask:0xf bank_mask:0xf')
        A(f'v_mul_f32 {sm}, {hexf(1.0/640)}, {sm}'); A(f'v_mul_f32 {sq}, {hexf(1.0/640)}, {sq}')
        A(f'v_fma_f32 {sq}, -{sm}, {sm}, {sq}'); A(f'v_max_f32 {sq}, 0, {sq}')
        s.rstd(g[0], sq); A(f'v_rcp_f32 {g[0]}, {g[0]}')
        A(f'v_mov_b32 {g[3]}, {s.sN}')
        A(f'v_mul_f32 {sq}, {sq}, {g[0]}'); A(f'v_mul_f32 {sq}, {sq}, {g[0]}')
        s.rstd(g[2], sq); A(f'v_rcp_f32 {g[2]}, {g[2]}')
        A(f'v_lshlrev_b32 {t}, 5, {s.vLane}')
        for e in range(3): A(f'ds_bpermute_b32 {g[e]}, {t}, {g[e]}')
        A(f's_lshl_b32 {s.sT0}, {sRow0}, 7'); A(f's_add_u32 {s.sT0}, {s.sT0}, {RS}')
        A('s_waitcnt lgkmcnt(0)'); S.put(*ini0)
        A('s_mov_b64 exec, 0xff')
        A(f'buffer_store_dwordx4 {g}, {s.vL16}, {sWS}, {s.sT0} offen sc1'); A('s_mov_b64 exec, -1')
        A.waitvm(x); rp_rd(0); x = rp_st(0, 20, W2R)
        A(f'v_mov_b32 {t}, 1')
        A.waitvm(wl); wo_read(RPB + 4 * KB, 1); A(f'ds_write_b32 {vC0}, {t} offset:8')
        A.waitvm(x); rp_fl(0, FR2, 7)
        s.stamp(1)
        NR, ST = (4, 128) if o['rt1'] else (2, 256)
        Ls = s.lab()
        A(f'v_mov_b32 {t}, 1')
        if o['rt1']: A('s_cmp_ge_u32 s2, 128'); A(f's_cbranch_scc1 {Ls}')
        kb += [S.get() for _ in range(2)]; lcc += [S.get() for _ in range(2)]
        for r in range(NR):
            A(f's_add_u32 {lcc[r]}, s2, {ST * r}'); A(f's_mul_i32 {kb[r]}, {lcc[r]}, 6554'); A(f's_lshr_b32 {kb[r]}, {kb[r]}, 16')
            A(f's_mul_i32 {s.sT2}, {kb[r]}, 10'); A(f's_sub_u32 {lcc[r]}, {lcc[r]}, {s.sT2}')
        A(f'v_add_u32 {q}, {RPB}, {s.vL16}'); A(f'v_lshlrev_b32 {sq}, 7, {s.vLane}'); A(f'v_mov_b32 {junk[0]}, 0')
        s.lds_wait(0, o['jd'], sl=8)
        for r in range(NR):
            A(f's_mul_i32 {s.sT0}, {kb[r]}, 40960'); A(f's_lshl_b32 {s.sT2}, {lcc[r]}, 7'); A(f's_add_u32 {s.sT0}, {s.sT0}, {s.sT2}')
            for i in range(4): A(f'buffer_load_dwordx4 {fr.sub(16*r + 4*i, 4)}, {vo[i]}, {sW4}, {s.sT0} offen offset:{1024 * i} {nt}')
        nl = 6400 // ST
        A(f's_mul_i32 {s.sT0}, s2, {nl * 128}'); A(f's_add_u32 {s.sT0}, {s.sT0}, {WOP}')
        if o['pt']:
            A(f's_mov_b32 exec_lo, {hex(((1 << nl) - 1) & 0xffffffff)}'); A(f's_mov_b32 exec_hi, {hex(((1 << nl) - 1) >> 32)}')
            A(f'buffer_load_dword {junk[0]}, {sq}, {sWS}, {s.sT0} offen sc1' if o['pt'] == 1 else f'buffer_atomic_add {junk[0]}, {sq}, {sWS}, {s.sT0} offen sc1'); A('s_mov_b64 exec, -1')
        for r in range(NR):
            for i in range(4): A(f'ds_write_b128 {q}, {fr.sub(16*r + 4*i, 4)} offset:{1024 * i}')
            A('s_waitcnt lgkmcnt(0)'); rp_rd(r)
        A(f'ds_write_b32 {vC0}, {t} offset:40')
        if o['jd2']: s.prog_wait(g, o['jd2'], sl=4)
        for r in range(NR): x = rp_st(r, 48, W4R)
        A.waitvm(x)
        for r in range(NR): rp_fl(r, FR4, 8)
        A(f'{Ls}:')
        A(f'ds_write_b32 {vC0}, {t} offset:40')
        A('s_waitcnt vmcnt(0) lgkmcnt(0)')
        s.rest(sn); A('L_jobj:')
        s.stamp(2)
        if s.stop > 2:
            vTok, pa, vk, vz, vp, vkw, vka, q, vfl = [V.get() for _ in range(9)]; wa = [V.get() for _ in range(2)]
            sHp = S.get()
            A(f'v_and_b32 {vTok}, 15, {s.vLane}'); A(f's_lshl1_add_u32 {sHp}, {s.sJ2}, {sK}')
            sP = [S.get() for _ in range(3)]
            A(f's_lshl_b32 {sP[0]}, {s.sRb2}, 7'); A(f's_add_u32 {sP[0]}, {sP[0]}, {FQ}'); A(f's_lshl_b32 {sP[1]}, {sHp}, 7'); A(f's_add_u32 {sP[1]}, {sP[1]}, {FK}')
            A(f's_lshr_b32 {sP[2]}, {s.sRb2}, 1'); A(f's_lshl_b32 {sP[2]}, {sP[2]}, 7'); A(f's_add_u32 {sP[2]}, {sP[2]}, {FK}')
            d40 = vk; E = vz
            A(f'v_min_u32 {q}, 49, {s.vLane}'); A(f's_mul_i32 {s.sT0}, {sK}, 50'); A(f'v_add_u32 {q}, {s.sT0}, {q}')
            A(f'v_mul_u32_u24 {u}, 3277, {q}'); A(f'v_lshrrev_b32 {u}, 16, {u}'); A(f'v_mul_u32_u24 {d40}, 20, {u}'); A(f'v_sub_u32 {d40}, {q}, {d40}')
            A(f'v_lshlrev_b32 {q}, 6, {d40}'); A(f'v_lshl_add_u32 {q}, {u}, 3, {q}'); A(f'v_add_u32 {vkw}, {KVB}, {q}')
            A(f's_and_b32 {s.sT0}, {s.sRb2}, 1'); A(f's_mul_i32 {s.sT0}, {s.sT0}, 20'); A(f'v_add_u32 {d40}, {s.sT0}, {d40}')
            A(f's_add_u32 {s.sT0}, {s.sT0}, 8'); A(f'v_lshl_add_u32 {E}, {u}, 2, {s.sT0}'); A(f'v_lshlrev_b32 {E}, 6, {E}')
            A(f'v_lshrrev_b32 {u}, 4, {d40}'); A(f'v_lshl_add_u32 {E}, {u}, 11, {E}'); A(f'v_and_b32 {d40}, 15, {d40}'); A(f'v_lshl_add_u32 {E}, {d40}, 4, {E}')
            A(f's_lshr_b32 {s.sT0}, {s.sRb2}, 1'); A(f's_mul_i32 {s.sT0}, {s.sT0}, {KVH}'); A(f'v_add_u32 {vk}, {s.sT0}, {E}')
            A(f'v_lshrrev_b32 {t}, 4, {s.vLane}'); A(f'v_lshlrev_b32 {u}, 4, {vTok}')
            A(f's_mul_i32 {s.sT0}, {sHp}, {KVH}'); A(f's_add_u32 {s.sT0}, {s.sT0}, 7168'); A(f'v_mul_u32_u24 {vz}, {KVP}, {t}'); A(f'v_add3_u32 {vz}, {vz}, {u}, {s.sT0}')
            A(f's_mul_i32 {s.sT0}, {s.sRb2}, 81920'); A(f's_mul_i32 {s.sT1}, {sHp}, 1280'); A(f's_add_u32 {s.sT0}, {s.sT0}, {s.sT1}'); A(f's_add_u32 {s.sT0}, {s.sT0}, {PQ}')
            A(f'v_mul_u32_u24 {vp}, 20480, {t}'); A(f'v_add3_u32 {vp}, {vp}, {u}, {s.sT0}')
            A(f'v_lshlrev_b32 {vka}, 6, {vTok}'); A(f'v_lshl_add_u32 {vka}, {t}, 4, {vka}'); A(f'v_add_u32 {vka}, {KVB}, {vka}')
            A(f's_mul_i32 {s.sT0}, {s.sRb2}, 5'); A(f's_mul_i32 {s.sT1}, {s.sJ2}, 102400'); A(f's_mul_i32 {s.sT2}, {sK}, 3072'); A(f's_add_u32 {s.sT1}, {s.sT1}, {s.sT2}'); A(f's_add_u32 {s.sT1}, {s.sT1}, {WOP}')
            for m in range(2):
                A(f'v_add3_u32 {q}, {t}, {s.sT0}, {4 * m}')
                A(f'v_lshrrev_b32 {ad}, 3, {q}'); A(f'v_mul_u32_u24 {wa[m]}, 5120, {ad}')
                A(f'v_bfe_u32 {ad}, {q}, 1, 2'); A(f'v_lshl_add_u32 {wa[m]}, {ad}, 7, {wa[m]}')
                A(f'v_and_b32 {ad}, 1, {q}'); A(f'v_lshl_add_u32 {wa[m]}, {ad}, 9, {wa[m]}'); A(f'v_lshl_add_u32 {wa[m]}, {vTok}, 3, {wa[m]}'); A(f'v_add_u32 {wa[m]}, {s.sT1}, {wa[m]}')
            A(f'v_cmp_gt_u32 vcc, 16, {s.vLane}'); A(f'v_mov_b32 {q}, {OOB}'); A(f'v_cndmask_b32 {wa[1]}, {q}, {wa[1]}, vcc')
            sQ_ = [S.get() for _ in range(2)]
            A(f's_lshl_b32 {sQ_[0]}, {s.sRb2}, 7'); A(f's_add_u32 {sQ_[0]}, {sQ_[0]}, {FP}'); A(f's_lshl_b32 {sQ_[1]}, {s.sJ2}, 7'); A(f's_add_u32 {sQ_[1]}, {sQ_[1]}, {FW}')
            A(f'v_add_u32 {vfl}, {sQ_[0]}, {s.vL0}'); A(f'v_writelane_b32 {vfl}, {sQ_[1]}, 1')
            s.mkbit(s.sJ2); A(f's_lshl_b32 {s.sT3}, 1, {s.sRb2}'); A(f'v_writelane_b32 {s.vBit}, {s.sT3}, 1')
            A(f'v_min_u32 {t}, 59, {s.vLane}'); A(f'v_mul_u32_u24 {u}, 21846, {t}'); A(f'v_lshrrev_b32 {u}, 16, {u}'); A(f'v_mul_u32_u24 {u}, 40, {u}'); A(f'v_lshl_add_u32 {t}, {t}, 3, {u}'); A(f'v_add_u32 {ad}, {KVB + 40}, {t}')
            kq = [V.get(4) for _ in range(16)]; zq = [V.get(4) for _ in range(4)]; pq = [V.get(4) for _ in range(5)]; sKo = S.get(); z2 = V.get(2)
            A(f'v_mov_b32 {z2[0]}, 0'); A(f'v_mov_b32 {z2[1]}, 0')
            if o['fke'] == 3:
                Lw = s.lab(); w3_ = [s.sT0, s.sT1, s.sT2]
                A(f's_cmp_eq_u32 {sK}, 0'); A(f's_cbranch_scc0 {Lw}')
                for k, x_ in enumerate(w3_): A(f's_add_u32 {x_}, {s.sRb2}, {[0, 31, 1][k]}'); A(f's_and_b32 {x_}, {x_}, 31'); A(f's_lshl_b32 {x_}, {x_}, 7'); A(f's_add_u32 {x_}, {x_}, {F1}')
                s.prog_wait(kq[0], o['f1p'], sl=2)
                s.spoll([(x_, 0xffff) for x_ in w3_], sl=o['f1s'], d0=o['f1w'])
                A(f'v_mov_b32 {t}, 1'); A(f'ds_write_b32 {vC0}, {t} offset:72'); A('s_waitcnt lgkmcnt(0)')
                A(f'{Lw}:')
            s.prog_wait(kq[0], o['jp'], sl=4)
            A(f'ds_write_b64 {ad}, {z2}')
            if o['j1p']: s.spoll([(x, 0xffff) for x in sP], sl=o['jsl'], d0=o['jw'])
            else:
                Lj = s.lab(); Lk = s.lab()
                A(f's_cmp_eq_u32 {sK}, 0'); A(f's_cbranch_scc0 {Lj}')
                A(f's_add_u32 {s.sT2}, {sP[1]}, 128')
                s.spoll([(x, 0xffff) for x in sP + [s.sT2]], sl=o['jsl'], d0=o['jw'])
                A(f'v_mov_b32 {t}, 2'); A(f'ds_write_b32 {vC0}, {t} offset:8'); A('s_waitcnt lgkmcnt(0)'); A(f's_branch {Lk}')
                A(f'{Lj}:'); s.lds_wait(8, 2, sl=2); A(f'{Lk}:')
            s.stamp(3)
            if o['jprio']: A(f's_setprio {o["jprio"]}')
            for i in range(0 if 'nokv' in s.dbg else 16):
                A(f's_mov_b32 {sKo}, {KV + KVP * i}'); A(f'buffer_load_dwordx4 {kq[i]}, {vk}, {sWS}, {sKo} offen sc1')
            for i in range(0 if 'noz' in s.dbg else 4):
                A(f's_mov_b32 {sKo}, {KV + 4 * KVP * i}'); A(f'buffer_load_dwordx4 {zq[i]}, {vz}, {sWS}, {sKo} offen sc1')
            for i in range(0 if 'nopq' in s.dbg else 5): A(f'buffer_load_dwordx4 {pq[i]}, {vp}, {sWS}, 0 offen offset:{256 * i} sc1')
            s.stamp(6)
            for i in range(1, 16):
                for e in range(4): A(f'v_add_f32 {kq[0][e]}, {kq[0][e]}, {kq[i][e]}')
            A(f'v_cvt_pk_bf16_f32 {z2[0]}, {kq[0][0]}, {kq[0][1]}'); A(f'v_cvt_pk_bf16_f32 {z2[1]}, {kq[0][2]}, {kq[0][3]}')
            A(f'v_mov_b32 {t}, 1')
            A(f'ds_write_b64 {vkw}, {z2}'); A(f'ds_write_b32 {vC0}, {t} offset:56')
            V.put(*kq); s.stamp(7)
            for i in range(1, 4):
                for e in range(3): A(f'v_add_f32 {zq[0][e]}, {zq[0][e]}, {zq[i][e]}')
            for swp in ('16', '32'):
                for e in range(3): A(f'v_mov_b32 {zq[1][e]}, {zq[0][e]}')
                for e in range(3): A(f'v_permlane{swp}_swap_b32 {zq[0][e]}, {zq[1][e]}')
                for e in range(3): A(f'v_add_f32 {zq[0][e]}, {zq[0][e]}, {zq[1][e]}')
            L4 = s.lab(); L5 = s.lab()
            A(f'{L4}:'); A(f'ds_read_b64 {s.vF}, {s.vCtl} offset:56'); s.tick_spin(L5); A(f'v_min_u32 {s.vF[0]}, {s.vF[0]}, {s.vF[1]}'); A(f'v_cmp_eq_u32 vcc, 0, {s.vF[0]}'); A(f's_cbranch_vccnz {L4}'); A(f'{L5}:')
            s.stamp(8)
            pf = V.get(40); ka = [V.get(4) for _ in range(2)]; D = [[V.get(4) for _ in range(2)] for _ in range(3)]; den = [V.get() for _ in range(2)]
            for m in range(2): A(f'ds_read_b128 {ka[m]}, {vka} offset:{1024 * m}')
            for i in range(20): A(f'v_lshlrev_b32 {pf[2*i]}, 16, {pq[i // 4][i % 4]}'); A(f'v_and_b32 {pf[2*i+1]}, 0xffff0000, {pq[i // 4][i % 4]}')
            for n in range(3):
                for m in range(2): A(f'v_mfma_f32_16x16x32_bf16 {D[n][m]}, {ka[m]}, {wb[n]}, 0')
            A(f's_lshl_b32 {sKo}, {sK}, 29'); s.stamp(9)
            for hh in range(2): A(f'v_mov_b32 {den[hh]}, {hexf(1e-6)}')
            for d in range(20):
                for hh in range(2):
                    f = 20 * hh + d
                    A(f'v_fmac_f32_dpp {den[hh]}, {zq[0][f >> 4]}, {pf[f]} row_newbcast:{f & 15} row_mask:0xf bank_mask:0xf')
                if d == 6:
                    for n in range(3):
                        for m in range(2):
                            dd = D[n][m]
                            A(f'v_cvt_pk_bf16_f32 {dd[0]}, {dd[0]}, {dd[1]}'); A(f'v_cvt_pk_bf16_f32 {dd[1]}, {dd[2]}, {dd[3]}')
                            A(f'buffer_store_dwordx2 {dd[0:2]}, {wa[m]}, {sWS}, {sKo if n == 2 else 0} offen offset:{1024 * n} sc1')
            s.stamp(10)
            for hh in range(2): A(f'v_rcp_f32 {den[hh]}, {den[hh]}')
            for i in range(20):
                for e in range(2): A(f'v_mul_f32 {pf[2*i+e]}, {den[i // 10]}, {pf[2*i+e]}')
                A(f'v_cvt_pk_bf16_f32 {pq[i // 4][i % 4]}, {pf[2*i]}, {pf[2*i+1]}')
                if i % 4 == 3: last = A(f'buffer_store_dwordx4 {pq[i // 4]}, {vp}, {sWS}, 0 offen offset:{256 * (i // 4)} sc1')
            s.stamp(4)
            A.waitvm(last); A(f'v_mov_b32 {t}, 2'); A(f'ds_write_b32 {vC0}, {t} offset:56')
            A(f's_cmp_eq_u32 {sK}, 0'); A('s_cbranch_scc0 L_fin')
            s.lds_wait(60, 2, sl=1)
            A(s.flagtxt(0, vfl))
            s.stamp(5)
            if s.stop > 4:
                A('s_setprio 0')
                s.spoll([(sQ_[0], 0xff), (sQ_[1], -1)], sl=o['wsl'])
                A(f'v_mov_b32 {t}, 2'); A(f'ds_write_b32 {vC0}, {t} offset:36')
                s.stamp(11)
                if o['hp3']:
                    A(f's_lshl_b32 {sP[0]}, {s.sRb2}, 8'); A(f's_add_u32 {sP[0]}, {sP[0]}, {F3}'); A(f's_add_u32 {sP[1]}, {sP[0]}, 128')
                    s.prog_wait(zq[0], s.f3rel, sl=4)
                    s.spoll([(sP[0], 0xffff), (sP[1], 0xffff)])
                    A(f'v_mov_b32 {t}, 3'); A(f'ds_write_b32 {vC0}, {t} offset:36')
        A('s_branch L_fin')

    def ld_begin(s):
        s.L_n = 0; s.L_out = []; s.L_seen = 0
    def ld_pub(s, p): s.A(f'v_mov_b32 {s.vS}, {p.seq}'); s.A(f'ds_max_u32 {s.vC0}, {s.vS}')
    def ld_window(s, keep):
        A = s.A
        while s.L_out and s.L_out[0][1] <= max(s.L_low, s.L_n - keep):
            p, idx = s.L_out.pop(0)
            if idx > s.L_low: A(f's_waitcnt vmcnt({s.L_n - idx})'); s.L_low = idx
            if not (s.L_out and s.L_out[0][1] <= s.L_low): s.ld_pub(p)
        if s.L_n - s.L_low > keep:
            A(f's_waitcnt vmcnt({keep})'); s.L_low = s.L_n - keep
    def ld_drain_code(s):
        for p, idx in s.L_out:
            s.A(f's_waitcnt vmcnt({min(63, s.L_n - idx)})'); s.ld_pub(p)
    def ld_space(s, p):
        A = s.A
        need = max([p.minrel] + [q.rel for q in s.P[:p.seq - 1] if ovl(p, q)])
        if need <= s.L_seen: return
        s.L_seen = need
        Lr = s.lab('S'); Lb = s.lab('B'); L2 = s.lab('S'); q = s.vQ
        def rd(): A(f'ds_read_b128 {q}, {s.vCtl} offset:16'); A('s_waitcnt lgkmcnt(0)'); A(f'v_min3_u32 {q[0]}, {q[0]}, {q[1]}, {q[2]}'); A(f'v_min_u32 {q[0]}, {q[0]}, {q[3]}'); A(f'v_cmp_gt_u32 vcc, {need}, {q[0]}')
        rd(); A(f's_cbranch_vccnz {Lr}'); A(f'{Lb}:')
        def slow():
            A(f'{Lr}:')
            for pp, idx in s.L_out:
                A(f's_waitcnt vmcnt({min(63, s.L_n - idx)})'); s.ld_pub(pp); rd(); A(f's_cbranch_vccz {Lb}')
            A(f'{L2}:'); s.tick_spin(Lb, s.o['slp']); rd(); A(f's_cbranch_vccnz {L2}'); A(f's_branch {Lb}')
        s.outline(slow)
    def ld_panel(s, p, groups, W, sc=''):
        A = s.A
        if not groups:
            s.L_out.append((p, s.L_n)); return
        s.ld_space(p)
        for (lo, pre, srd, so, lst) in groups:
            s.ld_window(max(0, W - len(lst)))
            A(f's_mov_b32 m0, {p.addr + lo}')
            if pre: A(pre)
            for vo, imm in lst:
                A(f'buffer_load_dwordx4 {vo}, {srd}, {so} offen offset:{imm} {sc} lds'); s.L_n += 1
        s.L_out.append((p, s.L_n))
    def g5(s, lo, srd, base, add, regs):
        so = s.sT0 if add else base
        return [(lo, f's_add_u32 {so}, {base}, {add}' if add else None, srd, so, [(regs[i], 1024 * i) for i in range(4)]), (lo + 4096, None, srd, so, [(regs[4], 0)])]
    def div20(s, i, q, c20):
        A = s.A; t = s.V.get()
        A(f'v_add_u32 {t}, {64*i}, {s.vLane}')
        A(f'v_mul_u32_u24 {q}, 3277, {t}'); A(f'v_lshrrev_b32 {q}, 16, {q}')
        A(f'v_mul_u32_u24 {c20}, 20, {q}'); A(f'v_sub_u32 {c20}, {t}, {c20}')
        A(f'v_lshrrev_b32 {t}, 2, {q}'); A(f'v_and_b32 {t}, 2, {t}'); A(f'v_xor_b32 {c20}, {c20}, {t}')
        A(f'v_cmp_le_u32 vcc, 10, {c20}')
        s.V.put(t)
    def voff20(s, stride, hi, add):
        A = s.A; V = s.V; out = [V.get() for _ in range(5)]; q = V.get(); c = V.get(); t = V.get()
        for i in range(5):
            s.div20(i, q, c)
            A(f'v_mov_b32 {t}, {hi}'); A(f'v_mul_u32_u24 {q}, {stride}, {q}'); A(f'v_cndmask_b32 {t}, 0, {t}, vcc')
            A(f'v_lshlrev_b32 {c}, 4, {c}'); A(f'v_add3_u32 {out[i]}, {q}, {c}, {t}')
            k = (add - (1024 * i if i < 4 else 0)) & 0xffffffff
            if k: A(f'v_add_u32 {out[i]}, {k}, {out[i]}')
        V.put(q, c, t); return out
    def voff12(s, stride, swz=False):
        A = s.A; V = s.V; vo = [V.get() for _ in range(3)]; t = V.get(); c = V.get()
        for i in range(3):
            q = vo[i]
            A(f'v_add_u32 {t}, {64*i}, {s.vLane}'); A(f'v_mul_u32_u24 {q}, 5462, {t}'); A(f'v_lshrrev_b32 {q}, 16, {q}')
            A(f'v_mul_u32_u24 {c}, 12, {q}'); A(f'v_sub_u32 {c}, {t}, {c}')
            if swz: A(f'v_lshrrev_b32 {t}, 2, {q}'); A(f'v_and_b32 {t}, 2, {t}'); A(f'v_xor_b32 {c}, {c}, {t}')
            A(f'v_mul_u32_u24 {q}, {stride}, {q}'); A(f'v_lshl_add_u32 {q}, {c}, 4, {q}')
            if i: A(f'v_subrev_u32 {q}, {1024*i}, {q}')
        V.put(t, c); return vo
    def loader(s, me):
        A = s.A; S = s.S; V = s.V; o = s.o
        A(f'L_load{me}:'); A.ctl('restore', 'entry')
        if o['lprio']: A(f's_setprio {o["lprio"]}')
        s.vS = V.get(); s.vQ = V.get(4); s.vC0 = V.get()
        sRot, sOA, sOB, sBB, sOC, sBC = [S.get() for _ in range(6)]
        A(f's_lshl3_add_u32 {s.sT0}, {s.sXc}, {s.sCl}'); A(f's_add_u32 {s.sT0}, {s.sT0}, {s.sRb}')
        nph = o['nph']
        if nph == 10:
            A(f's_mul_i32 {s.sT1}, {s.sT0}, 26'); A(f's_lshr_b32 {s.sT1}, {s.sT1}, 8'); A(f's_mul_i32 {s.sT1}, {s.sT1}, 10'); A(f's_sub_u32 {sRot}, {s.sT0}, {s.sT1}')
        else:
            A(f's_and_b32 {s.sT0}, {s.sT0}, {nph - 1}'); A(f's_mul_i32 {s.sT0}, {s.sT0}, {20 // nph}'); A(f's_lshr_b32 {sRot}, {s.sT0}, 1')
        A(f's_lshl_b32 {sOA}, {sRot}, 7')
        t = V.get(); u = V.get()
        late = {}
        vR = V.get(4)
        def late_setup():
            s.srd(*([sWS, sW3] + ([sX] if me else []))); s.base(*([sW3] + ([sX] if me else [])))
            A(f's_load_dword {s.sN}, {sWS[0:2]}, 0')
            late['b3'] = s.voff12(3072); late['xt'] = s.voff10()
            if me == 0:
                A(f's_mul_i32 {s.sT3}, {s.sJ2}, 5'); A(f's_lshr_b32 {s.sT3}, {s.sT3}, 2'); A(f'v_lshrrev_b32 {t}, 5, {s.vLane}'); A(f'v_add_u32 {t}, {s.sT3}, {t}')
                A(f'v_and_b32 {u}, 31, {s.vLane}'); A(f'v_min_u32 {vR[2]}, 19, {u}'); A(f'v_lshlrev_b32 {vR[2]}, 2, {vR[2]}'); A(f'v_lshl_add_u32 {vR[2]}, {t}, 7, {vR[2]}'); A(f'v_add_u32 {vR[2]}, {FR2}, {vR[2]}')
                A(f'v_min_u32 {vR[3]}, 23, {u}'); A(f'v_lshlrev_b32 {vR[3]}, 3, {vR[3]}'); A(f'v_lshl_add_u32 {vR[3]}, {t}, 8, {vR[3]}'); A(f'v_add_u32 {vR[3]}, {FR4}, {vR[3]}')
            s.nonce()
        frtxt = f'v_mov_b32 {vR[0]}, {s.vN}\ns_mov_b32 exec_lo, 0xfffff\ns_mov_b32 exec_hi, 0xfffff\n' + s.polltxt(vR[0], vR[2], 0) + '\ns_mov_b64 exec, -1'
        fr4txt = f'v_mov_b32 {vR[0]}, {s.vN}\nv_mov_b32 {vR[1]}, {s.vN}\ns_mov_b32 exec_lo, 0xffffff\ns_mov_b32 exec_hi, 0xffffff\nv_mov_b32 {vR[0]}, 0\nv_mov_b32 {vR[1]}, 0\nbuffer_atomic_add_x2 {vR[0:2]}, {vR[3]}, {sWS}, 0 offen sc0 sc1\ns_mov_b64 exec, -1'
        def stages(gs, rot, W):
            s.ld_begin(); s.L_low = 0
            hold = V.get(4)
            s.defer(late_setup); chunks = s.q3; s.q3 = []
            for st in range(10):
                if st == 3: s.lds_wait(8, 1, sl=1, slowpre=s.ld_drain_code)
                if st == o['frs'] and me == 0: A(frtxt); s.L_n += 1
                if st == 0:
                    s.ld_panel(s.st[0], gs[:2], 63, 'nt' if o['nt1'] else ''); s.L_out.pop(); s.bar0()
                    s.ld_panel(s.st[0], gs[2:], 63, 'nt' if o['nt1'] else '')
                    s.mkL0(); A(f'v_lshrrev_b32 {s.vC0}, 10, {s.vL0}'); A(f'v_add_u32 {s.vC0}, {CTRL + 4 * me}, {s.vC0}')
                    A(f'v_mov_b32 {s.vS}, 1'); A(f'ds_write_b32 {s.vC0}, {s.vS} offset:64')
                    s.stamp(0)
                    if o['iss'] == 2: s.ld_window(0)
                else: s.ld_panel(s.st[st], gs, W, 'nt' if (o['nt1'] > st) else '')
                if st < 9: rot()
                if st >= 1:
                    k = 0
                    while chunks and (k < 20 or st == 5 or 'v_cmp' in A.ins[-1].text or 'v_cmp' in A.ins[-2].text or 'v_cmp' in A.ins[-3].text): chunks.pop(0)(); k += 1
                s.stamp(1 + st)
            assert not chunks
            if me: s.ld_window(min(o['W1w'], o['W1v'], o['W1']))
            return (s.L_n, s.L_low, [(p.name, i) for p, i in s.L_out], s.L_seen, str(late))
        if me == 0:
            vXA = [V.get() for _ in range(4)]
            A(f's_mul_i32 {s.sT0}, {s.sRb}, 163840')
            A(f'v_lshrrev_b32 {u}, 3, {s.vLane}'); A(f'v_mul_u32_u24 {u}, 1280, {u}'); A(f'v_add_u32 {t}, {s.sT0}, {u}')
            A(f'v_lshrrev_b32 {u}, 4, {s.vLane}'); A(f'v_xor_b32 {u}, {u}, {s.vLane}'); A(f'v_and_b32 {u}, 7, {u}'); A(f'v_lshlrev_b32 {u}, 4, {u}')
            A(f'v_add_u32 {vXA[0]}, {t}, {u}'); A(f'v_xor_b32 {u}, 64, {u}'); A(f'v_add_u32 {u}, 9216, {u}'); A(f'v_add_u32 {vXA[1]}, {t}, {u}')
            A(f'v_add_u32 {vXA[2]}, 18432, {vXA[0]}'); A(f'v_add_u32 {vXA[3]}, 18432, {vXA[1]}')
            s.srd(sX); s.base(sX)
            gA = [(4096 * g, f's_add_u32 {s.sT0}, {sOA}, {40960 * g}', sX, s.sT0, [(vXA[i], 1024 * i) for i in range(4)]) for g in range(4)]
            def rot(): A(f's_add_u32 {sOA}, {sOA}, 128'); A(f's_cmpk_eq_u32 {sOA}, 1280'); A(f's_cmovk_i32 {sOA}, 0')
            stages(gA, rot, o['W1x'])
        else:
            s.srd(sWQKV, sW1)
            A(f's_cmp_lt_u32 {s.sCl}, 4'); A('s_cbranch_scc0 L_load23')
            A.ctl('save', 'ldfork'); sn = s.snap()
            for var in ('T1', 'T23'):
                s.rest(sn)
                pad = V.get(12)
                sub = Pool('v', pad.i, pad.i + 12); Vm = s.V; s.V = sub
                if var == 'T1':
                    A(f's_lshl2_add_u32 {sBB}, {s.sXc}, {s.sCl}'); A(f's_mul_i32 {sBB}, {sBB}, 160'); A(f's_mul_i32 {sOB}, {sRot}, {64 * 3840}'); A(f's_add_u32 {sOB}, {sOB}, {sBB}')
                    vB = s.voff20(3840, 1120, 1280); s.base(sWQKV)
                    gB = sum([s.g5(16 * KB + 5120 * g, sWQKV, sOB, 16 * 3840 * g, vB) for g in range(4)], [])
                    def rot(): A(f's_add_u32 {sOA}, {sOA}, 128'); A(f's_add_u32 {sOB}, {sOB}, {64 * 3840}'); A(f's_cmpk_eq_u32 {sOA}, 1280'); A(f's_cmov_b32 {sOB}, {sBB}'); A(f's_cmovk_i32 {sOA}, 0')
                else:
                    A('L_load23:'); A.ctl('restore', 'ldfork')
                    s96, s64, g96, g64 = [S.get() for _ in range(4)]
                    A(f's_lshl1_add_u32 {s.sT0}, {s.sXc}, {s.sCl}'); A(f's_cmp_lt_u32 {s.sCl}, 6'); A(f's_cselect_b32 {s.sT1}, 4, 6')
                    A(f's_movk_i32 {s96}, 3840'); A(f's_cmovk_i32 {s96}, 1280'); A(f's_movk_i32 {s64}, 1280'); A(f's_cmovk_i32 {s64}, 3840')
                    A(f's_sub_u32 {s.sT0}, {s.sT0}, {s.sT1}')
                    A(f's_mul_i32 {sBB}, {s.sT0}, 192'); A(f's_lshl_b32 {sBC}, {s.sT0}, 7'); A(f's_add_u32 {sBC}, {sBC}, 768')
                    vB = s.voff12(s96, True); vC = [sub.get() for _ in range(4)]
                    A(f'v_lshrrev_b32 {t}, 3, {s.vLane}'); A(f'v_mul_u32_u24 {t}, {s64}, {t}')
                    A(f'v_lshrrev_b32 {u}, 3, {s.vLane}'); A(f'v_and_b32 {u}, 2, {u}'); A(f'v_xor_b32 {u}, {u}, {s.vLane}'); A(f'v_and_b32 {u}, 7, {u}'); A(f'v_lshl_add_u32 {vC[0]}, {u}, 4, {t}')
                    A(f's_lshl_b32 {s.sT1}, {s64}, 3'); A(f's_sub_u32 {s.sT1}, {s.sT1}, 1024')
                    A(f'v_xor_b32 {vC[1]}, 64, {vC[0]}'); A(f'v_add_u32 {vC[1]}, {s.sT1}, {vC[1]}'); A(f's_lshl_b32 {s.sT1}, {s.sT1}, 1')
                    for i in range(2, 4): A(f'v_add_u32 {vC[i]}, {s.sT1}, {vC[i-2]}')
                    A(f's_lshl_b32 {g96}, {s96}, 4'); A(f's_lshl_b32 {g64}, {s64}, 5')
                    A(f's_mul_i32 {sOB}, {sRot}, {g96}'); A(f's_lshl2_add_u32 {sOB}, {sOB}, {sBB}'); A(f's_mul_i32 {sOC}, {sRot}, {g64}'); A(f's_lshl1_add_u32 {sOC}, {sOC}, {sBC}')
                    s.base(sW1, sWQKV)
                    A(f's_cmp_lt_u32 {s.sCl}, 6')
                    A(f's_cselect_b64 {sD0[0:2]}, {sW1[0:2]}, {sWQKV[0:2]}'); A(f's_cselect_b32 {sD0[2]}, {sW1[2]}, {sWQKV[2]}'); A(f's_mov_b32 {sD0[3]}, 0x20000')
                    A(f's_cselect_b64 {sD1[0:2]}, {sWQKV[0:2]}, {sW1[0:2]}'); A(f's_cselect_b32 {sD1[2]}, {sWQKV[2]}, {sW1[2]}'); A(f's_mov_b32 {sD1[3]}, 0x20000')
                    gB = [(16 * KB + 3072 * g, f's_add_u32 {sOB}, {sOB}, {g96}' if g else None, sD0, sOB, [(vB[i], 1024 * i) for i in range(3)]) for g in range(4)]
                    gB += [(28 * KB + 4096 * g, f's_add_u32 {sOC}, {sOC}, {g64}' if g else None, sD1, sOC, [(vC[i], 1024 * i) for i in range(4)]) for g in range(2)]
                    def rot():
                        A(f's_add_u32 {sOA}, {sOA}, 128'); A(f's_add_u32 {sOB}, {sOB}, {g96}'); A(f's_add_u32 {sOC}, {sOC}, {g64}')
                        A(f's_cmpk_eq_u32 {sOA}, 1280'); A(f's_cmov_b32 {sOB}, {sBB}'); A(f's_cmov_b32 {sOC}, {sBC}'); A(f's_cmovk_i32 {sOA}, 0')
                s.V = Vm
                state = stages(gB, rot, o['W1w'] if var == 'T1' else o['W1v'])
                if var == 'T1': st1 = state; A('s_branch L_loadj')
                else: assert state == st1, (state, st1)
            A('L_loadj:')
        sQ, sB = S.get(), S.get()
        A(f's_mul_i32 {s.sT1}, {s.sJ2}, 160'); A(f's_mul_i32 {sB}, {s.sRb2}, 81920'); A(f's_add_u32 {sB}, {sB}, {s.sT1}')
        LIN = ((WOP, 102400, 20480, 20480), (W4R, 245760, 61440, 20480), (W2R, 102400, 25600, 25600))
        sL = [S.get() for _ in LIN]; vL = [V.get(), V.get()]; vL.append(vL[0])
        s.rot4(s.sT1)
        for k, (base, span, mul, sz) in enumerate(LIN):
            if k < 2: A(f's_mul_i32 {s.sT2}, {s.sJ2}, {span}'); A(f'v_add_u32 {vL[k]}, {s.sT2}, {s.vL16}')
            A(f's_mul_i32 {sL[k]}, {s.sT1}, {mul}'); A(f's_add_u32 {sL[k]}, {sL[k]}, {base}')
        def lin(p, k, W):
            base, span, _, sz = LIN[k]; n = sz // 1024; lo, hi = (0, (n + 1) // 2) if me == 0 else ((n + 1) // 2, n)
            gs = [(1024 * a, f's_add_u32 {s.sT0}, {sL[k]}, {1024 * a}', sWS, s.sT0, [(vL[k], 1024 * i) for i in range(min(4, hi - a))]) for a in range(lo, hi, 4)]
            s.ld_panel(p, gs, W, 'sc1')
            s.wrapadd(sL[k], sz, base + span, base)
        def frcheck(txt, tags, word):
            if me == 0:
                s.checked([txt], tags, pre=s.ld_drain_code, sl=8)
                A(f'v_mov_b32 {s.vS}, {word}'); A(f'ds_write_b32 {s.vC0}, {s.vS} offset:32')
            else: s.lds_wait(32, word, sl=1, slowpre=s.ld_drain_code)
        if o['frs'] > 9 and me == 0: A(frtxt); s.L_n += 1; s.ld_window(1)
        frcheck(frtxt, [vR[0]], 1)
        for p in s.b2: lin(p, 2, o['W1'])
        s.ld_panel(s.pxt, s.g5(5120 * me, sX, sB, 40960 * me, late['xt']), o['W1'])
        s.stamp(11)
        nt2 = 'nt' if o['nt2'] else ''
        if s.stop > 1:
            A(f's_mul_i32 {sB}, {s.sC3}, 192'); s.rot2(s.sT0); A(f's_mul_i32 {sQ}, {s.sT0}, {64 * 3072}'); A(f's_add_u32 {sQ}, {sQ}, {sB}')
            def b3dma(i):
                p = s.b3[i]
                if i == 3: s.lds_wait(40, 1, sl=1, slowpre=s.ld_drain_code)
                s.ld_panel(p, [(3072 * g, f's_add_u32 {s.sT0}, {sQ}, {16 * 3072 * g}', sW3, s.sT0, [(late['b3'][k], 1024 * k) for k in range(3)]) for g in (2 * me, 2 * me + 1)], o['W2'], nt2)
                s.wrapadd(sQ, 64 * 3072, 640 * 3072, sB)
            ns = o['sg3']
            if not ns:
                for i in range(10):
                    if i == 8 and me == 0 and s.stop > 4: s.ld_space(s.b3[i]); A(fr4txt); s.L_n += 1
                    b3dma(i)
            else:
                sQ2 = S.get(); buf = [s.AG.get(24) if k < 3 else V.get(24) for k in range(ns)]; wa = V.get()
                A(f's_add_u32 {sQ2}, {sQ}, {(10 - ns) * 64 * 3072}'); A(f's_cmp_ge_u32 {sQ2}, {640 * 3072}'); A(f's_cselect_b32 {s.sT0}, {640 * 3072}, 0'); A(f's_sub_u32 {sQ2}, {sQ2}, {s.sT0}')
                A(f'v_add_u32 {wa}, {6144 * me}, {s.vL16}'); fwa = s.dsaddr(wa, (0, 1))
                def stg(k):
                    for gi, g in enumerate((2 * me, 2 * me + 1)):
                        s.ld_window(max(0, o['Ws'] - 3)); A(f's_add_u32 {s.sT0}, {sQ2}, {16 * 3072 * g}')
                        for j in range(3): A(f'buffer_load_dwordx4 {buf[k].sub(12 * gi + 4 * j, 4)}, {late["b3"][j]}, {sW3}, {s.sT0} offen offset:{1024 * j}'); s.L_n += 1
                    s.wrapadd(sQ2, 64 * 3072, 640 * 3072, sB)
                b3dma(0); b3dma(1)
                for k in range(o['sg3a']): stg(k)
                b3dma(2); b3dma(3)
                for k in range(o['sg3a'], ns): stg(k)
                if me == 0 and s.stop > 4: A(fr4txt); s.L_n += 1
                for i in range(4, 10 - ns): b3dma(i)
                s.ld_drain_code(); s.L_out = []
                for k in range(ns):
                    p = s.b3[10 - ns + k]; p.minrel = max(p.minrel, o['sgr'])
                    s.ld_space(p)
                    for j in range(6):
                        r_, im = fwa(p.addr + 1024 * j).split(' ')
                        A(f'ds_write_b128 {r_}, {buf[k].sub(4 * j, 4)} {im}')
                    s.ld_pub(p)
            s.stamp(12)
        if s.stop > 4:
            frcheck(fr4txt, [vR[0], vR[1]], 2)
            def warm(first, n):
                A(f's_mul_i32 {s.sT2}, {s.sJ2}, 245760'); A(f'v_lshlrev_b32 {t}, 7, {s.vLane}'); A(f'v_add_u32 {t}, {s.sT2}, {t}')
                for i in range(first + me, n, 2):
                    s.ld_window(o['Ww']); A(f's_add_u32 {s.sT0}, {sL[1]}, {8192 * i}'); A(f'buffer_load_dword {vR[i & 1]}, {t}, {sWS}, {s.sT0} offen sc1'); s.L_n += 1
            if o['wm'] == 2: warm(0, 8)
            lin(s.b4b[0], 1, o['W2'])
            if o['wm'] == 1: warm(0, 5)
            lin(s.b4b[1], 1, o['W3'])
            s.stamp(13)
            def fwcheck(): s.lds_wait(36, 2, sl=1, slowpre=s.ld_drain_code)
            if not o['stg']:
                s.ld_space(s.b4a[0]); fwcheck(); s.stamp(17)
                for i, p in enumerate(s.b4a):
                    s.ld_space(p)
                    if 'stl' in s.dbg: s.stamp(18 + i)
                    lin(p, 0, o['Wa'])
                s.stamp(14)
                for i, p in enumerate(s.b4b[2:]):
                    s.ld_space(p)
                    if 'stl' in s.dbg and i % 2 == 0: s.stamp([23, 24, 25, 26, 28][i // 2])
                    lin(p, 1, o['W4'] if i < 5 else o['W5'])
            else:
                V.put(*late['b3'], *late['xt'])
                buf = [s.AG.get(40), s.AG.get(40), V.get(40), V.get(40), V.get(40)]
                wa = V.get(); A(f'v_add_u32 {wa}, {10240 * me}, {s.vL16}'); fwa = s.dsaddr(wa)
                def stage(i, W):
                    b = buf[(i - 2) % 5]
                    for a, n in ((0, 4), (4, 4), (8, 2)):
                        s.ld_window(max(0, W - n))
                        A(f's_add_u32 {s.sT0}, {sL[1]}, {10240 * me + 1024 * a}')
                        for k in range(n): A(f'buffer_load_dwordx4 {b.sub(4 * (a + k), 4)}, {vL[1]}, {sWS}, {s.sT0} offen offset:{1024 * k} sc1'); s.L_n += 1
                    s.wrapadd(sL[1], 20480, W4R + 245760, W4R)
                def put(i):
                    p = s.b4b[i]; b = buf[(i - 2) % 5]
                    s.ld_space(p)
                    for k in range(10):
                        r_, im = fwa(p.addr + 1024 * k).split(' ')
                        A(f'ds_write_b128 {r_}, {b.sub(4 * k, 4)} {im}')
                    s.ld_pub(p)
                stage(2, o['W3']); stage(3, o['W3'])
                s.ld_space(s.b4a[0]); fwcheck()
                lin(s.b4a[0], 0, o['W3']); stage(4, o['W3']); lin(s.b4a[1], 0, o['W3']); stage(5, o['W3']); lin(s.b4a[2], 0, o['W3']); lin(s.b4a[3], 0, o['W4']); lin(s.b4a[4], 0, o['W4']); stage(6, o['W4'])
                s.stamp(14)
                s.ld_drain_code(); s.L_out = []
                for i in range(2, 12):
                    put(i)
                    if i + 5 < 12: A('s_waitcnt lgkmcnt(0)'); stage(i + 5, o['W4'])
        s.ld_drain_code()
        s.stamp(15)
        A('s_waitcnt vmcnt(0) lgkmcnt(0)')
        A('s_branch L_fin')

    def cpro(s):
        A = s.A; S = s.S; V = s.V
        s.vP, s.vPa, s.vTok, s.vTok4 = [V.get() for _ in range(4)]
        s.sFlag, s.sJ160, s.sCb3, s.sTw, s.sTw3, s.sTT = [S.get() for _ in range(6)]
        s.vA2 = [V.get() for _ in range(4)]; s.rW3 = [V.get() for _ in range(3)]
        s.vL1 = V.get(); s.sP1 = [S.get(), S.get()]
        s.gr2 = V.get(2); s.cg3 = [V.get(2) for _ in range(3)]
        t = V.get(); u = V.get(); q = V.get()
        if s.o['prio']: A(f's_setprio {s.o["prio"]}')
        s.srd(sWS, sOUT); s.bar0()
        s.mkL0()
        A(f'v_and_b32 {s.vTok}, 15, {s.vLane}'); A(f'v_lshlrev_b32 {s.vTok4}, 2, {s.vTok}')
        A(f's_lshl_b32 {s.sT0}, {s.sW}, 2'); A(f's_add_u32 {s.sT0}, {s.sT0}, {CTRL + 16}'); A(f'v_lshrrev_b32 {s.vPa}, 10, {s.vL0}'); A(f'v_add_u32 {s.vPa}, {s.sT0}, {s.vPa}')
        A(f's_mul_i32 {s.sJ160}, {s.sJ2}, 160'); A(f's_mov_b32 {s.sCb3}, {s.sC3}')
        A(f's_lshr_b32 {s.sT0}, {s.sW}, 1'); A(f's_lshl1_add_u32 {s.sTw}, {s.sRb2}, {s.sT0}'); A(f's_lshl2_add_u32 {s.sTT}, {s.sRb2}, {s.sW}')
        A(f's_lshl2_add_u32 {s.sTw3}, {s.sXr}, {s.sG}'); A(f's_lshl2_add_u32 {s.sTw3}, {s.sTw3}, {s.sW}')
        A(f'v_add_u32 {s.vL1}, 65536, {s.vL16}')
        A(f's_lshl_b32 {s.sT2}, {s.sTT}, 4'); A(f'v_and_b32 {q}, 48, {s.vLane}'); A(f'v_lshlrev_b32 {q}, 4, {q}')
        for i in range(4):
            if i == 0: s.rot4(s.sT3)
            A(f's_add_u32 {s.sT0}, {s.sT3}, {i}'); A(f's_and_b32 {s.sT0}, {s.sT0}, 3')
            A(f's_lshl_b32 {s.sT1}, {s.sT0}, 2'); A(f's_lshr_b32 {s.sT1}, 0x4031, {s.sT1}'); A(f's_and_b32 {s.sT1}, {s.sT1}, 15'); A(f's_add_u32 {s.sT1}, {s.sT1}, {s.sT2}'); A(f's_sub_u32 {s.sT1}, {s.sT1}, 2')
            A(f's_mul_i32 {s.sT0}, {s.sT0}, 5120')
            A(f'v_add_u32 {t}, {s.sT1}, {s.vTok}'); A(f'v_cmp_gt_u32 vcc, 0x800, {t}'); A(f'v_lshrrev_b32 {u}, 4, {t}'); A(f'v_mul_u32_u24 {u}, 20480, {u}')
            A(f'v_and_b32 {t}, 15, {t}'); A(f'v_lshl_add_u32 {u}, {t}, 4, {u}'); A(f'v_add3_u32 {u}, {u}, {q}, {s.sT0}'); A(f'v_mov_b32 {t}, {OOB}'); A(f'v_cndmask_b32 {s.vA2[i]}, {t}, {u}, vcc')
        s.fw3, _ = s.mk_nt_read(3, s.rW3)
        A(f's_and_b32 {s.sT0}, {s.sW}, 2'); A(f's_add_u32 {s.sT0}, {s.sT0}, {s.sRb2}'); A(f's_add_u32 {s.sT0}, {s.sT0}, 31'); A(f's_and_b32 {s.sT0}, {s.sT0}, 31')
        A(f's_add_u32 {s.sT1}, {s.sW}, 1'); A(f's_bitcmp1_b32 {s.sT1}, 1'); A(f's_cmov_b32 {s.sT0}, {s.sRb2}')
        A(f's_lshl_b32 {s.sP1[0]}, {s.sRb2}, 7'); A(f's_add_u32 {s.sP1[0]}, {s.sP1[0]}, {F1}'); A(f's_lshl_b32 {s.sP1[1]}, {s.sT0}, 7'); A(f's_add_u32 {s.sP1[1]}, {s.sP1[1]}, {F1}')
        A(f's_load_dword {s.sN}, {sWS[0:2]}, 0')
        s.stamp(0)
        V.put(t, u, q)
        A(f's_cmp_lt_u32 {s.sCl}, 4'); A('s_cbranch_scc1 L_T1')
        A(f's_cmp_lt_u32 {s.sCl}, 6'); A('s_cbranch_scc1 L_TA')
        A.ctl('save', 'fork')
    def gr_common(s, t):
        A = s.A
        A(f's_lshl_b32 {s.sT0}, {s.sW}, 7'); A(f's_add_u32 {s.sT0}, {s.sT0}, {G2}'); A(f'v_lshl_add_u32 {t}, {s.vTok}, 3, {s.sT0}'); A(f'ds_read_b64 {s.gr2}, {t}')
        A(f'v_and_b32 {t}, 31, {s.vLane}'); A(f'v_lshlrev_b32 {t}, 3, {t}'); A(f'v_add_u32 {t}, {GW}, {t}')
        for J in range(3): A(f'ds_read_b64 {s.cg3[J]}, {t} offset:{(160 + 32 * J) * 8}')

    def flat(s, mf, rd, lag, cap, group=None, relmap=None, hooks=None, n3=1, coarse=None, after_first=None, per=None):
        first = {}; lastu = {}
        for i, (_, ids) in enumerate(mf):
            for x in ids: first.setdefault(x, i); lastu[x] = i
        Rd = []; prev = {}
        for x in sorted(rd, key=lambda x: first[x]):
            dest, p, fns = rd[x]; key = str(dest)
            free = lastu[prev[key]] if key in prev else -1
            assert free < first[x]
            prev[key] = x
            for f in fns: Rd.append([first[x], free, p, f, None])
        known = s.known; lastidx = {}
        for k, r in enumerate(Rd):
            lastidx[r[2]] = k
            g = group(r[2]) if group else r[2]
            if r[2].seq > known:
                known = g.seq; r[4] = g
                if k >= 5: Rd[k - 5].append('pre')
        for p, k in lastidx.items():
            rl = relmap.get(p) if relmap is not None else [p]
            if rl: Rd[k].append(rl)
        cnt = [0]
        def emit(i, cap):
            k = 0
            while Rd and Rd[0][1] <= i and (Rd[0][0] <= i + 1 or (Rd[0][0] <= i + lag and k < cap)):
                r = Rd.pop(0)
                if r[4]: s.full(r[4], pre=cnt[0] < 5)
                assert r[2].seq <= s.known and (r[2].rel is None or r[2].rel > s.nrel), r[2].name
                r[3](); k += 1; cnt[0] += 1
                for e in r[5:]:
                    if e == 'pre': s.A(f'ds_read_b64 {s.vF}, {s.vCtl}')
                    else: s.release(e)
            return k
        emit(-1, 999)
        if after_first: after_first()
        for i, (m, _) in enumerate(mf):
            if hooks and i in hooks: hooks[i]()
            if coarse and i in coarse: s.A.touch(coarse[i])
            m()
            if s.stbase is not None and per and i % per == per - 1: s.stamp(s.stbase + i // per)
            k = emit(i, cap); j = 0
            while s.q3 and (j + k < n3 or s.A.clk + 4 <= s.A.mf_free): s.q3.pop(0)(); j += 1
        assert not Rd

    def begin_variant(s):
        s.A.ctl('restore', 'fork'); s.q3 = []; s.known = 0; s.nrel = 0
    def end_variant(s):
        A = s.A
        s.fixat(1)
        s.release([]); assert s.nrel == 11
        A('s_waitcnt lgkmcnt(0)'); A.ctl('endvar'); A('s_branch L_join')

    def t1(s):
        A = s.A; V = s.V; S = s.S; AG = s.AG; stages = s.st
        A('L_T1:'); s.begin_variant()
        sCb = S.get(); sWr = S.get(); sWc = S.get()
        A(f's_lshl2_add_u32 {sCb}, {s.sXc}, {s.sCl}'); A(f's_lshr_b32 {sWr}, {s.sW}, 1'); A(f's_and_b32 {sWc}, {s.sW}, 1')
        q = V.get(); t = V.get(); a0 = V.get(); a1 = V.get()
        A(f'v_lshrrev_b32 {t}, 1, {s.vTok}'); A(f'v_lshrrev_b32 {q}, 4, {s.vLane}'); A(f'v_xor_b32 {t}, {t}, {q}')
        A(f's_lshl_b32 {s.sT0}, {sWr}, 6'); A(f'v_add_u32 {a0}, {s.sT0}, {s.vTok}'); A(f'v_lshlrev_b32 {a0}, 7, {a0}'); A(f'v_lshl_add_u32 {a0}, {t}, 4, {a0}')
        A(f'v_xor_b32 {a1}, 64, {a0}')
        fa = [s.dsaddr(a0, (0, 1)), s.dsaddr(a1, (0, 1))]
        fb = []
        rowp = V.get(); hi = V.get(); x2 = V.get()
        A(f'v_lshlrev_b32 {rowp}, 3, {q}'); A(f'v_bfe_u32 {t}, {s.vLane}, 2, 2'); A(f'v_add_u32 {rowp}, {rowp}, {t}'); A(f'v_mul_u32_u24 {rowp}, 320, {rowp}')
        A(f'v_and_b32 {t}, 1, {s.vLane}'); A(f'v_lshl_add_u32 {rowp}, {t}, 3, {rowp}'); A(f'v_add_u32 {rowp}, {16 * KB}, {rowp}')
        A(f'v_bfe_u32 {hi}, {s.vLane}, 1, 1'); A(f'v_and_b32 {x2}, 1, {q}'); A(f'v_lshlrev_b32 {x2}, 1, {x2}')
        A(f's_mul_i32 {s.sT0}, {sWc}, 5')
        for tt, ba in enumerate([0, 2, 4, 11, 13]):
            b = V.get()
            A(f'v_mul_u32_u24 {b}, {6 if tt == 2 else 1}, {hi}'); A(f'v_add3_u32 {b}, {b}, {ba}, {s.sT0}')
            A(f'v_xor_b32 {b}, {b}, {x2}'); A(f'v_lshl_add_u32 {b}, {b}, 4, {rowp}')
            fb.append(s.dsaddr(b, (0, 1)))
        V.put(rowp, hi, x2, q)
        sKV = [S.get(), S.get()]
        A(f's_lshl1_add_u32 {s.sT0}, {sCb}, {sWc}')
        A(f's_mul_i32 {sKV[0]}, {s.sT0}, {KVH}'); A(f's_mul_i32 {sKV[1]}, {s.sRb}, {KVP}'); A(f's_add_u32 {sKV[0]}, {sKV[0]}, {sKV[1]}'); A(f's_add_u32 {sKV[0]}, {sKV[0]}, {KV}'); A(f's_add_u32 {sKV[1]}, {sKV[0]}, 4096')
        A(f's_lshl_b32 {s.sT2}, {sWr}, 29')
        A(f's_lshl_b32 {s.sT0}, {s.sT0}, 7'); A(f's_add_u32 {s.sT0}, {s.sT0}, {s.sT2}'); A(f's_add_u32 {s.sFlag}, {s.sT0}, {FK}'); s.mkbit(s.sRb)
        s.nonce()
        s.stamp(1)
        acc = [[V.get(4) for _ in range(5)] for _ in range(4)]
        XA = [[AG.get(4) for _ in range(4)] for _ in range(2)]; WB = [[AG.get(4) for _ in range(5)] for _ in range(2)]
        gr = [V.get(4) for _ in range(4)]; csg = [V.get(4) for _ in range(5)]
        mf = []; rd = {}; at = {}
        for st in range(10):
            p = stages[st]
            for h in range(2):
                at[(st, h)] = len(mf)
                for mt in range(4): rd[('x', st, h, mt)] = (XA[h][mt], p, [lambda mt=mt, h=h, p=p: A(f'ds_read_b128 {XA[h][mt]}, {fa[h](p.addr + 2048 * mt)}')])
                for tt in range(5): rd[('w', st, h, tt)] = (WB[h][tt], p, [(lambda tt=tt, h=h, p=p, t2=t2: A(f'ds_read_b64_tr_b16 {WB[h][tt].sub(2*t2, 2)}, {fb[tt](p.addr + (32 * h + 4 * t2) * 320)}')) for t2 in range(2)])
                for tt in range(5):
                    for mt in range(4):
                        mf.append((lambda mt=mt, tt=tt, h=h, c0=(st == 0 and h == 0): A(f'v_mfma_f32_16x16x32_bf16 {acc[mt][tt]}, {XA[h][mt]}, {WB[h][tt]}, {"0" if c0 else acc[mt][tt]}'), [('x', st, h, mt), ('w', st, h, tt)]))
                if st == 8 and h == 0:
                    at['corr'] = len(mf)
                    mf += [(lambda mt=mt, tt=tt: A(f'v_mfma_f32_16x16x32_bf16 {acc[mt][tt]}, {gr[mt]}, {csg[tt]}, {acc[mt][tt]}'), []) for tt in range(5) for mt in range(4)]
        ga = [V.get() for _ in range(4)]
        A(f's_lshl_b32 {s.sT0}, {sWr}, 9'); A(f's_add_u32 {s.sT0}, {s.sT0}, {GX}'); A(f'v_lshl_add_u32 {ga[0]}, {s.vTok}, 3, {s.sT0}')
        A(f's_mul_i32 {s.sT0}, {sWc}, 320'); A(f's_add_u32 {s.sT0}, {s.sT0}, {GW}'); A(f'v_lshl_add_u32 {ga[1]}, {s.vTok}, 3, {s.sT0}')
        A(f'v_lshrrev_b32 {t}, 3, {s.vTok}'); A(f'v_mul_u32_u24 {t}, 320, {t}'); A(f'v_add_u32 {ga[2]}, {t}, {ga[1]}')
        A(f's_lshl_b32 {s.sT0}, {sWr}, 8'); A(f's_add_u32 {s.sT0}, {s.sT0}, {G1}'); A(f'v_and_b32 {ga[3]}, 48, {s.vLane}'); A(f'v_add_u32 {ga[3]}, {s.sT0}, {ga[3]}')
        for g in gr: A(f'v_mov_b32 {g[2]}, 0'); A(f'v_mov_b32 {g[3]}, 0')
        for c_ in csg:
            for e in range(4): A(f'v_mov_b32 {c_[e]}, 0')
        def h_get():
            s.lds_wait(36, 1)
            A('s_mov_b64 exec, 0xffff')
            for tt in range(5): A(f'ds_read_b64 {csg[tt][0:2]}, {ga[2] if tt == 2 else ga[1]} offset:{128 * tt + (320 if tt > 2 else 0)}')
            A('s_mov_b64 exec, -1')
            def f():
                for mt in range(4): A(f'ds_read_b64 {gr[mt][0:2]}, {ga[0]} offset:{128 * mt}')
                s.gr_common(t)
            s.defer(f)
        def h_r1():
            for mt in range(4): A(f'ds_read_b128 {gr[mt]}, {ga[3]} offset:{64 * mt}')
        hooks = {at[(7, 0)] + 10: h_get, at['corr']: s.flush3, at[(9, 1)]: h_r1}
        if 'st1' in s.dbg: s.stbase = 17
        s.flat(mf, rd, s.o['lag16'], 1, hooks=hooks, per=40, n3=2)
        s.stbase = None
        s.stamp(2)
        r1 = gr
        for f in fa + fb: V.put(*f.regs)
        V.put(*csg, *ga)
        eps = V.get(2); epm = V.get(2); l2e = V.get(2); sK = S.get(2)
        A(f'v_mov_b32 {eps[0]}, {hexf(1e-6)}'); A(f'v_mov_b32 {l2e[0]}, {hexf(LOG2E)}')
        A(f'v_and_b32 {t}, 8, {s.vLane}'); A(f'v_cmp_eq_u32 {sK}, 0, {t}'); A(f'v_cndmask_b32 {epm[0]}, 0, {eps[0]}, {sK}')
        pk = [[acc[2 * u][tt] for tt in range(5)] for u in range(2)]
        U = [V.get(2) for _ in range(4)]
        for tt in range(5):
            for u in range(2):
                prs = [(2 * u + m, h) for m in range(2) for h in range(2)]
                y = [acc[mt][tt].sub(2 * h, 2) for mt, h in prs]
                for k, (mt, h) in enumerate(prs):
                    if tt < 3: A(f'v_pk_fma_f32 {y[k]}, {y[k]}, {r1[mt].sub(2*h, 2)}, {eps if tt < 2 else epm} op_sel_hi:[1,1,0]')
                    else: A(f'v_pk_mul_f32 {y[k]}, {y[k]}, {r1[mt].sub(2*h, 2)}')
                if tt < 3:
                    for k in range(4): A(f'v_pk_mul_f32 {U[k]}, {y[k]}, {l2e} op_sel_hi:[1,0]')
                    for k in range(4): A(f'v_exp_f32_e64 {U[k][0]}, {U[k][0]} clamp'); A(f'v_exp_f32_e64 {U[k][1]}, {U[k][1]} clamp')
                    if tt < 2:
                        for k in range(4): A(f'v_max_f32 {y[k][0]}, {eps[0]}, {y[k][0]}'); A(f'v_max_f32 {y[k][1]}, {eps[0]}, {y[k][1]}')
                        for k in range(4): A(f'v_pk_add_f32 {y[k]}, {y[k]}, {U[k]}')
                    else:
                        for k in range(4):
                            for e in range(2):
                                A(f'v_max_f32 {t}, {eps[0]}, {y[k][e]}'); A(f'v_add_f32 {t}, {t}, {U[k][e]}'); A(f'v_cndmask_b32 {y[k][e]}, {y[k][e]}, {t}, {sK}')
                for k in range(4): A(f'v_cvt_pk_bf16_f32 {pk[u][tt][k]}, {y[k][0]}, {y[k][1]}')
        V.put(*U, eps, epm, l2e, *r1, *acc[1], *acc[3])
        ones = V.get(4); ad = V.get(); tw = V.get()
        for i in range(4): A(f'v_mov_b32 {ones[i]}, 0x3f803f80')
        pairs = [(0, 2), (0, 3), (1, 2), (1, 3), (1, 4), (2, 3), (2, 4)]
        kv = [V.get(4) for _ in pairs]; zz = [V.get(4) for _ in range(3)]
        RED = 124 * KB
        for u in range(2):
            for dt in range(3): A(f'v_mfma_f32_16x16x32_bf16 {zz[dt]}, {ones}, {pk[u][dt]}, {"0" if u == 0 else zz[dt]}')
            for k, (dt, et) in enumerate(pairs): A(f'v_mfma_f32_16x16x32_bf16 {kv[k]}, {pk[u][et]}, {pk[u][dt]}, {"0" if u == 0 else kv[k]}')
            if u == 0:
                A(f's_lshl_b32 {s.sT0}, {sWc}, 13'); A(f's_add_u32 {s.sT0}, {s.sT0}, {RED}'); A(f'v_add_u32 {ad}, {s.sT0}, {s.vL16}')
                A(f's_lshl_b32 {s.sT0}, {sWc}, 2'); A(f'v_add_u32 {t}, {s.sT0}, {s.vCtl}'); A(f'v_lshrrev_b32 {tw}, 10, {s.vL0}'); A(f'v_add_u32 {tw}, {tw}, {t}')
        V.put(*acc[0], *acc[2])
        A(f'v_mov_b32 {zz[0][1]}, {zz[1][0]}'); A(f'v_mov_b32 {zz[0][2]}, {zz[2][0]}')
        red = [zz[0]] + kv
        L1 = s.lab(); L2 = s.lab(); L3 = s.lab(); L4 = s.lab(); L5 = s.lab()
        q4 = V.get(4)
        A('s_nop 7')
        A(f's_cmp_eq_u32 {sWr}, 0'); A(f's_cbranch_scc1 {L1}')
        s.prog_wait(q4, 10)
        for k, r in enumerate(red): A(f'ds_write_b128 {ad}, {r} offset:{1024 * k}')
        A(f'ds_write_b32 {tw}, {ones[0]} offset:48')
        A('s_waitcnt lgkmcnt(0)')
        A(f's_branch {L2}')
        A(f'{L1}:'); A(f'ds_read_b32 {q4[0]}, {t} offset:48'); s.tick_spin(L3); A(f'v_cmp_eq_u32 vcc, 0, {q4[0]}'); A(f's_cbranch_vccnz {L1}')
        A(f'{L3}:')
        tmp = [V.get(4) for _ in red]
        for k, r in enumerate(red): A(f'ds_read_b128 {tmp[k]}, {ad} offset:{1024 * k}')
        for k, r in enumerate(red):
            for h in range(2): A(f'v_pk_add_f32 {r.sub(2*h, 2)}, {r.sub(2*h, 2)}, {tmp[k].sub(2*h, 2)}')
            kk = (k + 7) % 8
            A(f'buffer_store_dwordx4 {r}, {s.vL16}, {sWS}, {sKV[kk // 4]} offen offset:{1024 * (kk % 4)} sc1')
        A(f'{L2}:')
        s.stamp(3)
        s.end_variant()

    def cs_loads(s, NT, so):
        cg = [s.V.get(4) for _ in range(NT)]
        return [f'buffer_load_dwordx2 {cg[J].sub(2*e, 2)}, {s.vCsA}, {sWS}, {so[e]} offen offset:{256 * J} sc1' for J in range(NT) for e in range(2)], cg
    def cs_build(s, cg):
        for c in cg: s.A(f'v_add_f32 {c[0]}, {c[0]}, {c[2]}'); s.split_w(c, c[0])
    def epi32(s, kind, acc, k0, k1, k2, addr, mid=None, hold=None):
        A = s.A; V = s.V
        T = [V.get(2) for _ in range(4)]; P = [V.get(4) for _ in range(2)]
        for J in range(len(acc)):
            vo, so, imm = addr[J]
            for hf in range(2):
                y = [acc[J].sub(8 * hf + 2 * k, 2) for k in range(4)]
                if kind == 'gelu':
                    for k in range(4): A(f'v_pk_mul_f32 {T[k]}, {y[k]}, {y[k]}')
                    for k in range(4): A(f'v_pk_fma_f32 {T[k]}, {T[k]}, {k1}, {k0} op_sel_hi:[1,0,0]')
                    for k in range(4): A(f'v_pk_mul_f32 {T[k]}, {T[k]}, {y[k]}')
                    for k in range(4): A(f'v_exp_f32 {T[k][0]}, {T[k][0]}'); A(f'v_exp_f32 {T[k][1]}, {T[k][1]}')
                    for k in range(4): A(f'v_pk_fma_f32 {T[k]}, {T[k]}, {k2[J]}, {k2[J]} op_sel_hi:[1,0,0]')
                    for k in range(4): A(f'v_rcp_f32 {T[k][0]}, {T[k][0]}'); A(f'v_rcp_f32 {T[k][1]}, {T[k][1]}')
                    for k in range(4): A(f'v_pk_mul_f32 {y[k]}, {y[k]}, {T[k]}')
                else:
                    for k in range(4): A(f'v_pk_mul_f32 {T[k]}, {y[k]}, {k1} op_sel_hi:[1,0]')
                    for k in range(4): A(f'v_pk_fma_f32 {y[k]}, {y[k]}, {k0}, {k2} op_sel_hi:[1,0,0]')
                    for k in range(4): A(f'v_exp_f32_e64 {T[k][0]}, {T[k][0]} clamp'); A(f'v_exp_f32_e64 {T[k][1]}, {T[k][1]} clamp')
                    for k in range(4): A(f'v_max_f32 {y[k][0]}, {k2[0]}, {y[k][0]}'); A(f'v_max_f32 {y[k][1]}, {k2[0]}, {y[k][1]}')
                    for k in range(4): A(f'v_pk_add_f32 {y[k]}, {y[k]}, {T[k]}')
                p = P[hf] if hold is None else acc[J].sub(8 * hf, 4)
                for k in ((0, 2, 1, 3) if hold is None else (0, 1, 2, 3)): A(f'v_cvt_pk_bf16_f32 {p[k]}, {y[k][0]}, {y[k][1]}')
                if mid: mid(2 * J + hf)
                A(f'v_permlane32_swap_b32 {p[0]}, {p[2]}'); A(f'v_permlane32_swap_b32 {p[1]}, {p[3]}')
                txt = f'buffer_store_dwordx4 {p}, {vo}, {sWS}, {so} offen offset:{imm + 512 * hf} sc1'
                if hold is None: last = A(txt)
                else: hold.append(txt); last = None
        V.put(*T, *P)
        return last
    def gelu_k(s, k0, k1, a):
        A = s.A
        A(f'v_mul_f32 {k0[0]}, {hexf(GC0)}, {a}'); A(f'v_mul_f32 {k1[0]}, {a}, {a}'); A(f'v_mul_f32 {k1[0]}, {k1[0]}, {a}'); A(f'v_mul_f32 {k1[0]}, {hexf(GC1)}, {k1[0]}')

    def t23(s, typ):
        A = s.A; V = s.V; S = s.S; AG = s.AG; stages = s.st
        G1, G2 = ([0, 1, 2], [3, 4]) if typ == 'A' else ([3, 4], [0, 1, 2])
        if typ == 'A': A('L_TA:')
        s.begin_variant()
        sA = S.get(); sWr = S.get(); sWc = S.get()
        A(f's_lshl1_add_u32 {sA}, {s.sXc}, {s.sCl}'); A(f's_sub_u32 {sA}, {sA}, {4 if typ == "A" else 6}')
        A(f's_lshr_b32 {sWr}, {s.sW}, 1'); A(f's_and_b32 {sWc}, {s.sW}, 1')
        q = V.get(); t = V.get(); a0 = V.get(); a1 = V.get()
        A(f'v_lshrrev_b32 {t}, 1, {s.vTok}'); A(f'v_lshrrev_b32 {q}, 4, {s.vLane}'); A(f'v_xor_b32 {t}, {t}, {q}')
        A(f's_lshl_b32 {s.sT0}, {sWr}, 6'); A(f'v_add_u32 {a0}, {s.sT0}, {s.vTok}'); A(f'v_lshlrev_b32 {a0}, 7, {a0}'); A(f'v_lshl_add_u32 {a0}, {t}, 4, {a0}')
        A(f'v_xor_b32 {a1}, 64, {a0}')
        fa = [s.dsaddr(a0, (0, 1)), s.dsaddr(a1, (0, 1))]
        fb = []; row = V.get(); r96 = V.get(); r64 = V.get(); x96 = V.get(); x64 = V.get()
        A(f'v_lshlrev_b32 {row}, 3, {q}'); A(f'v_bfe_u32 {t}, {s.vLane}, 2, 2'); A(f'v_add_u32 {row}, {row}, {t}')
        A(f'v_and_b32 {t}, 3, {s.vLane}'); A(f'v_lshlrev_b32 {t}, 3, {t}')
        A(f'v_mul_u32_u24 {r96}, 192, {row}'); A(f'v_add_u32 {r96}, {r96}, {t}'); A(f'v_add_u32 {r96}, {16 * KB}, {r96}')
        A(f'v_lshl_add_u32 {r64}, {row}, 7, {t}'); A(f'v_add_u32 {r64}, {28 * KB}, {r64}')
        A(f'v_and_b32 {x96}, 1, {q}'); A(f'v_bfe_u32 {x64}, {s.vLane}, 3, 2')
        for tt in range(5):
            b = V.get()
            if tt < 3: A(f's_mul_i32 {s.sT0}, {sWc}, 3'); A(f's_add_u32 {s.sT0}, {s.sT0}, {tt}')
            else: A(f's_lshl_b32 {s.sT0}, {sWc}, 1'); A(f's_add_u32 {s.sT0}, {s.sT0}, {tt - 3}')
            A(f'v_xor_b32 {b}, {s.sT0}, {x96 if tt < 3 else x64}'); A(f'v_lshl_add_u32 {b}, {b}, 5, {r96 if tt < 3 else r64}')
            fb.append(s.dsaddr(b, (0, 1)))
        V.put(row, r96, r64, x96, x64)
        vo = V.get(); so = [[S.get(), S.get()], [S.get(), S.get()]]
        A(f's_lshl1_add_u32 {s.sT0}, {s.sRb}, {sWr}'); A(f's_lshl_b32 {s.sFlag}, {s.sT0}, 7'); A(f's_mul_i32 {s.sT0}, {s.sT0}, 81920')
        A(f'v_and_b32 {t}, 1, {q}'); A(f'v_mul_u32_u24 {vo}, 20480, {t}'); A(f'v_lshrrev_b32 {t}, 1, {q}'); A(f'v_lshl_add_u32 {vo}, {t}, 8, {vo}'); A(f'v_lshl_add_u32 {vo}, {s.vTok}, 4, {vo}'); A(f'v_add_u32 {vo}, {s.sT0}, {vo}')
        A(f's_lshl1_add_u32 {s.sT0}, {sA}, {sWc}')
        A(f's_add_u32 {s.sFlag}, {s.sFlag}, {F1}'); A(f's_add_u32 {s.sT1}, {s.sT0}, {0 if typ == "A" else 8}'); s.mkbit(s.sT1)
        A(f's_mul_i32 {so[0][0]}, {s.sT0}, {48 * 32}'); A(f's_add_u32 {so[0][0]}, {so[0][0]}, {HS if typ == "A" else PQ}')
        A(f's_lshl_b32 {so[1][0]}, {s.sT0}, 10'); A(f's_add_u32 {so[1][0]}, {so[1][0]}, {(PQ if typ == "A" else HS) + 384 * 32}')
        for k in range(2): A(f's_add_u32 {so[k][1]}, {so[k][0]}, 40960')
        V.put(q)
        s.nonce()
        s.stamp(1)
        acc = [[V.get(4) for _ in range(5)] for _ in range(4)]
        XA = [[AG.get(4) for _ in range(4)] for _ in range(2)]; WB = [[AG.get(4) for _ in range(5)] for _ in range(2)]
        gr = [V.get(4) for _ in range(4)]; csg = [V.get(4) for _ in range(5)]
        mf = []; rd = {}; at = {}; late = []
        def mk(st, h, tt, mt): return (lambda: A(f'v_mfma_f32_16x16x32_bf16 {acc[mt][tt]}, {WB[h][tt]}, {XA[h][mt]}, {"0" if st == 0 and h == 0 else acc[mt][tt]}'))
        for st in range(10):
            p = stages[st]
            for h in range(2):
                at[(st, h)] = len(mf)
                for mt in range(4): rd[('x', st, h, mt)] = (XA[h][mt], p, [lambda mt=mt, h=h, p=p: A(f'ds_read_b128 {XA[h][mt]}, {fa[h](p.addr + 2048 * mt)}')])
                for tt in range(5): rd[('w', st, h, tt)] = (WB[h][tt], p, [(lambda tt=tt, h=h, p=p, t2=t2: A(f'ds_read_b64_tr_b16 {WB[h][tt].sub(2*t2, 2)}, {fb[tt](p.addr + (32 * h + 4 * t2) * (192 if tt < 3 else 128))}')) for t2 in range(2)])
                for tt in (G1 + G2 if st < 9 else G1):
                    for mt in range(4): mf.append((mk(st, h, tt, mt), [('x', st, h, mt), ('w', st, h, tt)]))
                if st == 8 and h == 0:
                    at['corr'] = len(mf)
                    mf += [(lambda mt=mt, tt=tt: A(f'v_mfma_f32_16x16x32_bf16 {acc[mt][tt]}, {csg[tt]}, {gr[mt]}, {acc[mt][tt]}'), []) for tt in range(5) for mt in range(4)]
        for h in range(2):
            for tt in G2:
                mf.append((lambda: None, [('w', 9, h, tt)])); late += [mk(9, h, tt, mt) for mt in range(4)]
        ga = [V.get() for _ in range(4)]
        A(f's_lshl_b32 {s.sT0}, {sWr}, 9'); A(f's_add_u32 {s.sT0}, {s.sT0}, {GX}'); A(f'v_lshl_add_u32 {ga[0]}, {s.vTok}, 3, {s.sT0}')
        A(f's_mul_i32 {s.sT0}, {sWc}, 384'); A(f's_add_u32 {s.sT0}, {s.sT0}, {GW}'); A(f'v_lshl_add_u32 {ga[1]}, {s.vTok}, 3, {s.sT0}')
        A(f's_lshl_b32 {s.sT0}, {sWc}, 8'); A(f's_add_u32 {s.sT0}, {s.sT0}, {GW + 768}'); A(f'v_lshl_add_u32 {ga[2]}, {s.vTok}, 3, {s.sT0}')
        A(f's_lshl_b32 {s.sT0}, {sWr}, 10'); A(f's_add_u32 {s.sT0}, {s.sT0}, {GK}'); A(f'v_lshl_add_u32 {ga[3]}, {s.vTok}, 4, {s.sT0}')
        for g in gr: A(f'v_mov_b32 {g[2]}, 0'); A(f'v_mov_b32 {g[3]}, 0')
        for c_ in csg:
            for e in range(4): A(f'v_mov_b32 {c_[e]}, 0')
        def h_get():
            s.lds_wait(36, 1)
            A('s_mov_b64 exec, 0xffff')
            for tt in range(5): A(f'ds_read_b64 {csg[tt][0:2]}, {ga[1] if tt < 3 else ga[2]} offset:{128 * (tt % 3)}')
            A('s_mov_b64 exec, -1')
            def f():
                for mt in range(4): A(f'ds_read_b64 {gr[mt][0:2]}, {ga[0]} offset:{128 * mt}')
                s.gr_common(t)
            s.defer(f)
        def h_k():
            for mt in range(4): A(f'ds_read_b128 {gr[mt]}, {ga[3]} offset:{256 * mt}')
        if 'st1' in s.dbg: s.stbase = 17
        s.flat(mf, rd, s.o['lag16'], 1, hooks={at[(7, 0)] + 10: h_get, at['corr']: s.flush3, at[(9, 0)]: h_k}, per=40, n3=2)
        s.stbase = None
        s.stamp(2)
        for f in fa + fb: V.put(*f.regs)
        V.put(*csg, *ga)
        K = gr; T = [V.get(2) for _ in range(4)]; eps = V.get(2)
        def tile(kind, tt, u):
            prs = [(2 * u + m, h) for m in range(2) for h in range(2)]
            y = [acc[mt][tt].sub(2 * h, 2) for mt, h in prs]; k_ = [K[mt] for mt, h in prs]
            if kind == 'gelu':
                for k in range(4): A(f'v_pk_mul_f32 {T[k]}, {y[k]}, {y[k]}')
                for k in range(4): A(f'v_pk_fma_f32 {T[k]}, {T[k]}, {k_[k][0:2]}, {k_[k][0:2]} op_sel:[0,1,0] op_sel_hi:[1,1,0]')
                for k in range(4): A(f'v_pk_mul_f32 {T[k]}, {T[k]}, {y[k]}')
                for k in range(4): A(f'v_exp_f32 {T[k][0]}, {T[k][0]}'); A(f'v_exp_f32 {T[k][1]}, {T[k][1]}')
                for k in range(4): A(f'v_pk_fma_f32 {T[k]}, {T[k]}, {k_[k][2:4]}, {k_[k][2:4]} op_sel_hi:[1,0,0]')
                for k in range(4): A(f'v_rcp_f32 {T[k][0]}, {T[k][0]}'); A(f'v_rcp_f32 {T[k][1]}, {T[k][1]}')
                for k in range(4): A(f'v_pk_mul_f32 {y[k]}, {y[k]}, {T[k]}')
            else:
                for k in range(4): A(f'v_pk_mul_f32 {T[k]}, {y[k]}, {k_[k][0:2]} op_sel_hi:[1,0]')
                for k in range(4): A(f'v_pk_fma_f32 {y[k]}, {y[k]}, {k_[k][2:4]}, {eps} op_sel:[0,1,0] op_sel_hi:[1,1,0]')
                for k in range(4): A(f'v_exp_f32_e64 {T[k][0]}, {T[k][0]} clamp'); A(f'v_exp_f32_e64 {T[k][1]}, {T[k][1]} clamp')
                for k in range(4): A(f'v_max_f32 {y[k][0]}, {eps[0]}, {y[k][0]}'); A(f'v_max_f32 {y[k][1]}, {eps[0]}, {y[k][1]}')
                for k in range(4): A(f'v_pk_add_f32 {y[k]}, {y[k]}, {T[k]}')
            p = acc[2 * u][tt]
            for k in range(4): A(f'v_cvt_pk_bf16_f32 {p[k]}, {y[k][0]}, {y[k][1]}')
            A(f'v_permlane16_swap_b32 {p[0]}, {p[2]}'); A(f'v_permlane16_swap_b32 {p[1]}, {p[3]}')
            return f'buffer_store_dwordx4 {p}, {vo}, {sWS}, {so[tt // 3][u]} offen offset:{512 * (tt % 3)} sc1'
        for tt in G1:
            for u in range(2): last1 = A(tile('gelu', tt, u))
        s.stamp(3)
        for f in late: f()
        A(f'v_mov_b32 {eps[0]}, {hexf(1e-6)}')
        for mt in range(4): A(f'v_mul_f32 {K[mt][0]}, {hexf(LOG2E)}, {K[mt][3]}')
        hold = []
        for i, (tt, u) in enumerate([(tt, u) for tt in G2 for u in range(2)]):
            hold.append(tile('phi', tt, u))
            if i == s.o['f1i']: s.setflag(last1, s.sFlag); A(f's_add_u32 {s.sFlag}, {s.sFlag}, {FQ - F1}'); s.stamp(4)
        for x in hold: A(x)
        s.stamp(5)
        s.end_variant()

    def common(s):
        A = s.A; V = s.V; S = s.S; AG = s.AG; o = s.o
        A('L_join:'); A.ctl('join'); s.q3 = []; s.known = 10; s.nrel = 11
        b2, b3, b4a, b4b = s.b2, s.b3, s.b4a, s.b4b
        for p in b3[2:4]: p.minrel = 11
        s.pxt.minrel = 10
        if s.stop <= 1:
            s.setflag('prejoin', s.sFlag); return
        NF = o['NF']; XA = [AG.get(4) for _ in range(20)]
        WF = [V.get(4) for _ in range(NF)]
        t = V.get(); u = V.get()
        def rd2(n):
            p = b2[n // 25]; c = p.addr + (n % 25) * 1024
            s.full(p if p is not b2[1] else b2[3])
            A(f'ds_read_b128 {WF[n % NF]}, {s.vL1 if c >> 16 else s.vL16} offset:{c & 0xffff}')
            if n == o['r2a']: s.release([b2[0], b2[1], s.pxt])
            if n == o['r2b']: s.release([b2[2]])
            if n == 99: s.release([b2[3]])
        acc = [V.get(4) for _ in range(5)]; resid = [V.get(4) for _ in range(5)]; gr = s.gr2
        A(f'v_mul_u32_u24 {t}, 160, {s.vTok}'); A(f'v_lshrrev_b32 {u}, 4, {s.vLane}'); A(f'v_lshl_add_u32 {t}, {u}, 3, {t}')
        A(f's_mul_i32 {s.sT0}, {s.sW}, 2560'); A(f's_add_u32 {s.sT0}, {s.sT0}, {XT}'); A(f'v_add_u32 {t}, {s.sT0}, {t}')
        sH = [S.get(), S.get()]
        A(f's_mov_b32 {sH[0]}, {HS}'); A(f's_mov_b32 {sH[1]}, {HS + 4096}')
        def lda2(i): A(f'buffer_load_dwordx4 {XA[i]}, {s.vA2[i // 5]}, {sWS}, {sH[i % 5 // 4]} offen offset:{1024 * (i % 5 % 4)} sc1')
        s.setflag('prejoin', s.sFlag)
        if o['fke']:
            if o['fke'] == 3:
                s.lds_wait(72, 1, sl=1)
            else: s.spoll([(x, 0xffff) for x in s.sP1], sl=o['f1s'])
            s.stamp(6)
            for i in range(o['LA2']): lda2(i)
        s.full(s.pxt)
        for nt in range(5): A(f'ds_read_b64 {acc[nt][2:4]}, {t} offset:{32 * nt}')
        vSt = [V.get() for _ in range(3)]; va, va2, vs = vSt; sF2 = S.get()
        def xn():
            A(f's_mul_i32 {s.sT0}, {s.sTw}, 40960'); A(f's_mul_i32 {s.sT1}, {s.sJ2}, 5120'); A(f's_add_u32 {s.sT0}, {s.sT0}, {s.sT1}')
            A(f's_and_b32 {s.sT1}, {s.sW}, 1'); A(f's_lshl_b32 {s.sT1}, {s.sT1}, 8'); A(f's_add_u32 {s.sT0}, {s.sT0}, {s.sT1}'); A(f's_add_u32 {s.sT0}, {s.sT0}, {X1}')
            A(f'v_lshl_add_u32 {va}, {s.vTok}, 4, {s.sT0}'); A(f'v_and_b32 {u}, 32, {s.vLane}'); A(f'v_lshl_add_u32 {va}, {u}, 4, {va}')
            A(f'v_and_b32 {u}, 16, {s.vLane}'); A(f'v_lshl_add_u32 {va2}, {u}, 26, {va}'); A(f'v_add_u32 {va2}, 4096, {va2}'); A(f'v_lshl_add_u32 {va}, {u}, 6, {va}')
            A(f's_lshl3_add_u32 {s.sT0}, {s.sTw}, {s.sJ2}'); A(f's_lshl_b32 {s.sT0}, {s.sT0}, 9'); A(f's_add_u32 {s.sT0}, {s.sT0}, {s.sT1}'); A(f's_add_u32 {s.sT0}, {s.sT0}, {S2}')
            A(f'v_lshl_add_u32 {vs}, {s.vTok}, 4, {s.sT0}'); A(f'v_and_b32 {u}, 48, {s.vLane}'); A(f'v_lshl_add_u32 {vs}, {u}, 25, {vs}')
            for nt in range(5):
                for h in range(2):
                    x = resid[nt].sub(2 * h, 2); y = acc[nt].sub(2 * h, 2); src = acc[nt][2 + h]
                    A(f'v_lshlrev_b32 {x[0]}, 16, {src}'); A(f'v_and_b32 {x[1]}, 0xffff0000, {src}')
                    A(f'v_pk_fma_f32 {y}, {x}, {gr[0:2]}, {gr[0:2]} op_sel:[0,0,1] op_sel_hi:[1,0,1] neg_lo:[0,0,1] neg_hi:[0,0,1]')
                    A(f'v_cvt_pk_bf16_f32 {y[1]}, {y[0]}, {y[1]}')
                    A(f'v_lshlrev_b32 {y[0]}, 16, {y[1]}'); A(f'v_and_b32 {y[1]}, 0xffff0000, {y[1]}')
        s.defer(xn)
        for n in range(NF):
            rd2(n)
            for k in range(3):
                if s.q3: s.q3.pop(0)()
        s.flush3()
        A(f's_and_b32 {s.sT1}, {s.sW}, 1'); A(f's_lshl3_add_u32 {s.sT1}, {s.sT1}, {s.sJ2}'); A(f's_lshl_b32 {s.sT0}, {s.sTw}, 7'); A(f's_add_u32 {sF2}, {s.sT0}, {F2}'); s.mkbit(s.sT1)
        if not o['fke']:
            s.stamp(6)
            s.spoll([(x, 0xffff) for x in s.sP1], sl=o['f1s'])
            for i in range(o['LA2']): lda2(i)
        s.stamp(7)
        nr = NF; nl = o['LA2']
        for n in range(100):
            u_, nt = divmod(n, 5)
            A(f'v_mfma_f32_16x16x32_bf16 {acc[nt]}, {WF[n % NF]}, {XA[u_]}, {acc[nt]}')
            if nr < 100: rd2(nr); nr += 1
            if nt % 3 == 1 and nl < 20: lda2(nl); nl += 1
        s.stamp(8)
        V.put(*WF, *s.vA2); AG.put(*XA); S.put(*sH, *s.sP1)
        pk = [V.get(4) for _ in range(3)]; sm4 = V.get(4); sm = sm4[0:2]; T = V.get(2); one = V.get()
        A(f'v_mov_b32 {pk[2][2]}, 0'); A(f'v_mov_b32 {pk[2][3]}, 0'); A(f'v_mov_b32 {sm[0]}, 0'); A(f'v_mov_b32 {sm[1]}, 0'); A(f'v_mov_b32 {one}, 0x3f803f80')
        for nt in range(5):
            for h in range(2): A(f'v_cvt_pk_bf16_f32 {pk[nt // 2][2 * (nt & 1) + h]}, {acc[nt][2*h]}, {acc[nt][2*h+1]}')
        for k in range(3):
            A(f'v_permlane16_swap_b32 {pk[k][0]}, {pk[k][2]}'); A(f'v_permlane16_swap_b32 {pk[k][1]}, {pk[k][3]}')
            last = A(f'buffer_store_dwordx4 {pk[k]}, {va if k < 2 else va2}, {sWS}, 0 offen offset:{2048 * (k & 1)} sc1')
        for k in range(3):
            for i in range(4): A(f'v_dot2c_f32_bf16 {sm[0]}, {pk[k][i]}, {one}'); A(f'v_dot2c_f32_bf16 {sm[1]}, {pk[k][i]}, {pk[k][i]}')
        for swp in ('16', '32'):
            A(f'v_mov_b32 {T[0]}, {sm[0]}'); A(f'v_mov_b32 {T[1]}, {sm[1]}')
            A(f'v_permlane{swp}_swap_b32 {sm[0]}, {T[0]}'); A(f'v_permlane{swp}_swap_b32 {sm[1]}, {T[1]}')
            A(f'v_pk_add_f32 {sm}, {sm}, {T}')
        A(f'v_mov_b32 {sm4[2]}, {s.sN}'); A(f'v_mov_b32 {sm4[3]}, {s.sN}')
        A(f'buffer_store_dwordx4 {sm4}, {vs}, {sWS}, 0 offen sc1')
        if s.stop <= 3:
            s.setflag(last, sF2); return
        cg = [V.get(4) for _ in range(3)]
        A(f'v_cmp_gt_u32 vcc, 32, {s.vLane}')
        for J in range(3):
            A(f'v_mov_b32 {cg[J][2]}, 0'); A(f'v_mov_b32 {cg[J][3]}, 0')
            for e in range(2): A(f'v_cndmask_b32 {cg[J][e]}, 0, {s.cg3[J][e]}, vcc')
        V.put(*s.cg3)
        for nt in range(5):
            for h in range(2): A(f'v_pk_add_f32 {resid[nt].sub(2*h, 2)}, {resid[nt].sub(2*h, 2)}, {acc[nt].sub(2*h, 2)}')
        vst = V.get(); vo = V.get(); vA3 = V.get(); so = S.get(); sA3 = S.get()
        A(f'v_and_b32 {t}, 31, {s.vLane}'); s.f16_voff(vo, t, 48)
        A(f's_lshl_b32 {s.sT0}, {s.sTw3}, 12'); A(f's_add_u32 {s.sT0}, {s.sT0}, {S2}')
        A(f'v_lshl_add_u32 {t}, {t}, 4, {s.sT0}'); A(f'v_and_b32 {u}, 32, {s.vLane}'); A(f'v_lshl_add_u32 {vst}, {u}, 6, {t}')
        A(f's_mul_i32 {so}, {s.sTw3}, {2 * 48 * 1024}'); A(f's_mul_i32 {s.sT0}, {s.sCb3}, 3072'); A(f's_add_u32 {so}, {so}, {s.sT0}'); A(f's_add_u32 {so}, {so}, {H3}')
        A(f's_mul_i32 {s.sT0}, {s.sTw3}, 40960'); A(f'v_add_u32 {vA3}, {s.sT0}, {s.vL16}')
        s.rot2(s.sT0); A(f's_mul_i32 {sA3}, {s.sT0}, 4096'); A(f's_add_u32 {sA3}, {sA3}, {X1}')
        s.setflag(last, sF2)
        s.stamp(9)
        V.put(*acc, *pk, sm4, T, *vSt, s.gr2, one, *s.hold); s.hold = []; S.put(sF2)
        s.stamp(10)
        LA3 = o['LA3']; NX = LA3 + 1; NB = 20 - NX
        XF = [AG.get(4) for _ in range(NX)]; WB = [AG.get(4) for _ in range(NB)]; st2 = [V.get(4) for _ in range(4)]
        def ldx3(i):
            if i >= 40: return
            A(f'buffer_load_dwordx4 {XF[i % NX]}, {vA3}, {sWS}, {sA3} offen offset:{1024 * (i % 4)} sc1')
            if i % 4 == 3: s.wrapadd(sA3, 4096, X1 + 40960, X1)
        def start3():
            A(f's_lshl_b32 {s.sT1}, {s.sTw3}, 7'); A(f's_add_u32 {s.sT1}, {s.sT1}, {F2}')
            s.spoll([(s.sT1, 0xffff)], sl=o['psl'])
            s.fixat(2)
            s.stamp(11)
            for i in range(LA3): ldx3(i)
        s2txt = [f'buffer_load_dwordx4 {st2[k]}, {vst}, {sWS}, 0 offen offset:{512 * k} sc1' for k in range(4)]
        def lds2():
            for x in s2txt: A(x)
        sA4 = S.get(); vA4 = [[V.get() for _ in range(2)] for _ in range(2)];
        acc = [V.get(16) for _ in range(3)]; xq = V.get(4); k0 = V.get(2); k1 = V.get(2); ia = V.get(2)
        rL4 = [V.get() for _ in range(3)]; rL8 = [V.get() for _ in range(3)]; H = {}
        def su():
            A(f's_and_b32 {s.sT1}, {s.sW}, 1'); A(f's_mul_i32 {s.sT2}, {s.sT1}, 10240'); A(f'v_add_u32 {rL4[0]}, {s.sT2}, {s.vL16}')
            H['fl'] = s.dsaddr(rL4[0], regs=rL4[1:])
            A(f'v_lshl_add_u32 {rL8[0]}, {s.vLane}, 3, {s.sT2}'); H['f8'] = s.dsaddr(rL8[0], regs=rL8[1:])
            A(f's_lshl_b32 {s.sT1}, {s.sT1}, 11')
            for k, nkb in enumerate((20, 48)):
                for m in range(2):
                    A(f's_xor_b32 {s.sT2}, {s.sTT}, {m}'); A(f's_mul_i32 {s.sT2}, {s.sT2}, {nkb * 1024}'); A(f's_add_u32 {s.sT2}, {s.sT2}, {s.sT1}'); A(f'v_add_u32 {vA4[k][m]}, {s.sT2}, {s.vL16}')
            s.rot4(s.sT1); A(f's_lshl_b32 {sA4}, {s.sT1}, 12'); A(f's_add_u32 {sA4}, {sA4}, {PP}')
            A(f's_lshl_b32 {s.sT2}, {s.sTw3}, 7'); A(f's_add_u32 {s.sFlag}, {s.sT2}, {F3}'); s.mkbit(s.sCb3)
        def ln():
            a = st2[0]
            for k in range(1, 4):
                for e in range(2): A(f'v_add_f32 {a[e]}, {a[e]}, {st2[k][e]}')
            for e in range(2): A(f'v_mov_b32 {a[e+2]}, {a[e]}')
            for e in range(2): A(f'v_permlane32_swap_b32 {a[e]}, {a[e+2]}')
            for e in range(2): A(f'v_add_f32 {a[e]}, {a[e]}, {a[e+2]}')
            for e in range(2): A(f'v_mul_f32 {a[e]}, {hexf(1.0/640)}, {a[e]}')
            A(f'v_fma_f32 {a[1]}, -{a[0]}, {a[0]}, {a[1]}'); A(f'v_max_f32 {a[1]}, 0, {a[1]}')
            s.rstd(ia[0], a[1]); A(f'v_rcp_f32 {a[2]}, {ia[0]}')
            s.split_x(xq, a[0]); s.gelu_k(k0, k1, a[2])
        NA = 10
        order = [XF[(40 + i) % NX] for i in range(NX)] + WB
        XA = [[order[2 * n], order[2 * n + 1]] for n in range(NA)]
        def lda4(n, k):
            lim, base, span = ((10, PP, 20480), (24, H3, 49152))[k]
            if n >= lim: return []
            ops = [(lambda m=m: A(f'buffer_load_dwordx4 {XA[n % NA][m]}, {vA4[k][m]}, {sWS}, {sA4} offen offset:{1024 * (n % 2)} sc1')) for m in range(2)]
            if n % 2 == 1: ops.append(lambda: s.wrapadd(sA4, 4096, base + span, base))
            return ops
        A4e = LA3 // 2
        mf = []; rd = {}
        for n in range(40):
            st, ks = divmod(n, 4); p = b3[st]
            for J in range(3):
                w = WB[(n * 3 + J) % NB]
                rd[('w', n, J)] = (w, p, [(lambda ks=ks, J=J, t2=t2, w=w, p=p: A(f'ds_read_b64_tr_b16 {w.sub(2*t2, 2)}, {s.fw3[J](p.addr + (16 * ks + 4 * t2) * 192)}')) for t2 in range(2)])
                def m(J=J, n=n, w=w):
                    A(f'v_mfma_f32_32x32x16_bf16 {acc[J]}, {w}, {XF[n % NX]}, {"0" if n == 0 else acc[J]}')
                    if J == 0:
                        ldx3(n + LA3)
                        i = n + LA3 - 40
                        if 0 <= i < 2 * A4e and s.stop > 4:
                            ops = lda4(i // 2, 0)
                            for f in (ops[:1] if i % 2 == 0 else ops[1:]): f()
                mf.append((m, [('w', n, J)]))
            if n == 36: ic = len(mf); mf += [(lambda J=J: A(f'v_mfma_f32_32x32x16_bf16 {acc[J]}, {cg[J]}, {xq}, {acc[J]}'), []) for J in range(3)]
        g3 = {b3[0]: b3[3], b3[4]: b3[6], b3[7]: b3[9]}
        if 'st3' in s.dbg: s.stbase = 17
        su()
        def chk_s2(): s.checked(s2txt, [x[2] for x in st2], sl=4); s.defer(ln)
        def chk_p():
            if s.stop > 4: s.lds_wait(36, 2)
        fp = 3 * (40 - LA3)
        s.flat(mf, rd, o['lag32'], 3, group=lambda p: g3.get(p, p), relmap={b3[1]: b3[0:2], b3[3]: b3[2:4], b3[5]: b3[4:6], b3[7]: b3[6:8], b3[8]: [b3[8]], b3[9]: [b3[9]]},
               after_first=start3, hooks={24: lambda: s.defer(lds2), 66: chk_s2, fp: chk_p, ic: s.flush3}, n3=4, per=12)
        s.stbase = None
        s.stamp(12)
        V.put(*s.rW3, vA3, vst, *st2, *cg, xq, *s.hold); S.put(sA3); s.hold = []
        last = s.epi32('gelu', acc, k0, k1, [ia] * 3, [(vo, so, 1024 * J) for J in range(3)])
        s.release([]); s.f3rel = s.nrel
        s.stamp(13)
        sF3 = s.sFlag
        V.put(*acc, k0, k1, ia)
        if s.stop <= 4:
            s.setflag(last, sF3); return
        fl = H['fl']
        acc = [resid, [V.get(4) for _ in range(5)]]
        WB = [[V.get(4) for _ in range(5)] for _ in range(3)]
        va = V.get(); va2 = V.get(); vr = [V.get(), V.get()]
        RED = 40 * KB
        def gemm4(k, panels, LA, hooks, group, relmap, af=None):
            mf = []; rd = {}; coarse = {}; N = 2 * len(panels)
            def mk(n, nt, m):
                W = WB[n % 3]; X = XA[n % NA]
                def f():
                    A(f'v_mfma_f32_16x16x32_bf16 {acc[m][nt]}, {W[nt]}, {X[m]}, {"0" if k == 0 and n == 0 and m == 1 else acc[m][nt]}')
                    if LA and m == 0 and nt % 2 == 0:
                        ops = lda4(n + LA, k)
                        if nt // 2 < len(ops): ops[nt // 2]()
                    if k == 1 and m == 0 and n >= N - 2:
                        i = 5 * (n - N + 2) + nt
                        if i % 2 == 1: A(f'ds_write_b128 {vr[0]}, {acc[1][i // 2]} offset:{1024 * (i // 2)}')
                return (f, [(n, nt)])
            for n in range(N):
                p = panels[n // 2]; h = n % 2; W = WB[n % 3]
                for nt in range(5):
                    if k: rd[(n, nt)] = (W[nt], p, [lambda nt=nt, W=W, p=p, h=h: A(f'ds_read_b128 {W[nt]}, {fl(p.addr + (5 * h + nt) * 1024)}')])
                    else: rd[(n, nt)] = (W[nt], p, [(lambda nt=nt, W=W, p=p, h=h, e=e: A(f'ds_read_b64 {W[nt].sub(2 * e, 2)}, {H["f8"](p.addr + (5 * h + nt) * 1024 + 512 * e)}')) for e in range(2)])
                if k == 1 and n >= N - 2: continue
                if k: coarse[len(mf)] = W + XA[n % NA]
                else: coarse[len(mf)] = W[:2] + XA[n % NA]; coarse[len(mf) + 4] = W[2:]
                mf += [mk(n, nt, m) for nt in range(5) for m in range(2)]
            if k == 1: mf += [mk(n, nt, m) for m in (1, 0) for n in (N - 2, N - 1) for nt in range(5)]
            s.flat(mf, rd, 19 if k else 15, 1, group=group, relmap=relmap, hooks=hooks, coarse=coarse, per=20, after_first=af)
        def flag3(): s.setflag(last, sF3); s.slowpre = None; s.stamp(28)
        def addr4():
            A(f's_mul_i32 {s.sT0}, {s.sW}, 5120'); A(f's_add_u32 {s.sT0}, {s.sT0}, {RED}'); A(f'v_add_u32 {vr[0]}, {s.sT0}, {s.vL16}')
            A(f's_xor_b32 {s.sT0}, {s.sW}, 1'); A(f's_mul_i32 {s.sT0}, {s.sT0}, 5120'); A(f's_add_u32 {s.sT0}, {s.sT0}, {RED}'); A(f'v_add_u32 {vr[1]}, {s.sT0}, {s.vL16}')
            A(f's_mul_i32 {s.sT0}, {s.sTT}, 20480'); A(f's_add_u32 {s.sT0}, {s.sT0}, {s.sJ160}')
            if not o['oc']:
                A(f'v_mul_u32_u24 {va}, 1280, {s.vTok}'); A(f'v_lshrrev_b32 {t}, 1, {s.vLane}'); A(f'v_and_b32 {t}, 16, {t}'); A(f'v_add3_u32 {va}, {va}, {t}, {s.sT0}')
                A(f'v_and_b32 {t}, 16, {s.vLane}'); A(f'v_lshl_add_u32 {va2}, {t}, 26, {va}'); A(f'v_lshl_add_u32 {va}, {t}, 1, {va}')
            else:
                for k in range(3):
                    A(f'v_add_u32 {t}, {64 * k}, {s.vLane}'); A(f'v_mul_u32_u24 {t}, 6554, {t}'); A(f'v_lshrrev_b32 {t}, 16, {t}'); A(f'v_mul_u32_u24 {t}, 1120, {t}'); A(f'v_add3_u32 {rL8[k]}, {t}, {s.vL16}, {s.sT0}')
                A(f'v_sub_u32 {va}, {vr[1]}, {s.vL16}'); A(f'v_mul_u32_u24 {t}, 160, {s.vTok}'); A(f'v_lshrrev_b32 {u}, 4, {s.vLane}'); A(f'v_lshl_add_u32 {t}, {u}, 3, {t}'); A(f'v_add_u32 {va}, {va}, {t}')
        s.slowpre = lambda: (A('s_waitcnt vmcnt(0)'), A(s.flagtxt(sF3)))
        gemm4(0, b4a, A4e, {min(o['f3d'], 10 * A4e): flag3}, None, None)
        addr4()
        s.rot4(s.sT1); A(f's_mul_i32 {sA4}, {s.sT1}, 12288'); A(f's_add_u32 {sA4}, {sA4}, {H3}')
        s.stamp(14)
        LA4 = o['LA4']
        def start4():
            A(f's_lshl_b32 {s.sT1}, {s.sTw}, 7'); A(f's_add_u32 {s.sT1}, {s.sT1}, {F3}')
            if o['hp3']: s.lds_wait(36, 3)
            else: s.spoll([(s.sT1, 0xffff)], sl=o['psl'])
            s.stamp(15)
            for n in range(LA4):
                for f in lda4(n, 1): f()
        if 'st4' in s.dbg: s.stbase = 17
        g4 = {b4b[2]: b4b[3], b4b[4]: b4b[6]}
        rm = {p: [p] for p in b4b[:6]}
        gemm4(1, b4b, LA4, None, lambda p: g4.get(p, p), rm, start4)
        redrel = b4b[5].rel
        s.stbase = None
        if 'st4' in s.dbg: s.stamp(29)
        b4b[11].minrel = redrel
        A('s_waitcnt lgkmcnt(0)'); A('s_barrier')
        for nt in range(5): A(f'ds_read_b128 {WB[0][nt]}, {vr[1]} offset:{1024 * nt}')
        pk = [V.get(4) for _ in range(3)]
        for nt in range(5):
            for h in range(2):
                y = acc[0][nt].sub(2 * h, 2)
                A(f'v_pk_add_f32 {y}, {y}, {WB[0][nt].sub(2*h, 2)}')
                A(f'v_cvt_pk_bf16_f32 {pk[nt // 2][2 * (nt & 1) + h]}, {y[0]}, {y[1]}')
            osc = ['', 'nt', 'sc1', 'sc0 sc1 nt'][o['ost']]
            if o['oc']: A(f'ds_write_b64 {va}, {pk[nt // 2].sub(2 * (nt & 1), 2)} offset:{32 * nt}')
            elif nt % 2 == 1 or nt == 4:
                k = nt // 2
                A(f'v_permlane16_swap_b32 {pk[k][0]}, {pk[k][2]}'); A(f'v_permlane16_swap_b32 {pk[k][1]}, {pk[k][3]}')
                A(f'buffer_store_dwordx4 {pk[k]}, {va if k < 2 else va2}, {sOUT}, 0 offen offset:{64 * k} {osc}')
        if o['oc']:
            for k in range(3): A(f'ds_read_b128 {WB[1][k]}, {vr[1]} offset:{1024 * k}')
            for k in range(3):
                if k == 2: A('s_mov_b32 exec_hi, 0')
                A(f'buffer_store_dwordx4 {WB[1][k]}, {rL8[k]}, {sOUT}, 0 offen offset:{1024 * k} {osc}')
            A('s_mov_b32 exec_hi, -1')
        A(f'v_or_b32 {t}, s2, v0'); A(f'v_cmp_eq_u32 vcc, 0, {t}'); A(f'v_mov_b32 {u}, {OOB}'); A(f'v_cndmask_b32 {t}, {u}, {t}, vcc')
        A(f'buffer_store_dword {s.vN}, {t}, {sWS}, 0 offen')
        s.fixat(0)

    def finish(s):
        A = s.A
        A('L_fin:')
        if s.stamps:
            t = s.vF[0]; u = s.vCtl
            A('s_waitcnt vmcnt(0) lgkmcnt(0)')
            s.stamp(16); A(f'v_writelane_b32 {s.vStamp}, {s.sEnt[0]}, 27')
            A(f's_getreg_b32 {s.sT0}, hwreg(HW_REG_HW_ID)'); A(f'v_writelane_b32 {s.vStamp}, {s.sT0}, 31')
            A(f's_lshl_b32 {s.sT0}, s2, 3'); A(f's_add_u32 {s.sT0}, {s.sT0}, {s.sW}'); A(f's_lshl_b32 {s.sT0}, {s.sT0}, 7'); A(f's_add_u32 {s.sT0}, {s.sT0}, {STAMP}')
            A(f'v_and_b32 {t}, 31, {s.vLane}'); A(f'v_lshlrev_b32 {t}, 2, {t}'); A(f'v_and_b32 {u}, 32, {s.vLane}'); A(f'v_lshl_add_u32 {t}, {u}, 25, {t}')
            A(f'buffer_store_dword {s.vStamp}, {t}, {sWS}, {s.sT0} offen')
        A('L_end:'); A('s_endpgm')

    def build(s):
        A = s.A
        s.entry(); e = s.snap(); head = A.ins; A.ins = []
        A('L_comp:'); A.ctl('restore', 'entry')
        s.cpro(); c = s.snap()
        for var in ('B', 'A', 'T1'):
            s.rest(c)
            if var == 'T1': s.t1()
            else: s.t23(var)
        s.rest(c)
        s.common()
        s.finish()
        comp = A.ins; A.ins = []
        for p in s.P:
            if p.rel is None: p.rel = 0
        s.rest(e); s.loader(1)
        s.rest(e); s.loader(0)
        s.rest(e); s.job()
        A.ins = head + A.ins + comp
        A('s_waitcnt vmcnt(0) lgkmcnt(0)')
        A.ins += s.cold
        A('s_endpgm'); A('.p2align 8'); A('L_codeend:')
        hdr = open('cdna_kernels/' + NAME + '.s.ref').read().split('; Override launch')[0]
        txt = hdr + '; @launch grid=(256,1,1) block=(512,1,1) lds=163840\n'
        txt += f'.amdgcn_target "amdgcn-amd-amdhsa--gfx950"\n.text\n.globl {NAME}_kernel\n.p2align 8\n.type {NAME}_kernel,@function\n{NAME}_kernel:\n'
        if 'nomfma' in s.dbg: A.ins = [i for i in A.ins if i.cls != 'mfma']
        if 'nob3' in s.dbg: A.ins = [i for i in A.ins if not (i.note == 'dma' and str(sW3) in i.text)]
        if 'nos2' in s.dbg: A.ins = [i for i in A.ins if not (i.op == 'buffer_store_dwordx2')]
        if 'noa' in s.dbg: A.ins = [i for i in A.ins if not (i.op == 'buffer_load_dwordx4' and i.ops[0].startswith('a['))]
        if 'notr' in s.dbg: A.ins = [i for i in A.ins if not (i.op == 'ds_read_b64_tr_b16' and i.ops[0].startswith('a[') and (int(i.ops[0][2:].split(':')[0]) & 2))]
        if 'nords' in s.dbg: A.ins = [i for i in A.ins if not (i.cls == 'ds' and i.ops[0].startswith('a['))]
        if 'nodma' in s.dbg: A.ins = [i for i in A.ins if i.note != 'dma']
        if 'nopf' in s.dbg: A.ins = [i for i in A.ins if not (i.op == 'buffer_load_dword' and i.ops[0] == i.ops[1])]
        txt += A.text()
        txt += f'''.section .rodata,"a"
.p2align 6
.amdhsa_kernel {NAME}_kernel
  .amdhsa_next_free_vgpr 256
  .amdhsa_next_free_sgpr 102
  .amdhsa_accum_offset {NV}
  .amdhsa_group_segment_fixed_size 0
  .amdhsa_kernarg_size 88
  .amdhsa_user_sgpr_count 2
  .amdhsa_user_sgpr_kernarg_segment_ptr 1
  .amdhsa_system_sgpr_workgroup_id_x 1
.end_amdhsa_kernel
'''
        return txt

if __name__ == '__main__':
    import argparse
    ap = argparse.ArgumentParser()
    ap.add_argument('-o', default='cdna_kernels/' + NAME + '.s')
    ap.add_argument('--stop', type=int, default=99)
    ap.add_argument('--stamps', action='store_true')
    ap.add_argument('--dbg', default='')
    a = ap.parse_args()
    opt = {k.split('=')[0]: int(k.split('=')[1]) for k in a.dbg.split(',') if '=' in k}
    g = G(stop=a.stop, stamps=a.stamps, dbg=a.dbg, **opt)
    txt = g.build()
    open(a.o, 'w').write(txt)
    print('written', a.o, 'vgpr top', g.V.top, 'agpr top', g.AG.top, 'sgpr top', g.S.top)
```
